```python
import torch

def _softmax(x, axis=-1):
    return torch.softmax(x, dim=axis)
def _gelu(x):
    return torch.nn.functional.gelu(x, approximate="tanh")
def _silu(x):
    return torch.nn.functional.silu(x)
def _sigmoid(x):
    return torch.sigmoid(x)
def _layernorm(x, axis=-1, eps=1e-5):
    m = x.mean(dim=axis, keepdim=True)
    v = x.var(dim=axis, keepdim=True, unbiased=False)
    return (x - m) / torch.sqrt(v + eps)
def _scatter_add(tgt, idx, src, axis=0):
    return tgt.clone().index_add_(axis, idx, src)
def _segment_sum(src, seg, n):
    out = torch.zeros((n,) + src.shape[1:], dtype=src.dtype)
    return out.index_add_(0, seg, src)
def _pad(x, pw):
    flat = tuple(v for pair in reversed(pw) for v in pair)
    return torch.nn.functional.pad(x, flat)

kernel_name = 'gated_mix__grouped_kv_mqa__moe_arch_mod__prompt'

def setup_inputs():

    _w = (lambda a: (lambda t: t.to(torch.bfloat16) if t.is_floating_point() else t)(torch.as_tensor(a)))
    def _A_setup():
        B, S, D, H = 1, 2048, 640, 32
        Dh = D // H
        return {
            "x": _w((lambda *s: torch.randn(*s, dtype=torch.bfloat16) * 0.05)(B, S, D)),
            "wq": _w((lambda *s: torch.randn(*s, dtype=torch.bfloat16) * 0.8)(D, H * Dh)),
            "wk": _w((lambda *s: torch.randn(*s, dtype=torch.bfloat16) * 0.8)(D, Dh)),
            "wv": _w((lambda *s: torch.randn(*s, dtype=torch.bfloat16) * 0.2)(D, Dh)),
            "wo": _w((lambda *s: torch.randn(*s, dtype=torch.bfloat16) * 0.2)(H * Dh, D)),
        }
    _A_in = _A_setup()

    def _B_setup():
        B, S, D, F, C = 1, 2048, 640, 1536, 1
        return {
            "x": _w((lambda *s: torch.randn(*s, dtype=torch.bfloat16) * 0.05)(B, S, D)),
            "w_r": _w((lambda *s: torch.randn(*s, dtype=torch.bfloat16) * 1.6)(D)),
            "w_gate": _w((lambda *s: torch.randn(*s, dtype=torch.bfloat16) * 0.2)(D, F)),
            "w_up": _w((lambda *s: torch.randn(*s, dtype=torch.bfloat16) * 0.2)(D, F)),
            "w_down": _w((lambda *s: torch.randn(*s, dtype=torch.bfloat16) * 0.2)(F, D)),
        }
    _B_in = _B_setup()

    return {
        "A_x": _A_in["x"],
        "A_wq": _A_in["wq"],
        "A_wk": _A_in["wk"],
        "A_wv": _A_in["wv"],
        "A_wo": _A_in["wo"],
        "B_x": _B_in["x"],
        "B_w_r": _B_in["w_r"],
        "B_w_gate": _B_in["w_gate"],
        "B_w_up": _B_in["w_up"],
        "B_w_down": _B_in["w_down"],
        "gate_w": _w((lambda *s: torch.randn(*s, dtype=torch.bfloat16) * 0.05)(640) * 16.0),
    }

def reference(A_x, A_wq, A_wk, A_wv, A_wo, B_x, B_w_r, B_w_gate, B_w_up, B_w_down, gate_w):
    def _A_ref(x, wq, wk, wv, wo):
        B, S, D = x.shape
        H = 32
        Dh = D // H
        q = (lambda x, *d: x.permute(*d))((x @ wq).reshape(B, S, H, Dh), 0, 2, 1, 3)
        k = x @ wk
        v = x @ wv
        scores = torch.einsum("bhqd,bkd->bhqk", q, k) * (Dh ** -0.5)
        p = _softmax(scores, axis=-1)
        o = torch.einsum("bhqk,bkd->bhqd", p, v)
        return (lambda x, *d: x.permute(*d))(o, 0, 2, 1, 3).reshape(B, S, H * Dh) @ wo

    def _B_ref(x, w_r, w_gate, w_up, w_down):
        B, S, D = x.shape
        C = 1
        r = x @ w_r
        idx = torch.argsort(-r, axis=-1)[:, :C]
        idx_e = (lambda x, n, axis: torch.repeat_interleave(x, n, dim=axis))(idx.reshape(B, C, 1), D, axis=2)
        x_sel = (lambda x, i, axis: torch.take_along_dim(x, i, dim=axis))(x, idx_e, axis=1)
        g = _silu(x_sel @ w_gate)
        u = x_sel @ w_up
        y = (g * u) @ w_down
        r_sel = _sigmoid((lambda x, i, axis: torch.take_along_dim(x, i, dim=axis))(r, idx, axis=1))
        y = y * r_sel.reshape(B, C, 1)
        b_off = (torch.arange(B) * S).reshape(B, 1)
        flat_idx = (idx + b_off).reshape(B * C)
        zero = (x * 0.0).reshape(B * S, D)
        upd = _scatter_add(zero, flat_idx, y.reshape(B * C, D), axis=0)
        return x + upd.reshape(B, S, D)

    x = A_x
    g = _sigmoid((x * gate_w).sum(-1, keepdims=True))
    a = _A_ref(x, A_wq, A_wk, A_wv, A_wo)
    b = _B_ref(x, B_w_r, B_w_gate, B_w_up, B_w_down)
    return g * a + (1 - g) * b
```

```python
class Asm:
    def __init__(self):
        self.lines = []
        self.uid = 0
    def __call__(self, s):
        for l in s.split("\n"):
            l = l.strip()
            if not l:
                continue
            if l.endswith(":") or l.startswith("."):
                self.lines.append(l)
            else:
                self.lines.append("    " + l)
    def c(self, s):
        self.lines.append("    ; " + s)
    def label(self, base):
        self.uid += 1
        return f"L_{base}_{self.uid}"
    def text(self):
        return "\n".join(self.lines) + "\n"

def vr(a, n=1):
    return f"v{a}" if n == 1 else f"v[{a}:{a+n-1}]"
def sr(a, n=1):
    return f"s{a}" if n == 1 else f"s[{a}:{a+n-1}]"
def ar(a, n=1):
    return f"a{a}" if n == 1 else f"a[{a}:{a+n-1}]"

def srd(A, d, base, nbytes):
    A(f"s_mov_b32 s{d}, s{base}")
    A(f"s_and_b32 s{d+1}, s{base+1}, 0xffff")
    A(f"s_mov_b32 s{d+2}, {nbytes:#x}")
    A(f"s_mov_b32 s{d+3}, 0x00020000")

def kernel_begin(A, name):
    A(f".globl {name}")
    A(".p2align 8")
    A(f".type {name},@function")
    A(f"{name}:")

def kernel_desc(name, nvgpr, accum, nsgpr=102):
    return f""".p2align 6
.amdhsa_kernel {name}
  .amdhsa_next_free_vgpr {nvgpr}
  .amdhsa_next_free_sgpr {nsgpr}
  .amdhsa_accum_offset {accum}
  .amdhsa_group_segment_fixed_size 0
  .amdhsa_kernarg_size 112
  .amdhsa_user_sgpr_count 2
  .amdhsa_user_sgpr_kernarg_segment_ptr 1
  .amdhsa_system_sgpr_workgroup_id_x 1
.end_amdhsa_kernel
"""
import struct
def f32bits(x):
    return struct.unpack("<I", struct.pack("<f", x))[0]
```

```python
import math, sys
from asmlib import *

KA_X, KA_WQ, KA_WK, KA_WV, KA_WO, KA_BX, KA_WR, KA_WG, KA_WU, KA_WD, KA_GW, KA_OUT, KA_DBG, KA_WS = [8*i for i in range(14)]
WS_Q1 = 0
WS_Q2 = 0x200000
WS_KV = 0x280000
WS_KMAX = 0x2B0000
WS_RKEY = 0x2B0200
WS_R = 0x2B1000
WS_G = 0x2B3000
WS_O = 0x300000
WS_OT = 0x500000
WS_Y = 0x580000
WS_SIZE = 0x800000
X_BYTES = 2048*640*2
W_BYTES = 640*640*2
QSCALE = (20 ** -0.5) * math.log2(math.e)

def wg_decode(A):
    A("s_cmp_ge_u32 s2, 256")

def gemm_prologue(A, L_exit):
    A(f"s_cmp_ge_u32 s2, 256")
    A(f"s_cbranch_scc1 {L_exit}")
    A("v_and_b32 v1, 63, v0")
    A("v_lshrrev_b32 v4, 6, v0")
    A("v_and_b32 v2, 15, v0")
    A("v_readfirstlane_b32 s29, v4")
    A("v_lshrrev_b32 v3, 4, v1")
    A("s_and_b32 s30, s2, 7")
    A("s_lshl_b32 s30, s30, 2")
    A("s_lshr_b32 s31, s2, 6")
    A("s_add_u32 s30, s30, s31")
    A("s_lshr_b32 s31, s2, 3")
    A("s_and_b32 s31, s31, 7")

def w_dma_offsets(A, vbase, swz):
    A("s_lshl_b32 s32, s29, 6")
    A("s_mul_i32 s33, s31, 160")
    A("s_movk_i32 s34, 6554")
    A("s_movk_i32 s35, 1280")
    for t in range(5):
        A(f"v_add_u32 v5, s32, v1")
        if t:
            A(f"v_add_u32 v5, {256*t}, v5")
        A("v_mul_lo_u32 v6, v5, s34")
        A("v_lshrrev_b32 v6, 16, v6")
        A("v_mul_u32_u24 v7, 10, v6")
        A("v_sub_u32 v7, v5, v7")
        if swz:
            A("v_lshrrev_b32 v5, 1, v6")
            A("v_and_b32 v5, 4, v5")
            A("v_xor_b32 v6, v6, v5")
        A("v_mul_lo_u32 v6, v6, s35")
        A("v_lshl_add_u32 v6, v7, 4, v6")
        A(f"v_add_u32 v{vbase+t}, s33, v6")

def k1(A):
    name = "proj_kernel"
    kernel_begin(A, name)
    L_exit = A.label("k1exit")
    gemm_prologue(A, L_exit)
    A(f"s_load_dwordx4 s[36:39], s[0:1], {KA_X}")
    A(f"s_load_dwordx4 s[40:43], s[0:1], {KA_WK}")
    A(f"s_load_dwordx2 s[44:45], s[0:1], {KA_WR}")
    A(f"s_load_dwordx2 s[46:47], s[0:1], {KA_GW}")
    A(f"s_load_dwordx2 s[48:49], s[0:1], {KA_WS}")
    VX = 64
    VACC = 32
    VE = 52
    VW = 144
    VDO = 8
    VXO = 13
    VB1, VB2, VB1H, VB2H = 14, 15, 16, 17
    w_dma_offsets(A, VDO, True)
    A("s_lshl_b32 s32, s30, 6")
    A("s_lshl_b32 s33, s29, 4")
    A("s_add_u32 s50, s32, s33")
    A("v_add_u32 v5, s50, v2")
    A("v_mul_lo_u32 v6, v5, s35")
    A(f"v_lshl_add_u32 v{VXO}, v3, 4, v6")
    A("v_lshrrev_b32 v5, 2, v2")
    A("v_and_b32 v6, 3, v2")
    A("v_lshl_add_u32 v5, v3, 3, v5")
    A("v_and_b32 v7, 1, v3")
    A("v_lshlrev_b32 v7, 2, v7")
    A("v_add_u32 v18, v5, v7")
    A("v_mul_u32_u24 v18, 160, v18")
    A(f"v_lshl_add_u32 v{VB1}, v6, 3, v18")
    A("v_xor_b32 v7, 4, v7")
    A("v_add_u32 v18, v5, v7")
    A("v_mul_u32_u24 v18, 160, v18")
    A(f"v_lshl_add_u32 v{VB2}, v6, 3, v18")
    A(f"v_add_u32 v{VB1H}, 51200, v{VB1}")
    A(f"v_add_u32 v{VB2H}, 51200, v{VB2}")
    XB = 102400
    A("v_mul_u32_u24 v18, 40, v5")
    A(f"v_add_u32 v18, {XB}, v18")
    A("v_lshl_add_u32 v19, v6, 3, v18")
    A("v_add_u32 v20, 32, v18")
    for i in range(VACC, VE + 8):
        A(f"v_mov_b32 v{i}, 0")
    A("s_waitcnt lgkmcnt(0)")
    srd(A, 8, 36, X_BYTES)
    srd(A, 12, 38, W_BYTES)
    srd(A, 20, 48, WS_SIZE)
    A("s_cmp_eq_u32 s31, 0")
    A("s_cselect_b32 s16, s40, s42")
    A("s_cselect_b32 s17, s41, s43")
    A("s_and_b32 s17, s17, 0xffff")
    A("s_movk_i32 s18, 25600")
    A("s_mov_b32 s19, 0x00020000")
    L_nox = A.label("nox")
    A("s_cmp_ge_u32 s31, 2")
    A(f"s_cbranch_scc1 {L_nox}")
    A("v_lshlrev_b32 v21, 4, v1")
    A("s_lshl_b32 s32, s29, 10")
    for t in range(7):
        A(f"s_add_u32 s33, s32, {t*4096}")
        A(f"s_add_u32 m0, s33, {XB}")
        A("s_nop 0")
        A(f"buffer_load_dwordx4 v21, s[16:19], s33 offen lds")
    A("s_waitcnt vmcnt(0)")
    A(f"{L_nox}:")
    A("s_lshl_b32 s32, s29, 10")
    for c5 in range(5):
        A(f"s_mov_b32 s33, {c5*163840}")
        for t in range(5):
            A(f"s_add_u32 m0, s32, {(c5*20+t*4)*1024}")
            A("s_nop 0")
            A(f"buffer_load_dwordx4 v{VDO+t}, s[12:15], s33 offen lds")
        for s in range(4*c5, 4*c5+4):
            A(f"buffer_load_dwordx4 {vr(VX+4*s,4)}, v{VXO}, s[8:11], 0 offen offset:{s*64}")
    A("v_add_u32 v5, s50, v2")
    A("v_lshrrev_b32 v6, 5, v5")
    A("v_and_b32 v7, 31, v5")
    A("v_lshlrev_b32 v6, 5, v6")
    A("s_lshl_b32 s33, s31, 2")
    A("v_add_u32 v6, s33, v6")
    for mt in range(5):
        A(f"v_add_u32 v27, {4*mt}, v3")
        A("v_mul_u32_u24 v28, 52, v27")
        A("v_lshrrev_b32 v28, 8, v28")
        A("v_mul_u32_u24 v29, 5, v28")
        A("v_sub_u32 v29, v27, v29")
        A("v_add_u32 v28, v6, v28")
        A("v_lshrrev_b32 v30, 1, v29")
        A("v_lshl_add_u32 v30, v30, 5, v7")
        A("v_lshlrev_b32 v30, 4, v30")
        A("v_lshl_add_u32 v30, v28, 10, v30")
        A("v_and_b32 v31, 1, v29")
        A("v_lshl_add_u32 v30, v31, 3, v30")
        A("v_lshlrev_b32 v31, 3, v7")
        A("v_lshl_add_u32 v31, v28, 8, v31")
        A(f"v_add_u32 v31, {WS_Q2}, v31")
        A("v_cmp_eq_u32 vcc, 4, v29")
        A("s_nop 1")
        A(f"v_cndmask_b32 v{22+mt}, v30, v31, vcc")
    LA = 5
    NS = LA + 1
    for c5 in range(5):
        A(f"s_waitcnt vmcnt({9*(4-c5)})")
        A("s_barrier")
        items = [(s, mt) for s in range(4*c5, 4*c5+4) for mt in range(5)]
        def rd(i):
            s, mt = items[i]
            slot = VW + 4*(i % NS)
            b1, b2 = (VB1, VB2) if s < 10 else (VB1H, VB2H)
            off = (s % 10) * 5120 + mt * 32
            A(f"ds_read_b64_tr_b16 {vr(slot,2)}, v{b1} offset:{off}")
            A(f"ds_read_b64_tr_b16 {vr(slot+2,2)}, v{b2} offset:{off}")
        for i in range(LA):
            rd(i)
        for i in range(len(items)):
            if i + LA < len(items):
                rd(i + LA)
            pend = min(LA, len(items) - 1 - i)
            A(f"s_waitcnt lgkmcnt({2*pend})")
            s, mt = items[i]
            slot = VW + 4*(i % NS)
            A(f"v_mfma_f32_16x16x32_bf16 {vr(VACC+4*mt,4)}, {vr(slot,4)}, {vr(VX+4*s,4)}, {vr(VACC+4*mt,4)}")
    A("s_nop 7")
    A(f"s_mov_b32 s33, {f32bits(QSCALE):#x}")
    for mt in range(5):
        a = VACC + 4*mt
        for i in range(4):
            A(f"v_mul_f32 v{a+i}, s33, v{a+i}")
        A(f"v_cvt_pk_bf16_f32 v{a}, v{a}, v{a+1}")
        A(f"v_cvt_pk_bf16_f32 v{a+1}, v{a+2}, v{a+3}")
        A(f"buffer_store_dwordx2 {vr(a,2)}, v{22+mt}, s[20:23], 0 offen")
    L_k, L_v, L_r = A.label("xk"), A.label("xv"), A.label("xr")
    A("s_cmp_eq_u32 s31, 0")
    A(f"s_cbranch_scc1 {L_k}")
    A("s_cmp_eq_u32 s31, 1")
    A(f"s_cbranch_scc1 {L_v}")
    A("s_cmp_eq_u32 s31, 2")
    A(f"s_cbranch_scc1 {L_r}")
    A("s_cmp_lg_u32 s31, 3")
    A(f"s_cbranch_scc1 {L_exit}")
    A("s_mul_i32 s33, s30, 1280")
    A(f"s_add_u32 s33, s33, {WS_Y}")
    A("v_lshlrev_b32 v5, 4, v0")
    for i in range(4):
        A(f"v_mov_b32 v{8+i}, 0")
    A("v_cmp_gt_u32 vcc, 80, v0")
    A("s_and_saveexec_b64 s[54:55], vcc")
    A(f"s_cbranch_execz {L_exit}")
    A("buffer_store_dwordx4 v[8:11], v5, s[20:23], s33 offen")
    A("s_endpgm")

    def extra_mm(swap):
        items = [(s, t) for s in range(20) for t in range(2)]
        def rd(i):
            s, t = items[i]
            slot = VW + 4*(i % NS)
            b = 19 if t == 0 else 20
            A(f"ds_read_b64_tr_b16 {vr(slot,2)}, v{b} offset:{s*1280}")
            A(f"ds_read_b64_tr_b16 {vr(slot+2,2)}, v{b} offset:{s*1280+160}")
        for i in range(LA):
            rd(i)
        for i in range(len(items)):
            if i + LA < len(items):
                rd(i + LA)
            pend = min(LA, len(items) - 1 - i)
            A(f"s_waitcnt lgkmcnt({2*pend})")
            s, t = items[i]
            slot = VW + 4*(i % NS)
            if swap:
                A(f"v_mfma_f32_16x16x32_bf16 {vr(VE+4*t,4)}, {vr(VX+4*s,4)}, {vr(slot,4)}, {vr(VE+4*t,4)}")
            else:
                A(f"v_mfma_f32_16x16x32_bf16 {vr(VE+4*t,4)}, {vr(slot,4)}, {vr(VX+4*s,4)}, {vr(VE+4*t,4)}")
        A("s_nop 7")
        for t in range(2):
            a = VE + 4*t
            A(f"v_cvt_pk_bf16_f32 v{a}, v{a}, v{a+1}")
            A(f"v_cvt_pk_bf16_f32 v{a+1}, v{a+2}, v{a+3}")
    def kvbase():
        A("s_mul_i32 s51, s30, 5120")
        A(f"s_add_u32 s51, s51, {WS_KV}")
        A("s_lshr_b32 s52, s29, 1")
        A("s_and_b32 s53, s29, 1")
    A(f"{L_k}:")
    extra_mm(False)
    kvbase()
    A("s_lshl_b32 s33, s53, 4")
    A("v_add_u32 v5, s33, v2")
    A("v_lshrrev_b32 v6, 1, v3")
    A("v_lshl_add_u32 v6, v6, 5, v5")
    A("v_lshlrev_b32 v6, 4, v6")
    A("v_and_b32 v7, 1, v3")
    A("v_lshl_add_u32 v6, v7, 3, v6")
    A("s_mul_i32 s33, s52, 2560")
    A("s_add_u32 s33, s33, s51")
    A(f"buffer_store_dwordx2 {vr(VE,2)}, v6, s[20:23], s33 offen")
    A("v_lshlrev_b32 v6, 3, v5")
    A("s_add_u32 s33, s33, 2304")
    A("v_cmp_eq_u32 vcc, 0, v3")
    A("s_and_saveexec_b64 s[54:55], vcc")
    A(f"buffer_store_dwordx2 {vr(VE+4,2)}, v6, s[20:23], s33 offen")
    A("s_mov_b64 exec, s[54:55]")
    A(f"v_cndmask_b32 v{VE+4}, 0, v{VE+4}, vcc")
    A(f"v_cndmask_b32 v{VE+5}, 0, v{VE+5}, vcc")
    A("v_mov_b32 v7, 0")
    for r in (VE, VE+1, VE+4, VE+5):
        A(f"v_dot2c_f32_bf16 v7, v{r}, v{r}")
        A("s_nop 3")
    A("v_xor_b32 v5, 16, v1")
    A("v_lshlrev_b32 v5, 2, v5")
    A("ds_bpermute_b32 v6, v5, v7")
    A("s_waitcnt lgkmcnt(0)")
    A("v_add_f32 v7, v7, v6")
    A("v_xor_b32 v5, 32, v1")
    A("v_lshlrev_b32 v5, 2, v5")
    A("ds_bpermute_b32 v6, v5, v7")
    A("s_waitcnt lgkmcnt(0)")
    A("v_add_f32 v7, v7, v6")
    for sh in (8, 4, 2, 1):
        A("s_nop 1")
        A(f"v_max_f32_dpp v7, v7, v7 row_ror:{sh} row_mask:0xf bank_mask:0xf")
    A("s_lshl_b32 s33, s30, 2")
    A("s_add_u32 s33, s33, s29")
    A("s_lshl_b32 s33, s33, 2")
    A(f"s_add_u32 s33, s33, {WS_KMAX}")
    A("v_mov_b32 v6, 0")
    A("v_cmp_eq_u32 vcc, 0, v1")
    A("s_and_saveexec_b64 s[54:55], vcc")
    A("buffer_store_dword v7, v6, s[20:23], s33 offen")
    A("s_endpgm")
    A(f"{L_v}:")
    extra_mm(True)
    kvbase()
    A("v_lshrrev_b32 v6, 1, v3")
    A("v_mul_u32_u24 v6, 20, v6")
    A("v_add_u32 v6, v6, v2")
    A("v_lshlrev_b32 v6, 4, v6")
    A("v_and_b32 v7, 1, v3")
    A("v_lshl_add_u32 v6, v7, 3, v6")
    A("s_mul_i32 s33, s52, 2560")
    A("s_mul_i32 s32, s53, 640")
    A("s_add_u32 s33, s33, s32")
    A("s_add_u32 s33, s33, s51")
    A("s_add_u32 s33, s33, 1024")
    A(f"buffer_store_dwordx2 {vr(VE,2)}, v6, s[20:23], s33 offen")
    A("v_cmp_gt_u32 vcc, 4, v2")
    A("s_and_saveexec_b64 s[54:55], vcc")
    A(f"buffer_store_dwordx2 {vr(VE+4,2)}, v6, s[20:23], s33 offen offset:256")
    A("s_endpgm")
    A(f"{L_r}:")
    A("v_and_b32 v5, 1, v2")
    A("v_cmp_eq_u32 vcc, 0, v5")
    A("v_mov_b32 v6, s46")
    A("v_mov_b32 v7, s44")
    A("v_cndmask_b32 v6, v6, v7, vcc")
    A("v_mov_b32 v7, s47")
    A("v_mov_b32 v5, s45")
    A("v_cndmask_b32 v7, v7, v5, vcc")
    A("v_lshlrev_b32 v5, 4, v3")
    A("v_add_co_u32 v6, vcc, v6, v5")
    A("s_nop 1")
    A("v_addc_co_u32 v7, vcc, 0, v7, vcc")
    for s in range(20):
        A(f"global_load_dwordx4 {vr(VW+4*s,4)}, v[6:7], off offset:{s*64}")
    for s in range(20):
        A(f"s_waitcnt vmcnt({19-s})")
        A(f"v_mfma_f32_16x16x32_bf16 {vr(VE,4)}, {vr(VW+4*s,4)}, {vr(VX+4*s,4)}, {vr(VE,4)}")
    A("s_nop 7")
    A("v_add_u32 v5, s50, v2")
    A("v_lshlrev_b32 v6, 2, v5")
    A(f"v_ashrrev_i32 v7, 31, v{VE}")
    A("v_or_b32 v7, 0x80000000, v7")
    A(f"v_xor_b32 v7, v7, v{VE}")
    A("v_and_b32 v7, 0xfffff800, v7")
    A("v_sub_u32 v5, 2047, v5")
    A("v_or_b32 v7, v7, v5")
    for sh in (8, 4, 2, 1):
        A("s_nop 1")
        A(f"v_max_u32_dpp v7, v7, v7 row_ror:{sh} row_mask:0xf bank_mask:0xf")
    A("v_cmp_eq_u32 vcc, 0, v3")
    A("s_and_saveexec_b64 s[54:55], vcc")
    A(f"s_mov_b32 s33, {WS_R}")
    A(f"buffer_store_dword v{VE}, v6, s[20:23], s33 offen")
    A(f"s_mov_b32 s33, {WS_G}")
    A(f"buffer_store_dword v{VE+1}, v6, s[20:23], s33 offen")
    A("s_lshl_b32 s33, s30, 2")
    A("s_add_u32 s33, s33, s29")
    A("s_lshl_b32 s33, s33, 2")
    A(f"s_add_u32 s33, s33, {WS_RKEY}")
    A("v_mov_b32 v6, 0")
    A("v_cmp_eq_u32 vcc, 0, v1")
    A("s_and_saveexec_b64 s[54:55], vcc")
    A("buffer_store_dword v7, v6, s[20:23], s33 offen")
    A(f"{L_exit}:")
    A("s_endpgm")
    return (name, (256,1,1), (256,1,1), 131072, 224, 224)

def build(kernels, path):
    A = Asm()
    infos = [k(A) for k in kernels]
    hdr = "".join(f"; @launch kernel={n} grid=({g[0]},{g[1]},{g[2]}) block=({b[0]},{b[1]},{b[2]}) lds={l}\n" for n, g, b, l, nv, ac in infos)
    out = hdr + '.amdgcn_target "amdgcn-amd-amdhsa--gfx950"\n.text\n' + A.text() + '.section .rodata,"a"\n'
    seen = set()
    for n, g, b, l, nv, ac in infos:
        if n in seen: continue
        seen.add(n)
        out += kernel_desc(n, nv, ac)
    open(path, "w").write(out)

if __name__ == "__main__":
    build([k1], "t1.s")
```

```python
from gen1 import *

U_TILES = 4
LTHR = f32bits(2.0 ** -30)

STAMP = False
WS_ST = 0x700000
def stamp(A, idx):
    if STAMP:
        A(f"s_memtime s[{60+2*idx}:{61+2*idx}]")
def stamp_rt(A, idx):
    if STAMP:
        A(f"s_memrealtime s[{60+2*idx}:{61+2*idx}]")
def stamp_flush(A, n, srdbase, wave_sgpr):
    if STAMP:
        A("s_waitcnt lgkmcnt(0)")
        A("s_mov_b64 exec, 1")
        A(f"s_lshl_b32 s58, s2, 4")
        A(f"s_add_u32 s58, s58, s{wave_sgpr}")
        A(f"s_lshl_b32 s58, s58, 7")
        A(f"s_add_u32 s58, s58, {WS_ST}")
        A("v_mov_b32 v200, 0")
        for i in range(n):
            A(f"v_mov_b32 v202, s{60+2*i}")
            A(f"v_mov_b32 v203, s{61+2*i}")
            A(f"buffer_store_dwordx2 v[202:203], v200, s[{srdbase}:{srdbase+3}], s58 offen offset:{8*i}")
            A("s_nop 1")

def k2(A):
    name = "attn_kernel"
    kernel_begin(A, name)
    L_exit = A.label("k2exit")
    A("s_cmp_ge_u32 s2, 256")
    A(f"s_cbranch_scc1 {L_exit}")
    stamp_rt(A, 0)
    stamp(A, 1)
    A(f"s_load_dwordx2 s[48:49], s[0:1], {KA_WS}")
    A("v_and_b32 v1, 63, v0")
    A("v_lshrrev_b32 v4, 6, v0")
    A("v_and_b32 v2, 31, v0")
    A("v_readfirstlane_b32 s29, v4")
    A("v_lshrrev_b32 v3, 5, v1")
    A("s_and_b32 s30, s2, 7")
    A("s_lshl_b32 s30, s30, 2")
    A("s_lshr_b32 s31, s2, 6")
    A("s_add_u32 s30, s30, s31")
    A("s_lshr_b32 s31, s2, 3")
    A("s_and_b32 s31, s31, 7")
    A("s_and_b32 s27, s29, 3")
    A("s_lshr_b32 s28, s29, 2")
    A("s_lshl_b32 s26, s31, 2")
    A("s_add_u32 s26, s26, s27")
    A("s_lshl_b32 s25, s30, 6")
    A("s_add_u32 s25, s25, s26")
    QB1 = [8, 16]; QB2 = [12, 14]
    VIDX = 4
    VKA, VA2, VVA = 20, 21, 22
    S = [32, 48, 64, 80]
    O = [96, 112]
    KA1 = [128, 136]; KA2 = [132, 140]
    V0 = [144, 152]; V1 = [148, 156]
    A("v_lshlrev_b32 v5, 4, v1")
    A("v_lshlrev_b32 v6, 3, v2")
    A("v_lshlrev_b32 v7, 30, v3")
    A("v_or_b32 v6, v6, v7")
    A("v_lshlrev_b32 v7, 3, v1")
    A("s_waitcnt lgkmcnt(0)")
    srd(A, 8, 48, WS_SIZE)
    A("s_lshl_b32 s32, s25, 10")
    A(f"buffer_load_dwordx4 {vr(QB1[0],4)}, v5, s[8:11], s32 offen")
    A("s_add_u32 s32, s32, 32768")
    A(f"buffer_load_dwordx4 {vr(QB1[1],4)}, v5, s[8:11], s32 offen")
    A("s_lshl_b32 s32, s25, 8")
    A(f"s_add_u32 s32, s32, {WS_Q2}")
    A(f"buffer_load_dwordx2 {vr(QB2[0],2)}, v6, s[8:11], s32 offen")
    A("s_add_u32 s32, s32, 8192")
    A(f"buffer_load_dwordx2 {vr(QB2[1],2)}, v6, s[8:11], s32 offen")
    A(f"s_mov_b32 s32, {WS_KMAX}")
    A("buffer_load_dwordx2 v[24:25], v7, s[8:11], s32 offen")
    A("s_lshl_b32 s32, s29, 10")
    for i in range(20):
        A(f"s_add_u32 m0, s32, {i*8192}")
        A(f"s_add_u32 s33, s32, {WS_KV + i*8192}")
        A(f"buffer_load_dwordx4 v5, s[8:11], s33 offen lds")
    A("s_mul_i32 s32, s28, 2560")
    A(f"v_add_u32 v{VKA}, s32, v5")
    A("v_lshlrev_b32 v6, 3, v2")
    A(f"v_add_u32 v{VA2}, s32, v6")
    A("v_mul_u32_u24 v6, 20, v3")
    A("v_add_u32 v6, v6, v2")
    A("v_lshlrev_b32 v6, 4, v6")
    A(f"v_add_u32 v{VVA}, s32, v6")
    A(f"v_mov_b32 v{VIDX}, 0xdddd")
    A("s_mov_b32 s40, 0x000fffff")
    A("s_mov_b32 s41, 0x000fffff")
    A("s_mov_b32 s42, -1")
    A("s_mov_b32 s43, 0")
    for r in range(O[0], O[0] + 32):
        A(f"v_mov_b32 v{r}, 0")
    for r in range(S[3] + 8, S[3] + 16):
        A(f"v_mov_b32 v{r}, 0")
    for r in range(144, 160):
        A(f"v_mov_b32 v{r}, 0x3f803f80")
    for par in range(2):
        A(f"v_mov_b32 v{KA2[par]}, 0x3f80")
        A(f"v_mov_b32 v{KA2[par]+1}, 0")
    A("s_waitcnt vmcnt(20)")
    A("v_max_f32 v24, v24, v25")
    for sh in (8, 4, 2, 1):
        A("s_nop 1")
        A(f"v_max_f32_dpp v24, v24, v24 row_ror:{sh} row_mask:0xf bank_mask:0xf")
    A("s_nop 1")
    for i in range(4):
        A(f"v_readlane_b32 s{34+i}, v24, {16*i}")
    A("s_max_u32 s34, s34, s35")
    A("s_max_u32 s36, s36, s37")
    A("s_max_u32 s34, s34, s36")
    A("v_cmp_eq_u32 s[44:45], 1, v3")
    for b in range(2):
        t = 26 + 2*b
        A(f"v_mov_b32 v{t}, 0")
        for r in list(range(QB1[b], QB1[b]+4)) + [QB2[b], QB2[b]+1]:
            A(f"v_dot2c_f32_bf16 v{t}, v{r}, v{r}")
        A("s_nop 3")
        A(f"v_mov_b32 v{t+1}, v{t}")
        A("s_nop 1")
        A(f"v_permlane32_swap_b32 v{t}, v{t+1}")
        A("s_nop 1")
        A(f"v_add_f32 v{t}, v{t}, v{t+1}")
        A(f"v_mul_f32 v{t}, s34, v{t}")
        A(f"v_sqrt_f32 v{t}, v{t}")
        A("s_nop 0")
        A(f"v_mul_f32 v{t}, {f32bits(-(1.0 + 2.0**-6)):#x}, v{t}")
        A(f"v_lshrrev_b32 v{t}, 16, v{t}")
        A(f"v_cndmask_b32 v{QB2[b]}, v{QB2[b]}, v{t}, s[44:45]")
    def ldK(par, off):
        A(f"ds_read_b128 {vr(KA1[par],4)}, v{VKA} offset:{off}")
    def group(kpar, koff, vpar, voff):
        A("s_mov_b64 exec, s[40:41]")
        A(f"ds_read_b128 {vr(V0[vpar],4)}, v{VVA} offset:{voff+1024}")
        A(f"ds_read_b128 {vr(V1[vpar],4)}, v{VVA} offset:{voff+1664}")
        A("s_mov_b64 exec, s[42:43]")
        A(f"ds_read_b64 {vr(KA2[kpar],2)}, v{VA2} offset:{koff+2304}")
        A("s_mov_b64 exec, -1")
        A(f"ds_read_b128 {vr(KA1[kpar],4)}, v{VKA} offset:{koff}")
    def qk1(buf, par, b):
        A(f"v_mfma_f32_32x32x16_bf16 {vr(S[buf],16)}, {vr(KA1[par],4)}, {vr(QB1[b],4)}, 0")
    def qk2(buf, par, b):
        A(f"v_mfma_f32_32x32x8_bf16 {vr(S[buf],16)}, {vr(KA2[par],2)}, {vr(QB2[b],2)}, {vr(S[buf],16)}")
    def pv(buf, half, vpar, b):
        vv = V0[vpar] if half == 0 else V1[vpar]
        A(f"v_smfmac_f32_32x32x32_bf16 {vr(O[b],16)}, {vr(vv,4)}, {vr(S[buf]+8*half,8)}, v{VIDX}")
    def ex(buf, lo, hi):
        for r in range(lo, hi):
            A(f"v_exp_f32 v{S[buf]+r}, v{S[buf]+r}")
    STEP = 5120
    n_iter = 32 // U_TILES
    def need_loads(j):
        tiles = min(64, 2*U_TILES*(j+1) + 4)
        return min(20, -(-tiles*2560 // 8192))
    stamp(A, 2)
    A(f"s_waitcnt vmcnt({20-need_loads(0)})")
    A("s_barrier")
    stamp(A, 3)
    A("s_mov_b64 exec, s[42:43]")
    A(f"ds_read_b64 {vr(KA2[0],2)}, v{VA2} offset:2304")
    A("s_mov_b64 exec, -1")
    A(f"ds_read_b128 {vr(KA1[0],4)}, v{VKA} offset:0")
    group(1, STEP, 0, 0)
    A("s_waitcnt lgkmcnt(4)")
    qk1(0, 0, 0); qk2(0, 0, 0); qk1(1, 0, 1); qk2(1, 0, 1)
    A("s_mov_b32 s46, 0")
    A("s_nop 15")
    L_loop = A.label("loop")
    L_w1, L_w2, L_go = A.label("w1"), A.label("w2"), A.label("go")
    A(f"{L_loop}:")
    for t in range(U_TILES):
        par = t & 1
        for b in range(2):
            i = 2*t + b
            buf = i % 4
            ex(buf, 0, 2)
            if b == 0:
                pv((i-1) % 4, 1, par ^ 1, 1)
                A("s_waitcnt lgkmcnt(0)")
                group(par, (t+2)*STEP, par ^ 1, (t+1)*STEP)
            else:
                pv((i-1) % 4, 1, par, 0)
            ex(buf, 2, 6)
            qk1((i+2) % 4, par ^ 1, b)
            ex(buf, 6, 10)
            qk2((i+2) % 4, par ^ 1, b)
            ex(buf, 10, 14)
            pv(buf, 0, par, b)
            if t == U_TILES-1 and b == 1:
                A(f"v_add_u32 v{VKA}, {U_TILES*STEP}, v{VKA}")
                A(f"v_add_u32 v{VA2}, {U_TILES*STEP}, v{VA2}")
                A(f"v_add_u32 v{VVA}, {U_TILES*STEP}, v{VVA}")
                A("s_add_u32 s46, s46, 1")
                A("s_cmp_gt_u32 s46, 2")
            ex(buf, 14, 16)
    A(f"s_cbranch_scc1 {L_go}")
    A("s_cmp_eq_u32 s46, 1")
    A(f"s_cbranch_scc1 {L_w1}")
    A("s_waitcnt vmcnt(0)")
    A("s_barrier")
    A(f"s_branch {L_loop}")
    A(f"{L_w1}:")
    A(f"s_waitcnt vmcnt({20-need_loads(1)})")
    A("s_barrier")
    A(f"s_branch {L_loop}")
    A(f"{L_go}:")
    A(f"s_cmp_lt_u32 s46, {n_iter}")
    A(f"s_cbranch_scc1 {L_loop}")
    stamp(A, 4)
    A("s_nop 1")
    pv(3, 1, 1, 1)
    A("s_waitcnt lgkmcnt(0)")
    A("s_nop 15")
    A("s_barrier")
    A("s_lshl_b32 s32, s29, 12")
    A("v_add_u32 v6, s32, v5")
    A("s_xor_b32 s32, s32, 0x4000")
    A("v_add_u32 v7, s32, v5")
    L_x1, L_x2 = A.label("x1"), A.label("x2")
    A("s_cmp_eq_u32 s28, 0")
    A(f"s_cbranch_scc1 {L_x1}")
    for j in range(4):
        A(f"ds_write_b128 v6, {vr(O[0]+4*j,4)} offset:{j*1024}")
    for r in range(16):
        A(f"v_mov_b32 v{O[0]+r}, v{O[1]+r}")
    for r in range(4):
        A(f"v_mov_b32 v{QB1[0]+r}, v{QB1[1]+r}")
    for r in range(2):
        A(f"v_mov_b32 v{QB2[0]+r}, v{QB2[1]+r}")
    A(f"s_branch {L_x2}")
    A(f"{L_x1}:")
    for j in range(4):
        A(f"ds_write_b128 v6, {vr(O[1]+4*j,4)} offset:{j*1024}")
    A(f"{L_x2}:")
    A("s_waitcnt lgkmcnt(0)")
    A("s_barrier")
    for j in range(4):
        A(f"ds_read_b128 {vr(S[0]+4*j,4)}, v7 offset:{j*1024}")
    A("s_lshl_b32 s32, s30, 1")
    A("s_add_u32 s32, s32, s28")
    A("s_lshl_b32 s32, s32, 1")
    A("v_lshrrev_b32 v6, 4, v2")
    A("v_add_u32 v6, s32, v6")
    A("v_and_b32 v7, 15, v2")
    A("v_lshlrev_b32 v24, 5, v6")
    A("v_add_u32 v24, s26, v24")
    A("v_lshl_add_u32 v24, v24, 4, v7")
    A("v_lshlrev_b32 v24, 5, v24")
    A("v_lshl_add_u32 v24, v3, 4, v24")
    A("s_lshr_b32 s33, s26, 1")
    A("v_lshlrev_b32 v25, 4, v6")
    A("v_add_u32 v25, s33, v25")
    A("v_lshl_add_u32 v25, v25, 4, v7")
    A("v_lshlrev_b32 v25, 4, v25")
    A("s_and_b32 s33, s26, 1")
    A("s_lshl_b32 s33, s33, 3")
    A("v_add_u32 v25, s33, v25")
    A("v_lshlrev_b32 v26, 30, v3")
    A("v_or_b32 v25, v25, v26")
    A("s_waitcnt lgkmcnt(0)")
    for r in range(13):
        A(f"v_add_f32 v{O[0]+r}, v{O[0]+r}, v{S[0]+r}")
    L_fb, L_norm = A.label("fb"), A.label("norm")
    A(f"v_mov_b32 v26, {LTHR:#x}")
    A(f"v_cmp_nge_f32 vcc, v{O[0]+12}, v26")
    A("s_nop 4")
    A(f"s_cbranch_vccnz {L_fb}")
    A(f"{L_norm}:")
    A(f"v_rcp_f32 v26, v{O[0]+12}")
    A("s_nop 0")
    for r in range(12):
        A(f"v_mul_f32 v{O[0]+r}, v{O[0]+r}, v26")
    for r in range(6):
        A(f"v_cvt_pk_bf16_f32 v{S[0]+r}, v{O[0]+2*r}, v{O[0]+2*r+1}")
    A(f"s_mov_b32 s32, {WS_O}")
    A(f"buffer_store_dwordx4 {vr(S[0],4)}, v24, s[8:11], s32 offen")
    A(f"s_mov_b32 s32, {WS_OT}")
    A(f"buffer_store_dwordx2 {vr(S[0]+4,2)}, v25, s[8:11], s32 offen")
    stamp(A, 5)
    stamp_rt(A, 6)
    stamp_flush(A, 7, 8, 29)
    A(f"{L_exit}:")
    A("s_endpgm")
    A(f"{L_fb}:")
    A(f"v_cndmask_b32 v{QB2[0]}, v{QB2[0]}, 0, s[44:45]")
    A("v_lshlrev_b32 v28, 3, v2")
    A("v_mul_u32_u24 v29, 20, v3")
    A("v_add_u32 v29, v29, v2")
    A("v_lshlrev_b32 v29, 4, v29")
    A("v_mov_b32 v30, 0xff800000")
    A(f"s_mov_b32 s32, {WS_KV}")
    L_p1, L_p2 = A.label("p1"), A.label("p2")
    def fb_k():
        A(f"buffer_load_dwordx4 {vr(KA1[0],4)}, v5, s[8:11], s32 offen")
        A("s_mov_b64 exec, s[42:43]")
        A(f"buffer_load_dwordx2 {vr(KA2[0],2)}, v28, s[8:11], s32 offen offset:2304")
        A("s_mov_b64 exec, -1")
    A(f"{L_p1}:")
    fb_k()
    A("s_waitcnt vmcnt(0)")
    qk1(0, 0, 0); qk2(0, 0, 0)
    A("s_nop 15")
    for r in range(0, 16, 2):
        A(f"v_max3_f32 v30, v{S[0]+r}, v{S[0]+r+1}, v30")
    A("s_add_u32 s32, s32, 2560")
    A(f"s_cmp_lt_u32 s32, {WS_KV + 163840}")
    A(f"s_cbranch_scc1 {L_p1}")
    A("v_mov_b32 v31, v30")
    A("s_nop 1")
    A("v_permlane32_swap_b32 v30, v31")
    A("s_nop 1")
    A("v_max_f32 v30, v30, v31")
    for r in range(16):
        A(f"v_mov_b32 v{O[0]+r}, 0")
    A(f"s_mov_b32 s32, {WS_KV}")
    A(f"{L_p2}:")
    fb_k()
    A("s_mov_b64 exec, s[40:41]")
    A(f"buffer_load_dwordx4 {vr(V0[0],4)}, v29, s[8:11], s32 offen offset:1024")
    A(f"buffer_load_dwordx4 {vr(V1[0],4)}, v29, s[8:11], s32 offen offset:1664")
    A("s_mov_b64 exec, -1")
    A("s_waitcnt vmcnt(0)")
    qk1(0, 0, 0); qk2(0, 0, 0)
    A("s_nop 15")
    for r in range(16):
        A(f"v_sub_f32 v{S[0]+r}, v{S[0]+r}, v30")
    ex(0, 0, 16)
    A("s_nop 2")
    pv(0, 0, 0, 0); pv(0, 1, 0, 0)
    A("s_add_u32 s32, s32, 2560")
    A(f"s_cmp_lt_u32 s32, {WS_KV + 163840}")
    A(f"s_cbranch_scc1 {L_p2}")
    A("s_nop 15")
    A(f"s_branch {L_norm}")
    return (name, (256,1,1), (512,1,1), 163840, 208 if STAMP else 160, 208 if STAMP else 160)

if __name__ == "__main__":
    build([k1, k2], "t2.s")
    STAMP = True
    build([k1, k2], "t2s.s")
```

```python
import gen2
from gen2 import *
LOG2E = math.log2(math.e)

def argmax_idx(A, srdb, vt, vlane, sdst, stmp):
    pass

def bf16r(A, d, s):
    A(f"v_cvt_pk_bf16_f32 v{d}, v{s}, v{s}")
    A(f"v_and_b32 v{d}, 0xffff0000, v{d}")

def sigmoid(A, d, s, t):
    A(f"v_mul_f32 v{t}, {f32bits(-LOG2E):#x}, v{s}")
    A(f"v_exp_f32 v{t}, v{t}")
    A("s_nop 0")
    A(f"v_add_f32 v{t}, 1.0, v{t}")
    A(f"v_rcp_f32 v{d}, v{t}")
    A("s_nop 0")

def key_reduce(A, v, v2, sdst, st):
    A(f"v_max_u32 v{v}, v{v}, v{v2}")
    for sh in (8, 4, 2, 1):
        A("s_nop 1")
        A(f"v_max_u32_dpp v{v}, v{v}, v{v} row_ror:{sh} row_mask:0xf bank_mask:0xf")
    A("s_nop 1")
    for i in range(4):
        A(f"v_readlane_b32 s{st+i}, v{v}, {16*i}")
    A(f"s_max_u32 s{st}, s{st}, s{st+1}")
    A(f"s_max_u32 s{st+2}, s{st+2}, s{st+3}")
    A(f"s_max_u32 s{st}, s{st}, s{st+2}")
    A(f"s_and_b32 s{st}, s{st}, 2047")
    A(f"s_sub_u32 s{sdst}, 2047, s{st}")

def kf(A):
    name = "ffn_kernel"
    kernel_begin(A, name)
    L_exit = A.label("kfexit")
    A("s_cmp_ge_u32 s2, 192")
    A(f"s_cbranch_scc1 {L_exit}")
    A(f"s_load_dwordx2 s[36:37], s[0:1], {KA_X}")
    A(f"s_load_dwordx4 s[40:43], s[0:1], {KA_WG}")
    A(f"s_load_dwordx2 s[44:45], s[0:1], {KA_WD}")
    A(f"s_load_dwordx2 s[48:49], s[0:1], {KA_WS}")
    A("v_lshlrev_b32 v2, 3, v0")
    A("s_movk_i32 s35, 3072")
    A("v_mul_lo_u32 v3, v0, s35")
    A("s_lshl_b32 s34, s2, 4")
    A("v_add_u32 v3, s34, v3")
    A("v_lshlrev_b32 v4, 2, v0")
    A("v_lshlrev_b32 v5, 1, v0")
    A("s_waitcnt lgkmcnt(0)")
    srd(A, 8, 36, X_BYTES)
    srd(A, 12, 40, 640*1536*2)
    srd(A, 16, 42, 640*1536*2)
    srd(A, 20, 44, 640*1536*2)
    srd(A, 24, 48, WS_SIZE)
    A(f"s_mov_b32 s32, {WS_RKEY}")
    A("buffer_load_dwordx2 v[6:7], v2, s[24:27], s32 offen")
    WG_, WU_, WD_ = 32, 72, 112
    for i in range(10):
        A(f"s_mov_b32 s32, {i*64*3072}")
        A(f"buffer_load_dwordx4 {vr(WG_+4*i,4)}, v3, s[12:15], s32 offen")
        A(f"buffer_load_dwordx4 {vr(WU_+4*i,4)}, v3, s[16:19], s32 offen")
    A("s_mul_i32 s33, s2, 10240")
    for f in range(8):
        A(f"s_add_u32 s32, s33, {f*1280}")
        for j in range(5):
            A(f"buffer_load_dword v{WD_+5*f+j}, v4, s[20:23], s32 offen offset:{j*256}")
    A("s_waitcnt vmcnt(60)")
    key_reduce(A, 6, 7, 50, 52)
    A("s_mul_i32 s32, s50, 1280")
    XL = 152
    for i in range(10):
        A(f"buffer_load_ushort v{XL+i}, v5, s[8:11], s32 offen offset:{i*128}")
    ACC = 8
    for j in range(16):
        A(f"v_mov_b32 v{ACC+j}, 0")
    A("s_waitcnt vmcnt(0)")
    for i in range(10):
        A(f"v_lshlrev_b32 v{XL+10}, 16, v{XL+i}")
        for dw in range(4):
            for mat, W in ((0, WG_), (1, WU_)):
                A(f"v_dot2c_f32_bf16 v{ACC+4*dw+2*mat}, v{W+4*i+dw}, v{XL+i}")
                A(f"v_dot2c_f32_bf16 v{ACC+4*dw+2*mat+1}, v{W+4*i+dw}, v{XL+10}")
    A("s_nop 3")
    for j in range(8):
        A(f"v_permlane32_swap_b32 v{ACC+j}, v{ACC+j+8}")
    A("s_nop 1")
    for j in range(8):
        A(f"v_add_f32 v{ACC+j}, v{ACC+j}, v{ACC+j+8}")
    A("s_nop 1")
    for j in range(4):
        A(f"v_permlane16_swap_b32 v{ACC+j}, v{ACC+j+4}")
    A("s_nop 1")
    for j in range(4):
        A(f"v_add_f32 v{ACC+j}, v{ACC+j}, v{ACC+j+4}")
    for sh in (8, 4, 2, 1):
        A("s_nop 1")
        for j in range(4):
            A(f"v_add_f32_dpp v{ACC+j}, v{ACC+j}, v{ACC+j} row_ror:{sh} row_mask:0xf bank_mask:0xf")
    for hi in range(2):
        g, u = ACC+hi, ACC+2+hi
        bf16r(A, g, g)
        sigmoid(A, 20, g, 21)
        A(f"v_mul_f32 v{g}, v{g}, v20")
        bf16r(A, g, g)
        bf16r(A, u, u)
        A(f"v_mul_f32 v{g}, v{g}, v{u}")
        bf16r(A, g, g)
    A("s_nop 1")
    for rho in range(4):
        for hi in range(2):
            f = 2*rho + hi
            A(f"v_readlane_b32 s{60+2*f+1}, v{ACC+hi}, {16*rho}")
    for f in range(8):
        A(f"s_lshr_b32 s{60+2*f}, s{60+2*f+1}, 16")
    Y = 16
    for j in range(10):
        A(f"v_mov_b32 v{Y+j}, 0")
    for f in range(8):
        for j in range(5):
            A(f"v_dot2c_f32_bf16 v{Y+2*j}, s{60+2*f}, v{WD_+5*f+j}")
            A(f"v_dot2c_f32_bf16 v{Y+2*j+1}, s{60+2*f+1}, v{WD_+5*f+j}")
    A("s_and_b32 s32, s2, 15")
    A("s_mul_i32 s32, s32, 2560")
    A(f"s_add_u32 s32, s32, {WS_Y}")
    A("s_nop 3")
    for j in range(5):
        A(f"buffer_atomic_add_f32 v{Y+2*j}, v2, s[24:27], s32 offen offset:{j*512}")
        A(f"buffer_atomic_add_f32 v{Y+2*j+1}, v2, s[24:27], s32 offen offset:{j*512+4}")
    A(f"{L_exit}:")
    A("s_endpgm")
    return (name, (192,1,1), (64,1,1), 0, 168, 168)

def k3(A):
    name = "out_kernel"
    kernel_begin(A, name)
    L_exit = A.label("k3exit")
    gemm_prologue(A, L_exit)
    A(f"s_load_dwordx2 s[36:37], s[0:1], {KA_X}")
    A(f"s_load_dwordx2 s[38:39], s[0:1], {KA_WO}")
    A(f"s_load_dwordx2 s[40:41], s[0:1], {KA_OUT}")
    A(f"s_load_dwordx2 s[48:49], s[0:1], {KA_WS}")
    VX = 64; VACC = 32; VW = 144; VDO = 8
    VO1, VO2 = 13, 14
    VB1, VB1H, VBT, VBTH = 15, 16, 17, 18
    w_dma_offsets(A, VDO, False)
    A("s_lshl_b32 s32, s30, 2")
    A("s_add_u32 s51, s32, s29")
    A("s_lshl_b32 s50, s51, 4")
    A("v_lshrrev_b32 v5, 1, v3")
    A("v_lshlrev_b32 v5, 9, v5")
    A("v_lshl_add_u32 v5, v2, 5, v5")
    A("v_and_b32 v6, 1, v3")
    A("v_lshl_add_u32 v5, v6, 4, v5")
    A("s_lshl_b32 s32, s51, 14")
    A(f"v_add_u32 v{VO1}, s32, v5")
    A("v_lshlrev_b32 v5, 8, v3")
    A("v_lshl_add_u32 v5, v2, 4, v5")
    A("s_lshl_b32 s32, s51, 12")
    A(f"v_add_u32 v{VO2}, s32, v5")
    A("v_lshrrev_b32 v5, 2, v2")
    A("v_and_b32 v7, 3, v2")
    A("v_lshrrev_b32 v19, 1, v3")
    A("v_mul_u32_u24 v19, 20, v19")
    A("v_lshl_add_u32 v19, v6, 2, v19")
    A("v_add_u32 v19, v19, v5")
    A("v_mul_u32_u24 v19, 160, v19")
    A(f"v_lshl_add_u32 v{VB1}, v7, 3, v19")
    A(f"v_add_u32 v{VB1H}, 51200, v{VB1}")
    A("v_mul_u32_u24 v19, 40, v3")
    A("v_add3_u32 v19, v19, v5, 16")
    A("v_mul_u32_u24 v19, 160, v19")
    A(f"v_lshl_add_u32 v{VBT}, v7, 3, v19")
    A(f"v_add_u32 v{VBTH}, 51200, v{VBT}")
    A("v_add_u32 v5, s50, v2")
    A("v_mul_lo_u32 v20, v5, s35")
    A("v_lshl_add_u32 v20, v3, 3, v20")
    A("v_add_u32 v20, s33, v20")
    A("v_lshlrev_b32 v21, 2, v5")
    A("v_lshlrev_b32 v22, 3, v1")
    for i in range(VACC, VACC+20):
        A(f"v_mov_b32 v{i}, 0")
    A("s_waitcnt lgkmcnt(0)")
    srd(A, 8, 36, X_BYTES)
    srd(A, 12, 38, W_BYTES)
    srd(A, 16, 40, X_BYTES)
    srd(A, 20, 48, WS_SIZE)
    A(f"s_mov_b32 s32, {WS_RKEY}")
    A("buffer_load_dwordx2 v[24:25], v22, s[20:23], s32 offen")
    A(f"s_mov_b32 s32, {WS_G}")
    A("buffer_load_dword v26, v21, s[20:23], s32 offen")
    XV = 52
    for mt in range(5):
        A(f"buffer_load_dwordx2 {vr(XV+2*mt,2)}, v20, s[8:11], 0 offen offset:{mt*32}")
    steps_of = [[0,1,2], [3,4,5], [6,7,8], [9,10,11], [12,13,14,15,16,17,18,19]]
    A("s_lshl_b32 s32, s29, 10")
    cnt = []
    for c5 in range(5):
        A(f"s_mov_b32 s34, {c5*163840}")
        for t in range(5):
            A(f"s_add_u32 m0, s32, {(c5*20+t*4)*1024}")
            A("s_nop 0")
            A(f"buffer_load_dwordx4 v{VDO+t}, s[12:15], s34 offen lds")
        for s in steps_of[c5]:
            if s < 16:
                A(f"s_mov_b32 s34, {WS_O + (s//4)*4096}")
                A(f"buffer_load_dwordx4 {vr(VX+4*s,4)}, v{VO1}, s[20:23], s34 offen offset:{(s%4)*1024}")
            else:
                A(f"s_mov_b32 s34, {WS_OT}")
                A(f"buffer_load_dwordx4 {vr(VX+4*s,4)}, v{VO2}, s[20:23], s34 offen offset:{(s-16)*1024}")
        cnt.append(5 + len(steps_of[c5]))
    A("s_waitcnt vmcnt(45)")
    key_reduce(A, 24, 25, 56, 52)
    bf16r(A, 26, 26)
    sigmoid(A, 26, 26, 27)
    bf16r(A, 26, 26)
    A("v_sub_f32 v27, 1.0, v26")
    bf16r(A, 27, 27)
    LA = 5; NS = LA + 1
    for c5 in range(5):
        A(f"s_waitcnt vmcnt({sum(cnt[c5+1:])})")
        A("s_barrier")
        items = [(s, mt) for s in steps_of[c5] for mt in range(5)]
        def rd(i):
            s, mt = items[i]
            slot = VW + 4*(i % NS)
            if s < 16:
                b = VB1 if s < 8 else VB1H
                off = (s % 8) * 6400 + mt * 32
                o2 = 8*160
            else:
                b = VBT if s < 18 else VBTH
                off = ((s - 16) % 2) * 25600 + mt * 32
                o2 = 20*160
            A(f"ds_read_b64_tr_b16 {vr(slot,2)}, v{b} offset:{off}")
            A(f"ds_read_b64_tr_b16 {vr(slot+2,2)}, v{b} offset:{off+o2}")
        for i in range(LA):
            rd(i)
        for i in range(len(items)):
            if i + LA < len(items):
                rd(i + LA)
            pend = min(LA, len(items) - 1 - i)
            A(f"s_waitcnt lgkmcnt({2*pend})")
            s, mt = items[i]
            slot = VW + 4*(i % NS)
            A(f"v_mfma_f32_16x16x32_bf16 {vr(VACC+4*mt,4)}, {vr(slot,4)}, {vr(VX+4*s,4)}, {vr(VACC+4*mt,4)}")
    B = 64
    for mt in range(5):
        for j in range(2):
            A(f"v_lshlrev_b32 v{B+4*mt+2*j}, 16, v{XV+2*mt+j}")
            A(f"v_and_b32 v{B+4*mt+2*j+1}, 0xffff0000, v{XV+2*mt+j}")
    L_nosel = A.label("nosel")
    A("s_lshr_b32 s32, s56, 4")
    A("s_cmp_lg_u32 s32, s51")
    A(f"s_cbranch_scc1 {L_nosel}")
    Yv = 96
    A("v_mul_u32_u24 v5, 2560, v2")
    A("v_lshl_add_u32 v5, v3, 4, v5")
    A("s_lshl_b32 s32, s33, 1")
    A(f"s_add_u32 s32, s32, {WS_Y}")
    for mt in range(5):
        A(f"buffer_load_dwordx4 {vr(Yv+4*mt,4)}, v5, s[20:23], s32 offen offset:{mt*64}")
    A("s_lshl_b32 s32, s56, 2")
    A(f"s_add_u32 s32, s32, {WS_R}")
    A("v_mov_b32 v6, 0")
    A("buffer_load_dword v7, v6, s[20:23], s32 offen")
    A("s_waitcnt vmcnt(0)")
    for sh in (8, 4, 2, 1):
        A("s_nop 1")
        for j in range(20):
            A(f"v_add_f32_dpp v{Yv+j}, v{Yv+j}, v{Yv+j} row_ror:{sh} row_mask:0xf bank_mask:0xf")
    bf16r(A, 7, 7)
    sigmoid(A, 7, 7, 6)
    bf16r(A, 7, 7)
    A("s_and_b32 s32, s56, 15")
    A("v_cmp_eq_u32 vcc, s32, v2")
    for j in range(20):
        bf16r(A, Yv+j, Yv+j)
        A(f"v_mul_f32 v{Yv+j}, v{Yv+j}, v7")
        bf16r(A, Yv+j, Yv+j)
        A(f"v_add_f32 v{Yv+j}, v{Yv+j}, v{B+j}")
        bf16r(A, Yv+j, Yv+j)
        A(f"v_cndmask_b32 v{B+j}, v{B+j}, v{Yv+j}, vcc")
    A(f"{L_nosel}:")
    A("s_nop 7")
    for mt in range(5):
        for j in range(2):
            a = VACC + 4*mt + 2*j
            b = B + 4*mt + 2*j
            A(f"v_cvt_pk_bf16_f32 v5, v{a}, v{a+1}")
            A(f"v_lshlrev_b32 v{a}, 16, v5")
            A(f"v_and_b32 v{a+1}, 0xffff0000, v5")
            A(f"v_mul_f32 v{a}, v{a}, v26")
            A(f"v_mul_f32 v{a+1}, v{a+1}, v26")
            A(f"v_cvt_pk_bf16_f32 v5, v{a}, v{a+1}")
            A(f"v_lshlrev_b32 v{a}, 16, v5")
            A(f"v_and_b32 v{a+1}, 0xffff0000, v5")
            A(f"v_mul_f32 v{b}, v{b}, v27")
            A(f"v_mul_f32 v{b+1}, v{b+1}, v27")
            A(f"v_cvt_pk_bf16_f32 v5, v{b}, v{b+1}")
            A(f"v_lshlrev_b32 v{b}, 16, v5")
            A(f"v_and_b32 v{b+1}, 0xffff0000, v5")
            A(f"v_add_f32 v{a}, v{a}, v{b}")
            A(f"v_add_f32 v{a+1}, v{a+1}, v{b+1}")
            A(f"v_cvt_pk_bf16_f32 v{XV+2*mt+j}, v{a}, v{a+1}")
        A(f"buffer_store_dwordx2 {vr(XV+2*mt,2)}, v20, s[16:19], 0 offen offset:{mt*32}")
    A(f"{L_exit}:")
    A("s_endpgm")
    return (name, (256,1,1), (256,1,1), 102400, 168, 168)

if __name__ == "__main__":
    build([k1, k2, kf, k3], "t3.s")
```

```python
from gen3 import *
def mk_empty(i, grid=256):
    def ke(A):
        name = f"empty{i}_kernel"
        kernel_begin(A, name)
        A("s_endpgm")
        return (name, (grid,1,1), (64,1,1), 0, 8, 8)
    return ke
build([k1, k2, kf, k3], "x0.s")
build([k1, k2, kf, k3, mk_empty(0)], "x1.s")
build([k1, k2, kf, k3] + [mk_empty(i) for i in range(4)], "x4.s")
build([mk_empty(i) for i in range(4)] + [k1, k2, kf, k3], "x4b.s")
build([k1, k2, kf, k3] + [mk_empty(i) for i in range(8)], "x8.s")
```

```python
import math, sys
from asmlib import *
from stamp import *

KA_X, KA_WQ, KA_WK, KA_WV, KA_WO, KA_BX, KA_WR, KA_WG, KA_WU, KA_WD, KA_GW, KA_OUT, KA_DBG, KA_WS = [8*i for i in range(14)]
WS_Q1 = 0
WS_Q2 = 0x200000
WS_KV = 0x280000
WS_KMAX = 0x2B0000
WS_RKEY = 0x2B0200
WS_R = 0x2B1000
WS_G = 0x2B3000
WS_O = 0x300000
WS_OT = 0x500000
WS_Y = 0x580000
WS_SIZE = 0x1000000
X_BYTES = 2048*640*2
W_BYTES = 640*640*2
QSCALE = (20 ** -0.5) * math.log2(math.e)

def wg_decode(A):
    A("s_cmp_ge_u32 s2, 256")

def gemm_prologue(A, L_exit):
    A(f"s_cmp_ge_u32 s2, 256")
    A(f"s_cbranch_scc1 {L_exit}")
    stamp_rt(A, 0)
    stamp(A, 1)
    A("v_and_b32 v1, 63, v0")
    A("v_lshrrev_b32 v4, 6, v0")
    A("v_and_b32 v2, 15, v0")
    A("v_readfirstlane_b32 s29, v4")
    A("v_lshrrev_b32 v3, 4, v1")
    A("s_and_b32 s30, s2, 7")
    A("s_lshl_b32 s30, s30, 2")
    A("s_lshr_b32 s31, s2, 6")
    A("s_add_u32 s30, s30, s31")
    A("s_lshr_b32 s31, s2, 3")
    A("s_and_b32 s31, s31, 7")

def w_dma_offsets(A, vbase, swz):
    A("s_lshl_b32 s32, s29, 6")
    A("s_mul_i32 s33, s31, 160")
    A("s_movk_i32 s34, 6554")
    A("s_movk_i32 s35, 1280")
    for t in range(5):
        A(f"v_add_u32 v5, s32, v1")
        if t:
            A(f"v_add_u32 v5, {256*t}, v5")
        A("v_mul_lo_u32 v6, v5, s34")
        A("v_lshrrev_b32 v6, 16, v6")
        A("v_mul_u32_u24 v7, 10, v6")
        A("v_sub_u32 v7, v5, v7")
        if swz:
            A("v_lshrrev_b32 v5, 1, v6")
            A("v_and_b32 v5, 4, v5")
            A("v_xor_b32 v6, v6, v5")
        A("v_mul_lo_u32 v6, v6, s35")
        A("v_lshl_add_u32 v6, v7, 4, v6")
        A(f"v_add_u32 v{vbase+t}, s33, v6")

def k1(A):
    name = "proj_kernel"
    kernel_begin(A, name)
    L_exit = A.label("k1exit")
    gemm_prologue(A, L_exit)
    A(f"s_load_dwordx4 s[36:39], s[0:1], {KA_X}")
    A(f"s_load_dwordx4 s[40:43], s[0:1], {KA_WK}")
    A(f"s_load_dwordx2 s[44:45], s[0:1], {KA_WR}")
    A(f"s_load_dwordx2 s[46:47], s[0:1], {KA_GW}")
    A(f"s_load_dwordx2 s[48:49], s[0:1], {KA_WS}")
    VX = 64
    VACC = 32
    VE = 52
    VW = 144
    VDO = 8
    VXO = 13
    VB1, VB2, VB1H, VB2H = 14, 15, 16, 17
    w_dma_offsets(A, VDO, True)
    A("s_lshl_b32 s32, s30, 6")
    A("s_lshl_b32 s33, s29, 4")
    A("s_add_u32 s50, s32, s33")
    A("v_add_u32 v5, s50, v2")
    A("v_mul_lo_u32 v6, v5, s35")
    A(f"v_lshl_add_u32 v{VXO}, v3, 4, v6")
    A("v_lshrrev_b32 v5, 2, v2")
    A("v_and_b32 v6, 3, v2")
    A("v_lshl_add_u32 v5, v3, 3, v5")
    A("v_and_b32 v7, 1, v3")
    A("v_lshlrev_b32 v7, 2, v7")
    A("v_add_u32 v18, v5, v7")
    A("v_mul_u32_u24 v18, 160, v18")
    A(f"v_lshl_add_u32 v{VB1}, v6, 3, v18")
    A("v_xor_b32 v7, 4, v7")
    A("v_add_u32 v18, v5, v7")
    A("v_mul_u32_u24 v18, 160, v18")
    A(f"v_lshl_add_u32 v{VB2}, v6, 3, v18")
    A(f"v_add_u32 v{VB1H}, 51200, v{VB1}")
    A(f"v_add_u32 v{VB2H}, 51200, v{VB2}")
    XB = 102400
    A("v_mul_u32_u24 v18, 40, v5")
    A(f"v_add_u32 v18, {XB}, v18")
    A("v_lshl_add_u32 v19, v6, 3, v18")
    A("v_add_u32 v20, 32, v18")
    for i in range(VACC, VE + 8):
        A(f"v_mov_b32 v{i}, 0")
    A("s_waitcnt lgkmcnt(0)")
    srd(A, 8, 36, X_BYTES)
    srd(A, 12, 38, W_BYTES)
    srd(A, 20, 48, WS_SIZE)
    A("s_cmp_eq_u32 s31, 0")
    A("s_cselect_b32 s16, s40, s42")
    A("s_cselect_b32 s17, s41, s43")
    A("s_and_b32 s17, s17, 0xffff")
    A("s_movk_i32 s18, 25600")
    A("s_mov_b32 s19, 0x00020000")
    L_nox = A.label("nox")
    A("s_cmp_ge_u32 s31, 2")
    A(f"s_cbranch_scc1 {L_nox}")
    A("v_lshlrev_b32 v21, 4, v1")
    A("s_lshl_b32 s32, s29, 10")
    for t in range(7):
        A(f"s_add_u32 s33, s32, {t*4096}")
        A(f"s_add_u32 m0, s33, {XB}")
        A("s_nop 0")
        A(f"buffer_load_dwordx4 v21, s[16:19], s33 offen lds")
    A("s_waitcnt vmcnt(0)")
    A(f"{L_nox}:")
    stamp(A, 2)
    A("s_lshl_b32 s32, s29, 10")
    for c5 in range(5):
        A(f"s_mov_b32 s33, {c5*163840}")
        for t in range(5):
            A(f"s_add_u32 m0, s32, {(c5*20+t*4)*1024}")
            A("s_nop 0")
            A(f"buffer_load_dwordx4 v{VDO+t}, s[12:15], s33 offen lds")
        for s in range(4*c5, 4*c5+4):
            A(f"buffer_load_dwordx4 {vr(VX+4*s,4)}, v{VXO}, s[8:11], 0 offen offset:{s*64}")
    A("v_add_u32 v5, s50, v2")
    A("v_lshrrev_b32 v6, 5, v5")
    A("v_and_b32 v7, 31, v5")
    A("v_lshlrev_b32 v6, 5, v6")
    A("s_lshl_b32 s33, s31, 2")
    A("v_add_u32 v6, s33, v6")
    for mt in range(5):
        A(f"v_add_u32 v27, {4*mt}, v3")
        A("v_mul_u32_u24 v28, 52, v27")
        A("v_lshrrev_b32 v28, 8, v28")
        A("v_mul_u32_u24 v29, 5, v28")
        A("v_sub_u32 v29, v27, v29")
        A("v_add_u32 v28, v6, v28")
        A("v_lshrrev_b32 v30, 1, v29")
        A("v_lshl_add_u32 v30, v30, 5, v7")
        A("v_lshlrev_b32 v30, 4, v30")
        A("v_lshl_add_u32 v30, v28, 10, v30")
        A("v_and_b32 v31, 1, v29")
        A("v_lshl_add_u32 v30, v31, 3, v30")
        A("v_lshlrev_b32 v31, 3, v7")
        A("v_lshl_add_u32 v31, v28, 8, v31")
        A(f"v_add_u32 v31, {WS_Q2}, v31")
        A("v_cmp_eq_u32 vcc, 4, v29")
        A("s_nop 1")
        A(f"v_cndmask_b32 v{22+mt}, v30, v31, vcc")
    LA = 5
    NS = LA + 1
    stamp(A, 3)
    for c5 in range(5):
        A(f"s_waitcnt vmcnt({9*(4-c5)})")
        A("s_barrier")
        if c5 in (0, 4): stamp(A, 4 if c5 == 0 else 5)
        items = [(s, mt) for s in range(4*c5, 4*c5+4) for mt in range(5)]
        def rd(i):
            s, mt = items[i]
            slot = VW + 4*(i % NS)
            b1, b2 = (VB1, VB2) if s < 10 else (VB1H, VB2H)
            off = (s % 10) * 5120 + mt * 32
            A(f"ds_read_b64_tr_b16 {vr(slot,2)}, v{b1} offset:{off}")
            A(f"ds_read_b64_tr_b16 {vr(slot+2,2)}, v{b2} offset:{off}")
        for i in range(LA):
            rd(i)
        for i in range(len(items)):
            if i + LA < len(items):
                rd(i + LA)
            pend = min(LA, len(items) - 1 - i)
            A(f"s_waitcnt lgkmcnt({2*pend})")
            s, mt = items[i]
            slot = VW + 4*(i % NS)
            A(f"v_mfma_f32_16x16x32_bf16 {vr(VACC+4*mt,4)}, {vr(slot,4)}, {vr(VX+4*s,4)}, {vr(VACC+4*mt,4)}")
    A("s_nop 7")
    A(f"s_mov_b32 s33, {f32bits(QSCALE):#x}")
    for mt in range(5):
        a = VACC + 4*mt
        for i in range(4):
            A(f"v_mul_f32 v{a+i}, s33, v{a+i}")
        A(f"v_cvt_pk_bf16_f32 v{a}, v{a}, v{a+1}")
        A(f"v_cvt_pk_bf16_f32 v{a+1}, v{a+2}, v{a+3}")
        A(f"buffer_store_dwordx2 {vr(a,2)}, v{22+mt}, s[20:23], 0 offen")
    stamp(A, 6)
    stamp_rt(A, 7)
    stamp_flush(A, 8, 20, 29, 0)
    A("s_mov_b64 exec, -1")
    L_k, L_v, L_r = A.label("xk"), A.label("xv"), A.label("xr")
    A("s_cmp_eq_u32 s31, 0")
    A(f"s_cbranch_scc1 {L_k}")
    A("s_cmp_eq_u32 s31, 1")
    A(f"s_cbranch_scc1 {L_v}")
    A("s_cmp_eq_u32 s31, 2")
    A(f"s_cbranch_scc1 {L_r}")
    A("s_cmp_lg_u32 s31, 3")
    A(f"s_cbranch_scc1 {L_exit}")
    A("s_mul_i32 s33, s30, 1280")
    A(f"s_add_u32 s33, s33, {WS_Y}")
    A("v_lshlrev_b32 v5, 4, v0")
    for i in range(4):
        A(f"v_mov_b32 v{8+i}, 0")
    A("v_cmp_gt_u32 vcc, 80, v0")
    A("s_and_saveexec_b64 s[54:55], vcc")
    A(f"s_cbranch_execz {L_exit}")
    A("buffer_store_dwordx4 v[8:11], v5, s[20:23], s33 offen")
    A("s_endpgm")

    def extra_mm(swap):
        items = [(s, t) for s in range(20) for t in range(2)]
        def rd(i):
            s, t = items[i]
            slot = VW + 4*(i % NS)
            b = 19 if t == 0 else 20
            A(f"ds_read_b64_tr_b16 {vr(slot,2)}, v{b} offset:{s*1280}")
            A(f"ds_read_b64_tr_b16 {vr(slot+2,2)}, v{b} offset:{s*1280+160}")
        for i in range(LA):
            rd(i)
        for i in range(len(items)):
            if i + LA < len(items):
                rd(i + LA)
            pend = min(LA, len(items) - 1 - i)
            A(f"s_waitcnt lgkmcnt({2*pend})")
            s, t = items[i]
            slot = VW + 4*(i % NS)
            if swap:
                A(f"v_mfma_f32_16x16x32_bf16 {vr(VE+4*t,4)}, {vr(VX+4*s,4)}, {vr(slot,4)}, {vr(VE+4*t,4)}")
            else:
                A(f"v_mfma_f32_16x16x32_bf16 {vr(VE+4*t,4)}, {vr(slot,4)}, {vr(VX+4*s,4)}, {vr(VE+4*t,4)}")
        A("s_nop 7")
        for t in range(2):
            a = VE + 4*t
            A(f"v_cvt_pk_bf16_f32 v{a}, v{a}, v{a+1}")
            A(f"v_cvt_pk_bf16_f32 v{a+1}, v{a+2}, v{a+3}")
    def kvbase():
        A("s_mul_i32 s51, s30, 5120")
        A(f"s_add_u32 s51, s51, {WS_KV}")
        A("s_lshr_b32 s52, s29, 1")
        A("s_and_b32 s53, s29, 1")
    A(f"{L_k}:")
    extra_mm(False)
    kvbase()
    A("s_lshl_b32 s33, s53, 4")
    A("v_add_u32 v5, s33, v2")
    A("v_lshrrev_b32 v6, 1, v3")
    A("v_lshl_add_u32 v6, v6, 5, v5")
    A("v_lshlrev_b32 v6, 4, v6")
    A("v_and_b32 v7, 1, v3")
    A("v_lshl_add_u32 v6, v7, 3, v6")
    A("s_mul_i32 s33, s52, 2560")
    A("s_add_u32 s33, s33, s51")
    A(f"buffer_store_dwordx2 {vr(VE,2)}, v6, s[20:23], s33 offen")
    A("v_lshlrev_b32 v6, 3, v5")
    A("s_add_u32 s33, s33, 2304")
    A("v_cmp_eq_u32 vcc, 0, v3")
    A("s_and_saveexec_b64 s[54:55], vcc")
    A(f"buffer_store_dwordx2 {vr(VE+4,2)}, v6, s[20:23], s33 offen")
    A("s_mov_b64 exec, s[54:55]")
    A(f"v_cndmask_b32 v{VE+4}, 0, v{VE+4}, vcc")
    A(f"v_cndmask_b32 v{VE+5}, 0, v{VE+5}, vcc")
    A("v_mov_b32 v7, 0")
    for r in (VE, VE+1, VE+4, VE+5):
        A(f"v_dot2c_f32_bf16 v7, v{r}, v{r}")
        A("s_nop 3")
    A("v_xor_b32 v5, 16, v1")
    A("v_lshlrev_b32 v5, 2, v5")
    A("ds_bpermute_b32 v6, v5, v7")
    A("s_waitcnt lgkmcnt(0)")
    A("v_add_f32 v7, v7, v6")
    A("v_xor_b32 v5, 32, v1")
    A("v_lshlrev_b32 v5, 2, v5")
    A("ds_bpermute_b32 v6, v5, v7")
    A("s_waitcnt lgkmcnt(0)")
    A("v_add_f32 v7, v7, v6")
    for sh in (8, 4, 2, 1):
        A("s_nop 1")
        A(f"v_max_f32_dpp v7, v7, v7 row_ror:{sh} row_mask:0xf bank_mask:0xf")
    A("s_lshl_b32 s33, s30, 2")
    A("s_add_u32 s33, s33, s29")
    A("s_lshl_b32 s33, s33, 2")
    A(f"s_add_u32 s33, s33, {WS_KMAX}")
    A("v_mov_b32 v6, 0")
    A("v_cmp_eq_u32 vcc, 0, v1")
    A("s_and_saveexec_b64 s[54:55], vcc")
    A("buffer_store_dword v7, v6, s[20:23], s33 offen")
    A("s_endpgm")
    A(f"{L_v}:")
    extra_mm(True)
    kvbase()
    A("v_lshrrev_b32 v6, 1, v3")
    A("v_mul_u32_u24 v6, 20, v6")
    A("v_add_u32 v6, v6, v2")
    A("v_lshlrev_b32 v6, 4, v6")
    A("v_and_b32 v7, 1, v3")
    A("v_lshl_add_u32 v6, v7, 3, v6")
    A("s_mul_i32 s33, s52, 2560")
    A("s_mul_i32 s32, s53, 640")
    A("s_add_u32 s33, s33, s32")
    A("s_add_u32 s33, s33, s51")
    A("s_add_u32 s33, s33, 1024")
    A(f"buffer_store_dwordx2 {vr(VE,2)}, v6, s[20:23], s33 offen")
    A("v_cmp_gt_u32 vcc, 4, v2")
    A("s_and_saveexec_b64 s[54:55], vcc")
    A(f"buffer_store_dwordx2 {vr(VE+4,2)}, v6, s[20:23], s33 offen offset:256")
    A("s_endpgm")
    A(f"{L_r}:")
    A("v_and_b32 v5, 1, v2")
    A("v_cmp_eq_u32 vcc, 0, v5")
    A("v_mov_b32 v6, s46")
    A("v_mov_b32 v7, s44")
    A("v_cndmask_b32 v6, v6, v7, vcc")
    A("v_mov_b32 v7, s47")
    A("v_mov_b32 v5, s45")
    A("v_cndmask_b32 v7, v7, v5, vcc")
    A("v_lshlrev_b32 v5, 4, v3")
    A("v_add_co_u32 v6, vcc, v6, v5")
    A("s_nop 1")
    A("v_addc_co_u32 v7, vcc, 0, v7, vcc")
    for s in range(20):
        A(f"global_load_dwordx4 {vr(VW+4*s,4)}, v[6:7], off offset:{s*64}")
    for s in range(20):
        A(f"s_waitcnt vmcnt({19-s})")
        A(f"v_mfma_f32_16x16x32_bf16 {vr(VE,4)}, {vr(VW+4*s,4)}, {vr(VX+4*s,4)}, {vr(VE,4)}")
    A("s_nop 7")
    A("v_add_u32 v5, s50, v2")
    A("v_lshlrev_b32 v6, 2, v5")
    A(f"v_ashrrev_i32 v7, 31, v{VE}")
    A("v_or_b32 v7, 0x80000000, v7")
    A(f"v_xor_b32 v7, v7, v{VE}")
    A("v_and_b32 v7, 0xfffff800, v7")
    A("v_sub_u32 v5, 2047, v5")
    A("v_or_b32 v7, v7, v5")
    for sh in (8, 4, 2, 1):
        A("s_nop 1")
        A(f"v_max_u32_dpp v7, v7, v7 row_ror:{sh} row_mask:0xf bank_mask:0xf")
    A("v_cmp_eq_u32 vcc, 0, v3")
    A("s_and_saveexec_b64 s[54:55], vcc")
    A(f"s_mov_b32 s33, {WS_R}")
    A(f"buffer_store_dword v{VE}, v6, s[20:23], s33 offen")
    A(f"s_mov_b32 s33, {WS_G}")
    A(f"buffer_store_dword v{VE+1}, v6, s[20:23], s33 offen")
    A("s_lshl_b32 s33, s30, 2")
    A("s_add_u32 s33, s33, s29")
    A("s_lshl_b32 s33, s33, 2")
    A(f"s_add_u32 s33, s33, {WS_RKEY}")
    A("v_mov_b32 v6, 0")
    A("v_cmp_eq_u32 vcc, 0, v1")
    A("s_and_saveexec_b64 s[54:55], vcc")
    A("buffer_store_dword v7, v6, s[20:23], s33 offen")
    A(f"{L_exit}:")
    A("s_endpgm")
    return (name, (256,1,1), (256,1,1), 131072, 224, 224)

def build(kernels, path):
    A = Asm()
    infos = [k(A) for k in kernels]
    hdr = "".join(f"; @launch kernel={n} grid=({g[0]},{g[1]},{g[2]}) block=({b[0]},{b[1]},{b[2]}) lds={l}\n" for n, g, b, l, nv, ac in infos)
    out = hdr + '.amdgcn_target "amdgcn-amd-amdhsa--gfx950"\n.text\n' + A.text() + '.section .rodata,"a"\n'
    seen = set()
    for n, g, b, l, nv, ac in infos:
        if n in seen: continue
        seen.add(n)
        out += kernel_desc(n, 256 if Cfg.on else nv, 256 if Cfg.on else ac)
    open(path, "w").write(out)

if __name__ == "__main__":
    build([k1], "t1.s")
```

```python
from gen1 import *

U_TILES = 4
LTHR = f32bits(2.0 ** -30)

from stamp import *
def k2(A):
    name = "attn_kernel"
    kernel_begin(A, name)
    L_exit = A.label("k2exit")
    A("s_cmp_ge_u32 s2, 256")
    A(f"s_cbranch_scc1 {L_exit}")
    stamp_rt(A, 0)
    stamp(A, 1)
    A(f"s_load_dwordx2 s[48:49], s[0:1], {KA_WS}")
    A("v_and_b32 v1, 63, v0")
    A("v_lshrrev_b32 v4, 6, v0")
    A("v_and_b32 v2, 31, v0")
    A("v_readfirstlane_b32 s29, v4")
    A("v_lshrrev_b32 v3, 5, v1")
    A("s_and_b32 s30, s2, 7")
    A("s_lshl_b32 s30, s30, 2")
    A("s_lshr_b32 s31, s2, 6")
    A("s_add_u32 s30, s30, s31")
    A("s_lshr_b32 s31, s2, 3")
    A("s_and_b32 s31, s31, 7")
    A("s_and_b32 s27, s29, 3")
    A("s_lshr_b32 s28, s29, 2")
    A("s_lshl_b32 s26, s31, 2")
    A("s_add_u32 s26, s26, s27")
    A("s_lshl_b32 s25, s30, 6")
    A("s_add_u32 s25, s25, s26")
    QB1 = [8, 16]; QB2 = [12, 14]
    VIDX = 4
    VKA, VA2, VVA = 20, 21, 22
    S = [32, 48, 64, 80]
    O = [96, 112]
    KA1 = [128, 136]; KA2 = [132, 140]
    V0 = [144, 152]; V1 = [148, 156]
    A("v_lshlrev_b32 v5, 4, v1")
    A("v_lshlrev_b32 v6, 3, v2")
    A("v_lshlrev_b32 v7, 30, v3")
    A("v_or_b32 v6, v6, v7")
    A("v_lshlrev_b32 v7, 3, v1")
    A("s_waitcnt lgkmcnt(0)")
    srd(A, 8, 48, WS_SIZE)
    A("s_lshl_b32 s32, s25, 10")
    A(f"buffer_load_dwordx4 {vr(QB1[0],4)}, v5, s[8:11], s32 offen")
    A("s_add_u32 s32, s32, 32768")
    A(f"buffer_load_dwordx4 {vr(QB1[1],4)}, v5, s[8:11], s32 offen")
    A("s_lshl_b32 s32, s25, 8")
    A(f"s_add_u32 s32, s32, {WS_Q2}")
    A(f"buffer_load_dwordx2 {vr(QB2[0],2)}, v6, s[8:11], s32 offen")
    A("s_add_u32 s32, s32, 8192")
    A(f"buffer_load_dwordx2 {vr(QB2[1],2)}, v6, s[8:11], s32 offen")
    A(f"s_mov_b32 s32, {WS_KMAX}")
    A("buffer_load_dwordx2 v[24:25], v7, s[8:11], s32 offen")
    A("s_lshl_b32 s32, s29, 10")
    for i in range(20):
        A(f"s_add_u32 m0, s32, {i*8192}")
        A(f"s_add_u32 s33, s32, {WS_KV + i*8192}")
        A(f"buffer_load_dwordx4 v5, s[8:11], s33 offen lds")
    A("s_mul_i32 s32, s28, 2560")
    A(f"v_add_u32 v{VKA}, s32, v5")
    A("v_lshlrev_b32 v6, 3, v2")
    A(f"v_add_u32 v{VA2}, s32, v6")
    A("v_mul_u32_u24 v6, 20, v3")
    A("v_add_u32 v6, v6, v2")
    A("v_lshlrev_b32 v6, 4, v6")
    A(f"v_add_u32 v{VVA}, s32, v6")
    A(f"v_mov_b32 v{VIDX}, 0xdddd")
    A("s_mov_b32 s40, 0x000fffff")
    A("s_mov_b32 s41, 0x000fffff")
    A("s_mov_b32 s42, -1")
    A("s_mov_b32 s43, 0")
    for r in range(O[0], O[0] + 32):
        A(f"v_mov_b32 v{r}, 0")
    for r in range(S[3] + 8, S[3] + 16):
        A(f"v_mov_b32 v{r}, 0")
    for r in range(144, 160):
        A(f"v_mov_b32 v{r}, 0x3f803f80")
    for par in range(2):
        A(f"v_mov_b32 v{KA2[par]}, 0x3f80")
        A(f"v_mov_b32 v{KA2[par]+1}, 0")
    A("s_waitcnt vmcnt(20)")
    A("v_max_f32 v24, v24, v25")
    for sh in (8, 4, 2, 1):
        A("s_nop 1")
        A(f"v_max_f32_dpp v24, v24, v24 row_ror:{sh} row_mask:0xf bank_mask:0xf")
    A("s_nop 1")
    for i in range(4):
        A(f"v_readlane_b32 s{34+i}, v24, {16*i}")
    A("s_max_u32 s34, s34, s35")
    A("s_max_u32 s36, s36, s37")
    A("s_max_u32 s34, s34, s36")
    A("v_cmp_eq_u32 s[44:45], 1, v3")
    for b in range(2):
        t = 26 + 2*b
        A(f"v_mov_b32 v{t}, 0")
        for r in list(range(QB1[b], QB1[b]+4)) + [QB2[b], QB2[b]+1]:
            A(f"v_dot2c_f32_bf16 v{t}, v{r}, v{r}")
        A("s_nop 3")
        A(f"v_mov_b32 v{t+1}, v{t}")
        A("s_nop 1")
        A(f"v_permlane32_swap_b32 v{t}, v{t+1}")
        A("s_nop 1")
        A(f"v_add_f32 v{t}, v{t}, v{t+1}")
        A(f"v_mul_f32 v{t}, s34, v{t}")
        A(f"v_sqrt_f32 v{t}, v{t}")
        A("s_nop 0")
        A(f"v_mul_f32 v{t}, {f32bits(-(1.0 + 2.0**-6)):#x}, v{t}")
        A(f"v_lshrrev_b32 v{t}, 16, v{t}")
        A(f"v_cndmask_b32 v{QB2[b]}, v{QB2[b]}, v{t}, s[44:45]")
    def ldK(par, off):
        A(f"ds_read_b128 {vr(KA1[par],4)}, v{VKA} offset:{off}")
    def group(kpar, koff, vpar, voff):
        A("s_mov_b64 exec, s[40:41]")
        A(f"ds_read_b128 {vr(V0[vpar],4)}, v{VVA} offset:{voff+1024}")
        A(f"ds_read_b128 {vr(V1[vpar],4)}, v{VVA} offset:{voff+1664}")
        A("s_mov_b64 exec, s[42:43]")
        A(f"ds_read_b64 {vr(KA2[kpar],2)}, v{VA2} offset:{koff+2304}")
        A("s_mov_b64 exec, -1")
        A(f"ds_read_b128 {vr(KA1[kpar],4)}, v{VKA} offset:{koff}")
    def qk1(buf, par, b):
        A(f"v_mfma_f32_32x32x16_bf16 {vr(S[buf],16)}, {vr(KA1[par],4)}, {vr(QB1[b],4)}, 0")
    def qk2(buf, par, b):
        A(f"v_mfma_f32_32x32x8_bf16 {vr(S[buf],16)}, {vr(KA2[par],2)}, {vr(QB2[b],2)}, {vr(S[buf],16)}")
    def pv(buf, half, vpar, b):
        vv = V0[vpar] if half == 0 else V1[vpar]
        A(f"v_smfmac_f32_32x32x32_bf16 {vr(O[b],16)}, {vr(vv,4)}, {vr(S[buf]+8*half,8)}, v{VIDX}")
    def ex(buf, lo, hi):
        for r in range(lo, hi):
            A(f"v_exp_f32 v{S[buf]+r}, v{S[buf]+r}")
    STEP = 5120
    n_iter = 32 // U_TILES
    def need_loads(j):
        tiles = min(64, 2*U_TILES*(j+1) + 4)
        return min(20, -(-tiles*2560 // 8192))
    stamp(A, 2)
    A(f"s_waitcnt vmcnt({20-need_loads(0)})")
    A("s_barrier")
    stamp(A, 3)
    A("s_mov_b64 exec, s[42:43]")
    A(f"ds_read_b64 {vr(KA2[0],2)}, v{VA2} offset:2304")
    A("s_mov_b64 exec, -1")
    A(f"ds_read_b128 {vr(KA1[0],4)}, v{VKA} offset:0")
    group(1, STEP, 0, 0)
    A("s_waitcnt lgkmcnt(4)")
    qk1(0, 0, 0); qk2(0, 0, 0); qk1(1, 0, 1); qk2(1, 0, 1)
    A("s_mov_b32 s46, 0")
    A("s_nop 15")
    L_loop = A.label("loop")
    L_w1, L_w2, L_go = A.label("w1"), A.label("w2"), A.label("go")
    A(f"{L_loop}:")
    for t in range(U_TILES):
        par = t & 1
        for b in range(2):
            i = 2*t + b
            buf = i % 4
            ex(buf, 0, 2)
            if b == 0:
                pv((i-1) % 4, 1, par ^ 1, 1)
                A("s_waitcnt lgkmcnt(0)")
                group(par, (t+2)*STEP, par ^ 1, (t+1)*STEP)
            else:
                pv((i-1) % 4, 1, par, 0)
            ex(buf, 2, 6)
            qk1((i+2) % 4, par ^ 1, b)
            ex(buf, 6, 10)
            qk2((i+2) % 4, par ^ 1, b)
            ex(buf, 10, 14)
            pv(buf, 0, par, b)
            if t == U_TILES-1 and b == 1:
                A(f"v_add_u32 v{VKA}, {U_TILES*STEP}, v{VKA}")
                A(f"v_add_u32 v{VA2}, {U_TILES*STEP}, v{VA2}")
                A(f"v_add_u32 v{VVA}, {U_TILES*STEP}, v{VVA}")
                A("s_add_u32 s46, s46, 1")
                A("s_cmp_gt_u32 s46, 2")
            ex(buf, 14, 16)
    A(f"s_cbranch_scc1 {L_go}")
    A("s_cmp_eq_u32 s46, 1")
    A(f"s_cbranch_scc1 {L_w1}")
    A("s_waitcnt vmcnt(0)")
    A("s_barrier")
    A(f"s_branch {L_loop}")
    A(f"{L_w1}:")
    A(f"s_waitcnt vmcnt({20-need_loads(1)})")
    A("s_barrier")
    A(f"s_branch {L_loop}")
    A(f"{L_go}:")
    A(f"s_cmp_lt_u32 s46, {n_iter}")
    A(f"s_cbranch_scc1 {L_loop}")
    stamp(A, 4)
    A("s_nop 1")
    pv(3, 1, 1, 1)
    A("s_waitcnt lgkmcnt(0)")
    A("s_nop 15")
    A("s_barrier")
    A("s_lshl_b32 s32, s29, 12")
    A("v_add_u32 v6, s32, v5")
    A("s_xor_b32 s32, s32, 0x4000")
    A("v_add_u32 v7, s32, v5")
    L_x1, L_x2 = A.label("x1"), A.label("x2")
    A("s_cmp_eq_u32 s28, 0")
    A(f"s_cbranch_scc1 {L_x1}")
    for j in range(4):
        A(f"ds_write_b128 v6, {vr(O[0]+4*j,4)} offset:{j*1024}")
    for r in range(16):
        A(f"v_mov_b32 v{O[0]+r}, v{O[1]+r}")
    for r in range(4):
        A(f"v_mov_b32 v{QB1[0]+r}, v{QB1[1]+r}")
    for r in range(2):
        A(f"v_mov_b32 v{QB2[0]+r}, v{QB2[1]+r}")
    A(f"s_branch {L_x2}")
    A(f"{L_x1}:")
    for j in range(4):
        A(f"ds_write_b128 v6, {vr(O[1]+4*j,4)} offset:{j*1024}")
    A(f"{L_x2}:")
    A("s_waitcnt lgkmcnt(0)")
    A("s_barrier")
    for j in range(4):
        A(f"ds_read_b128 {vr(S[0]+4*j,4)}, v7 offset:{j*1024}")
    A("s_lshl_b32 s32, s30, 1")
    A("s_add_u32 s32, s32, s28")
    A("s_lshl_b32 s32, s32, 1")
    A("v_lshrrev_b32 v6, 4, v2")
    A("v_add_u32 v6, s32, v6")
    A("v_and_b32 v7, 15, v2")
    A("v_lshlrev_b32 v24, 5, v6")
    A("v_add_u32 v24, s26, v24")
    A("v_lshl_add_u32 v24, v24, 4, v7")
    A("v_lshlrev_b32 v24, 5, v24")
    A("v_lshl_add_u32 v24, v3, 4, v24")
    A("s_lshr_b32 s33, s26, 1")
    A("v_lshlrev_b32 v25, 4, v6")
    A("v_add_u32 v25, s33, v25")
    A("v_lshl_add_u32 v25, v25, 4, v7")
    A("v_lshlrev_b32 v25, 4, v25")
    A("s_and_b32 s33, s26, 1")
    A("s_lshl_b32 s33, s33, 3")
    A("v_add_u32 v25, s33, v25")
    A("v_lshlrev_b32 v26, 30, v3")
    A("v_or_b32 v25, v25, v26")
    A("s_waitcnt lgkmcnt(0)")
    for r in range(13):
        A(f"v_add_f32 v{O[0]+r}, v{O[0]+r}, v{S[0]+r}")
    L_fb, L_norm = A.label("fb"), A.label("norm")
    A(f"v_mov_b32 v26, {LTHR:#x}")
    A(f"v_cmp_nge_f32 vcc, v{O[0]+12}, v26")
    A("s_nop 4")
    A(f"s_cbranch_vccnz {L_fb}")
    A(f"{L_norm}:")
    A(f"v_rcp_f32 v26, v{O[0]+12}")
    A("s_nop 0")
    for r in range(12):
        A(f"v_mul_f32 v{O[0]+r}, v{O[0]+r}, v26")
    for r in range(6):
        A(f"v_cvt_pk_bf16_f32 v{S[0]+r}, v{O[0]+2*r}, v{O[0]+2*r+1}")
    A(f"s_mov_b32 s32, {WS_O}")
    A(f"buffer_store_dwordx4 {vr(S[0],4)}, v24, s[8:11], s32 offen")
    A(f"s_mov_b32 s32, {WS_OT}")
    A(f"buffer_store_dwordx2 {vr(S[0]+4,2)}, v25, s[8:11], s32 offen")
    stamp(A, 5)
    stamp_rt(A, 6)
    stamp_flush(A, 7, 8, 29, 1)
    A(f"{L_exit}:")
    A("s_endpgm")
    A(f"{L_fb}:")
    A(f"v_cndmask_b32 v{QB2[0]}, v{QB2[0]}, 0, s[44:45]")
    A("v_lshlrev_b32 v28, 3, v2")
    A("v_mul_u32_u24 v29, 20, v3")
    A("v_add_u32 v29, v29, v2")
    A("v_lshlrev_b32 v29, 4, v29")
    A("v_mov_b32 v30, 0xff800000")
    A(f"s_mov_b32 s32, {WS_KV}")
    L_p1, L_p2 = A.label("p1"), A.label("p2")
    def fb_k():
        A(f"buffer_load_dwordx4 {vr(KA1[0],4)}, v5, s[8:11], s32 offen")
        A("s_mov_b64 exec, s[42:43]")
        A(f"buffer_load_dwordx2 {vr(KA2[0],2)}, v28, s[8:11], s32 offen offset:2304")
        A("s_mov_b64 exec, -1")
    A(f"{L_p1}:")
    fb_k()
    A("s_waitcnt vmcnt(0)")
    qk1(0, 0, 0); qk2(0, 0, 0)
    A("s_nop 15")
    for r in range(0, 16, 2):
        A(f"v_max3_f32 v30, v{S[0]+r}, v{S[0]+r+1}, v30")
    A("s_add_u32 s32, s32, 2560")
    A(f"s_cmp_lt_u32 s32, {WS_KV + 163840}")
    A(f"s_cbranch_scc1 {L_p1}")
    A("v_mov_b32 v31, v30")
    A("s_nop 1")
    A("v_permlane32_swap_b32 v30, v31")
    A("s_nop 1")
    A("v_max_f32 v30, v30, v31")
    for r in range(16):
        A(f"v_mov_b32 v{O[0]+r}, 0")
    A(f"s_mov_b32 s32, {WS_KV}")
    A(f"{L_p2}:")
    fb_k()
    A("s_mov_b64 exec, s[40:41]")
    A(f"buffer_load_dwordx4 {vr(V0[0],4)}, v29, s[8:11], s32 offen offset:1024")
    A(f"buffer_load_dwordx4 {vr(V1[0],4)}, v29, s[8:11], s32 offen offset:1664")
    A("s_mov_b64 exec, -1")
    A("s_waitcnt vmcnt(0)")
    qk1(0, 0, 0); qk2(0, 0, 0)
    A("s_nop 15")
    for r in range(16):
        A(f"v_sub_f32 v{S[0]+r}, v{S[0]+r}, v30")
    ex(0, 0, 16)
    A("s_nop 2")
    pv(0, 0, 0, 0); pv(0, 1, 0, 0)
    A("s_add_u32 s32, s32, 2560")
    A(f"s_cmp_lt_u32 s32, {WS_KV + 163840}")
    A(f"s_cbranch_scc1 {L_p2}")
    A("s_nop 15")
    A(f"s_branch {L_norm}")
    return (name, (256,1,1), (512,1,1), 163840, 160, 160)

if __name__ == "__main__":
    build([k1, k2], "t2.s")
```

```python
import gen2
from gen2 import *
LOG2E = math.log2(math.e)

def argmax_idx(A, srdb, vt, vlane, sdst, stmp):
    pass

def bf16r(A, d, s):
    A(f"v_cvt_pk_bf16_f32 v{d}, v{s}, v{s}")
    A(f"v_and_b32 v{d}, 0xffff0000, v{d}")

def sigmoid(A, d, s, t):
    A(f"v_mul_f32 v{t}, {f32bits(-LOG2E):#x}, v{s}")
    A(f"v_exp_f32 v{t}, v{t}")
    A("s_nop 0")
    A(f"v_add_f32 v{t}, 1.0, v{t}")
    A(f"v_rcp_f32 v{d}, v{t}")
    A("s_nop 0")

def key_reduce(A, v, v2, sdst, st):
    A(f"v_max_u32 v{v}, v{v}, v{v2}")
    for sh in (8, 4, 2, 1):
        A("s_nop 1")
        A(f"v_max_u32_dpp v{v}, v{v}, v{v} row_ror:{sh} row_mask:0xf bank_mask:0xf")
    A("s_nop 1")
    for i in range(4):
        A(f"v_readlane_b32 s{st+i}, v{v}, {16*i}")
    A(f"s_max_u32 s{st}, s{st}, s{st+1}")
    A(f"s_max_u32 s{st+2}, s{st+2}, s{st+3}")
    A(f"s_max_u32 s{st}, s{st}, s{st+2}")
    A(f"s_and_b32 s{st}, s{st}, 2047")
    A(f"s_sub_u32 s{sdst}, 2047, s{st}")

def kf(A):
    name = "ffn_kernel"
    kernel_begin(A, name)
    L_exit = A.label("kfexit")
    A("s_cmp_ge_u32 s2, 192")
    A(f"s_cbranch_scc1 {L_exit}")
    stamp_rt(A, 0)
    stamp(A, 1)
    A(f"s_load_dwordx2 s[36:37], s[0:1], {KA_X}")
    A(f"s_load_dwordx4 s[40:43], s[0:1], {KA_WG}")
    A(f"s_load_dwordx2 s[44:45], s[0:1], {KA_WD}")
    A(f"s_load_dwordx2 s[48:49], s[0:1], {KA_WS}")
    A("v_lshlrev_b32 v2, 3, v0")
    A("s_movk_i32 s35, 3072")
    A("v_mul_lo_u32 v3, v0, s35")
    A("s_lshl_b32 s34, s2, 4")
    A("v_add_u32 v3, s34, v3")
    A("v_lshlrev_b32 v4, 2, v0")
    A("v_lshlrev_b32 v5, 1, v0")
    A("s_waitcnt lgkmcnt(0)")
    srd(A, 8, 36, X_BYTES)
    srd(A, 12, 40, 640*1536*2)
    srd(A, 16, 42, 640*1536*2)
    srd(A, 20, 44, 640*1536*2)
    srd(A, 24, 48, WS_SIZE)
    A(f"s_mov_b32 s32, {WS_RKEY}")
    A("buffer_load_dwordx2 v[6:7], v2, s[24:27], s32 offen")
    WG_, WU_, WD_ = 32, 72, 112
    for i in range(10):
        A(f"s_mov_b32 s32, {i*64*3072}")
        A(f"buffer_load_dwordx4 {vr(WG_+4*i,4)}, v3, s[12:15], s32 offen")
        A(f"buffer_load_dwordx4 {vr(WU_+4*i,4)}, v3, s[16:19], s32 offen")
    A("s_mul_i32 s33, s2, 10240")
    for f in range(8):
        A(f"s_add_u32 s32, s33, {f*1280}")
        for j in range(5):
            A(f"buffer_load_dword v{WD_+5*f+j}, v4, s[20:23], s32 offen offset:{j*256}")
    stamp(A, 2)
    A("s_waitcnt vmcnt(60)")
    stamp(A, 3)
    key_reduce(A, 6, 7, 50, 52)
    A("s_mul_i32 s32, s50, 1280")
    XL = 152
    for i in range(10):
        A(f"buffer_load_ushort v{XL+i}, v5, s[8:11], s32 offen offset:{i*128}")
    ACC = 8
    for j in range(16):
        A(f"v_mov_b32 v{ACC+j}, 0")
    stamp(A, 4)
    A("s_waitcnt vmcnt(0)")
    stamp(A, 5)
    for i in range(10):
        A(f"v_lshlrev_b32 v{XL+10}, 16, v{XL+i}")
        for dw in range(4):
            for mat, W in ((0, WG_), (1, WU_)):
                A(f"v_dot2c_f32_bf16 v{ACC+4*dw+2*mat}, v{W+4*i+dw}, v{XL+i}")
                A(f"v_dot2c_f32_bf16 v{ACC+4*dw+2*mat+1}, v{W+4*i+dw}, v{XL+10}")
    A("s_nop 3")
    for j in range(8):
        A(f"v_permlane32_swap_b32 v{ACC+j}, v{ACC+j+8}")
    A("s_nop 1")
    for j in range(8):
        A(f"v_add_f32 v{ACC+j}, v{ACC+j}, v{ACC+j+8}")
    A("s_nop 1")
    for j in range(4):
        A(f"v_permlane16_swap_b32 v{ACC+j}, v{ACC+j+4}")
    A("s_nop 1")
    for j in range(4):
        A(f"v_add_f32 v{ACC+j}, v{ACC+j}, v{ACC+j+4}")
    for sh in (8, 4, 2, 1):
        A("s_nop 1")
        for j in range(4):
            A(f"v_add_f32_dpp v{ACC+j}, v{ACC+j}, v{ACC+j} row_ror:{sh} row_mask:0xf bank_mask:0xf")
    for hi in range(2):
        g, u = ACC+hi, ACC+2+hi
        bf16r(A, g, g)
        sigmoid(A, 20, g, 21)
        A(f"v_mul_f32 v{g}, v{g}, v20")
        bf16r(A, g, g)
        bf16r(A, u, u)
        A(f"v_mul_f32 v{g}, v{g}, v{u}")
        bf16r(A, g, g)
    A("s_nop 1")
    for rho in range(4):
        for hi in range(2):
            f = 2*rho + hi
            A(f"v_readlane_b32 s{60+2*f+1}, v{ACC+hi}, {16*rho}")
    for f in range(8):
        A(f"s_lshr_b32 s{60+2*f}, s{60+2*f+1}, 16")
    Y = 16
    for j in range(10):
        A(f"v_mov_b32 v{Y+j}, 0")
    for f in range(8):
        for j in range(5):
            A(f"v_dot2c_f32_bf16 v{Y+2*j}, s{60+2*f}, v{WD_+5*f+j}")
            A(f"v_dot2c_f32_bf16 v{Y+2*j+1}, s{60+2*f+1}, v{WD_+5*f+j}")
    A("s_and_b32 s32, s2, 15")
    A("s_mul_i32 s32, s32, 2560")
    A(f"s_add_u32 s32, s32, {WS_Y}")
    A("s_nop 3")
    for j in range(5):
        A(f"buffer_atomic_add_f32 v{Y+2*j}, v2, s[24:27], s32 offen offset:{j*512}")
        A(f"buffer_atomic_add_f32 v{Y+2*j+1}, v2, s[24:27], s32 offen offset:{j*512+4}")
    stamp(A, 6)
    stamp_rt(A, 7)
    stamp_flush(A, 8, 24, None, 2)
    A(f"{L_exit}:")
    A("s_endpgm")
    return (name, (192,1,1), (64,1,1), 0, 168, 168)

def k3(A):
    name = "out_kernel"
    kernel_begin(A, name)
    L_exit = A.label("k3exit")
    gemm_prologue(A, L_exit)
    A(f"s_load_dwordx2 s[36:37], s[0:1], {KA_X}")
    A(f"s_load_dwordx2 s[38:39], s[0:1], {KA_WO}")
    A(f"s_load_dwordx2 s[40:41], s[0:1], {KA_OUT}")
    A(f"s_load_dwordx2 s[48:49], s[0:1], {KA_WS}")
    VX = 64; VACC = 32; VW = 144; VDO = 8
    VO1, VO2 = 13, 14
    VB1, VB1H, VBT, VBTH = 15, 16, 17, 18
    w_dma_offsets(A, VDO, False)
    A("s_lshl_b32 s32, s30, 2")
    A("s_add_u32 s51, s32, s29")
    A("s_lshl_b32 s50, s51, 4")
    A("v_lshrrev_b32 v5, 1, v3")
    A("v_lshlrev_b32 v5, 9, v5")
    A("v_lshl_add_u32 v5, v2, 5, v5")
    A("v_and_b32 v6, 1, v3")
    A("v_lshl_add_u32 v5, v6, 4, v5")
    A("s_lshl_b32 s32, s51, 14")
    A(f"v_add_u32 v{VO1}, s32, v5")
    A("v_lshlrev_b32 v5, 8, v3")
    A("v_lshl_add_u32 v5, v2, 4, v5")
    A("s_lshl_b32 s32, s51, 12")
    A(f"v_add_u32 v{VO2}, s32, v5")
    A("v_lshrrev_b32 v5, 2, v2")
    A("v_and_b32 v7, 3, v2")
    A("v_lshrrev_b32 v19, 1, v3")
    A("v_mul_u32_u24 v19, 20, v19")
    A("v_lshl_add_u32 v19, v6, 2, v19")
    A("v_add_u32 v19, v19, v5")
    A("v_mul_u32_u24 v19, 160, v19")
    A(f"v_lshl_add_u32 v{VB1}, v7, 3, v19")
    A(f"v_add_u32 v{VB1H}, 51200, v{VB1}")
    A("v_mul_u32_u24 v19, 40, v3")
    A("v_add3_u32 v19, v19, v5, 16")
    A("v_mul_u32_u24 v19, 160, v19")
    A(f"v_lshl_add_u32 v{VBT}, v7, 3, v19")
    A(f"v_add_u32 v{VBTH}, 51200, v{VBT}")
    A("v_add_u32 v5, s50, v2")
    A("v_mul_lo_u32 v20, v5, s35")
    A("v_lshl_add_u32 v20, v3, 3, v20")
    A("v_add_u32 v20, s33, v20")
    A("v_lshlrev_b32 v21, 2, v5")
    A("v_lshlrev_b32 v22, 3, v1")
    for i in range(VACC, VACC+20):
        A(f"v_mov_b32 v{i}, 0")
    A("s_waitcnt lgkmcnt(0)")
    srd(A, 8, 36, X_BYTES)
    srd(A, 12, 38, W_BYTES)
    srd(A, 16, 40, X_BYTES)
    srd(A, 20, 48, WS_SIZE)
    stamp(A, 2)
    A(f"s_mov_b32 s32, {WS_RKEY}")
    A("buffer_load_dwordx2 v[24:25], v22, s[20:23], s32 offen")
    A(f"s_mov_b32 s32, {WS_G}")
    A("buffer_load_dword v26, v21, s[20:23], s32 offen")
    XV = 52
    for mt in range(5):
        A(f"buffer_load_dwordx2 {vr(XV+2*mt,2)}, v20, s[8:11], 0 offen offset:{mt*32}")
    steps_of = [[0,1,2], [3,4,5], [6,7,8], [9,10,11], [12,13,14,15,16,17,18,19]]
    A("s_lshl_b32 s32, s29, 10")
    cnt = []
    for c5 in range(5):
        A(f"s_mov_b32 s34, {c5*163840}")
        for t in range(5):
            A(f"s_add_u32 m0, s32, {(c5*20+t*4)*1024}")
            A("s_nop 0")
            A(f"buffer_load_dwordx4 v{VDO+t}, s[12:15], s34 offen lds")
        for s in steps_of[c5]:
            if s < 16:
                A(f"s_mov_b32 s34, {WS_O + (s//4)*4096}")
                A(f"buffer_load_dwordx4 {vr(VX+4*s,4)}, v{VO1}, s[20:23], s34 offen offset:{(s%4)*1024}")
            else:
                A(f"s_mov_b32 s34, {WS_OT}")
                A(f"buffer_load_dwordx4 {vr(VX+4*s,4)}, v{VO2}, s[20:23], s34 offen offset:{(s-16)*1024}")
        cnt.append(5 + len(steps_of[c5]))
    A("s_waitcnt vmcnt(45)")
    key_reduce(A, 24, 25, 56, 52)
    bf16r(A, 26, 26)
    sigmoid(A, 26, 26, 27)
    bf16r(A, 26, 26)
    A("v_sub_f32 v27, 1.0, v26")
    bf16r(A, 27, 27)
    LA = 5; NS = LA + 1
    stamp(A, 3)
    for c5 in range(5):
        A(f"s_waitcnt vmcnt({sum(cnt[c5+1:])})")
        A("s_barrier")
        if c5 in (0, 4): stamp(A, 4 if c5 == 0 else 5)
        items = [(s, mt) for s in steps_of[c5] for mt in range(5)]
        def rd(i):
            s, mt = items[i]
            slot = VW + 4*(i % NS)
            if s < 16:
                b = VB1 if s < 8 else VB1H
                off = (s % 8) * 6400 + mt * 32
                o2 = 8*160
            else:
                b = VBT if s < 18 else VBTH
                off = ((s - 16) % 2) * 25600 + mt * 32
                o2 = 20*160
            A(f"ds_read_b64_tr_b16 {vr(slot,2)}, v{b} offset:{off}")
            A(f"ds_read_b64_tr_b16 {vr(slot+2,2)}, v{b} offset:{off+o2}")
        for i in range(LA):
            rd(i)
        for i in range(len(items)):
            if i + LA < len(items):
                rd(i + LA)
            pend = min(LA, len(items) - 1 - i)
            A(f"s_waitcnt lgkmcnt({2*pend})")
            s, mt = items[i]
            slot = VW + 4*(i % NS)
            A(f"v_mfma_f32_16x16x32_bf16 {vr(VACC+4*mt,4)}, {vr(slot,4)}, {vr(VX+4*s,4)}, {vr(VACC+4*mt,4)}")
    B = 64
    for mt in range(5):
        for j in range(2):
            A(f"v_lshlrev_b32 v{B+4*mt+2*j}, 16, v{XV+2*mt+j}")
            A(f"v_and_b32 v{B+4*mt+2*j+1}, 0xffff0000, v{XV+2*mt+j}")
    L_nosel = A.label("nosel")
    A("s_lshr_b32 s32, s56, 4")
    A("s_cmp_lg_u32 s32, s51")
    A(f"s_cbranch_scc1 {L_nosel}")
    Yv = 96
    A("v_mul_u32_u24 v5, 2560, v2")
    A("v_lshl_add_u32 v5, v3, 4, v5")
    A("s_lshl_b32 s32, s33, 1")
    A(f"s_add_u32 s32, s32, {WS_Y}")
    for mt in range(5):
        A(f"buffer_load_dwordx4 {vr(Yv+4*mt,4)}, v5, s[20:23], s32 offen offset:{mt*64}")
    A("s_lshl_b32 s32, s56, 2")
    A(f"s_add_u32 s32, s32, {WS_R}")
    A("v_mov_b32 v6, 0")
    A("buffer_load_dword v7, v6, s[20:23], s32 offen")
    A("s_waitcnt vmcnt(0)")
    for sh in (8, 4, 2, 1):
        A("s_nop 1")
        for j in range(20):
            A(f"v_add_f32_dpp v{Yv+j}, v{Yv+j}, v{Yv+j} row_ror:{sh} row_mask:0xf bank_mask:0xf")
    bf16r(A, 7, 7)
    sigmoid(A, 7, 7, 6)
    bf16r(A, 7, 7)
    A("s_and_b32 s32, s56, 15")
    A("v_cmp_eq_u32 vcc, s32, v2")
    for j in range(20):
        bf16r(A, Yv+j, Yv+j)
        A(f"v_mul_f32 v{Yv+j}, v{Yv+j}, v7")
        bf16r(A, Yv+j, Yv+j)
        A(f"v_add_f32 v{Yv+j}, v{Yv+j}, v{B+j}")
        bf16r(A, Yv+j, Yv+j)
        A(f"v_cndmask_b32 v{B+j}, v{B+j}, v{Yv+j}, vcc")
    A(f"{L_nosel}:")
    A("s_nop 7")
    for mt in range(5):
        for j in range(2):
            a = VACC + 4*mt + 2*j
            b = B + 4*mt + 2*j
            A(f"v_cvt_pk_bf16_f32 v5, v{a}, v{a+1}")
            A(f"v_lshlrev_b32 v{a}, 16, v5")
            A(f"v_and_b32 v{a+1}, 0xffff0000, v5")
            A(f"v_mul_f32 v{a}, v{a}, v26")
            A(f"v_mul_f32 v{a+1}, v{a+1}, v26")
            A(f"v_cvt_pk_bf16_f32 v5, v{a}, v{a+1}")
            A(f"v_lshlrev_b32 v{a}, 16, v5")
            A(f"v_and_b32 v{a+1}, 0xffff0000, v5")
            A(f"v_mul_f32 v{b}, v{b}, v27")
            A(f"v_mul_f32 v{b+1}, v{b+1}, v27")
            A(f"v_cvt_pk_bf16_f32 v5, v{b}, v{b+1}")
            A(f"v_lshlrev_b32 v{b}, 16, v5")
            A(f"v_and_b32 v{b+1}, 0xffff0000, v5")
            A(f"v_add_f32 v{a}, v{a}, v{b}")
            A(f"v_add_f32 v{a+1}, v{a+1}, v{b+1}")
            A(f"v_cvt_pk_bf16_f32 v{XV+2*mt+j}, v{a}, v{a+1}")
        A(f"buffer_store_dwordx2 {vr(XV+2*mt,2)}, v20, s[16:19], 0 offen offset:{mt*32}")
    stamp(A, 6)
    stamp_rt(A, 7)
    stamp_flush(A, 8, 20, 29, 3)
    A(f"{L_exit}:")
    A("s_endpgm")
    return (name, (256,1,1), (256,1,1), 102400, 168, 168)

if __name__ == "__main__":
    build([k1, k2, kf, k3], "t3.s")
    Cfg.on = True
    build([k1, k2, kf, k3], "t3s.s")
```

```python
class Cfg:
    on = False
WS_ST = 0x700000
def stamp(A, idx):
    if Cfg.on:
        A(f"s_memtime s[{76+2*idx}:{77+2*idx}]")
def stamp_rt(A, idx):
    if Cfg.on:
        A(f"s_memrealtime s[{76+2*idx}:{77+2*idx}]")
def stamp_flush(A, n, srdbase, wave_sgpr, kidx, vt=250):
    if Cfg.on:
        A("s_waitcnt lgkmcnt(0)")
        A("s_mov_b64 exec, 1")
        A(f"s_lshl_b32 s75, s2, 4")
        if wave_sgpr is not None:
            A(f"s_add_u32 s75, s75, s{wave_sgpr}")
        A(f"s_lshl_b32 s75, s75, 7")
        A(f"s_add_u32 s75, s75, {WS_ST + kidx*0x80000}")
        A(f"v_mov_b32 v{vt}, 0")
        for i in range(n):
            A(f"v_mov_b32 v{vt+2}, s{76+2*i}")
            A(f"v_mov_b32 v{vt+3}, s{77+2*i}")
            A(f"buffer_store_dwordx2 v[{vt+2}:{vt+3}], v{vt}, s[{srdbase}:{srdbase+3}], s75 offen offset:{8*i}")
            A("s_nop 1")
```

```python
from gen3 import *
def mk_jump(i, nlines, stride=64, grid=256):
    def ke(A):
        name = f"jump{i}_kernel"
        kernel_begin(A, name)
        for j in range(nlines):
            A(f"s_branch L_j{i}_{j}")
            A(f".p2align {stride.bit_length()-1}")
            A(f"L_j{i}_{j}:")
        A("s_endpgm")
        return (name, (grid,1,1), (64,1,1), 0, 8, 8)
    return ke
def mk_line(i, n, grid=256):
    def ke(A):
        name = f"line{i}_kernel"
        kernel_begin(A, name)
        for j in range(n):
            A(f"v_mov_b32 v1, 0x12345678")
        A("s_endpgm")
        return (name, (grid,1,1), (64,1,1), 0, 8, 8)
    return ke
build([k1, k2, kf, k3, mk_jump(0, 1)], "y0.s")
build([k1, k2, kf, k3, mk_jump(0, 32)], "y1.s")
build([k1, k2, kf, k3, mk_jump(0, 128)], "y2.s")
build([k1, k2, kf, k3, mk_line(0, 512)], "y3.s")
build([k1, k2, kf, k3, mk_line(0, 2048)], "y4.s")
```

```python
import math, sys
from asmlib import *
from stamp import *

KA_X, KA_WQ, KA_WK, KA_WV, KA_WO, KA_BX, KA_WR, KA_WG, KA_WU, KA_WD, KA_GW, KA_OUT, KA_DBG, KA_WS = [8*i for i in range(14)]
SL = 2592
WS_Q1 = 0
WS_Q2 = 0x200000
WS_KV0 = 0x600000
WS_KMAX = 0x2B0000
WS_RKEY = 0x2B0200
WS_R = 0x2B1000
WS_G = 0x2B3000
WS_O = 0x300000
WS_Y = 0x580000
WS_SIZE = 0x1000000
X_BYTES = 2048*640*2
W_BYTES = 640*640*2
F_BYTES = 640*1536*2
QSCALE = (20 ** -0.5) * math.log2(math.e)
LOG2E = math.log2(math.e)
LTHR = f32bits(2.0 ** -30)
OFF_A2, OFF_V0, OFF_V1 = 1024, 1280, 1936
FB = 63*SL

def wg_decode(A):
    A("s_and_b32 s30, s2, 7")
    A("s_lshl_b32 s30, s30, 2")
    A("s_lshr_b32 s31, s2, 6")
    A("s_add_u32 s30, s30, s31")
    A("s_bfe_u32 s31, s2, 0x30003")

def bf16r(A, d, s):
    A(f"v_cvt_pk_bf16_f32 v{d}, v{s}, v{s}")
    A(f"v_and_b32 v{d}, 0xffff0000, v{d}")

def sigmoid(A, d, s, t):
    A(f"v_mul_f32 v{t}, {f32bits(-LOG2E):#x}, v{s}")
    A(f"v_exp_f32 v{t}, v{t}")
    A("s_nop 0")
    A(f"v_add_f32 v{t}, 1.0, v{t}")
    A(f"v_rcp_f32 v{d}, v{t}")
    A("s_nop 0")

def wave_max_u32(A, v, v2, st):
    A(f"v_max_u32 v{v}, v{v}, v{v2}")
    for sh in (8, 4, 2, 1):
        A("s_nop 1")
        A(f"v_max_u32_dpp v{v}, v{v}, v{v} row_ror:{sh} row_mask:0xf bank_mask:0xf")
    A("s_nop 1")
    for i in range(4):
        A(f"v_readlane_b32 s{st+i}, v{v}, {16*i}")
    A(f"s_max_u32 s{st}, s{st}, s{st+1}")
    A(f"s_max_u32 s{st+2}, s{st+2}, s{st+3}")
    A(f"s_max_u32 s{st}, s{st}, s{st+2}")


U_TILES = 8
class X:
    noffn = False
PROG = FB + 132
FCNT = FB + 128
XB = 102400
SPIN = 200000

def k2(A):
    name = "attn_kernel"
    kernel_begin(A, name)
    L_exit = A.label("k2exit"); L_help = A.label("help"); L_op = A.label("oproj")
    A("s_cmp_ge_u32 s2, 256")
    A(f"s_cbranch_scc1 {L_exit}")
    stamp_rt(A, 0); stamp(A, 1)
    A(f"s_load_dwordx4 s[48:51], s[0:1], {KA_DBG}")
    A("v_lshrrev_b32 v4, 6, v0")
    A("v_and_b32 v1, 63, v0")
    A("v_readfirstlane_b32 s29, v4")
    A("v_lshlrev_b32 v5, 4, v1")
    wg_decode(A)
    A("s_mov_b32 s10, 0x1000000")
    A("s_mov_b32 s11, 0x00020000")
    A("s_bfe_u32 s24, s2, 0x40003")
    A(f"s_mul_i32 s24, s24, {4*SL}")
    A("s_cmp_ge_u32 s29, 4")
    A(f"s_cbranch_scc1 {L_help}")
    QB1 = [8, 16]; QS = [12, 14]
    VIDX = 4
    VKA, VA2, VVA = 20, 21, 22
    S = [32, 64]
    O = [96, 112]
    KA1 = [128, 136]; KA2 = [132, 140]
    V0 = [144, 152]; V1 = [148, 156]
    A("v_and_b32 v2, 31, v0")
    A("v_lshrrev_b32 v3, 5, v1")
    A("s_lshl_b32 s26, s31, 2")
    A("s_add_u32 s26, s26, s29")
    A("s_lshl_b32 s25, s30, 6")
    A("s_add_u32 s25, s25, s26")
    A("s_lshl_b32 s32, s25, 10")
    A("s_add_u32 s33, s32, 32768")
    A("s_lshl_b32 s34, s25, 8")
    A(f"s_add_u32 s34, s34, {WS_Q2}")
    A("s_add_u32 s35, s34, 8192")
    A("v_lshlrev_b32 v6, 3, v2")
    A("v_lshl_or_b32 v7, v3, 30, v6")
    A("v_lshlrev_b32 v23, 3, v1")
    A(f"s_mov_b32 s36, {WS_KMAX}")
    A("v_cmp_eq_u32 s[44:45], 1, v3")
    A(f"v_mov_b32 v24, {OFF_V0 + 640 - OFF_A2}")
    A(f"s_add_u32 s37, s24, {WS_KV0 + 62*SL}")
    A(f"s_add_u32 s38, s24, {WS_KV0 + 63*SL}")
    A(f"v_cndmask_b32 v{VA2}, v6, v24, s[44:45]")
    A("s_waitcnt lgkmcnt(0)")
    A("s_mov_b32 s8, s50")
    A("s_and_b32 s9, s51, 0xffff")
    A(f"buffer_load_dwordx4 {vr(QB1[0],4)}, v5, s[8:11], s32 offen")
    A(f"buffer_load_dwordx4 {vr(QB1[1],4)}, v5, s[8:11], s33 offen")
    A(f"buffer_load_dwordx2 {vr(QS[0],2)}, v7, s[8:11], s34 offen")
    A(f"buffer_load_dwordx2 {vr(QS[1],2)}, v7, s[8:11], s35 offen")
    A("buffer_load_dwordx2 v[24:25], v23, s[8:11], s36 offen")
    A(f"buffer_load_dwordx4 {vr(KA1[0],4)}, v5, s[8:11], s37 offen")
    A(f"buffer_load_dwordx2 {vr(KA2[0],2)}, v{VA2}, s[8:11], s37 offen offset:{OFF_A2}")
    A("v_mul_u32_u24 v6, 20, v3")
    A("v_add_u32 v6, v6, v2")
    A("v_cmp_gt_u32 vcc, 20, v2")
    A(f"buffer_load_dwordx4 {vr(KA1[1],4)}, v5, s[8:11], s38 offen")
    A("v_cndmask_b32 v6, 40, v6, vcc")
    A("v_lshlrev_b32 v23, 4, v6")
    A(f"buffer_load_dwordx2 {vr(KA2[1],2)}, v{VA2}, s[8:11], s38 offen offset:{OFF_A2}")
    A(f"buffer_load_dwordx4 {vr(V0[0],4)}, v23, s[8:11], s38 offen offset:{OFF_V0}")
    A(f"buffer_load_dwordx4 {vr(V1[0],4)}, v23, s[8:11], s38 offen offset:{OFF_V1}")
    A(f"v_mov_b32 v{VKA}, v5")
    A("v_cmp_lt_u32 vcc, 20, v2")
    A("v_mov_b32 v6, 0x40000")
    A(f"v_cndmask_b32 v{VVA}, v23, v6, vcc")
    A(f"v_mov_b32 v{VIDX}, 0xdddd")
    for r in range(O[0], O[0] + 32):
        A(f"v_mov_b32 v{r}, 0")
    for r in range(S[1] + 24, S[1] + 32):
        A(f"v_mov_b32 v{r}, 0")
    for r in range(V1[1], V1[1] + 4):
        A(f"v_mov_b32 v{r}, 0")
    A("v_mov_b32 v26, 0")
    A("v_mov_b32 v28, 0")
    A(f"v_mov_b32 v30, {PROG}")
    A("v_mov_b32 v31, 1")
    stamp(A, 2)
    A("s_waitcnt vmcnt(6)")
    for r in range(4):
        A(f"v_dot2c_f32_bf16 v26, v{QB1[0]+r}, v{QB1[0]+r}")
        A(f"v_dot2c_f32_bf16 v28, v{QB1[1]+r}, v{QB1[1]+r}")
    for r in range(2):
        A(f"v_dot2c_f32_bf16 v26, v{QS[0]+r}, v{QS[0]+r}")
        A(f"v_dot2c_f32_bf16 v28, v{QS[1]+r}, v{QS[1]+r}")
    wave_max_u32(A, 24, 25, 34)
    A("v_mov_b32 v27, v26")
    A("v_mov_b32 v29, v28")
    A("s_nop 1")
    A("v_permlane32_swap_b32 v26, v27")
    A("v_permlane32_swap_b32 v28, v29")
    A("s_nop 1")
    A("v_add_f32 v26, v26, v27")
    A("v_add_f32 v28, v28, v29")
    A("v_mul_f32 v26, s34, v26")
    A("v_mul_f32 v28, s34, v28")
    A("v_sqrt_f32 v26, v26")
    A("v_sqrt_f32 v28, v28")
    A("s_nop 0")
    A(f"v_mul_f32 v26, {f32bits(-(1.0 + 2.0**-6)):#x}, v26")
    A(f"v_mul_f32 v28, {f32bits(-(1.0 + 2.0**-6)):#x}, v28")
    A("v_lshrrev_b32 v26, 16, v26")
    A("v_lshrrev_b32 v28, 16, v28")
    A(f"v_cndmask_b32 v{QS[0]}, v{QS[0]}, v26, s[44:45]")
    A(f"v_cndmask_b32 v{QS[1]}, v{QS[1]}, v28, s[44:45]")
    def qs2(buf, par, b):
        A(f"v_mfma_f32_32x32x8_bf16 {vr(S[buf]+16*b,16)}, {vr(KA2[par],2)}, {vr(QS[b],2)}, 0")
    def qk1(buf, par, b):
        A(f"v_mfma_f32_32x32x16_bf16 {vr(S[buf]+16*b,16)}, {vr(KA1[par],4)}, {vr(QB1[b],4)}, {vr(S[buf]+16*b,16)}")
    def pv(buf, b, half, vpar):
        vv = V0[vpar] if half == 0 else V1[vpar]
        A(f"v_smfmac_f32_32x32x32_bf16 {vr(O[b],16)}, {vr(vv,4)}, {vr(S[buf]+16*b+8*half,8)}, v{VIDX}")
    A("s_waitcnt vmcnt(4)")
    qs2(0, 0, 0); qk1(0, 0, 0); qs2(0, 0, 1); qk1(0, 0, 1)
    A("s_mov_b32 s46, 0")
    stamp(A, 3)
    A("s_waitcnt vmcnt(0)")
    A("s_barrier")
    stamp(A, 7); stamp_rt(A, 8)
    A("s_nop 7")
    L_loop, L_go, L_sp = A.label("loop"), A.label("go"), A.label("sp")
    A(f"{L_loop}:")
    sched = {2: 'pv1p', 6: 's2a', 10: 'q1a', 14: 'pv0a', 18: 'pv1a', 22: 's2b', 26: 'q1b', 30: 'pv0b'}
    for t in range(U_TILES):
        par = t & 1
        off = t * SL
        for e in range(32):
            op = sched.get(e)
            if op == 'pv1p':
                pv(par ^ 1, 1, 1, par ^ 1)
                A("s_waitcnt lgkmcnt(0)")
                A(f"ds_read_b128 {vr(V0[par^1],4)}, v{VVA} offset:{off+OFF_V0}")
                A(f"ds_read_b128 {vr(V1[par^1],4)}, v{VVA} offset:{off+OFF_V1}")
            if op == 's2a': qs2(par ^ 1, par ^ 1, 0)
            if op == 's2b': qs2(par ^ 1, par ^ 1, 1)
            if op == 'pv0a':
                pv(par, 0, 0, par)
                A(f"ds_read_b128 {vr(KA1[par],4)}, v{VKA} offset:{off}")
                A(f"ds_read_b64 {vr(KA2[par],2)}, v{VA2} offset:{off+OFF_A2}")
            if op == 'q1a': qk1(par ^ 1, par ^ 1, 0)
            if op == 'pv1a': pv(par, 0, 1, par)
            if op == 'q1b': qk1(par ^ 1, par ^ 1, 1)
            if op == 'pv0b':
                pv(par, 1, 0, par)
                if t == U_TILES - 1:
                    A("s_add_u32 s46, s46, 1")
                    A("s_bitcmp1_b32 0x14e, s46")
                    A(f"v_add_u32 v{VKA}, {U_TILES*SL}, v{VKA}")
                    A(f"v_add_u32 v{VA2}, {U_TILES*SL}, v{VA2}")
                    A(f"v_add_u32 v{VVA}, {U_TILES*SL}, v{VVA}")
            A(f"v_exp_f32 v{S[par]+e}, v{S[par]+e}")
    A(f"s_cbranch_scc0 {L_loop}")
    A("s_cmp_gt_u32 s46, 2")
    A(f"s_cbranch_scc1 {L_sp}")
    A("s_barrier")
    A(f"s_branch {L_loop}")
    A(f"{L_sp}:")
    A("ds_add_u32 v30, v31")
    A("s_cmp_lt_u32 s46, 8")
    A(f"s_cbranch_scc1 {L_loop}")
    stamp(A, 4); stamp_rt(A, 9)
    pv(1, 1, 1, 1)
    A("v_lshrrev_b32 v6, 4, v2")
    A("v_mul_u32_u24 v6, 20480, v6")
    A("v_and_b32 v7, 15, v2")
    A("v_lshl_add_u32 v6, v7, 4, v6")
    A("v_lshl_add_u32 v24, v3, 8, v6")
    A("v_lshl_or_b32 v25, v3, 30, v6")
    A("s_mul_i32 s32, s30, 81920")
    A(f"s_add_u32 s32, s32, {WS_O}")
    A("s_lshl_b32 s33, s26, 9")
    A("s_add_u32 s33, s33, s32")
    A("s_lshr_b32 s34, s26, 1")
    A("s_lshl_b32 s34, s34, 8")
    A("s_and_b32 s35, s26, 1")
    A("s_lshl_b32 s35, s35, 3")
    A("s_add_u32 s34, s34, s35")
    A("s_add_u32 s34, s34, s32")
    A("s_add_u32 s34, s34, 16384")
    A(f"v_mov_b32 v26, {LTHR:#x}")
    L_fb, L_norm = A.label("fb"), A.label("norm")
    A(f"v_min_f32 v27, v{O[0]+8}, v{O[1]+8}")
    A(f"v_cmp_nge_f32 vcc, v27, v26")
    A(f"v_cmp_u_f32 s[36:37], v{O[0]+8}, v{O[1]+8}")
    A("s_or_b64 vcc, vcc, s[36:37]")
    A("s_and_b64 vcc, vcc, s[44:45]")
    A(f"s_cbranch_vccnz {L_fb}")
    A(f"{L_norm}:")
    for b in range(2):
        A(f"v_rcp_f32 v{26+2*b}, v{O[b]+8}")
    A("s_nop 0")
    for b in range(2):
        A(f"v_mov_b32 v{27+2*b}, v{26+2*b}")
    A("s_nop 1")
    for b in range(2):
        A(f"v_permlane32_swap_b32 v{26+2*b}, v{27+2*b}")
    A("s_nop 1")
    for b in range(2):
        for r in range(12):
            A(f"v_mul_f32 v{O[b]+r}, v{O[b]+r}, v{27+2*b}")
        for r in range(6):
            A(f"v_cvt_pk_bf16_f32 v{S[0]+8*b+r}, v{O[b]+2*r}, v{O[b]+2*r+1}")
        A(f"buffer_store_dwordx4 {vr(S[0]+8*b,4)}, v24, s[8:11], s33 offen sc1")
        A(f"buffer_store_dwordx2 {vr(S[0]+8*b+4,2)}, v25, s[8:11], s34 offen sc1")
        if b == 0:
            A("s_add_u32 s33, s33, 40960")
            A("s_add_u32 s34, s34, 40960")
    A(f"{L_op}:")
    A(f"s_load_dwordx2 s[36:37], s[0:1], {KA_X}")
    A(f"s_load_dwordx2 s[40:41], s[0:1], {KA_OUT}")
    ACC = 36; OF = 56; WF = 96
    A("v_and_b32 v2, 15, v0")
    A("v_lshrrev_b32 v3, 4, v1")
    A("s_and_b32 s27, s29, 3")
    A("s_lshr_b32 s28, s29, 2")
    A("v_lshrrev_b32 v7, 2, v2")
    A("v_and_b32 v8, 3, v2")
    A("v_lshrrev_b32 v9, 1, v3")
    A("v_mul_u32_u24 v9, 20, v9")
    A("v_and_b32 v6, 1, v3")
    A("v_lshl_add_u32 v9, v6, 2, v9")
    A("v_add_u32 v9, v9, v7")
    A("v_mul_u32_u24 v9, 160, v9")
    A("v_lshl_add_u32 v9, v8, 3, v9")
    A("s_mul_i32 s32, s28, 51200")
    A("v_add_u32 v10, s32, v9")
    A("v_mul_u32_u24 v9, 40, v3")
    A("v_add3_u32 v9, v9, v7, 16")
    A("v_mul_u32_u24 v9, 160, v9")
    A("v_lshl_add_u32 v9, v8, 3, v9")
    A("v_add_u32 v11, s32, v9")
    A("s_lshl_b32 s32, s30, 2")
    A("s_add_u32 s53, s32, s27")
    A("s_lshl_b32 s52, s53, 4")
    A("v_add_u32 v6, s52, v2")
    A("v_mul_u32_u24 v12, 1280, v6")
    A("v_lshl_add_u32 v12, v3, 3, v12")
    A("s_mul_i32 s33, s31, 160")
    A("s_mul_i32 s32, s28, 96")
    A("s_add_u32 s54, s33, s32")
    A("v_add_u32 v12, s54, v12")
    A("v_lshlrev_b32 v13, 2, v6")
    A("v_lshlrev_b32 v14, 3, v1")
    for i in range(ACC, ACC + 20):
        A(f"v_mov_b32 v{i}, 0")
    A("s_mov_b32 s12, s48")
    A("s_and_b32 s13, s49, 0xffff")
    A("s_movk_i32 s14, 256")
    A("s_mov_b32 s15, 0x00020000")
    A("v_lshlrev_b32 v15, 24, v1")
    A("s_lshl_b32 s55, s30, 3")
    A("s_add_u32 s32, s55, s31")
    A("v_mov_b32 v16, 1")
    A("s_waitcnt vmcnt(0) lgkmcnt(0)")
    A("s_barrier")
    stamp(A, 5)
    L_nf = A.label("nf")
    A("s_cmp_lg_u32 s29, 0")
    A(f"s_cbranch_scc1 {L_nf}")
    A("buffer_store_byte v16, v15, s[12:15], s32 offen sc1")
    A(f"{L_nf}:")
    srd(A, 16, 36, X_BYTES)
    srd(A, 20, 40, X_BYTES)
    XV = 20
    A(f"s_mov_b32 s32, {WS_RKEY}")
    A("buffer_load_dwordx2 v[18:19], v14, s[8:11], s32 offen")
    A(f"s_mov_b32 s32, {WS_G}")
    A("buffer_load_dword v26, v13, s[8:11], s32 offen")
    for mt in range(3):
        A(f"buffer_load_dwordx2 {vr(XV+2*mt,2)}, v12, s[16:19], 0 offen offset:{mt*32}")
    def wrd(slot, s, mt):
        if s < 8:
            b, off, o2 = 10, s * 6400 + mt * 32, 1280
        else:
            b, off, o2 = 11, (s - 8) * 25600 + mt * 32, 3200
        A(f"ds_read_b64_tr_b16 {vr(slot,2)}, v{b} offset:{off}")
        A(f"ds_read_b64_tr_b16 {vr(slot+2,2)}, v{b} offset:{off+o2}")
    for s in range(8):
        for mt in range(5):
            wrd(WF + 4*(5*s+mt), s, mt)
    A("s_waitcnt vmcnt(3)")
    wave_max_u32(A, 18, 19, 56)
    A("s_and_b32 s56, s56, 2047")
    A("s_sub_u32 s56, 2047, s56")
    bf16r(A, 26, 26)
    sigmoid(A, 26, 26, 27)
    bf16r(A, 26, 26)
    A("v_sub_f32 v27, 1.0, v26")
    bf16r(A, 27, 27)
    A("s_mul_i32 s32, s53, 20480")
    A("s_lshl_b32 s33, s28, 13")
    A("s_add_u32 s32, s32, s33")
    A(f"s_add_u32 s32, s32, {WS_O}")
    A("s_add_u32 s33, s32, 4096")
    A("s_mul_i32 s34, s28, -6144")
    A("s_add_u32 s34, s34, s32")
    A("s_add_u32 s34, s34, 16384")
    L_np, L_pl = A.label("np"), A.label("pl")
    A("s_cmp_lg_u32 s29, 7")
    A(f"s_cbranch_scc1 {L_np}")
    A(f"s_mov_b32 s46, {SPIN}")
    A(f"{L_pl}:")
    A("buffer_load_dwordx2 v[28:29], v15, s[12:15], s55 offen sc1")
    A("s_waitcnt vmcnt(0)")
    A("v_and_b32 v28, v28, v29")
    A("s_sub_u32 s46, s46, 1")
    A("v_readfirstlane_b32 s35, v28")
    A(f"s_cbranch_scc1 {L_np}")
    A("s_cmp_lg_u32 s35, 0x01010101")
    A(f"s_cbranch_scc1 {L_pl}")
    A(f"{L_np}:")
    A("s_barrier")
    stamp(A, 6)
    for s in range(10):
        sb, off = (32, s*1024) if s < 4 else (33, (s-4)*1024) if s < 8 else (34, (s-8)*1024)
        A(f"buffer_load_dwordx4 {vr(OF+4*s,4)}, v5, s[8:11], s{sb} offen offset:{off} sc1")
    A("s_waitcnt lgkmcnt(0)")
    for s in range(10):
        A(f"s_waitcnt vmcnt({9-s})" + (" lgkmcnt(0)" if s == 8 else ""))
        for mt in range(5):
            slot = WF + 4*(5*(s % 8)+mt)
            A(f"v_mfma_f32_16x16x32_bf16 {vr(ACC+4*mt,4)}, {vr(slot,4)}, {vr(OF+4*s,4)}, {vr(ACC+4*mt,4)}")
        if s in (0, 1):
            for mt in range(5):
                wrd(WF + 4*(5*s+mt), 8 + s, mt)
    A("s_lshl_b32 s32, s29, 12")
    A("s_xor_b32 s33, s32, 0x4000")
    A(f"s_add_u32 s32, s32, {XB}")
    A(f"s_add_u32 s33, s33, {XB}")
    A("v_add_u32 v6, s32, v5")
    A("v_add_u32 v7, s33, v5")
    L_x1, L_x2 = A.label("x1"), A.label("x2")
    B = 64
    A("s_cmp_eq_u32 s28, 0")
    A("s_nop 4")
    A(f"s_cbranch_scc1 {L_x1}")
    for j in range(3):
        A(f"ds_write_b128 v6, {vr(ACC+4*j,4)} offset:{j*1024}")
    for r in range(8):
        A(f"v_mov_b32 v{ACC+r}, v{ACC+12+r}")
    A(f"s_branch {L_x2}")
    A(f"{L_x1}:")
    for j in range(2):
        A(f"ds_write_b128 v6, {vr(ACC+12+4*j,4)} offset:{j*1024}")
    A(f"{L_x2}:")
    for mt in range(3):
        for j in range(2):
            A(f"v_lshlrev_b32 v{B+4*mt+2*j}, 16, v{XV+2*mt+j}")
            A(f"v_and_b32 v{B+4*mt+2*j+1}, 0xffff0000, v{XV+2*mt+j}")
    L_sel, L_nosel = A.label("sel"), A.label("nosel")
    A("s_lshr_b32 s32, s56, 4")
    A("s_cmp_eq_u32 s32, s53")
    A(f"s_cbranch_scc1 {L_sel}")
    A(f"{L_nosel}:")
    for j in range(12):
        A(f"v_mul_f32 v{B+j}, v{B+j}, v27")
    for j in range(0, 12, 2):
        A(f"v_cvt_pk_bf16_f32 v8, v{B+j}, v{B+j+1}")
        A(f"v_lshlrev_b32 v{B+j}, 16, v8")
        A(f"v_and_b32 v{B+j+1}, 0xffff0000, v8")
    A("s_waitcnt lgkmcnt(0)")
    A("s_barrier")
    P = 80
    for j in range(3):
        A(f"ds_read_b128 {vr(P+4*j,4)}, v7 offset:{j*1024}")
    A("v_mov_b32 v9, 0x40000000")
    A("s_cmp_eq_u32 s28, 0")
    A("s_cselect_b64 vcc, -1, 0")
    A("v_cndmask_b32 v9, v9, v12, vcc")
    for mt in range(3):
        A(f"s_waitcnt lgkmcnt({2-mt})")
        for j in range(4):
            A(f"v_add_f32 v{ACC+4*mt+j}, v{ACC+4*mt+j}, v{P+4*mt+j}")
        for j in range(2):
            a = ACC + 4*mt + 2*j; b = B + 4*mt + 2*j
            A(f"v_cvt_pk_bf16_f32 v8, v{a}, v{a+1}")
            A(f"v_lshlrev_b32 v{a}, 16, v8")
            A(f"v_and_b32 v{a+1}, 0xffff0000, v8")
            A(f"v_mul_f32 v{a}, v{a}, v26")
            A(f"v_mul_f32 v{a+1}, v{a+1}, v26")
            A(f"v_cvt_pk_bf16_f32 v8, v{a}, v{a+1}")
            A(f"v_lshlrev_b32 v{a}, 16, v8")
            A(f"v_and_b32 v{a+1}, 0xffff0000, v8")
            A(f"v_add_f32 v{a}, v{a}, v{b}")
            A(f"v_add_f32 v{a+1}, v{a+1}, v{b+1}")
            A(f"v_cvt_pk_bf16_f32 v{XV+2*mt+j}, v{a}, v{a+1}")
        A(f"buffer_store_dwordx2 {vr(XV+2*mt,2)}, v{12 if mt < 2 else 9}, s[20:23], 0 offen offset:{mt*32}")
    stamp(A, 10); stamp_rt(A, 11)
    stamp_flush(A, 12, 8, 29, 1)
    A(f"{L_exit}:")
    A("s_endpgm")
    A(f"{L_sel}:")
    A("v_lshlrev_b32 v8, 2, v1")
    A(f"s_mov_b32 s46, {SPIN}")
    L_sp2, L_sg = A.label("sp2"), A.label("sg")
    A(f"{L_sp2}:")
    A("buffer_load_dword v9, v8, s[12:15], 0 offen sc1")
    A("s_waitcnt vmcnt(0)")
    A("v_cmp_ne_u32 vcc, 0x01010101, v9")
    A("s_sub_u32 s46, s46, 1")
    A(f"s_cbranch_scc1 {L_sg}")
    A("s_nop 2")
    A(f"s_cbranch_vccnz {L_sp2}")
    A(f"{L_sg}:")
    Yv = 96
    A("v_mul_u32_u24 v8, 2560, v2")
    A("v_lshl_add_u32 v8, v3, 4, v8")
    A("s_lshl_b32 s32, s54, 1")
    A(f"s_add_u32 s32, s32, {WS_Y}")
    for mt in range(3):
        A(f"buffer_load_dwordx4 {vr(Yv+4*mt,4)}, v8, s[8:11], s32 offen offset:{mt*64} sc1")
    A("s_lshl_b32 s32, s56, 2")
    A(f"s_add_u32 s32, s32, {WS_R}")
    A("v_mov_b32 v8, 0")
    A("buffer_load_dword v9, v8, s[8:11], s32 offen")
    A("s_waitcnt vmcnt(0)")
    for sh in (8, 4, 2, 1):
        A("s_nop 1")
        for j in range(12):
            A(f"v_add_f32_dpp v{Yv+j}, v{Yv+j}, v{Yv+j} row_ror:{sh} row_mask:0xf bank_mask:0xf")
    bf16r(A, 9, 9)
    sigmoid(A, 9, 9, 8)
    bf16r(A, 9, 9)
    A("s_and_b32 s32, s56, 15")
    A("v_cmp_eq_u32 vcc, s32, v2")
    for j in range(12):
        bf16r(A, Yv+j, Yv+j)
        A(f"v_mul_f32 v{Yv+j}, v{Yv+j}, v9")
        bf16r(A, Yv+j, Yv+j)
        A(f"v_add_f32 v{Yv+j}, v{Yv+j}, v{B+j}")
        bf16r(A, Yv+j, Yv+j)
        A(f"v_cndmask_b32 v{B+j}, v{B+j}, v{Yv+j}, vcc")
    A(f"s_branch {L_nosel}")
    A(f"{L_fb}:")
    A("v_lshlrev_b32 v21, 3, v2")
    for b in range(2):
        A(f"v_cndmask_b32 v{QS[b]}, v{QS[b]}, 0, s[44:45]")
    A("v_mov_b32 v30, 0xff800000")
    A("v_mov_b32 v31, 0xff800000")
    L_p1, L_p2 = A.label("p1"), A.label("p2")
    def fb_s():
        A(f"buffer_load_dwordx4 {vr(KA1[0],4)}, v5, s[8:11], s32 offen")
        A(f"buffer_load_dwordx2 {vr(KA2[0],2)}, v21, s[8:11], s32 offen offset:{OFF_A2}")
    def fb_qk():
        A("s_waitcnt vmcnt(0)")
        qs2(0, 0, 0); qk1(0, 0, 0); qs2(0, 0, 1); qk1(0, 0, 1)
        A("s_nop 15")
    A(f"s_mov_b32 s32, {WS_KV0 + 62*SL}")
    A(f"{L_p1}:")
    fb_s(); fb_qk()
    for r in range(0, 16, 2):
        A(f"v_max3_f32 v30, v{S[0]+r}, v{S[0]+r+1}, v30")
        A(f"v_max3_f32 v31, v{S[0]+16+r}, v{S[0]+16+r+1}, v31")
    A(f"s_add_u32 s32, s32, {SL}")
    A(f"s_cmp_lt_u32 s32, {WS_KV0 + 126*SL}")
    A(f"s_cbranch_scc1 {L_p1}")
    A("v_mov_b32 v28, v30")
    A("v_mov_b32 v29, v31")
    A("s_nop 1")
    A("v_permlane32_swap_b32 v30, v28")
    A("v_permlane32_swap_b32 v31, v29")
    A("s_nop 1")
    A("v_max_f32 v30, v30, v28")
    A("v_max_f32 v31, v31, v29")
    for r in range(32):
        A(f"v_mov_b32 v{O[0]+r}, 0")
    A(f"s_mov_b32 s32, {WS_KV0 + 62*SL}")
    A(f"{L_p2}:")
    fb_s()
    A(f"s_add_u32 s32, s32, {SL}")
    A(f"buffer_load_dwordx4 {vr(V0[0],4)}, v23, s[8:11], s32 offen offset:{OFF_V0}")
    A(f"buffer_load_dwordx4 {vr(V1[0],4)}, v23, s[8:11], s32 offen offset:{OFF_V1}")
    fb_qk()
    for r in range(32):
        A(f"v_sub_f32 v{S[0]+r}, v{S[0]+r}, v{30 + r // 16}")
    for r in range(32):
        A(f"v_exp_f32 v{S[0]+r}, v{S[0]+r}")
    A("s_nop 2")
    pv(0, 0, 0, 0); pv(0, 1, 0, 0); pv(0, 0, 1, 0); pv(0, 1, 1, 0)
    A(f"s_cmp_lt_u32 s32, {WS_KV0 + 126*SL}")
    A(f"s_cbranch_scc1 {L_p2}")
    A("s_nop 15")
    A(f"s_branch {L_norm}")

    A(f"{L_help}:")
    A("s_setprio 2")
    A("s_sub_u32 s28, s29, 4")
    A("s_lshl_b32 s32, s28, 10")
    A("s_mov_b32 m0, s32")
    A("s_add_u32 s33, s32, s24")
    A(f"s_add_u32 s33, s33, {WS_KV0}")
    A("s_waitcnt lgkmcnt(0)")
    A("s_mov_b32 s8, s50")
    A("s_and_b32 s9, s51, 0xffff")
    A(f"s_load_dwordx2 s[36:37], s[0:1], {KA_X}")
    A(f"s_load_dwordx2 s[38:39], s[0:1], {KA_WO}")
    A(f"s_load_dwordx4 s[40:43], s[0:1], {KA_WG}")
    A(f"s_load_dwordx2 s[44:45], s[0:1], {KA_WD}")
    def dma(n):
        L = A.label("dma")
        A(f"s_add_u32 s34, s33, {n*4096}")
        A(f"{L}:")
        A("buffer_load_dwordx4 v5, s[8:11], s33 offen lds")
        A("s_add_u32 m0, m0, 4096")
        A("s_add_u32 s33, s33, 4096")
        A("s_cmp_lt_u32 s33, s34")
        A(f"s_cbranch_scc1 {L}")
    def need(tiles):
        return min(40, -(-(-(-tiles*SL // 1024)) // 4))
    n0, n1 = need(U_TILES), need(U_TILES * 2)
    dma(n1)
    A(f"s_waitcnt vmcnt({n1 - n0})")
    A("s_barrier")
    dma(40 - n1)
    A(f"s_waitcnt vmcnt({40 - n1})")
    A("s_barrier")
    A(f"v_mov_b32 v8, {FCNT}")
    A("v_mov_b32 v6, 0")
    A("v_mov_b32 v7, 0")
    A("v_mul_u32_u24 v2, 26, v1")
    A("v_lshrrev_b32 v2, 8, v2")
    A("v_mul_u32_u24 v3, 10, v2")
    A("v_sub_u32 v3, v1, v3")
    A("v_mul_u32_u24 v2, 1280, v2")
    A("v_lshl_add_u32 v30, v3, 4, v2")
    A("s_waitcnt vmcnt(0) lgkmcnt(0)")
    A("s_cmp_lg_u32 s28, 3")
    L_b2 = A.label("b2")
    A(f"s_cbranch_scc1 {L_b2}")
    A("ds_write_b64 v8, v[6:7]")
    A("s_waitcnt lgkmcnt(0)")
    A(f"{L_b2}:")
    stamp(A, 2)
    A("s_barrier")
    stamp(A, 3)
    srd(A, 60, 38, W_BYTES)
    A("s_mul_i32 s64, s28, 5120")
    A("s_mul_i32 s32, s31, 160")
    A("s_add_u32 s64, s64, s32")
    A("s_mul_i32 s65, s28, 640")
    A("s_mov_b32 s66, -1")
    A("s_movk_i32 s67, 0xff")
    def wo_part(thr):
        Lp, Lw = A.label("wp"), A.label("wl")
        A(f"{Lp}:")
        A("s_sleep 4")
        A("ds_read_b32 v9, v8 offset:4")
        A("s_waitcnt lgkmcnt(0)")
        A("v_readfirstlane_b32 s32, v9")
        A(f"s_cmp_lt_u32 s32, {thr}")
        A(f"s_cbranch_scc1 {Lp}")
        A(f"s_add_u32 s34, s64, {20*20480}")
        A("s_mov_b64 exec, s[66:67]")
        A(f"{Lw}:")
        A("s_mov_b32 m0, s65")
        A("s_add_u32 s65, s65, 2560")
        A("buffer_load_dwordx4 v30, s[60:63], s64 offen lds")
        A("s_add_u32 s64, s64, 20480")
        A("s_cmp_lt_u32 s64, s34")
        A(f"s_cbranch_scc1 {Lw}")
        A("s_mov_b64 exec, -1")
    L_w1, L_w2 = A.label("w1"), A.label("w2")
    A("s_lshr_b32 s32, s2, 3")
    A("s_and_b32 s33, s2, 7")
    A("s_mul_i32 s47, s33, 24")
    A("s_add_u32 s47, s47, s32")
    A(f"s_cmp_ge_u32 s32, {0 if X.noffn else 24}")
    A(f"s_cbranch_scc1 {L_w1}")
    srd(A, 12, 36, X_BYTES)
    A("s_cmp_ge_u32 s28, 2")
    A("s_cselect_b32 s16, s42, s40")
    A("s_cselect_b32 s17, s43, s41")
    A("s_and_b32 s17, s17, 0xffff")
    A(f"s_mov_b32 s18, {F_BYTES}")
    A("s_mov_b32 s19, 0x00020000")
    srd(A, 20, 44, F_BYTES)
    A("v_lshlrev_b32 v2, 3, v1")
    A(f"s_mov_b32 s32, {WS_RKEY}")
    A("buffer_load_dwordx2 v[6:7], v2, s[8:11], s32 offen")
    A("v_mul_u32_u24 v3, 3072, v1")
    A("s_and_b32 s27, s28, 1")
    A("v_cmp_gt_u32 vcc, 40, v1")
    A("v_mov_b32 v4, 0x40000000")
    A("v_cndmask_b32 v4, v4, v2, vcc")
    W_, WD_, XL, AC = 32, 56, 72, 10
    A(f"s_mul_i32 s32, s27, {320*3072}")
    A("s_lshl_b32 s33, s47, 4")
    A("s_add_u32 s32, s32, s33")
    for i in range(5):
        A(f"buffer_load_dwordx4 {vr(W_+4*i,4)}, v3, s[16:19], s32 offen")
        if i < 4: A(f"s_add_u32 s32, s32, {64*3072}")
    A("s_waitcnt vmcnt(5)")
    wave_max_u32(A, 6, 7, 52)
    A("s_and_b32 s52, s52, 2047")
    A("s_sub_u32 s52, 2047, s52")
    A("s_mul_i32 s32, s52, 1280")
    A("s_mul_i32 s33, s27, 640")
    A("s_add_u32 s32, s32, s33")
    A("v_lshlrev_b32 v9, 1, v1")
    for i in range(5):
        A(f"buffer_load_ushort v{XL+i}, v9, s[12:15], s32 offen offset:{i*128}")
    A("s_mul_i32 s32, s47, 10240")
    A("s_mul_i32 s33, s28, 320")
    A("s_add_u32 s32, s32, s33")
    for f in range(8):
        if f % 3 == 0 and f: A(f"s_add_u32 s32, s32, {3*1280}")
        A(f"buffer_load_dwordx2 {vr(WD_+2*f,2)}, v4, s[20:23], s32 offen offset:{(f%3)*1280}")
    for j in range(8):
        A(f"v_mov_b32 v{AC+j}, 0")
    A("s_waitcnt vmcnt(8)")
    stamp(A, 7)
    for i in range(5):
        A(f"v_lshlrev_b32 v{XL+5}, 16, v{XL+i}")
        for dw in range(4):
            A(f"v_dot2c_f32_bf16 v{AC+2*dw}, v{W_+4*i+dw}, v{XL+i}")
            A(f"v_dot2c_f32_bf16 v{AC+2*dw+1}, v{W_+4*i+dw}, v{XL+5}")
    A("s_nop 3")
    for j in range(4):
        A(f"v_permlane32_swap_b32 v{AC+j}, v{AC+j+4}")
    A("s_nop 1")
    for j in range(4):
        A(f"v_add_f32 v{AC+j}, v{AC+j}, v{AC+j+4}")
    A("s_nop 1")
    for j in range(2):
        A(f"v_permlane16_swap_b32 v{AC+j}, v{AC+j+2}")
    A("s_nop 1")
    for j in range(2):
        A(f"v_add_f32 v{AC+j}, v{AC+j}, v{AC+j+2}")
    for sh in (8, 4, 2, 1):
        A("s_nop 1")
        for j in range(2):
            A(f"v_add_f32_dpp v{AC+j}, v{AC+j}, v{AC+j} row_ror:{sh} row_mask:0xf bank_mask:0xf")
    A("v_lshrrev_b32 v9, 4, v1")
    A("s_lshl_b32 s32, s28, 5")
    A(f"s_add_u32 s32, s32, {FB}")
    A("v_lshl_add_u32 v9, v9, 3, s32")
    A(f"ds_write_b64 v9, {vr(AC,2)}")
    A("v_and_b32 v3, 7, v1")
    A("v_lshlrev_b32 v3, 2, v3")
    A(f"v_add_u32 v3, {FB}, v3")
    A("v_mov_b32 v9, 1")
    A("s_waitcnt lgkmcnt(0)")
    A("ds_add_u32 v8, v9")
    stamp(A, 8)
    wo_part(256)
    stamp(A, 9)
    L_poll = A.label("poll")
    A(f"{L_poll}:")
    A("ds_read_b32 v9, v8")
    A("s_waitcnt lgkmcnt(0)")
    A("v_readfirstlane_b32 s32, v9")
    A("s_sleep 2")
    A("s_cmp_lt_u32 s32, 256")
    A(f"s_cbranch_scc1 {L_poll}")
    A("ds_read2_b32 v[10:11], v3 offset0:0 offset1:8")
    A("ds_read2_b32 v[12:13], v3 offset0:16 offset1:24")
    A("s_waitcnt lgkmcnt(0)")
    A("v_add_f32 v10, v10, v11")
    A("v_add_f32 v12, v12, v13")
    bf16r(A, 10, 10)
    sigmoid(A, 14, 10, 15)
    A("v_mul_f32 v10, v10, v14")
    bf16r(A, 10, 10)
    bf16r(A, 12, 12)
    A("v_mul_f32 v10, v10, v12")
    bf16r(A, 10, 10)
    Y = 16
    for j in range(4):
        A(f"v_mov_b32 v{Y+j}, 0")
    for f in range(8):
        A(f"v_readlane_b32 s{13+2*f if f < 4 else 45+2*f}, v10, {f}")
    def hs(f):
        hi = 13+2*f if f < 4 else 45+2*f
        return hi - 1, hi
    for f in range(8):
        lo, hi = hs(f)
        A(f"s_lshr_b32 s{lo}, s{hi}, 16")
    A("s_waitcnt vmcnt(20)")
    for f in range(8):
        lo, hi = hs(f)
        for j in range(2):
            A(f"v_dot2c_f32_bf16 v{Y+2*j}, s{lo}, v{WD_+2*f+j}")
            A(f"v_dot2c_f32_bf16 v{Y+2*j+1}, s{hi}, v{WD_+2*f+j}")
    A("s_and_b32 s32, s47, 15")
    A("s_mul_i32 s32, s32, 2560")
    A("s_mul_i32 s33, s28, 640")
    A("s_add_u32 s32, s32, s33")
    A(f"s_add_u32 s32, s32, {WS_Y}")
    A("v_lshlrev_b32 v4, 1, v4")
    A("s_nop 2")
    for j in range(4):
        A(f"buffer_atomic_add_f32 v{Y+j}, v4, s[8:11], s32 offen offset:{j*4}")
    A(f"s_branch {L_w2}")
    A(f"{L_w1}:")
    wo_part(256)
    A(f"{L_w2}:")
    stamp(A, 4)
    wo_part(512)
    stamp(A, 0)
    A("s_setprio 0")
    A(f"s_branch {L_op}")
    return (name, (256,1,1), (512,1,1), 163840, 256, 256)

def build(kernels, path):
    A = Asm()
    infos = [k(A) for k in kernels]
    hdr = "".join(f"; @launch kernel={n} grid=({g[0]},{g[1]},{g[2]}) block=({b[0]},{b[1]},{b[2]}) lds={l}\n" for n, g, b, l, nv, ac in infos)
    out = hdr + '.amdgcn_target "amdgcn-amd-amdhsa--gfx950"\n.text\n' + A.text() + '.section .rodata,"a"\n'
    seen = set()
    for n, g, b, l, nv, ac in infos:
        if n in seen: continue
        seen.add(n)
        out += kernel_desc(n, 256 if Cfg.on else nv, 256 if Cfg.on else ac)
    open(path, "w").write(out)
```

```python
from g6 import *

NSLOT = 7
SLOTB = 18432
ER = NSLOT * SLOTB
DEPTH = 2
def k1(A):
    name = "proj_kernel"
    kernel_begin(A, name)
    L_exit = A.label("k1exit"); L_load = A.label("k1load")
    A("s_cmp_ge_u32 s2, 256")
    A(f"s_cbranch_scc1 {L_exit}")
    stamp_rt(A, 0); stamp(A, 1)
    A(f"s_load_dwordx4 s[36:39], s[0:1], {KA_X}")
    A(f"s_load_dwordx4 s[40:43], s[0:1], {KA_WK}")
    A(f"s_load_dwordx2 s[44:45], s[0:1], {KA_WR}")
    A(f"s_load_dwordx2 s[46:47], s[0:1], {KA_GW}")
    A(f"s_load_dwordx2 s[48:49], s[0:1], {KA_WS}")
    A("v_lshrrev_b32 v4, 6, v0")
    A("v_and_b32 v1, 63, v0")
    A("v_readfirstlane_b32 s29, v4")
    wg_decode(A)
    A("s_lshr_b32 s27, s31, 1")
    A("s_and_b32 s28, s31, 1")
    A("s_lshr_b32 s32, s2, 6")
    A("s_mul_i32 s32, s32, 3")
    A("s_add_u32 s24, s32, s31")
    A("s_cmp_ge_u32 s24, 10")
    A("s_cselect_b32 s32, 10, 0")
    A("s_sub_u32 s24, s24, s32")
    A("s_cmp_ge_u32 s29, 4")
    A(f"s_cbranch_scc1 {L_load}")
    A("v_and_b32 v2, 15, v0")
    A("v_lshrrev_b32 v3, 4, v1")
    VACC = 32; VE = 52; VW = 64; VXF = 96; VEW = 104
    VB1, VB2, VXA0, VXA1 = 14, 15, 16, 17
    A("v_lshrrev_b32 v5, 2, v2")
    A("v_and_b32 v6, 3, v2")
    A("v_lshl_add_u32 v5, v3, 3, v5")
    A("v_and_b32 v7, 1, v3")
    A("v_lshlrev_b32 v7, 2, v7")
    A("v_add_u32 v18, v5, v7")
    A("v_mul_u32_u24 v18, 160, v18")
    A(f"v_lshl_add_u32 v{VB1}, v6, 3, v18")
    A("v_xor_b32 v7, 4, v7")
    A("v_add_u32 v18, v5, v7")
    A("v_mul_u32_u24 v18, 160, v18")
    A(f"v_lshl_add_u32 v{VB2}, v6, 3, v18")
    A("v_mul_u32_u24 v18, 40, v5")
    A(f"v_add_u32 v18, {ER}, v18")
    A("v_lshl_add_u32 v19, v6, 3, v18")
    A("v_add_u32 v20, 32, v18")
    A("v_and_b32 v5, 1, v2")
    A("v_mul_u32_u24 v5, 1280, v5")
    A("v_lshl_add_u32 v5, v3, 4, v5")
    A(f"v_add_u32 v21, {ER + 25600}, v5")
    A("v_lshrrev_b32 v5, 1, v2")
    A("v_xor_b32 v5, v5, v3")
    A("v_lshlrev_b32 v5, 4, v5")
    A("v_lshl_add_u32 v5, v2, 7, v5")
    A("s_lshl_b32 s32, s29, 11")
    A(f"v_add_u32 v{VXA0}, s32, v5")
    A(f"v_xor_b32 v{VXA1}, 64, v{VXA0}")
    for i in range(VACC, VE + 8):
        A(f"v_mov_b32 v{i}, 0")
    A("s_lshl_b32 s32, s30, 6")
    A("s_lshl_b32 s33, s29, 4")
    A("s_add_u32 s50, s32, s33")
    A("v_add_u32 v5, s50, v2")
    A("v_lshrrev_b32 v6, 5, v5")
    A("v_and_b32 v7, 31, v5")
    A("v_lshlrev_b32 v6, 5, v6")
    A("s_lshl_b32 s33, s31, 2")
    A("v_add_u32 v6, s33, v6")
    for mt in range(5):
        A(f"v_add_u32 v27, {4*mt}, v3")
        A("v_mul_u32_u24 v28, 52, v27")
        A("v_lshrrev_b32 v28, 8, v28")
        A("v_mul_u32_u24 v29, 5, v28")
        A("v_sub_u32 v29, v27, v29")
        A("v_add_u32 v28, v6, v28")
        A("v_lshrrev_b32 v30, 1, v29")
        A("v_lshl_add_u32 v30, v30, 5, v7")
        A("v_lshlrev_b32 v30, 4, v30")
        A("v_lshl_add_u32 v30, v28, 10, v30")
        A("v_and_b32 v31, 1, v29")
        A("v_lshl_add_u32 v30, v31, 3, v30")
        A("v_lshlrev_b32 v31, 3, v7")
        A("v_lshl_add_u32 v31, v28, 8, v31")
        A("v_cmp_eq_u32 vcc, 4, v29")
        A(f"v_add_u32 v31, {WS_Q2}, v31")
        A("s_nop 0")
        A(f"v_cndmask_b32 v{22+mt}, v30, v31, vcc")
    A("s_mov_b32 s25, 0")
    A("s_add_u32 s32, s28, 1")
    A("s_cmp_eq_u32 s29, s27")
    A("s_cselect_b32 s25, s32, s25")
    A("s_add_u32 s32, s27, 1")
    A("s_and_b32 s32, s32, 3")
    A("s_lshl_b32 s33, s28, 2")
    A("s_or_b32 s33, s33, s29")
    A("s_or_b32 s32, s32, 4")
    A("s_cmp_eq_u32 s32, s33")
    A("s_cselect_b32 s25, 3, s25")
    A("s_waitcnt lgkmcnt(0)")
    srd(A, 20, 48, WS_SIZE)
    A("s_mov_b32 s46, 0")
    A(f"s_mov_b32 s55, {-(NSLOT-1)*SLOTB}")
    stamp(A, 2)
    L_c, L_ne, L_ekv, L_ev = A.label("c"), A.label("ne"), A.label("ekv"), A.label("ev")
    A(f"{L_c}:")
    A("s_barrier")
    A(f"ds_read_b128 {vr(VXF,4)}, v{VXA0}")
    items = [(s, mt) for s in range(2) for mt in range(5)]
    LA = 5; NS = 8
    def rd(i):
        s, mt = items[i]
        slot = VW + 4*(i % NS)
        off = 8192 + s * 5120 + mt * 32
        A(f"ds_read_b64_tr_b16 {vr(slot,2)}, v{VB1} offset:{off}")
        A(f"ds_read_b64_tr_b16 {vr(slot+2,2)}, v{VB2} offset:{off}")
    for i in range(LA):
        rd(i)
    A(f"ds_read_b128 {vr(VXF+4,4)}, v{VXA1}")
    A("s_add_u32 s46, s46, 1")
    A(f"s_cmp_eq_u32 s46, {NSLOT}")
    A(f"s_cselect_b32 s32, s55, {SLOTB}")
    for i in range(len(items)):
        if i + LA < len(items):
            rd(i + LA)
        n_after = 2*(min(i + LA, len(items) - 1) - i) + (1 if i < LA else 0)
        A(f"s_waitcnt lgkmcnt({n_after})")
        s, mt = items[i]
        slot = VW + 4*(i % NS)
        A(f"v_mfma_f32_16x16x32_bf16 {vr(VACC+4*mt,4)}, {vr(slot,4)}, {vr(VXF+4*s,4)}, {vr(VACC+4*mt,4)}")
        if i == LA - 1:
            A(f"v_add_u32 v{VB1}, s32, v{VB1}")
            A(f"v_add_u32 v{VB2}, s32, v{VB2}")
            A(f"v_add_u32 v{VXA0}, s32, v{VXA0}")
            A(f"v_add_u32 v{VXA1}, s32, v{VXA1}")
            A("s_cmp_eq_u32 s25, 0")
    A(f"s_cbranch_scc1 {L_ne}")
    A("s_cmp_lg_u32 s25, 3")
    A(f"s_cbranch_scc1 {L_ekv}")
    A("s_lshl_b32 s32, s24, 7")
    A("v_add_u32 v5, s32, v21")
    A(f"ds_read_b128 {vr(VEW,4)}, v5")
    A(f"ds_read_b128 {vr(VEW+4,4)}, v5 offset:64")
    A("s_waitcnt lgkmcnt(0)")
    for s in range(2):
        A(f"v_mfma_f32_16x16x32_bf16 {vr(VE,4)}, {vr(VEW+4*s,4)}, {vr(VXF+4*s,4)}, {vr(VE,4)}")
    A(f"s_branch {L_ne}")
    A(f"{L_ekv}:")
    A("s_mul_i32 s32, s24, 2560")
    A("v_add_u32 v5, s32, v19")
    A("v_add_u32 v6, s32, v20")
    for s in range(2):
        for t in range(2):
            slot = VEW + 8*s + 4*t
            A(f"ds_read_b64_tr_b16 {vr(slot,2)}, v{5+t} offset:{s*1280}")
            A(f"ds_read_b64_tr_b16 {vr(slot+2,2)}, v{5+t} offset:{s*1280+160}")
    A("s_cmp_eq_u32 s25, 2")
    A("s_waitcnt lgkmcnt(0)")
    A(f"s_cbranch_scc1 {L_ev}")
    for s in range(2):
        for t in range(2):
            A(f"v_mfma_f32_16x16x32_bf16 {vr(VE+4*t,4)}, {vr(VEW+8*s+4*t,4)}, {vr(VXF+4*s,4)}, {vr(VE+4*t,4)}")
    A(f"s_branch {L_ne}")
    A(f"{L_ev}:")
    for s in range(2):
        for t in range(2):
            A(f"v_mfma_f32_16x16x32_bf16 {vr(VE+4*t,4)}, {vr(VXF+4*s,4)}, {vr(VEW+8*s+4*t,4)}, {vr(VE+4*t,4)}")
    A(f"{L_ne}:")
    A("s_add_u32 s24, s24, 1")
    A("s_cmp_eq_u32 s24, 10")
    A("s_cselect_b32 s24, 0, s24")
    A("s_cmp_lt_u32 s46, 10")
    A(f"s_cbranch_scc1 {L_c}")
    stamp(A, 3)
    A(f"s_mov_b32 s33, {f32bits(QSCALE):#x}")
    A("s_nop 2")
    for mt in range(5):
        a = VACC + 4*mt
        for i in range(4):
            A(f"v_mul_f32 v{a+i}, s33, v{a+i}")
        A(f"v_cvt_pk_bf16_f32 v{a}, v{a}, v{a+1}")
        A(f"v_cvt_pk_bf16_f32 v{a+1}, v{a+2}, v{a+3}")
        A(f"buffer_store_dwordx2 {vr(a,2)}, v{22+mt}, s[20:23], 0 offen")
    stamp(A, 4)
    L_fin, L_sv, L_sr, L_z = A.label("fin"), A.label("sv"), A.label("sr"), A.label("z")
    A("s_cmp_eq_u32 s25, 0")
    A(f"s_cbranch_scc1 {L_z}")
    A("s_cmp_eq_u32 s25, 3")
    A(f"s_cbranch_scc1 {L_sr}")
    A("s_lshl_b32 s32, s30, 1")
    A("s_lshr_b32 s33, s27, 1")
    A("s_add_u32 s51, s32, s33")
    A("s_and_b32 s53, s27, 1")
    A("v_lshrrev_b32 v6, 1, v3")
    A("v_and_b32 v7, 1, v3")
    for t in range(2):
        a = VE + 4*t
        A(f"v_cvt_pk_bf16_f32 v{a}, v{a}, v{a+1}")
        A(f"v_cvt_pk_bf16_f32 v{a+1}, v{a+2}, v{a+3}")
    A("s_cmp_eq_u32 s25, 2")
    A(f"s_cbranch_scc1 {L_sv}")
    A("s_add_u32 s51, s51, 62")
    A("s_and_b32 s51, s51, 63")
    A(f"s_mul_i32 s51, s51, {SL}")
    A(f"s_add_u32 s51, s51, {WS_KV0}")
    A(f"s_add_u32 s52, s51, {64*SL}")
    A("s_lshl_b32 s33, s53, 4")
    A("v_add_u32 v5, s33, v2")
    A("v_lshl_add_u32 v6, v6, 5, v5")
    A("v_lshlrev_b32 v6, 4, v6")
    A("v_lshl_add_u32 v6, v7, 3, v6")
    A(f"buffer_store_dwordx2 {vr(VE,2)}, v6, s[20:23], s51 offen")
    A(f"buffer_store_dwordx2 {vr(VE,2)}, v6, s[20:23], s52 offen")
    A("v_cmp_eq_u32 vcc, 0, v3")
    A("v_lshlrev_b32 v6, 3, v5")
    A("v_lshl_or_b32 v6, v3, 28, v6")
    A(f"buffer_store_dwordx2 {vr(VE+4,2)}, v6, s[20:23], s51 offen offset:{OFF_A2}")
    A(f"buffer_store_dwordx2 {vr(VE+4,2)}, v6, s[20:23], s52 offen offset:{OFF_A2}")
    A(f"v_cndmask_b32 v8, 0, v{VE+4}, vcc")
    A(f"v_cndmask_b32 v9, 0, v{VE+5}, vcc")
    A("v_mov_b32 v7, 0")
    for r in (VE, VE+1, 8, 9):
        A(f"v_dot2c_f32_bf16 v7, v{r}, v{r}")
    A("s_nop 2")
    A("v_mov_b32 v6, v7")
    A("s_nop 1")
    A("v_permlane32_swap_b32 v6, v7")
    A("s_nop 1")
    A("v_add_f32 v7, v6, v7")
    A("v_mov_b32 v6, v7")
    A("s_nop 1")
    A("v_permlane16_swap_b32 v6, v7")
    A("s_nop 1")
    A("v_add_f32 v7, v6, v7")
    A(f"s_mov_b32 s34, {WS_KMAX}")
    A(f"s_branch {L_fin}")
    A(f"{L_sv}:")
    A("s_add_u32 s51, s51, 63")
    A("s_and_b32 s51, s51, 63")
    A(f"s_mul_i32 s51, s51, {SL}")
    A("s_mul_i32 s33, s53, 656")
    A("s_add_u32 s51, s51, s33")
    A(f"s_add_u32 s51, s51, {WS_KV0 + OFF_V0}")
    A(f"s_add_u32 s52, s51, {64*SL}")
    A("v_mul_u32_u24 v6, 20, v6")
    A("v_add_u32 v6, v6, v2")
    A("v_lshlrev_b32 v6, 4, v6")
    A("v_lshl_add_u32 v6, v7, 3, v6")
    A(f"buffer_store_dwordx2 {vr(VE,2)}, v6, s[20:23], s51 offen")
    A(f"buffer_store_dwordx2 {vr(VE,2)}, v6, s[20:23], s52 offen")
    A("v_cmp_eq_u32 vcc, 4, v2")
    A("v_mov_b32 v8, 0x3f803f80")
    A(f"v_cndmask_b32 v{VE+4}, v{VE+4}, v8, vcc")
    A(f"v_cndmask_b32 v{VE+5}, v{VE+5}, v8, vcc")
    A("v_lshrrev_b32 v8, 1, v3")
    A("v_add_u32 v8, 4, v8")
    A("v_cmp_gt_u32 vcc, v8, v2")
    A("v_mov_b32 v8, 0x40000000")
    A("v_cndmask_b32 v6, v8, v6, vcc")
    A(f"buffer_store_dwordx2 {vr(VE+4,2)}, v6, s[20:23], s51 offen offset:256")
    A(f"buffer_store_dwordx2 {vr(VE+4,2)}, v6, s[20:23], s52 offen offset:256")
    A("s_endpgm")
    A(f"{L_z}:")
    A("s_xor_b32 s32, s27, 1")
    A("s_lshl_b32 s33, s28, 2")
    A("s_or_b32 s33, s33, s29")
    A("s_cmp_lg_u32 s32, s33")
    A(f"s_cbranch_scc1 {L_exit}")
    A("s_lshl_b32 s33, s30, 2")
    A("s_add_u32 s33, s33, s27")
    A("s_mul_i32 s33, s33, 320")
    A(f"s_add_u32 s33, s33, {WS_Y}")
    A("v_cmp_gt_u32 vcc, 20, v1")
    A("v_lshlrev_b32 v5, 4, v1")
    A("v_mov_b32 v6, 0x40000000")
    A("v_cndmask_b32 v5, v6, v5, vcc")
    A(f"buffer_store_dwordx4 {vr(VE,4)}, v5, s[20:23], s33 offen")
    A("s_endpgm")
    A(f"{L_sr}:")
    A("v_add_u32 v5, s50, v2")
    A("v_lshlrev_b32 v6, 2, v5")
    A("v_lshl_or_b32 v6, v3, 28, v6")
    A("v_sub_u32 v5, 2047, v5")
    A(f"s_mov_b32 s33, {WS_R}")
    A(f"buffer_store_dword v{VE}, v6, s[20:23], s33 offen")
    A(f"s_mov_b32 s33, {WS_G}")
    A(f"buffer_store_dword v{VE+1}, v6, s[20:23], s33 offen")
    A(f"v_ashrrev_i32 v7, 31, v{VE}")
    A("v_or_b32 v7, 0x80000000, v7")
    A(f"v_xor_b32 v7, v7, v{VE}")
    A("v_and_b32 v7, 0xfffff800, v7")
    A("v_or_b32 v7, v7, v5")
    A(f"s_mov_b32 s34, {WS_RKEY}")
    A(f"{L_fin}:")
    for sh in (8, 4, 2, 1):
        A("s_nop 1")
        A(f"v_max_u32_dpp v7, v7, v7 row_ror:{sh} row_mask:0xf bank_mask:0xf")
    A("s_lshl_b32 s33, s30, 2")
    A("s_add_u32 s33, s33, s29")
    A("s_lshl_b32 s33, s33, 2")
    A("s_add_u32 s33, s33, s34")
    A("v_lshlrev_b32 v6, 24, v1")
    A("buffer_store_dword v7, v6, s[20:23], s33 offen")
    stamp(A, 5); stamp_rt(A, 6)
    stamp_flush(A, 7, 20, None, 0)
    A(f"{L_exit}:")
    A("s_endpgm")
    A(f"{L_load}:")
    A("s_sub_u32 s26, s29, 4")
    A("v_lshrrev_b32 v5, 3, v1")
    A("v_and_b32 v6, 7, v1")
    A("v_lshrrev_b32 v7, 1, v5")
    A("v_xor_b32 v6, v6, v7")
    A("v_mul_u32_u24 v5, 1280, v5")
    A("v_lshl_add_u32 v8, v6, 4, v5")
    A("v_xor_b32 v9, 64, v8")
    A("v_add_u32 v9, 9216, v9")
    A("v_mul_u32_u24 v5, 26, v1")
    A("v_lshrrev_b32 v5, 8, v5")
    A("v_mul_u32_u24 v6, 10, v5")
    A("v_sub_u32 v6, v1, v6")
    A("v_mul_u32_u24 v5, 1280, v5")
    A("v_lshl_add_u32 v10, v6, 4, v5")
    A("v_add_u32 v12, 17920, v10")
    A("v_lshlrev_b32 v11, 4, v1")
    A("s_mul_i32 s50, s30, 81920")
    A("s_mul_i32 s32, s26, 20480")
    A("s_add_u32 s50, s50, s32")
    A("s_lshr_b32 s32, s26, 1")
    A("s_xor_b32 s32, s32, s26")
    A("s_mul_i32 s52, s32, 5120")
    A("s_mul_i32 s33, s31, 160")
    A("s_add_u32 s52, s52, s33")
    A("s_lshl_b32 s53, s26, 11")
    A("s_mul_i32 s54, s26, 640")
    A("s_add_u32 s54, s54, 8192")
    A("s_mov_b32 s34, -1")
    A("s_movk_i32 s35, 0xff")
    A("s_mov_b32 s56, 0")
    A("s_waitcnt lgkmcnt(0)")
    srd(A, 8, 36, X_BYTES)
    srd(A, 12, 38, W_BYTES)
    def chunk():
        A("s_lshl_b32 s32, s24, 7")
        A("s_add_u32 s32, s32, s50")
        A("s_add_u32 m0, s56, s53")
        A("s_mul_i32 s33, s24, 81920")
        A("buffer_load_dwordx4 v8, s[8:11], s32 offen lds")
        A("buffer_load_dwordx4 v9, s[8:11], s32 offen offset:1024 lds")
        A("s_add_u32 s33, s33, s52")
        A("s_add_u32 m0, s56, s54")
        A("s_mov_b64 exec, s[34:35]")
        A("buffer_load_dwordx4 v10, s[12:15], s33 offen lds")
        A("buffer_load_dwordx4 v12, s[12:15], s33 offen offset:2560 lds")
        A("s_add_u32 m0, m0, 5120")
        A("s_add_u32 s33, s33, 40960")
        A("buffer_load_dwordx4 v10, s[12:15], s33 offen lds")
        A("buffer_load_dwordx4 v12, s[12:15], s33 offen offset:2560 lds")
        A("s_mov_b64 exec, -1")
        A("s_add_u32 s24, s24, 1")
        A("s_cmp_eq_u32 s24, 10")
        A("s_cselect_b32 s24, 0, s24")
        A(f"s_add_u32 s56, s56, {SLOTB}")
        A(f"s_cmp_eq_u32 s56, {NSLOT*SLOTB}")
        A("s_cselect_b32 s56, 0, s56")
    A("s_cmp_eq_u32 s28, 0")
    A("s_cselect_b32 s16, s40, s42")
    A("s_cselect_b32 s17, s41, s43")
    A("s_and_b32 s17, s17, 0xffff")
    A("s_movk_i32 s18, 25600")
    A("s_mov_b32 s19, 0x00020000")
    A("s_bitcmp1_b32 s26, 0")
    A("s_cselect_b32 s20, s46, s44")
    A("s_cselect_b32 s21, s47, s45")
    A("s_and_b32 s21, s21, 0xffff")
    A("s_movk_i32 s22, 1280")
    A("s_mov_b32 s23, 0x00020000")
    A("s_lshl_b32 s32, s26, 10")
    L_el = A.label("el")
    A(f"{L_el}:")
    A(f"s_add_u32 m0, s32, {ER}")
    A("s_nop 0")
    A(f"buffer_load_dwordx4 v11, s[16:19], s32 offen lds")
    A("s_add_u32 s32, s32, 4096")
    A("s_cmp_lt_u32 s32, 25600")
    A(f"s_cbranch_scc1 {L_el}")
    A("s_lshr_b32 s32, s26, 1")
    A("s_lshl_b32 s32, s32, 10")
    A("s_and_b32 s33, s26, 1")
    A("s_mul_i32 s33, s33, 1280")
    A("s_add_u32 s33, s33, s32")
    A(f"s_add_u32 m0, s33, {ER + 25600}")
    A("s_cmp_ge_u32 s26, 2")
    A("s_cselect_b32 s58, 0xffff, -1")
    A("s_cselect_b32 s59, 0, -1")
    A("s_mov_b64 exec, s[58:59]")
    A(f"buffer_load_dwordx4 v11, s[20:23], s32 offen lds")
    A("s_mov_b64 exec, -1")
    A("s_mov_b32 s46, 0")
    L_l, L_nb = A.label("l"), A.label("nb")
    A(f"{L_l}:")
    chunk()
    A("s_add_u32 s46, s46, 1")
    A(f"s_cmp_le_u32 s46, {DEPTH}")
    A(f"s_cbranch_scc1 {L_l}")
    A(f"s_waitcnt vmcnt({6*DEPTH})")
    A("s_barrier")
    A("s_cmp_lt_u32 s46, 10")
    A(f"s_cbranch_scc1 {L_l}")
    for d in range(DEPTH - 1, -1, -1):
        A(f"s_waitcnt vmcnt({6*d})")
        A("s_barrier")
    A("s_endpgm")
    return (name, (256,1,1), (512,1,1), 157184, 120, 120)

if __name__ == "__main__":
    build([k1, k2], "t6.s")
    Cfg.on = True
    build([k1, k2], "t6s.s")
```

```python
import math, sys
from asmlib import *
from stamp8 import *

NAME = "gated_mix__grouped_kv_mqa__moe_arch_mod__prompt_kernel"
KA_X, KA_WQ, KA_WK, KA_WV, KA_WO, KA_BX, KA_WR, KA_WG, KA_WU, KA_WD, KA_GW, KA_OUT, KA_DBG, KA_WS = [8*i for i in range(14)]
SL = 2592
WS_KV0 = 0x0
WS_KMAX = 0x60000
WS_RKEY = 0x60200
WS_R = 0x61000
WS_G = 0x63000
WS_Y = 0x68000
WS_GC = 0x74000
WS_FC = 0x76000
WS_O = 0x100000
WS_SIZE = 0x1000000
X_BYTES = 2048*640*2
W_BYTES = 640*640*2
F_BYTES = 640*1536*2
QSCALE = (20 ** -0.5) * math.log2(math.e)
LOG2E = math.log2(math.e)
LTHR = f32bits(2.0 ** -30)
OFF_A2, OFF_V0, OFF_V1 = 1024, 1280, 1936
FB = 63*SL
FCNT = FB + 128
YB = FB + 160
XB = 102400
SPIN = 100000
ER = 81920
WR = 107520
QX = 148480
U_TILES = 8
class X:
    noffn = False; st = 0

def bf16r(A, d, s):
    A(f"v_cvt_pk_bf16_f32 v{d}, v{s}, v{s}")
    A(f"v_and_b32 v{d}, 0xffff0000, v{d}")
def sigmoid(A, d, s, t):
    A(f"v_mul_f32 v{t}, {f32bits(-LOG2E):#x}, v{s}")
    A(f"v_exp_f32 v{t}, v{t}")
    A("s_nop 0")
    A(f"v_add_f32 v{t}, 1.0, v{t}")
    A(f"v_rcp_f32 v{d}, v{t}")
    A("s_nop 0")
def row_max_u32(A, v):
    for sh in (8, 4, 2, 1):
        A("s_nop 1")
        A(f"v_max_u32_dpp v{v}, v{v}, v{v} row_ror:{sh} row_mask:0xf bank_mask:0xf")
def wave_max_u32(A, v, v2, st):
    A(f"v_max_u32 v{v}, v{v}, v{v2}")
    row_max_u32(A, v)
    A("s_nop 1")
    for i in range(4):
        A(f"v_readlane_b32 s{st+i}, v{v}, {16*i}")
    A(f"s_max_u32 s{st}, s{st}, s{st+1}")
    A(f"s_max_u32 s{st+2}, s{st+2}, s{st+3}")
    A(f"s_max_u32 s{st}, s{st}, s{st+2}")

def arrive(A, cnt_off, total, vt):
    L = A.label("arr")
    A(f"v_mov_b32 v{vt}, 1")
    A(f"v_lshlrev_b32 v{vt+1}, 24, v1")
    A(f"buffer_atomic_add v{vt}, v{vt+1}, s[76:79], 0 offen offset:{cnt_off} sc0 sc1")
    A("s_waitcnt vmcnt(0)")
    A(f"v_readfirstlane_b32 s32, v{vt}")
    A(f"v_mov_b32 v{vt}, 1")
    A(f"s_cmp_lg_u32 s32, {total-1}")
    A(f"s_cbranch_scc1 {L}")
    A(f"buffer_store_dword v{vt}, v{vt+1}, s[76:79], 0 offen offset:{128+cnt_off} sc1")
    A(f"{L}:")
def await_go(A, cnt_off, vt, slp):
    L, Ld = A.label("aw"), A.label("awd")
    A(f"v_lshlrev_b32 v{vt+1}, 24, v1")
    A(f"s_mov_b32 s33, {SPIN}")
    A(f"{L}:")
    A(f"buffer_load_dword v{vt}, v{vt+1}, s[76:79], 0 offen offset:{128+cnt_off} sc1")
    A("s_waitcnt vmcnt(0)")
    A(f"v_readfirstlane_b32 s32, v{vt}")
    A("s_sub_u32 s33, s33, 1")
    A(f"s_cbranch_scc1 {Ld}")
    A("s_cmp_lg_u32 s32, 0")
    A(f"s_cbranch_scc1 {Ld}")
    A(f"s_sleep {slp}")
    A(f"s_branch {L}")
    A(f"{Ld}:")

def fused(A):
    kernel_begin(A, NAME)
    L_exit, L_help, L_op = A.label("exit"), A.label("help"), A.label("oproj")
    A("s_cmp_ge_u32 s2, 256")
    A(f"s_cbranch_scc1 {L_exit}")
    stamp_rt(A, 0)
    A(f"s_load_dwordx4 s[36:39], s[0:1], {KA_X}")
    A(f"s_load_dwordx4 s[40:43], s[0:1], {KA_WK}")
    A(f"s_load_dwordx4 s[48:51], s[0:1], {KA_DBG}")
    A(f"s_load_dwordx2 s[44:45], s[0:1], {KA_WR}")
    A(f"s_load_dwordx4 s[4:7], s[0:1], {KA_GW}")
    A("v_lshrrev_b32 v4, 6, v0")
    A("v_and_b32 v1, 63, v0")
    A("v_readfirstlane_b32 s29, v4")
    A("v_lshlrev_b32 v5, 4, v1")
    A("s_and_b32 s30, s2, 7")
    A("s_lshl_b32 s30, s30, 2")
    A("s_lshr_b32 s28, s2, 6")
    A("s_add_u32 s30, s30, s28")
    A("s_bfe_u32 s31, s2, 0x30003")
    A("s_mul_i32 s32, s28, 3")
    A("s_add_u32 s25, s32, s31")
    A("s_cmp_ge_u32 s25, 10")
    A("s_cselect_b32 s32, 10, 0")
    A("s_sub_u32 s25, s25, s32")
    A("s_cmp_ge_u32 s29, 4")
    A(f"s_cbranch_scc1 {L_help}")

    def common_setup():
        A("s_mov_b32 s10, 0x1000000")
        A("s_mov_b32 s11, 0x00020000")
        A("s_bfe_u32 s24, s2, 0x40003")
        A(f"s_mul_i32 s24, s24, {4*SL}")
        A("s_lshl_b32 s73, s28, 1")
        A("s_add_u32 s73, s73, s31")
        A("s_and_b32 s73, s73, 7")
        A("s_movk_i32 s78, 256")
        A("s_mov_b32 s79, 0x00020000")
    def common_setup2():
        A("s_mov_b32 s8, s50")
        A("s_and_b32 s9, s51, 0xffff")
        A("s_mov_b32 s76, s48")
        A("s_and_b32 s77, s49, 0xffff")
    PM, PT, PX, PTK, PO0, PO1, PPR, PY, PPW, POA, POB = range(160, 171)
    def oproj_addr():
        A("v_and_b32 v2, 15, v0")
        A("v_lshrrev_b32 v3, 4, v1")
        A("s_and_b32 s27, s29, 3")
        A("s_lshr_b32 s28, s29, 2")
        A("v_add_u32 v6, s73, v3")
        A("v_and_b32 v6, 7, v6")
        A("v_lshlrev_b32 v7, 4, v2")
        A(f"v_lshl_add_u32 v{PO0}, v6, 8, v7")
        A(f"v_xor_b32 v{PO1}, 0x400, v{PO0}")
        A("v_lshrrev_b32 v7, 2, v2")
        A("v_and_b32 v8, 3, v2")
        A("v_lshrrev_b32 v9, 1, v3")
        A("v_mul_u32_u24 v9, 20, v9")
        A("v_and_b32 v6, 1, v3")
        A("v_lshl_add_u32 v9, v6, 2, v9")
        A("v_add_u32 v9, v9, v7")
        A("v_mul_u32_u24 v9, 160, v9")
        A("v_lshl_add_u32 v9, v8, 3, v9")
        A("s_xor_b32 s32, s28, 1")
        A("s_mul_i32 s32, s32, 51200")
        A(f"v_add_u32 v{PM}, s32, v9")
        A("v_mul_u32_u24 v9, 40, v3")
        A("v_add3_u32 v9, v9, v7, 16")
        A("v_mul_u32_u24 v9, 160, v9")
        A("v_lshl_add_u32 v9, v8, 3, v9")
        A(f"v_add_u32 v{PT}, s32, v9")
        A("v_mul_u32_u24 v6, 26, v1")
        A("v_lshrrev_b32 v6, 8, v6")
        A("v_mul_u32_u24 v7, 10, v6")
        A("v_sub_u32 v7, v1, v7")
        A("s_lshl_b32 s32, s30, 6")
        A("s_lshl_b32 s33, s29, 3")
        A("s_add_u32 s52, s32, s33")
        A(f"v_add_u32 v{PTK}, s52, v6")
        A(f"v_mul_u32_u24 v8, 1280, v{PTK}")
        A("v_lshl_add_u32 v8, v7, 4, v8")
        A("s_mul_i32 s54, s31, 160")
        A("v_add_u32 v8, s54, v8")
        A("v_cmp_gt_u32 vcc, 40, v1")
        A("v_mov_b32 v9, 0x40000000")
        A(f"v_cndmask_b32 v{PX}, v9, v8, vcc")
        A("v_add_u32 v6, s33, v6")
        A("v_mul_u32_u24 v6, 336, v6")
        A("v_lshl_add_u32 v6, v7, 5, v6")
        A(f"v_add_u32 v{PPR}, {XB}, v6")
        A("v_lshlrev_b32 v7, 5, v7")
        A(f"v_add_u32 v{PY}, {YB}, v7")
        A("s_lshl_b32 s32, s27, 4")
        A("v_add_u32 v6, s32, v2")
        A("v_mul_u32_u24 v6, 336, v6")
        A("v_lshl_add_u32 v6, v3, 4, v6")
        A("s_mul_i32 s32, s28, 21504")
        A(f"s_add_u32 s32, s32, {XB}")
        A(f"v_add_u32 v{PPW}, s32, v6")
    def oproj_saddr():
        A("s_lshl_b32 s33, s30, 2")
        A("s_add_u32 s33, s33, s27")
        A("s_mul_i32 s68, s33, 20480")
        A(f"s_add_u32 s68, s68, {WS_O}")
        A("s_lshl_b32 s33, s28, 11")
        A("s_add_u32 s70, s68, s33")
        A("s_add_u32 s70, s70, 16384")
        A("s_lshl_b32 s33, s28, 13")
        A("s_add_u32 s68, s68, s33")
        for p in range(8):
            A(f"s_add_u32 s32, s73, {p}")
            A("s_and_b32 s32, s32, 7")
            A(f"s_lshl_b32 s{12+p}, s32, 10")
            A(f"s_add_u32 s{12+p}, s{12+p}, s68")
        A("s_movk_i32 s55, 5120")
        A(f"s_mov_b32 s22, {X_BYTES}")
        A("s_mov_b32 s23, 0x00020000")

    A("s_mov_b32 s72, 0")
    common_setup()
    oproj_addr()
    oproj_saddr()
    VACC = 32; VE = 52; H = [64, 84]; XF = [104, 108]
    VB1, VB2, VXA0, VXA1 = 14, 15, 16, 17
    A("v_lshrrev_b32 v6, 2, v2")
    A("v_and_b32 v7, 3, v2")
    A("v_lshl_add_u32 v6, v3, 3, v6")
    A("v_and_b32 v8, 1, v3")
    A("v_lshlrev_b32 v8, 2, v8")
    A("v_add_u32 v9, v6, v8")
    A("v_mul_u32_u24 v9, 160, v9")
    A("v_lshl_add_u32 v9, v7, 3, v9")
    A(f"v_add_u32 v{VB1}, {WR}, v9")
    A("v_xor_b32 v8, 4, v8")
    A("v_add_u32 v9, v6, v8")
    A("v_mul_u32_u24 v9, 160, v9")
    A("v_lshl_add_u32 v9, v7, 3, v9")
    A(f"v_add_u32 v{VB2}, {WR}, v9")
    A("v_mul_u32_u24 v9, 40, v6")
    A(f"v_add_u32 v9, {ER}, v9")
    A("v_lshl_add_u32 v18, v7, 3, v9")
    A("v_add_u32 v19, 32, v9")
    A("v_lshrrev_b32 v6, 1, v2")
    A("v_xor_b32 v6, v6, v3")
    A("v_lshlrev_b32 v6, 4, v6")
    A("v_lshl_add_u32 v6, v2, 7, v6")
    A("s_lshl_b32 s32, s29, 11")
    A("v_add_u32 v10, s32, v6")
    A("v_xor_b32 v11, 64, v10")
    A("s_lshl_b32 s32, s25, 13")
    A(f"v_add_u32 v{VXA0}, s32, v10")
    A(f"v_add_u32 v{VXA1}, s32, v11")
    for i in range(VACC, VE + 8):
        A(f"v_mov_b32 v{i}, 0")
    A("s_lshr_b32 s32, s29, 1")
    A("s_mul_i32 s32, s32, 5120")
    A("s_and_b32 s33, s29, 1")
    A("s_lshl_b32 s33, s33, 7")
    A("s_add_u32 s32, s32, s33")
    A(f"s_add_u32 s32, s32, {QX}")
    A("v_lshlrev_b32 v6, 3, v2")
    A("v_lshl_add_u32 v6, v3, 8, v6")
    A("v_add_u32 v13, s32, v6")
    A("s_lshl_b32 s26, s31, 2")
    A("s_add_u32 s26, s26, s29")
    A("v_bfe_u32 v6, v1, 4, 1")
    A("v_mul_u32_u24 v6, 20480, v6")
    A("v_lshl_add_u32 v6, v2, 4, v6")
    A("v_lshrrev_b32 v7, 5, v1")
    A(f"v_lshl_add_u32 v{POA}, v7, 8, v6")
    A(f"v_lshl_or_b32 v{POB}, v7, 30, v6")
    A("s_mul_i32 s32, s30, 81920")
    A(f"s_add_u32 s32, s32, {WS_O}")
    A("s_lshl_b32 s74, s26, 9")
    A("s_add_u32 s74, s74, s32")
    A("s_lshr_b32 s75, s26, 1")
    A("s_lshl_b32 s75, s75, 8")
    A("s_and_b32 s33, s26, 1")
    A("s_lshl_b32 s33, s33, 3")
    A("s_add_u32 s75, s75, s33")
    A("s_add_u32 s75, s75, s32")
    A("s_add_u32 s75, s75, 16384")
    for i in range(4):
        A(f"v_mov_b32 v{20+i}, -1")
    A("s_add_u32 s34, s74, 40960")
    A("s_add_u32 s35, s75, 40960")
    A("s_waitcnt lgkmcnt(0)")
    common_setup2()
    A("s_mov_b32 s4, s36")
    A("s_mov_b32 s5, s37")
    A(f"buffer_store_dwordx4 v[20:23], v{POA}, s[8:11], s74 offen sc1")
    A(f"buffer_store_dwordx2 v[20:21], v{POB}, s[8:11], s75 offen sc1")
    A(f"buffer_store_dwordx4 v[20:23], v{POA}, s[8:11], s34 offen sc1")
    A(f"buffer_store_dwordx2 v[20:21], v{POB}, s[8:11], s35 offen sc1")
    A("s_lshl_b32 s32, s29, 3")
    A("s_or_b32 s32, s32, s31")
    A("s_cmp_lt_u32 s32, 2")
    A("s_cselect_b32 s57, 2, 99")
    A("v_mov_b32 v12, 0")
    A("v_lshlrev_b32 v24, 24, v1")
    A("s_lshl_b32 s32, s30, 6")
    A("s_lshl_b32 s33, s29, 4")
    A("s_add_u32 s50, s32, s33")
    stamp(A, 1)
    A("s_barrier")
    stamp(A, 2)
    L_main, L_rg, L_e, L_ev, L_ej = A.label("main"), A.label("rg"), A.label("e"), A.label("ev"), A.label("ej")
    A("s_cmp_gt_u32 s31, 2")
    A(f"s_cbranch_scc1 {L_main}")
    A("s_cmp_eq_u32 s31, 2")
    A(f"s_cbranch_scc1 {L_rg}")
    EW = 64; EX = 112
    A("s_mov_b32 s46, 0")
    A(f"{L_e}:")
    for s in range(4):
        A(f"ds_read_b128 {vr(EX+4*s,4)}, v{10 + (s & 1)} offset:{(s >> 1)*8192}")
        for t in range(2):
            slot = EW + 8*s + 4*t
            A(f"ds_read_b64_tr_b16 {vr(slot,2)}, v{18+t} offset:{s*1280}")
            A(f"ds_read_b64_tr_b16 {vr(slot+2,2)}, v{18+t} offset:{s*1280+160}")
    A("v_add_u32 v10, 16384, v10")
    A("v_add_u32 v11, 16384, v11")
    A("v_add_u32 v18, 5120, v18")
    A("v_add_u32 v19, 5120, v19")
    A("s_add_u32 s46, s46, 1")
    A("s_cmp_eq_u32 s31, 1")
    A(f"s_cbranch_scc1 {L_ev}")
    for s in range(4):
        A(f"s_waitcnt lgkmcnt({5*(3-s)})")
        for t in range(2):
            A(f"v_mfma_f32_16x16x32_bf16 {vr(VE+4*t,4)}, {vr(EW+8*s+4*t,4)}, {vr(EX+4*s,4)}, {vr(VE+4*t,4)}")
    A(f"s_branch {L_ej}")
    A(f"{L_ev}:")
    for s in range(4):
        A(f"s_waitcnt lgkmcnt({5*(3-s)})")
        for t in range(2):
            A(f"v_mfma_f32_16x16x32_bf16 {vr(VE+4*t,4)}, {vr(EX+4*s,4)}, {vr(EW+8*s+4*t,4)}, {vr(VE+4*t,4)}")
    A(f"{L_ej}:")
    A("s_cmp_lt_u32 s46, 5")
    A(f"s_cbranch_scc1 {L_e}")
    A("s_lshl_b32 s32, s30, 1")
    A("s_lshr_b32 s33, s29, 1")
    A("s_add_u32 s51, s32, s33")
    A("s_and_b32 s53, s29, 1")
    A("v_lshrrev_b32 v6, 1, v3")
    A("v_and_b32 v7, 1, v3")
    A("s_nop 0")
    for t in range(2):
        a = VE + 4*t
        A(f"v_cvt_pk_bf16_f32 v{a}, v{a}, v{a+1}")
        A(f"v_cvt_pk_bf16_f32 v{a+1}, v{a+2}, v{a+3}")
    L_sv, L_fin, L_sig = A.label("sv"), A.label("fin"), A.label("sig")
    A("s_cmp_eq_u32 s31, 1")
    A(f"s_cbranch_scc1 {L_sv}")
    A("s_add_u32 s51, s51, 62")
    A("s_and_b32 s51, s51, 63")
    A(f"s_mul_i32 s51, s51, {SL}")
    A(f"s_add_u32 s34, s51, {64*SL}")
    A("s_lshl_b32 s33, s53, 4")
    A("v_add_u32 v8, s33, v2")
    A("v_lshl_add_u32 v6, v6, 5, v8")
    A("v_lshlrev_b32 v6, 4, v6")
    A("v_lshl_add_u32 v6, v7, 3, v6")
    A(f"buffer_store_dwordx2 {vr(VE,2)}, v6, s[8:11], s51 offen sc1")
    A(f"buffer_store_dwordx2 {vr(VE,2)}, v6, s[8:11], s34 offen sc1")
    A("v_cmp_eq_u32 vcc, 0, v3")
    A("v_lshlrev_b32 v6, 3, v8")
    A("v_lshl_or_b32 v6, v3, 28, v6")
    A(f"buffer_store_dwordx2 {vr(VE+4,2)}, v6, s[8:11], s51 offen offset:{OFF_A2} sc1")
    A(f"buffer_store_dwordx2 {vr(VE+4,2)}, v6, s[8:11], s34 offen offset:{OFF_A2} sc1")
    A(f"v_cndmask_b32 v8, 0, v{VE+4}, vcc")
    A(f"v_cndmask_b32 v9, 0, v{VE+5}, vcc")
    A("v_mov_b32 v7, 0")
    for r in (VE, VE+1, 8, 9):
        A(f"v_dot2c_f32_bf16 v7, v{r}, v{r}")
    A("s_nop 2")
    A("v_mov_b32 v6, v7")
    A("s_nop 1")
    A("v_permlane32_swap_b32 v6, v7")
    A("s_nop 1")
    A("v_add_f32 v7, v6, v7")
    A("v_mov_b32 v6, v7")
    A("s_nop 1")
    A("v_permlane16_swap_b32 v6, v7")
    A("s_nop 1")
    A("v_add_f32 v7, v6, v7")
    A(f"s_mov_b32 s34, {WS_KMAX}")
    A(f"s_branch {L_fin}")
    A(f"{L_sv}:")
    A("s_add_u32 s51, s51, 63")
    A("s_and_b32 s51, s51, 63")
    A(f"s_mul_i32 s51, s51, {SL}")
    A("s_mul_i32 s33, s53, 656")
    A("s_add_u32 s51, s51, s33")
    A(f"s_add_u32 s34, s51, {64*SL}")
    A("v_mul_u32_u24 v6, 20, v6")
    A("v_add_u32 v6, v6, v2")
    A("v_lshlrev_b32 v6, 4, v6")
    A("v_lshl_add_u32 v6, v7, 3, v6")
    A(f"buffer_store_dwordx2 {vr(VE,2)}, v6, s[8:11], s51 offen offset:{OFF_V0} sc1")
    A(f"buffer_store_dwordx2 {vr(VE,2)}, v6, s[8:11], s34 offen offset:{OFF_V0} sc1")
    A("v_cmp_eq_u32 vcc, 4, v2")
    A("v_mov_b32 v8, 0x3f803f80")
    A(f"v_cndmask_b32 v{VE+4}, v{VE+4}, v8, vcc")
    A(f"v_cndmask_b32 v{VE+5}, v{VE+5}, v8, vcc")
    A("v_lshrrev_b32 v8, 1, v3")
    A("v_add_u32 v8, 4, v8")
    A("v_cmp_gt_u32 vcc, v8, v2")
    A("v_mov_b32 v8, 0x40000000")
    A("v_cndmask_b32 v6, v8, v6, vcc")
    A(f"buffer_store_dwordx2 {vr(VE+4,2)}, v6, s[8:11], s51 offen offset:{OFF_V0+256} sc1")
    A(f"buffer_store_dwordx2 {vr(VE+4,2)}, v6, s[8:11], s34 offen offset:{OFF_V0+256} sc1")
    A(f"s_branch {L_main}")
    A(f"{L_rg}:")
    A("s_mul_i32 s32, s50, 20")
    A(f"s_add_u32 s32, s32, {WS_Y}")
    A("v_cmp_gt_u32 vcc, 20, v1")
    A("v_mov_b32 v7, 0x40000000")
    A("v_cndmask_b32 v6, v7, v5, vcc")
    A(f"buffer_store_dwordx4 {vr(VACC,4)}, v6, s[8:11], s32 offen sc1")
    A("s_lshl_b32 s32, s30, 7")
    A(f"s_add_u32 s33, s32, {WS_GC}")
    A(f"buffer_store_dword v{VACC}, v24, s[8:11], s33 offen sc1")
    A(f"s_add_u32 s33, s32, {WS_FC}")
    A(f"buffer_store_dword v{VACC}, v24, s[8:11], s33 offen sc1")
    A("v_and_b32 v6, 1, v2")
    A("v_mul_u32_u24 v6, 1280, v6")
    A("v_lshl_add_u32 v6, v3, 4, v6")
    A(f"v_add_u32 v18, {ER}, v6")
    A("s_mov_b32 s46, 0")
    L_r2 = A.label("r2")
    A(f"{L_r2}:")
    for s in range(4):
        A(f"ds_read_b128 {vr(EX+4*s,4)}, v{10 + (s & 1)} offset:{(s >> 1)*8192}")
        A(f"ds_read_b128 {vr(EW+4*s,4)}, v18 offset:{s*64}")
    A("v_add_u32 v10, 16384, v10")
    A("v_add_u32 v11, 16384, v11")
    A("v_add_u32 v18, 256, v18")
    A("s_add_u32 s46, s46, 1")
    A("s_cmp_lt_u32 s46, 5")
    for s in range(4):
        A(f"s_waitcnt lgkmcnt({2*(3-s)})")
        A(f"v_mfma_f32_16x16x32_bf16 {vr(VE,4)}, {vr(EW+4*s,4)}, {vr(EX+4*s,4)}, {vr(VE,4)}")
    A(f"s_cbranch_scc1 {L_r2}")
    A("v_add_u32 v8, s50, v2")
    A("v_lshlrev_b32 v6, 2, v8")
    A("v_lshl_or_b32 v6, v3, 28, v6")
    A("v_sub_u32 v8, 2047, v8")
    A(f"s_mov_b32 s33, {WS_R}")
    A(f"s_mov_b32 s34, {WS_G}")
    A("s_nop 1")
    A(f"buffer_store_dword v{VE}, v6, s[8:11], s33 offen sc1")
    A(f"buffer_store_dword v{VE+1}, v6, s[8:11], s34 offen sc1")
    A(f"v_ashrrev_i32 v7, 31, v{VE}")
    A("v_or_b32 v7, 0x80000000, v7")
    A(f"v_xor_b32 v7, v7, v{VE}")
    A("v_and_b32 v7, 0xfffff800, v7")
    A("v_or_b32 v7, v7, v8")
    A(f"s_mov_b32 s34, {WS_RKEY}")
    A(f"{L_fin}:")
    row_max_u32(A, 7)
    A("s_lshr_b32 s33, s50, 2")
    A("s_add_u32 s33, s33, s34")
    A("v_lshlrev_b32 v6, 24, v1")
    A("buffer_store_dword v7, v6, s[8:11], s33 offen sc1")
    A(f"{L_main}:")
    stamp(A, 3)
    def hread(hh, vx):
        A(f"ds_read_b128 {vr(XF[hh],4)}, v{vx}")
        for mt in range(5):
            A(f"ds_read_b64_tr_b16 {vr(H[hh]+4*mt,2)}, v{VB1} offset:{hh*5120 + mt*32}")
            A(f"ds_read_b64_tr_b16 {vr(H[hh]+4*mt+2,2)}, v{VB2} offset:{hh*5120 + mt*32}")
    def hmma(hh):
        for mt in range(5):
            A(f"s_waitcnt lgkmcnt({min(15, 11 + 2*(4-mt))})")
            A(f"v_mfma_f32_16x16x32_bf16 {vr(VACC+4*mt,4)}, {vr(H[hh]+4*mt,4)}, {vr(XF[hh],4)}, {vr(VACC+4*mt,4)}")
    A("s_mov_b32 s46, 0")
    A(f"s_mov_b32 s34, {-4*10240}")
    A(f"s_mov_b32 s35, {-9*8192}")
    A("s_barrier")
    hread(0, VXA0)
    L_c = A.label("c")
    A(f"{L_c}:")
    hread(1, VXA1)
    A("s_add_u32 s46, s46, 1")
    A("s_cmp_eq_u32 s46, 5")
    A("s_cselect_b32 s32, s34, 10240")
    A("s_add_u32 s25, s25, 1")
    A("s_cmp_eq_u32 s25, 10")
    A("s_cselect_b32 s33, s35, 8192")
    A("s_cselect_b32 s25, 0, s25")
    A(f"v_add_u32 v{VB1}, s32, v{VB1}")
    A(f"v_add_u32 v{VB2}, s32, v{VB2}")
    A(f"v_add_u32 v{VXA0}, s33, v{VXA0}")
    A(f"v_add_u32 v{VXA1}, s33, v{VXA1}")
    hmma(0)
    A("s_cmp_eq_u32 s46, 2")
    L_nv = A.label("nv")
    A(f"s_cbranch_scc0 {L_nv}")
    A("s_waitcnt vmcnt(0)")
    A(f"{L_nv}:")
    A("s_barrier")
    hread(0, VXA0)
    L_s1, L_s2 = A.label("s1"), A.label("s2")
    A("v_readfirstlane_b32 s32, v12")
    A("s_cmp_lg_u32 s46, s57")
    A(f"s_cbranch_scc1 {L_s1}")
    A("v_mov_b32 v12, 1")
    A("buffer_atomic_add v12, v24, s[76:79], 0 offen sc0 sc1")
    A(f"{L_s1}:")
    def go1():
        L = A.label("go1")
        A("s_cmp_lg_u32 s32, 63")
        A(f"s_cbranch_scc1 {L}")
        A("buffer_store_dword v12, v24, s[76:79], 0 offen offset:128 sc1")
        A("v_mov_b32 v12, 0")
        A(f"{L}:")
    go1()
    hmma(1)
    A("s_cmp_lt_u32 s46, 10")
    A(f"s_cbranch_scc1 {L_c}")
    stamp(A, 4)
    QB1 = [8, 16]; QS = [12, 14]
    VIDX = 4
    VKA, VA2, VVA = 20, 21, 22
    S = [32, 64]
    O = [96, 112]
    KA1 = [128, 136]; KA2 = [132, 140]
    V0 = [144, 152]; V1 = [148, 156]
    A(f"s_mov_b32 s33, {f32bits(QSCALE):#x}")
    A("v_and_b32 v2, 31, v0")
    A("v_lshrrev_b32 v3, 5, v1")
    A("v_cmp_eq_u32 s[44:45], 1, v3")
    A("v_lshlrev_b32 v6, 3, v2")
    A("s_waitcnt vmcnt(0) lgkmcnt(0)")
    A("v_readfirstlane_b32 s32, v12")
    go1()
    A(f"v_mov_b32 v24, {OFF_V0 + 640 - OFF_A2}")
    A("s_barrier")
    for mt in range(5):
        a = VACC + 4*mt
        for i in range(4):
            A(f"v_mul_f32 v{a+i}, s33, v{a+i}")
        A(f"v_cvt_pk_bf16_f32 v{a}, v{a}, v{a+1}")
        A(f"v_cvt_pk_bf16_f32 v{a+1}, v{a+2}, v{a+3}")
        A(f"ds_write_b64 v13, {vr(a,2)} offset:{mt*1024}")
    A(f"v_cndmask_b32 v{VA2}, v6, v24, s[44:45]")
    A("s_mul_i32 s32, s29, 1280")
    A(f"s_add_u32 s32, s32, {QX}")
    A("v_add_u32 v7, s32, v6")
    A("v_lshl_add_u32 v6, v3, 9, v7")
    A("v_mul_u32_u24 v23, 20, v3")
    A("v_add_u32 v23, v23, v2")
    A("v_cmp_gt_u32 vcc, 20, v2")
    A("v_lshlrev_b32 v26, 3, v1")
    A("v_cndmask_b32 v23, 40, v23, vcc")
    A("v_lshlrev_b32 v23, 4, v23")
    A(f"s_mov_b32 s36, {WS_KMAX}")
    A(f"s_add_u32 s37, s24, {WS_KV0 + 62*SL}")
    A(f"s_add_u32 s38, s24, {WS_KV0 + 63*SL}")
    A("s_waitcnt lgkmcnt(0)")
    A("s_barrier")
    stamp(A, 5)
    A("buffer_load_dwordx2 v[24:25], v26, s[8:11], s36 offen sc1")
    A(f"buffer_load_dwordx4 {vr(KA1[0],4)}, v5, s[8:11], s37 offen sc1")
    A(f"buffer_load_dwordx2 {vr(KA2[0],2)}, v{VA2}, s[8:11], s37 offen offset:{OFF_A2} sc1")
    A(f"buffer_load_dwordx4 {vr(KA1[1],4)}, v5, s[8:11], s38 offen sc1")
    A(f"buffer_load_dwordx2 {vr(KA2[1],2)}, v{VA2}, s[8:11], s38 offen offset:{OFF_A2} sc1")
    A(f"buffer_load_dwordx4 {vr(V0[0],4)}, v23, s[8:11], s38 offen offset:{OFF_V0} sc1")
    A(f"buffer_load_dwordx4 {vr(V1[0],4)}, v23, s[8:11], s38 offen offset:{OFF_V1} sc1")
    A(f"ds_read2_b64 {vr(QB1[0],4)}, v6 offset0:0 offset1:32")
    A(f"ds_read_b64 {vr(QS[0],2)}, v7 offset:1024")
    A("v_add_u32 v6, 5120, v6")
    A(f"ds_read2_b64 {vr(QB1[1],4)}, v6 offset0:0 offset1:32")
    A(f"ds_read_b64 {vr(QS[1],2)}, v7 offset:{1024+5120}")
    A(f"v_mov_b32 v{VKA}, v5")
    A("v_cmp_lt_u32 vcc, 20, v2")
    A("v_mov_b32 v6, 0x40000")
    A(f"v_cndmask_b32 v{VVA}, v23, v6, vcc")
    A(f"v_mov_b32 v{VIDX}, 0xdddd")
    for r in range(O[0], O[0] + 32):
        A(f"v_mov_b32 v{r}, 0")
    for r in range(S[1] + 24, S[1] + 32):
        A(f"v_mov_b32 v{r}, 0")
    for r in range(V1[1], V1[1] + 4):
        A(f"v_mov_b32 v{r}, 0")
    A("v_mov_b32 v26, 0")
    A("v_mov_b32 v28, 0")
    A(f"v_mov_b32 v30, {FCNT}")
    A("v_mov_b32 v31, 1")
    A("s_waitcnt lgkmcnt(0)")
    for b in range(2):
        for r in range(2):
            A(f"v_cndmask_b32 v{QS[b]+r}, v{QS[b]+r}, 0, s[44:45]")
    for r in range(4):
        A(f"v_dot2c_f32_bf16 v26, v{QB1[0]+r}, v{QB1[0]+r}")
        A(f"v_dot2c_f32_bf16 v28, v{QB1[1]+r}, v{QB1[1]+r}")
    for r in range(2):
        A(f"v_dot2c_f32_bf16 v26, v{QS[0]+r}, v{QS[0]+r}")
        A(f"v_dot2c_f32_bf16 v28, v{QS[1]+r}, v{QS[1]+r}")
    A("s_nop 2")
    A("v_mov_b32 v27, v26")
    A("v_mov_b32 v29, v28")
    A("s_nop 1")
    A("v_permlane32_swap_b32 v26, v27")
    A("v_permlane32_swap_b32 v28, v29")
    A("s_nop 1")
    A("v_add_f32 v26, v26, v27")
    A("v_add_f32 v28, v28, v29")
    A("s_waitcnt vmcnt(6)")
    wave_max_u32(A, 24, 25, 34)
    A("v_mul_f32 v26, s34, v26")
    A("v_mul_f32 v28, s34, v28")
    A("v_sqrt_f32 v26, v26")
    A("v_sqrt_f32 v28, v28")
    A("s_nop 0")
    A(f"v_mul_f32 v26, {f32bits(-(1.0 + 2.0**-6)):#x}, v26")
    A(f"v_mul_f32 v28, {f32bits(-(1.0 + 2.0**-6)):#x}, v28")
    A("v_lshrrev_b32 v26, 16, v26")
    A("v_lshrrev_b32 v28, 16, v28")
    A(f"v_cndmask_b32 v{QS[0]}, v{QS[0]}, v26, s[44:45]")
    A(f"v_cndmask_b32 v{QS[1]}, v{QS[1]}, v28, s[44:45]")
    def qs2(buf, par, b):
        A(f"v_mfma_f32_32x32x8_bf16 {vr(S[buf]+16*b,16)}, {vr(KA2[par],2)}, {vr(QS[b],2)}, 0")
    def qk1(buf, par, b):
        A(f"v_mfma_f32_32x32x16_bf16 {vr(S[buf]+16*b,16)}, {vr(KA1[par],4)}, {vr(QB1[b],4)}, {vr(S[buf]+16*b,16)}")
    def pv(buf, b, half, vpar):
        vv = V0[vpar] if half == 0 else V1[vpar]
        A(f"v_smfmac_f32_32x32x32_bf16 {vr(O[b],16)}, {vr(vv,4)}, {vr(S[buf]+16*b+8*half,8)}, v{VIDX}")
    A("s_waitcnt vmcnt(4)")
    qs2(0, 0, 0); qk1(0, 0, 0); qs2(0, 0, 1); qk1(0, 0, 1)
    A("s_mov_b32 s46, 0")
    A("s_waitcnt vmcnt(0)")
    A("s_barrier")
    stamp(A, 6)
    A("s_nop 7")
    L_loop, L_sp = A.label("loop"), A.label("sp")
    A(f"{L_loop}:")
    sched = {2: 'pv1p', 6: 's2a', 10: 'q1a', 14: 'pv0a', 18: 'pv1a', 22: 's2b', 26: 'q1b', 30: 'pv0b'}
    for t in range(U_TILES):
        par = t & 1
        off = t * SL
        for e in range(32):
            op = sched.get(e)
            if op == 'pv1p':
                pv(par ^ 1, 1, 1, par ^ 1)
                A("s_waitcnt lgkmcnt(0)")
                A(f"ds_read_b128 {vr(V0[par^1],4)}, v{VVA} offset:{off+OFF_V0}")
                A(f"ds_read_b128 {vr(V1[par^1],4)}, v{VVA} offset:{off+OFF_V1}")
            if op == 's2a': qs2(par ^ 1, par ^ 1, 0)
            if op == 's2b': qs2(par ^ 1, par ^ 1, 1)
            if op == 'pv0a':
                pv(par, 0, 0, par)
                A(f"ds_read_b128 {vr(KA1[par],4)}, v{VKA} offset:{off}")
                A(f"ds_read_b64 {vr(KA2[par],2)}, v{VA2} offset:{off+OFF_A2}")
            if op == 'q1a': qk1(par ^ 1, par ^ 1, 0)
            if op == 'pv1a': pv(par, 0, 1, par)
            if op == 'q1b': qk1(par ^ 1, par ^ 1, 1)
            if op == 'pv0b':
                pv(par, 1, 0, par)
                if t == U_TILES - 1:
                    A("s_add_u32 s46, s46, 1")
                    A("s_bitcmp1_b32 0x14e, s46")
                    A(f"v_add_u32 v{VKA}, {U_TILES*SL}, v{VKA}")
                    A(f"v_add_u32 v{VA2}, {U_TILES*SL}, v{VA2}")
                    A(f"v_add_u32 v{VVA}, {U_TILES*SL}, v{VVA}")
            A(f"v_exp_f32 v{S[par]+e}, v{S[par]+e}")
    A(f"s_cbranch_scc0 {L_loop}")
    A("s_cmp_gt_u32 s46, 2")
    A(f"s_cbranch_scc1 {L_sp}")
    A("s_barrier")
    A(f"s_branch {L_loop}")
    A(f"{L_sp}:")
    A("ds_add_u32 v30, v31 offset:4")
    A("s_cmp_lt_u32 s46, 8")
    A(f"s_cbranch_scc1 {L_loop}")
    stamp(A, 7)
    pv(1, 1, 1, 1)
    A(f"v_mov_b32 v26, {LTHR:#x}")
    A("s_add_u32 s34, s74, 40960")
    A("s_add_u32 s35, s75, 40960")
    L_fb, L_norm = A.label("fb"), A.label("norm")
    A(f"v_rcp_f32 v28, v{O[0]+8}")
    A("s_nop 0")
    A("v_mov_b32 v29, v28")
    A("s_nop 1")
    A("v_permlane32_swap_b32 v28, v29")
    A("s_nop 3")
    A(f"v_min_f32 v27, v{O[0]+8}, v{O[1]+8}")
    A(f"v_cmp_nge_f32 vcc, v27, v26")
    A(f"v_cmp_u_f32 s[36:37], v{O[0]+8}, v{O[1]+8}")
    A("s_or_b64 vcc, vcc, s[36:37]")
    A("s_and_b64 vcc, vcc, s[44:45]")
    A(f"s_cbranch_vccnz {L_fb}")
    A(f"{L_norm}:")
    A(f"v_rcp_f32 v26, v{O[1]+8}")
    for r in range(12):
        A(f"v_mul_f32 v{O[0]+r}, v{O[0]+r}, v29")
    A("v_mov_b32 v27, v26")
    for r in range(6):
        A(f"v_cvt_pk_bf16_f32 v{S[0]+r}, v{O[0]+2*r}, v{O[0]+2*r+1}")
    A("v_permlane32_swap_b32 v26, v27")
    A(f"buffer_store_dwordx4 {vr(S[0],4)}, v{POA}, s[8:11], s74 offen sc1")
    A(f"buffer_store_dwordx2 {vr(S[0]+4,2)}, v{POB}, s[8:11], s75 offen sc1")
    for r in range(12):
        A(f"v_mul_f32 v{O[1]+r}, v{O[1]+r}, v27")
    for r in range(6):
        A(f"v_cvt_pk_bf16_f32 v{S[0]+8+r}, v{O[1]+2*r}, v{O[1]+2*r+1}")
    A(f"buffer_store_dwordx4 {vr(S[0]+8,4)}, v{POA}, s[8:11], s34 offen sc1")
    A(f"buffer_store_dwordx2 {vr(S[0]+12,2)}, v{POB}, s[8:11], s35 offen sc1")
    A("s_barrier")
    A(f"{L_op}:")
    ACC = 8; OF = 56
    WFS = list(range(96, 160, 4)) + list(range(176, 256, 4))
    NPRE = 7
    XV = 28; G = 48
    def wslot(s, mt):
        return WFS[5*(s % NPRE) + mt]
    def wrd(s, mt):
        slot = wslot(s, mt)
        if s < 8:
            b, off, o2 = PM, s * 6400 + mt * 32, 1280
        else:
            b, off, o2 = PT, (s - 8) * 25600 + mt * 32, 3200
        A(f"ds_read_b64_tr_b16 {vr(slot,2)}, v{b} offset:{off}")
        A(f"ds_read_b64_tr_b16 {vr(slot+2,2)}, v{b} offset:{off+o2}")
    A("s_mov_b32 s20, s4")
    A("s_and_b32 s21, s5, 0xffff")
    A(f"v_lshlrev_b32 v6, 2, v{PTK}")
    A(f"s_mov_b32 s32, {WS_G}")
    for s in range(NPRE):
        for mt in range(5):
            wrd(s, mt)
    A(f"buffer_load_dword v{G}, v6, s[8:11], s32 offen sc1")
    A(f"buffer_load_dword v{G+1}, v6, s[8:11], s32 offen offset:16 sc1")
    A(f"buffer_load_dwordx4 {vr(XV,4)}, v{PX}, s[20:23], 0 offen")
    A(f"buffer_load_dwordx4 {vr(XV+4,4)}, v{PX}, s[20:23], s55 offen")
    for i in range(ACC, ACC + 20):
        A(f"v_mov_b32 v{i}, 0")
    A(f"s_mov_b32 s46, {SPIN}")
    A("s_mov_b32 s71, -1")
    A("s_mov_b32 s47, 0")
    RL = [A.label("rl") for _ in range(10)]
    RC = [A.label("rc") for _ in range(10)]
    RT = [A.label("rt") for _ in range(10)]
    L_disp, L_h2, L_h3 = A.label("disp"), A.label("h2"), A.label("h3")
    A("s_cmp_lg_u32 s72, 0")
    A(f"s_cbranch_scc1 {L_h2}")
    A(f"{L_h3}:")
    stamp(A, 8)
    for s in range(10):
        A(f"{RL[s]}:")
        if s < 8:
            A(f"buffer_load_dwordx4 {vr(OF+4*s,4)}, v5, s[8:11], s{12+s} offen sc1")
        else:
            A(f"buffer_load_dwordx4 {vr(OF+4*s,4)}, v{PO0+s-8}, s[8:11], s70 offen sc1")
    A("s_cmp_lg_u32 s47, 0")
    A(f"s_cbranch_scc1 {L_disp}")
    T = 36
    TT = list(range(36, 48)) + list(range(52, 56))
    A("s_waitcnt vmcnt(10)")
    for j in range(2):
        bf16r(A, G+j, G+j)
        sigmoid(A, G+j, G+j, G+2)
        bf16r(A, G+j, G+j)
    for j in range(2):
        A(f"v_sub_f32 v{G+2+j}, 1.0, v{G+j}")
        bf16r(A, G+2+j, G+2+j)
    for i in range(8):
        A(f"v_lshlrev_b32 v{TT[2*i]}, 16, v{XV+i}")
        A(f"v_and_b32 v{TT[2*i+1]}, 0xffff0000, v{XV+i}")
    L_sel, L_nosel = A.label("sel"), A.label("nosel")
    A(f"v_mov_b32 v6, {FCNT}")
    A("ds_read_b32 v6, v6 offset:12")
    A("s_mov_b32 s20, s6")
    A("s_and_b32 s21, s7, 0xffff")
    A("s_waitcnt lgkmcnt(0)")
    A("v_readfirstlane_b32 s56, v6")
    A("s_lshr_b32 s33, s52, 3")
    A("s_lshr_b32 s32, s56, 3")
    A("s_cmp_eq_u32 s32, s33")
    A(f"s_cbranch_scc1 {L_sel}")
    A(f"{L_nosel}:")
    for i in range(16):
        A(f"v_mul_f32 v{TT[i]}, v{TT[i]}, v{G + 2 + i // 8}")
    for s in range(10):
        A(f"{RC[s]}:")
        A(f"s_waitcnt vmcnt({9-s})" + (" lgkmcnt(0)" if s == NPRE else ""))
        o = OF + 4*s
        A(f"v_max3_u32 v6, v{o}, v{o+1}, v{o+2}")
        A(f"v_max_u32 v6, v6, v{o+3}")
        A("v_cmp_eq_u32 vcc, s71, v6")
        A(f"s_cbranch_vccnz {RT[s]}")
        for mt in range(5):
            A(f"v_mfma_f32_16x16x32_bf16 {vr(ACC+4*mt,4)}, {vr(wslot(s,mt),4)}, {vr(OF+4*s,4)}, {vr(ACC+4*mt,4)}")
        if s + NPRE < 10:
            for mt in range(5):
                wrd(s + NPRE, mt)
    A("s_nop 3")
    for mt in range(5):
        A(f"ds_write_b128 v{PPW}, {vr(ACC+4*mt,4)} offset:{mt*64}")
        if mt == 0: A("s_nop 3")
    A("s_waitcnt lgkmcnt(0)")
    stamp(A, 9)
    A("s_barrier")
    P = 96
    for j in range(2):
        for k in range(2):
            for h in range(2):
                A(f"ds_read_b128 {vr(P+16*j+8*k+4*h,4)}, v{PPR} offset:{j*1344 + k*21504 + h*16}")
    for j in range(2):
        A(f"s_waitcnt lgkmcnt({4*(1-j)})")
        for i in range(8):
            A(f"v_add_f32 v{P+16*j+i}, v{P+16*j+i}, v{P+16*j+8+i}")
        for i in range(8):
            A(f"v_fmac_f32 v{TT[8*j+i]}, v{P+16*j+i}, v{G+j}")
        for i in range(4):
            A(f"v_cvt_pk_bf16_f32 v{XV+4*j+i}, v{TT[8*j+2*i]}, v{TT[8*j+2*i+1]}")
        A(f"buffer_store_dwordx4 {vr(XV+4*j,4)}, v{PX}, s[20:23], {'0' if j == 0 else 's55'} offen")
    stamp_rt(A, 10)
    stamp_flush(A, 11, 8, 29)
    A(f"{L_exit}:")
    A("s_endpgm")
    for s_ in range(10):
        A(f"{RT[s_]}:")
        A(f"s_mov_b32 s47, {s_ + 1}")
        A("s_sub_u32 s46, s46, 1")
        A("s_cselect_b32 s71, 0x12345, s71")
        A("s_cselect_b32 s46, 0, s46")
        A("s_waitcnt vmcnt(0)")
        A(f"s_branch {RL[s_]}")
    A(f"{L_disp}:")
    for s_ in range(9):
        A(f"s_cmp_eq_u32 s47, {s_ + 1}")
        A(f"s_cbranch_scc1 {RC[s_]}")
    A(f"s_branch {RC[9]}")
    A(f"{L_sel}:")
    A(f"ds_read_b128 {vr(XV,4)}, v{PY}")
    A(f"ds_read_b128 {vr(XV+4,4)}, v{PY} offset:16")
    A("s_waitcnt lgkmcnt(0)")
    for j in range(2):
        A(f"v_add_u32 v6, {4*j}, v{PTK}")
        A("v_cmp_eq_u32 vcc, s56, v6")
        for i in range(8):
            A(f"v_add_f32 v6, v{TT[8*j+i]}, v{XV+i}")
            bf16r(A, 6, 6)
            A(f"v_cndmask_b32 v{TT[8*j+i]}, v{TT[8*j+i]}, v6, vcc")
    A(f"s_branch {L_nosel}")
    A(f"{L_fb}:")
    A("v_lshlrev_b32 v21, 3, v2")
    for b in range(2):
        A(f"v_cndmask_b32 v{QS[b]}, v{QS[b]}, 0, s[44:45]")
    A("v_mov_b32 v30, 0xff800000")
    A("v_mov_b32 v31, 0xff800000")
    L_p1, L_p2 = A.label("p1"), A.label("p2")
    def fb_s():
        A(f"buffer_load_dwordx4 {vr(KA1[0],4)}, v5, s[8:11], s32 offen sc1")
        A(f"buffer_load_dwordx2 {vr(KA2[0],2)}, v21, s[8:11], s32 offen offset:{OFF_A2} sc1")
    def fb_qk():
        A("s_waitcnt vmcnt(0)")
        qs2(0, 0, 0); qk1(0, 0, 0); qs2(0, 0, 1); qk1(0, 0, 1)
        A("s_nop 15")
    A(f"s_mov_b32 s32, {WS_KV0 + 62*SL}")
    A(f"{L_p1}:")
    fb_s(); fb_qk()
    for r in range(0, 16, 2):
        A(f"v_max3_f32 v30, v{S[0]+r}, v{S[0]+r+1}, v30")
        A(f"v_max3_f32 v31, v{S[0]+16+r}, v{S[0]+16+r+1}, v31")
    A(f"s_add_u32 s32, s32, {SL}")
    A(f"s_cmp_lt_u32 s32, {WS_KV0 + 126*SL}")
    A(f"s_cbranch_scc1 {L_p1}")
    A("v_mov_b32 v28, v30")
    A("v_mov_b32 v29, v31")
    A("s_nop 1")
    A("v_permlane32_swap_b32 v30, v28")
    A("v_permlane32_swap_b32 v31, v29")
    A("s_nop 1")
    A("v_max_f32 v30, v30, v28")
    A("v_max_f32 v31, v31, v29")
    for r in range(32):
        A(f"v_mov_b32 v{O[0]+r}, 0")
    A(f"s_mov_b32 s32, {WS_KV0 + 62*SL}")
    A(f"{L_p2}:")
    fb_s()
    A(f"s_add_u32 s32, s32, {SL}")
    A(f"buffer_load_dwordx4 {vr(V0[0],4)}, v23, s[8:11], s32 offen offset:{OFF_V0} sc1")
    A(f"buffer_load_dwordx4 {vr(V1[0],4)}, v23, s[8:11], s32 offen offset:{OFF_V1} sc1")
    fb_qk()
    for r in range(32):
        A(f"v_sub_f32 v{S[0]+r}, v{S[0]+r}, v{30 + r // 16}")
    for r in range(32):
        A(f"v_exp_f32 v{S[0]+r}, v{S[0]+r}")
    A("s_nop 2")
    pv(0, 0, 0, 0); pv(0, 1, 0, 0); pv(0, 0, 1, 0); pv(0, 1, 1, 0)
    A(f"s_cmp_lt_u32 s32, {WS_KV0 + 126*SL}")
    A(f"s_cbranch_scc1 {L_p2}")
    A("s_nop 15")
    A(f"v_rcp_f32 v28, v{O[0]+8}")
    A("s_nop 0")
    A("v_mov_b32 v29, v28")
    A("s_nop 1")
    A("v_permlane32_swap_b32 v28, v29")
    A("s_nop 1")
    A(f"s_branch {L_norm}")

    A(f"{L_help}:")
    A("s_mov_b32 s72, 1")
    A("s_sub_u32 s26, s29, 4")
    A("v_lshrrev_b32 v6, 3, v1")
    A("v_and_b32 v7, 7, v1")
    A("v_lshrrev_b32 v8, 1, v6")
    A("v_xor_b32 v7, v7, v8")
    A("v_mul_u32_u24 v6, 1280, v6")
    A("v_lshl_add_u32 v10, v7, 4, v6")
    A("v_xor_b32 v11, 64, v10")
    A("v_add_u32 v11, 9216, v11")
    A("s_mul_i32 s53, s30, 81920")
    A("s_mul_i32 s32, s26, 20480")
    A("s_add_u32 s53, s53, s32")
    A("s_lshl_b32 s54, s26, 11")
    A(f"s_mov_b32 s14, {X_BYTES}")
    A("s_mov_b32 s15, 0x00020000")
    A(f"s_mov_b32 s18, {W_BYTES}")
    A("s_mov_b32 s19, 0x00020000")
    A("s_mov_b32 s23, 0x00020000")
    A("s_lshl_b32 s35, s26, 10")
    A("s_waitcnt lgkmcnt(0)")
    A("s_mov_b32 s12, s36")
    A("s_and_b32 s13, s37, 0xffff")
    L_ne, L_vec, L_el = A.label("ne"), A.label("vec"), A.label("el")
    A("s_cmp_gt_u32 s31, 2")
    A(f"s_cbranch_scc1 {L_ne}")
    A("s_cmp_eq_u32 s31, 2")
    A(f"s_cbranch_scc1 {L_vec}")
    A("s_cmp_eq_u32 s31, 0")
    A("s_cselect_b32 s20, s40, s42")
    A("s_cselect_b32 s21, s41, s43")
    A("s_and_b32 s21, s21, 0xffff")
    A("s_movk_i32 s22, 25600")
    A(f"{L_el}:")
    A(f"s_add_u32 m0, s35, {ER}")
    A("s_nop 0")
    A(f"buffer_load_dwordx4 v5, s[20:23], s35 offen lds")
    A("s_add_u32 s35, s35, 4096")
    A("s_cmp_lt_u32 s35, 25600")
    A(f"s_cbranch_scc1 {L_el}")
    A(f"s_branch {L_ne}")
    A(f"{L_vec}:")
    A("s_bitcmp1_b32 s26, 0")
    A("s_cselect_b32 s20, s4, s44")
    A("s_cselect_b32 s21, s5, s45")
    A("s_and_b32 s21, s21, 0xffff")
    A("s_movk_i32 s22, 1280")
    A("s_lshr_b32 s32, s26, 1")
    A("s_lshl_b32 s32, s32, 10")
    A("s_and_b32 s33, s26, 1")
    A("s_mul_i32 s33, s33, 1280")
    A("s_add_u32 s33, s33, s32")
    A(f"s_add_u32 m0, s33, {ER}")
    A("s_cmp_ge_u32 s26, 2")
    A("s_cselect_b32 s34, 0xffff, -1")
    A("s_cselect_b32 s35, 0, -1")
    A("s_mov_b64 exec, s[34:35]")
    A(f"buffer_load_dwordx4 v5, s[20:23], s32 offen lds")
    A("s_mov_b64 exec, -1")
    A(f"{L_ne}:")
    A("s_mov_b32 s46, s25")
    L_x = A.label("x")
    A(f"{L_x}:")
    A("s_lshl_b32 s32, s46, 7")
    A("s_lshl_b32 s33, s46, 13")
    A("s_add_u32 m0, s33, s54")
    A("s_add_u32 s32, s32, s53")
    A("buffer_load_dwordx4 v10, s[12:15], s32 offen lds")
    A("buffer_load_dwordx4 v11, s[12:15], s32 offen offset:1024 lds")
    A("s_add_u32 s46, s46, 1")
    A("s_cmp_eq_u32 s46, 10")
    A("s_cselect_b32 s46, 0, s46")
    A("s_cmp_lg_u32 s46, s25")
    A(f"s_cbranch_scc1 {L_x}")
    A("v_mul_u32_u24 v2, 26, v1")
    A("v_lshrrev_b32 v2, 8, v2")
    A("v_mul_u32_u24 v3, 10, v2")
    A("v_sub_u32 v3, v1, v3")
    A("v_mul_u32_u24 v2, 1280, v2")
    A("v_lshl_add_u32 v172, v3, 4, v2")
    A("v_add_u32 v12, 17920, v172")
    A("s_mov_b32 s16, s38")
    A("s_and_b32 s17, s39, 0xffff")
    A("s_lshr_b32 s32, s26, 1")
    A("s_xor_b32 s32, s32, s26")
    A("s_mul_i32 s53, s32, 5120")
    A("s_mul_i32 s33, s31, 160")
    A("s_add_u32 s53, s53, s33")
    A("s_mul_i32 s54, s26, 640")
    A(f"s_add_u32 s54, s54, {WR}")
    A("s_mov_b32 s66, -1")
    A("s_movk_i32 s67, 0xff")
    A("s_mov_b64 exec, s[66:67]")
    def wchunks(n):
        L = A.label("wc")
        if n > 1:
            A(f"s_mov_b32 s46, {n}")
            A(f"{L}:")
        A("s_mul_i32 s33, s25, 81920")
        A("s_mov_b32 m0, s54")
        A("s_add_u32 s33, s33, s53")
        A("buffer_load_dwordx4 v172, s[16:19], s33 offen lds")
        A("buffer_load_dwordx4 v12, s[16:19], s33 offen offset:2560 lds")
        A("s_add_u32 m0, s54, 5120")
        A("s_add_u32 s33, s33, 40960")
        A("buffer_load_dwordx4 v172, s[16:19], s33 offen lds")
        A("buffer_load_dwordx4 v12, s[16:19], s33 offen offset:2560 lds")
        A("s_add_u32 s54, s54, 10240")
        A("s_add_u32 s25, s25, 1")
        A("s_cmp_eq_u32 s25, 10")
        A("s_cselect_b32 s25, 0, s25")
        if n > 1:
            A("s_sub_u32 s46, s46, 1")
            A("s_cmp_lg_u32 s46, 0")
            A(f"s_cbranch_scc1 {L}")
    wchunks(2)
    A("s_waitcnt vmcnt(8)")
    A("s_barrier")
    wchunks(3)
    A("s_sub_u32 s54, s54, 51200")
    A("s_waitcnt vmcnt(16)")
    A("s_barrier")
    A("s_waitcnt vmcnt(12)")
    A("s_barrier")
    A("s_mov_b32 s47, 0")
    L_wl, L_na = A.label("wl"), A.label("na")
    A(f"{L_wl}:")
    A("s_waitcnt vmcnt(8)")
    A("s_barrier")
    wchunks(1)
    A("s_add_u32 s47, s47, 1")
    A("s_cmp_lt_u32 s47, 5")
    A(f"s_cbranch_scc1 {L_wl}")
    A("s_mov_b64 exec, -1")
    for c in (7, 8, 9):
        A(f"s_waitcnt vmcnt({4*(9-c)})")
        A("s_barrier")
    A(f"s_load_dwordx2 s[38:39], s[0:1], {KA_WO}")
    A(f"s_load_dwordx4 s[40:43], s[0:1], {KA_WG}")
    A(f"s_load_dwordx2 s[44:45], s[0:1], {KA_WD}")
    A("s_lshr_b32 s28, s2, 6")
    common_setup()
    common_setup2()
    A("v_lshlrev_b32 v174, 24, v1")
    A("buffer_load_dword v29, v174, s[76:79], 0 offen offset:128 sc1")
    A("s_mov_b32 s4, s36")
    A("s_mov_b32 s5, s37")
    A("s_lshl_b32 s32, s26, 10")
    A("s_mov_b32 m0, s32")
    A("s_add_u32 s53, s32, s24")
    A("s_barrier")
    A("s_barrier")
    L_g1, L_g2 = A.label("g1"), A.label("g2")
    A("s_waitcnt vmcnt(0)")
    A("v_readfirstlane_b32 s32, v29")
    A("s_or_b32 s32, s32, s26")
    A("s_cmp_lg_u32 s32, 0")
    A(f"s_cbranch_scc1 {L_g1}")
    await_go(A, 0, 28, 4)
    A(f"{L_g1}:")
    A("s_barrier")
    stamp(A, 1)
    def dma(n):
        L = A.label("dma")
        A(f"s_add_u32 s34, s53, {n*4096}")
        A(f"{L}:")
        A("buffer_load_dwordx4 v5, s[8:11], s53 offen sc1 lds")
        A("s_add_u32 m0, m0, 4096")
        A("s_add_u32 s53, s53, 4096")
        A("s_cmp_lt_u32 s53, s34")
        A(f"s_cbranch_scc1 {L}")
    def need(tiles):
        return min(40, -(-(-(-tiles*SL // 1024)) // 4))
    n0, n1 = need(U_TILES), need(U_TILES * 2)
    dma(n1)
    oproj_addr()
    A(f"v_mov_b32 v173, {FCNT}")
    A("v_mov_b32 v6, 0")
    A("v_mov_b32 v7, 0")
    A("v_lshlrev_b32 v10, 3, v1")
    A("v_mul_u32_u24 v11, 3072, v1")
    A("v_cmp_gt_u32 vcc, 40, v1")
    A("v_mov_b32 v4, 0x40000000")
    A("v_cndmask_b32 v4, v4, v10, vcc")
    A("v_mov_b32 v175, 1")
    A("s_mul_i32 s64, s26, 5120")
    A("s_add_u32 s64, s64, s54")
    A("s_mul_i32 s32, s73, 51200")
    A("s_add_u32 s64, s64, s32")
    A(f"s_mov_b32 s69, {320*1280}")
    A("s_mul_i32 s65, s26, 640")
    A("s_waitcnt lgkmcnt(0)")
    srd(A, 60, 38, W_BYTES)
    A(f"s_waitcnt vmcnt({n1 - n0})")
    A("s_setprio 2")
    A("s_barrier")
    dma(40 - n1)
    A(f"s_waitcnt vmcnt({40 - n1})")
    A("s_barrier")
    L_b2, L_b3 = A.label("b2"), A.label("b3")
    A("s_lshl_b32 s32, s26, 3")
    A("s_or_b32 s32, s32, s31")
    A("s_cmp_lg_u32 s32, 2")
    A(f"s_cbranch_scc1 {L_b3}")
    arrive(A, 4, 32, 28)
    A(f"{L_b3}:")
    A("s_waitcnt vmcnt(0)")
    A("s_cmp_lg_u32 s26, 3")
    A(f"s_cbranch_scc1 {L_b2}")
    A("ds_write_b64 v173, v[6:7]")
    A("ds_write_b64 v173, v[6:7] offset:8")
    A("s_waitcnt lgkmcnt(0)")
    A(f"{L_b2}:")
    A("s_barrier")
    stamp(A, 2)
    def lds_wait(off, thr, slp=2):
        Lp = A.label("lw")
        A(f"{Lp}:")
        A(f"ds_read_b32 v171, v173 offset:{off}")
        A("s_waitcnt lgkmcnt(0)")
        A("v_readfirstlane_b32 s32, v171")
        A(f"s_sleep {slp}")
        A(f"s_cmp_lt_u32 s32, {thr}")
        A(f"s_cbranch_scc1 {Lp}")
    def wo_part(thr):
        Lw = A.label("wl")
        lds_wait(4, thr, 10)
        A(f"s_add_u32 s34, s65, 51200")
        A("s_mov_b64 exec, s[66:67]")
        A(f"{Lw}:")
        A("s_mov_b32 m0, s65")
        A("s_add_u32 s32, s64, s69")
        A("buffer_load_dwordx4 v172, s[60:63], s32 offen lds")
        A("s_add_u32 s65, s65, 2560")
        A("s_add_u32 s64, s64, 20480")
        A("s_cmp_ge_u32 s64, 409600")
        A("s_cselect_b32 s32, 409600, 0")
        A("s_sub_u32 s64, s64, s32")
        A("s_cmp_lt_u32 s65, s34")
        A(f"s_cbranch_scc1 {Lw}")
        A("s_mov_b64 exec, -1")
    await_go(A, 4, 28, 8)
    A(f"s_mov_b32 s32, {WS_RKEY}")
    A("buffer_load_dwordx2 v[6:7], v10, s[8:11], s32 offen sc1")
    L_gc = A.label("gc")
    A("s_lshl_b32 s35, s30, 7")
    A(f"s_add_u32 s35, s35, {WS_GC}")
    A("s_cmp_lg_u32 s26, 0")
    A(f"s_cbranch_scc1 {L_gc}")
    A("buffer_atomic_add v175, v174, s[8:11], s35 offen sc1")
    A(f"{L_gc}:")
    A("s_waitcnt vmcnt(0)")
    wave_max_u32(A, 6, 7, 56)
    A("s_and_b32 s56, s56, 2047")
    A("s_sub_u32 s25, 2047, s56")
    L_w1, L_w2 = A.label("w1"), A.label("w2")
    A("s_lshr_b32 s32, s2, 3")
    A("s_and_b32 s33, s2, 7")
    A("s_mul_i32 s47, s33, 24")
    A("s_add_u32 s47, s47, s32")
    A(f"s_cmp_ge_u32 s32, {0 if X.noffn else 24}")
    A(f"s_cbranch_scc1 {L_w1}")
    A("s_cmp_ge_u32 s26, 2")
    A("s_cselect_b32 s16, s42, s40")
    A("s_cselect_b32 s17, s43, s41")
    A("s_and_b32 s17, s17, 0xffff")
    A(f"s_mov_b32 s18, {F_BYTES}")
    srd(A, 20, 44, F_BYTES)
    A("s_and_b32 s46, s26, 1")
    W_, WD_, XL, AC = 32, 56, 72, 12
    A("s_mul_i32 s32, s25, 1280")
    A("s_mul_i32 s33, s46, 640")
    A("s_add_u32 s32, s32, s33")
    A("v_lshlrev_b32 v9, 1, v1")
    for i in range(5):
        A(f"buffer_load_ushort v{XL+i}, v9, s[12:15], s32 offen offset:{i*128}")
    A(f"s_mul_i32 s32, s46, {320*3072}")
    A("s_lshl_b32 s33, s47, 4")
    A("s_add_u32 s32, s32, s33")
    for i in range(5):
        A(f"buffer_load_dwordx4 {vr(W_+4*i,4)}, v11, s[16:19], s32 offen")
        if i < 4: A(f"s_add_u32 s32, s32, {64*3072}")
    A("s_mul_i32 s32, s47, 10240")
    A("s_mul_i32 s33, s26, 320")
    A("s_add_u32 s32, s32, s33")
    for f in range(8):
        if f % 3 == 0 and f: A(f"s_add_u32 s32, s32, {3*1280}")
        A(f"buffer_load_dwordx2 {vr(WD_+2*f,2)}, v4, s[20:23], s32 offen offset:{(f%3)*1280}")
    for j in range(8):
        A(f"v_mov_b32 v{AC+j}, 0")
    A("s_waitcnt vmcnt(8)")
    stamp(A, 3)
    for i in range(5):
        A(f"v_lshlrev_b32 v{XL+5}, 16, v{XL+i}")
        for dw in range(4):
            A(f"v_dot2c_f32_bf16 v{AC+2*dw}, v{W_+4*i+dw}, v{XL+i}")
            A(f"v_dot2c_f32_bf16 v{AC+2*dw+1}, v{W_+4*i+dw}, v{XL+5}")
    A("s_nop 3")
    for j in range(4):
        A(f"v_permlane32_swap_b32 v{AC+j}, v{AC+j+4}")
    A("s_nop 1")
    for j in range(4):
        A(f"v_add_f32 v{AC+j}, v{AC+j}, v{AC+j+4}")
    A("s_nop 1")
    for j in range(2):
        A(f"v_permlane16_swap_b32 v{AC+j}, v{AC+j+2}")
    A("s_nop 1")
    for j in range(2):
        A(f"v_add_f32 v{AC+j}, v{AC+j}, v{AC+j+2}")
    for sh in (8, 4, 2, 1):
        A("s_nop 1")
        for j in range(2):
            A(f"v_add_f32_dpp v{AC+j}, v{AC+j}, v{AC+j} row_ror:{sh} row_mask:0xf bank_mask:0xf")
    A("s_lshl_b32 s32, s26, 5")
    A(f"s_add_u32 s32, s32, {FB}")
    A("v_lshl_add_u32 v9, v3, 3, s32")
    A(f"ds_write_b64 v9, {vr(AC,2)}")
    A("v_and_b32 v8, 7, v1")
    A("v_lshlrev_b32 v8, 2, v8")
    A(f"v_add_u32 v8, {FB}, v8")
    A("s_waitcnt lgkmcnt(0)")
    A("ds_add_u32 v173, v175")
    wo_part(256)
    lds_wait(0, 256)
    A("ds_read2_b32 v[12:13], v8 offset0:0 offset1:8")
    A("ds_read2_b32 v[14:15], v8 offset0:16 offset1:24")
    A("s_waitcnt lgkmcnt(0)")
    A("v_add_f32 v12, v12, v13")
    A("v_add_f32 v14, v14, v15")
    bf16r(A, 12, 12)
    sigmoid(A, 16, 12, 17)
    A("v_mul_f32 v12, v12, v16")
    bf16r(A, 12, 12)
    bf16r(A, 14, 14)
    A("v_mul_f32 v12, v12, v14")
    bf16r(A, 12, 12)
    Y = 20
    for j in range(4):
        A(f"v_mov_b32 v{Y+j}, 0")
    def hs(f):
        hi = 13+2*f if f < 4 else 29+2*f
        return hi - 1, hi
    for f in range(8):
        A(f"v_readlane_b32 s{hs(f)[1]}, v12, {f}")
    for f in range(8):
        lo, hi = hs(f)
        A(f"s_lshr_b32 s{lo}, s{hi}, 16")
    A("s_waitcnt vmcnt(20)")
    for f in range(8):
        lo, hi = hs(f)
        for j in range(2):
            A(f"v_dot2c_f32_bf16 v{Y+2*j}, s{lo}, v{WD_+2*f+j}")
            A(f"v_dot2c_f32_bf16 v{Y+2*j+1}, s{hi}, v{WD_+2*f+j}")
    A("s_and_b32 s47, s47, 15")
    A("s_mul_i32 s32, s47, 2560")
    A("s_mul_i32 s33, s26, 640")
    A("s_add_u32 s32, s32, s33")
    A(f"s_add_u32 s32, s32, {WS_Y}")
    A("v_lshlrev_b32 v4, 1, v4")
    A("s_nop 2")
    for j in range(4):
        A(f"buffer_atomic_add_f32 v{Y+j}, v4, s[8:11], s32 offen offset:{j*4}")
    A("s_lshl_b32 s32, s47, 7")
    A(f"s_add_u32 s32, s32, {WS_FC}")
    A("s_waitcnt vmcnt(0)")
    A("buffer_atomic_add v175, v174, s[8:11], s32 offen sc1")
    A(f"s_branch {L_w2}")
    A(f"{L_w1}:")
    wo_part(256)
    A("s_waitcnt vmcnt(0)")
    A(f"{L_w2}:")
    stamp(A, 4)
    A("ds_add_u32 v173, v175 offset:8")
    oproj_saddr()
    lds_wait(8, 256)
    A(f"s_branch {L_op}")
    A(f"{L_h2}:")
    stamp(A, 5)
    A("v_mov_b32 v171, s25")
    A("ds_write_b32 v173, v171 offset:12")
    L_ny, L_sp2, L_sg, L_ng, L_gp = A.label("ny"), A.label("sp2"), A.label("sg"), A.label("ng"), A.label("gp")
    A("s_cmp_lg_u32 s26, 1")
    A(f"s_cbranch_scc1 {L_ng}")
    A(f"{L_gp}:")
    A("buffer_load_dword v171, v174, s[8:11], s35 offen sc1")
    A("s_waitcnt vmcnt(0)")
    A("v_readfirstlane_b32 s32, v171")
    A("s_sub_u32 s46, s46, 1")
    A(f"s_cbranch_scc1 {L_ng}")
    A("s_cmp_lt_u32 s32, 8")
    A(f"s_cbranch_scc1 {L_gp}")
    A(f"{L_ng}:")
    A("s_lshr_b32 s32, s25, 6")
    A("s_lshl_b32 s33, s26, 8")
    A("s_or_b32 s33, s33, s30")
    A("s_cmp_lg_u32 s32, s33")
    A(f"s_cbranch_scc1 {L_ny}")
    A("v_lshlrev_b32 v6, 7, v2")
    A(f"s_mov_b32 s33, {WS_FC}")
    A(f"{L_sp2}:")
    A("buffer_load_dword v171, v6, s[8:11], s33 offen sc1")
    A("s_waitcnt vmcnt(0)")
    A(f"v_cmp_ne_u32 vcc, {0 if X.noffn else 48}, v171")
    A("s_sub_u32 s46, s46, 1")
    A(f"s_cbranch_scc1 {L_sg}")
    A("s_sleep 8")
    A(f"s_cbranch_vccnz {L_sp2}")
    A(f"{L_sg}:")
    Yv = OF
    A("v_mul_u32_u24 v6, 2560, v2")
    A("v_lshl_add_u32 v6, v3, 4, v6")
    A("s_lshl_b32 s32, s54, 1")
    A(f"s_add_u32 s32, s32, {WS_Y}")
    for mt in range(5):
        A(f"buffer_load_dwordx4 {vr(Yv+4*mt,4)}, v6, s[8:11], s32 offen offset:{mt*64} sc1")
    A("s_lshl_b32 s32, s25, 2")
    A(f"s_add_u32 s32, s32, {WS_R}")
    A("v_mov_b32 v6, 0")
    A("buffer_load_dword v171, v6, s[8:11], s32 offen sc1")
    A("s_waitcnt vmcnt(0)")
    for sh in (8, 4, 2, 1):
        A("s_nop 1")
        for j in range(20):
            A(f"v_add_f32_dpp v{Yv+j}, v{Yv+j}, v{Yv+j} row_ror:{sh} row_mask:0xf bank_mask:0xf")
    bf16r(A, 171, 171)
    sigmoid(A, 171, 171, 6)
    bf16r(A, 171, 171)
    for j in range(20):
        bf16r(A, Yv+j, Yv+j)
        A(f"v_mul_f32 v{Yv+j}, v{Yv+j}, v171")
        bf16r(A, Yv+j, Yv+j)
    A("v_lshlrev_b32 v6, 4, v3")
    A(f"v_add_u32 v6, {YB}, v6")
    for mt in range(5):
        A(f"ds_write_b128 v6, {vr(Yv+4*mt,4)} offset:{mt*64}")
    A(f"{L_ny}:")
    A(f"s_mov_b32 s46, {SPIN}")
    A("s_mov_b32 s69, 0")
    wo_part(512)
    A("s_waitcnt vmcnt(0) lgkmcnt(0)")
    stamp(A, 6)
    A("s_barrier")
    stamp(A, 7)
    A("s_sleep 6")
    A(f"s_branch {L_h3}")

def build(path):
    A = Asm()
    fused(A)
    hdr = open("gated_mix__grouped_kv_mqa__moe_arch_mod__prompt.s.ref").read().split("; @launch")[0]
    out = hdr + "; @launch grid=(256,1,1) block=(512,1,1) lds=163840\n" + '.amdgcn_target "amdgcn-amd-amdhsa--gfx950"\n.text\n' + A.text() + '.section .rodata,"a"\n'
    out += kernel_desc(NAME, 256, 256)
    open(path, "w").write(out)

if __name__ == "__main__":
    build("t8.s")
    Cfg.on = True
    build("t8s.s")
```

```python
class Cfg:
    on = False
WS_ST = 0x700000
SB = 80
def stamp(A, idx):
    if Cfg.on:
        A(f"s_memtime s[{SB+2*idx}:{SB+1+2*idx}]")
def stamp_rt(A, idx):
    if Cfg.on:
        A(f"s_memrealtime s[{SB+2*idx}:{SB+1+2*idx}]")
def stamp_flush(A, n, srdbase, wave_sgpr, vt=250):
    if Cfg.on:
        A("s_waitcnt lgkmcnt(0)")
        A("s_mov_b64 exec, 1")
        A(f"s_lshl_b32 s32, s2, 4")
        A(f"s_add_u32 s32, s32, s{wave_sgpr}")
        A(f"s_lshl_b32 s32, s32, 7")
        A(f"s_add_u32 s32, s32, {WS_ST}")
        A(f"v_mov_b32 v{vt}, 0")
        for i in range(n):
            A(f"v_mov_b32 v{vt+2}, s{SB+2*i}")
            A(f"v_mov_b32 v{vt+3}, s{SB+1+2*i}")
            A(f"buffer_store_dwordx2 v[{vt+2}:{vt+3}], v{vt}, s[{srdbase}:{srdbase+3}], s32 offen offset:{8*i}")
            A("s_nop 1")
```

```python
class Cfg:
    on = False
    rt = False
    dbg = None
WS_ST = 0x700000
SB = 80
def stamp(A, idx):
    if Cfg.on:
        A(f"{'s_memrealtime' if (Cfg.dbg is not None or Cfg.rt) else 's_memtime'} s[{SB+2*idx}:{SB+1+2*idx}]")
def stamp_rt(A, idx):
    if Cfg.on:
        A(f"s_memrealtime s[{SB+2*idx}:{SB+1+2*idx}]")
def stamp_flush(A, n, srdbase, wave_sgpr, vt=250):
    if Cfg.on and Cfg.dbg is not None:
        L = A.label("nodbg")
        A("s_waitcnt lgkmcnt(0)")
        A(f"s_lshl_b32 s32, s{wave_sgpr}, 8")
        A("s_or_b32 s32, s32, s2")
        A(f"s_cmp_lg_u32 s32, {Cfg.dbg}")
        A(f"s_cbranch_scc1 {L}")
        A("s_mov_b64 exec, 1")
        A(f"v_mov_b32 v{vt}, 0")
        for i in range(1, n):
            A(f"s_sub_u32 s33, s{SB+2*i}, s{SB}")
            A(f"v_mov_b32 v{vt+2}, s33")
            A(f"buffer_store_dword v{vt+2}, v{vt}, s[76:79], 0 offen offset:{12+4*i}")
            A("s_nop 1")
        A(f"{L}:")
        return
    if Cfg.on:
        A("s_waitcnt lgkmcnt(0)")
        A("s_mov_b64 exec, 1")
        A(f"s_lshl_b32 s32, s2, 4")
        A(f"s_add_u32 s32, s32, s{wave_sgpr}")
        A(f"s_lshl_b32 s32, s32, 7")
        A(f"s_add_u32 s32, s32, {WS_ST}")
        A(f"v_mov_b32 v{vt}, 0")
        for i in range(n):
            A(f"v_mov_b32 v{vt+2}, s{SB+2*i}")
            A(f"v_mov_b32 v{vt+3}, s{SB+1+2*i}")
            A(f"buffer_store_dwordx2 v[{vt+2}:{vt+3}], v{vt}, s[{srdbase}:{srdbase+3}], s32 offen offset:{8*i}")
            A("s_nop 1")
```

```python
import math, sys
from asmlib import *
from stamp8 import *

NAME = "gated_mix__grouped_kv_mqa__moe_arch_mod__prompt_kernel"
KA_X, KA_WQ, KA_WK, KA_WV, KA_WO, KA_BX, KA_WR, KA_WG, KA_WU, KA_WD, KA_GW, KA_OUT, KA_DBG, KA_WS = [8*i for i in range(14)]
SL = 2592
WS_KV0 = 0x0
WS_KMAX = 0x60000
WS_RKEY = 0x60200
WS_R = 0x61000
WS_G = 0x63000
WS_Y = 0x68000
WS_GC = 0x74000
WS_FC = 0x76000
WS_O = 0x100000
WS_SIZE = 0x1000000
X_BYTES = 2048*640*2
W_BYTES = 640*640*2
F_BYTES = 640*1536*2
QSCALE = (20 ** -0.5) * math.log2(math.e)
LOG2E = math.log2(math.e)
LTHR = f32bits(2.0 ** -30)
OFF_A2, OFF_V0, OFF_V1 = 1024, 1280, 1936
FB = 63*SL
FCNT = FB + 128
YB = FB + 160
XB = 102400
SPIN = 100000
WR = 81920
ER = WR + 5*10240
QX = WR + 7*10240
VR = QX
NS = 7
SIG = 4
DN = 3
PERM = sum(p << (4*i) for i, p in enumerate([0, 4, 5, 9, 3, 7, 2, 6]))
U_TILES = 8
class X:
    noffn = False; st = 0; hprio = 2; cprio = 0; nowo = False; slp = 10; pdiag = False

def bf16r(A, d, s):
    A(f"v_cvt_pk_bf16_f32 v{d}, v{s}, v{s}")
    A(f"v_and_b32 v{d}, 0xffff0000, v{d}")
def sigmoid(A, d, s, t):
    A(f"v_mul_f32 v{t}, {f32bits(-LOG2E):#x}, v{s}")
    A(f"v_exp_f32 v{t}, v{t}")
    A("s_nop 0")
    A(f"v_add_f32 v{t}, 1.0, v{t}")
    A(f"v_rcp_f32 v{d}, v{t}")
    A("s_nop 0")
def row_max_u32(A, v):
    for sh in (8, 4, 2, 1):
        A("s_nop 1")
        A(f"v_max_u32_dpp v{v}, v{v}, v{v} row_ror:{sh} row_mask:0xf bank_mask:0xf")
def wave_max_u32(A, v, v2, st):
    A(f"v_max_u32 v{v}, v{v}, v{v2}")
    row_max_u32(A, v)
    A("s_nop 1")
    for i in range(4):
        A(f"v_readlane_b32 s{st+i}, v{v}, {16*i}")
    A(f"s_max_u32 s{st}, s{st}, s{st+1}")
    A(f"s_max_u32 s{st+2}, s{st+2}, s{st+3}")
    A(f"s_max_u32 s{st}, s{st}, s{st+2}")

def arrive(A, cnt_off, total, vt):
    L = A.label("arr")
    A(f"v_mov_b32 v{vt}, 1")
    A(f"v_lshlrev_b32 v{vt+1}, 24, v1")
    A(f"buffer_atomic_add v{vt}, v{vt+1}, s[76:79], 0 offen offset:{cnt_off} sc0 sc1")
    A("s_waitcnt vmcnt(0)")
    A(f"v_readfirstlane_b32 s32, v{vt}")
    A(f"v_mov_b32 v{vt}, 1")
    A(f"s_cmp_lg_u32 s32, {total-1}")
    A(f"s_cbranch_scc1 {L}")
    A(f"buffer_store_dword v{vt}, v{vt+1}, s[76:79], 0 offen offset:{128+cnt_off} sc1")
    A(f"{L}:")
def await_go(A, cnt_off, vt, slp):
    L, Ld = A.label("aw"), A.label("awd")
    A(f"v_lshlrev_b32 v{vt+1}, 24, v1")
    A(f"s_mov_b32 s33, {SPIN}")
    A(f"{L}:")
    A(f"buffer_load_dword v{vt}, v{vt+1}, s[76:79], 0 offen offset:{128+cnt_off} sc1")
    A("s_waitcnt vmcnt(0)")
    A(f"v_readfirstlane_b32 s32, v{vt}")
    A("s_sub_u32 s33, s33, 1")
    A(f"s_cbranch_scc1 {Ld}")
    A("s_cmp_lg_u32 s32, 0")
    A(f"s_cbranch_scc1 {Ld}")
    A(f"s_sleep {slp}")
    A(f"s_branch {L}")
    A(f"{Ld}:")

def hst(A, i):
    if X.pdiag: A(f"s_memtime s[{SB+2*i}:{SB+2*i+1}]")
def fused(A):
    kernel_begin(A, NAME)
    L_exit, L_help, L_op = A.label("exit"), A.label("help"), A.label("oproj")
    A("s_cmp_ge_u32 s2, 256")
    A(f"s_cbranch_scc1 {L_exit}")
    stamp_rt(A, 0)
    A(f"s_load_dwordx4 s[36:39], s[0:1], {KA_X}")
    A(f"s_load_dwordx4 s[40:43], s[0:1], {KA_WK}")
    A(f"s_load_dwordx4 s[48:51], s[0:1], {KA_DBG}")
    A(f"s_load_dwordx2 s[44:45], s[0:1], {KA_WR}")
    A(f"s_load_dwordx4 s[4:7], s[0:1], {KA_GW}")
    A("v_lshrrev_b32 v4, 6, v0")
    A("v_and_b32 v1, 63, v0")
    A("v_readfirstlane_b32 s29, v4")
    A("v_lshlrev_b32 v5, 4, v1")
    A("s_and_b32 s30, s2, 7")
    A("s_lshl_b32 s30, s30, 2")
    A("s_lshr_b32 s28, s2, 6")
    A("s_add_u32 s30, s30, s28")
    A("s_bfe_u32 s31, s2, 0x30003")
    A("s_lshl_b32 s33, s28, 1")
    A("s_sub_u32 s3, s31, s33")
    A("s_and_b32 s3, s3, 7")
    A("s_lshl_b32 s32, s3, 2")
    A(f"s_lshr_b32 s25, {PERM:#x}, s32")
    A("s_and_b32 s25, s25, 15")
    A("s_add_u32 s25, s25, s33")
    A("s_cmp_ge_u32 s25, 10")
    A("s_cselect_b32 s32, 10, 0")
    A("s_sub_u32 s25, s25, s32")
    A("s_cmp_ge_u32 s29, 4")
    A(f"s_cbranch_scc1 {L_help}")

    def common_setup():
        A("s_mov_b32 s10, 0x1000000")
        A("s_mov_b32 s11, 0x00020000")
        A("s_bfe_u32 s24, s2, 0x40003")
        A(f"s_mul_i32 s24, s24, {4*SL}")
        A("s_lshl_b32 s73, s28, 1")
        A("s_add_u32 s73, s73, s31")
        A("s_and_b32 s73, s73, 7")
        A("s_movk_i32 s78, 256")
        A("s_mov_b32 s79, 0x00020000")
    def common_setup2():
        A("s_mov_b32 s8, s50")
        A("s_and_b32 s9, s51, 0xffff")
        A("s_mov_b32 s76, s48")
        A("s_and_b32 s77, s49, 0xffff")
    PM, PT, PX, PTK, PO0, PO1, PPR, PY, PPW, POA, POB = range(160, 171)
    def oproj_addr():
        A("v_and_b32 v2, 15, v0")
        A("v_lshrrev_b32 v3, 4, v1")
        A("s_and_b32 s27, s29, 3")
        A("s_lshr_b32 s28, s29, 2")
        A("v_add_u32 v6, s73, v3")
        A("v_and_b32 v6, 7, v6")
        A("v_lshlrev_b32 v7, 4, v2")
        A(f"v_lshl_add_u32 v{PO0}, v6, 8, v7")
        A(f"v_xor_b32 v{PO1}, 0x400, v{PO0}")
        A("v_lshrrev_b32 v7, 2, v2")
        A("v_and_b32 v8, 3, v2")
        A("v_lshrrev_b32 v9, 1, v3")
        A("v_mul_u32_u24 v9, 20, v9")
        A("v_and_b32 v6, 1, v3")
        A("v_lshl_add_u32 v9, v6, 2, v9")
        A("v_add_u32 v9, v9, v7")
        A("v_mul_u32_u24 v9, 160, v9")
        A("v_lshl_add_u32 v9, v8, 3, v9")
        A("s_xor_b32 s32, s28, 1")
        A("s_mul_i32 s32, s32, 51200")
        A(f"v_add_u32 v{PM}, s32, v9")
        A("v_mul_u32_u24 v9, 40, v3")
        A("v_add3_u32 v9, v9, v7, 16")
        A("v_mul_u32_u24 v9, 160, v9")
        A("v_lshl_add_u32 v9, v8, 3, v9")
        A(f"v_add_u32 v{PT}, s32, v9")
        A("v_mul_u32_u24 v6, 26, v1")
        A("v_lshrrev_b32 v6, 8, v6")
        A("v_mul_u32_u24 v7, 10, v6")
        A("v_sub_u32 v7, v1, v7")
        A("s_lshl_b32 s32, s30, 6")
        A("s_lshl_b32 s33, s29, 3")
        A("s_add_u32 s52, s32, s33")
        A(f"v_add_u32 v{PTK}, s52, v6")
        A(f"v_mul_u32_u24 v8, 1280, v{PTK}")
        A("v_lshl_add_u32 v8, v7, 4, v8")
        A("s_mul_i32 s54, s31, 160")
        A("v_add_u32 v8, s54, v8")
        A("v_cmp_gt_u32 vcc, 40, v1")
        A("v_mov_b32 v9, 0x40000000")
        A(f"v_cndmask_b32 v{PX}, v9, v8, vcc")
        A("v_add_u32 v6, s33, v6")
        A("v_mul_u32_u24 v6, 336, v6")
        A("v_lshl_add_u32 v6, v7, 5, v6")
        A(f"v_add_u32 v{PPR}, {XB}, v6")
        A("v_lshlrev_b32 v7, 5, v7")
        A(f"v_add_u32 v{PY}, {YB}, v7")
        A("s_lshl_b32 s32, s27, 4")
        A("v_add_u32 v6, s32, v2")
        A("v_mul_u32_u24 v6, 336, v6")
        A("v_lshl_add_u32 v6, v3, 4, v6")
        A("s_mul_i32 s32, s28, 21504")
        A(f"s_add_u32 s32, s32, {XB}")
        A(f"v_add_u32 v{PPW}, s32, v6")
    def oproj_saddr():
        A("s_lshl_b32 s33, s30, 2")
        A("s_add_u32 s33, s33, s27")
        A("s_mul_i32 s68, s33, 20480")
        A(f"s_add_u32 s68, s68, {WS_O}")
        A("s_lshl_b32 s33, s28, 11")
        A("s_add_u32 s70, s68, s33")
        A("s_add_u32 s70, s70, 16384")
        A("s_lshl_b32 s33, s28, 13")
        A("s_add_u32 s68, s68, s33")
        for p in range(8):
            A(f"s_add_u32 s32, s73, {p}")
            A("s_and_b32 s32, s32, 7")
            A(f"s_lshl_b32 s{12+p}, s32, 10")
            A(f"s_add_u32 s{12+p}, s{12+p}, s68")
        A("s_movk_i32 s55, 5120")
        A(f"s_mov_b32 s22, {X_BYTES}")
        A("s_mov_b32 s23, 0x00020000")

    def o_addr():
        A("s_lshl_b32 s47, s31, 2")
        A("s_add_u32 s47, s47, s27")
        A("v_bfe_u32 v6, v1, 4, 1")
        A("v_mul_u32_u24 v6, 20480, v6")
        A("v_lshl_add_u32 v6, v2, 4, v6")
        A("v_lshrrev_b32 v7, 5, v1")
        A(f"v_lshl_add_u32 v{POA}, v7, 8, v6")
        A(f"v_lshl_or_b32 v{POB}, v7, 30, v6")
        A("s_mul_i32 s32, s30, 81920")
        A(f"s_add_u32 s32, s32, {WS_O}")
        A("s_lshl_b32 s74, s47, 9")
        A("s_add_u32 s74, s74, s32")
        A("s_lshr_b32 s75, s47, 1")
        A("s_lshl_b32 s75, s75, 8")
        A("s_and_b32 s33, s47, 1")
        A("s_lshl_b32 s33, s33, 3")
        A("s_add_u32 s75, s75, s33")
        A("s_add_u32 s75, s75, s32")
        A("s_add_u32 s75, s75, 16384")
        A("s_add_u32 s58, s74, 40960")
        A("s_add_u32 s59, s75, 40960")

    A("s_mov_b32 s72, 0")
    common_setup()
    oproj_addr()
    oproj_saddr()
    VACC = 32; VE = 52; H = [64, 84]; XF = [104, 108]
    VB1, VB2, VXA0, VXA1 = 14, 15, 16, 17
    A("v_lshrrev_b32 v6, 2, v2")
    A("v_and_b32 v7, 3, v2")
    A("v_lshl_add_u32 v6, v3, 3, v6")
    A("v_and_b32 v8, 1, v3")
    A("v_lshlrev_b32 v8, 2, v8")
    A("v_add_u32 v9, v6, v8")
    A("v_mul_u32_u24 v9, 160, v9")
    A("v_lshl_add_u32 v9, v7, 3, v9")
    A(f"v_add_u32 v{VB1}, {WR}, v9")
    A("v_xor_b32 v8, 4, v8")
    A("v_add_u32 v9, v6, v8")
    A("v_mul_u32_u24 v9, 160, v9")
    A("v_lshl_add_u32 v9, v7, 3, v9")
    A(f"v_add_u32 v{VB2}, {WR}, v9")
    A("v_mul_u32_u24 v9, 40, v6")
    A(f"v_add_u32 v9, {ER}, v9")
    A("v_lshl_add_u32 v18, v7, 3, v9")
    A("v_add_u32 v19, 32, v9")
    A("v_lshrrev_b32 v6, 1, v2")
    A("v_xor_b32 v6, v6, v3")
    A("v_lshlrev_b32 v6, 4, v6")
    A("v_lshl_add_u32 v6, v2, 7, v6")
    A("s_lshl_b32 s32, s29, 11")
    A("v_add_u32 v10, s32, v6")
    A("v_xor_b32 v11, 64, v10")
    A(f"v_mov_b32 v{VXA0}, v10")
    A(f"v_mov_b32 v{VXA1}, v11")
    for i in range(VACC, VE + 8):
        A(f"v_mov_b32 v{i}, 0")
    A("s_lshr_b32 s32, s29, 1")
    A("s_mul_i32 s32, s32, 5120")
    A("s_and_b32 s33, s29, 1")
    A("s_lshl_b32 s33, s33, 7")
    A("s_add_u32 s32, s32, s33")
    A(f"s_add_u32 s32, s32, {QX}")
    A("v_lshlrev_b32 v6, 3, v2")
    A("v_lshl_add_u32 v6, v3, 8, v6")
    A("v_add_u32 v13, s32, v6")
    o_addr()
    A("s_waitcnt lgkmcnt(0)")
    common_setup2()
    A("s_mov_b32 s4, s36")
    A("s_mov_b32 s5, s37")
    A("v_lshlrev_b32 v24, 24, v1")
    A("s_lshl_b32 s32, s30, 6")
    A("s_lshl_b32 s33, s29, 4")
    A("s_add_u32 s50, s32, s33")
    stamp(A, 1)
    L_main, L_rg, L_ev, L_ej = A.label("main"), A.label("rg"), A.label("ev"), A.label("ej")
    A("s_cmp_gt_u32 s3, 2")
    A(f"s_cbranch_scc1 {L_main}")
    A("s_cmp_eq_u32 s3, 2")
    A(f"s_cbranch_scc1 {L_rg}")
    EW = 64; EX = 112
    A("s_mov_b32 s46, 0")
    def erd(s):
        A(f"ds_read_b128 {vr(EX+4*s,4)}, v{10 + (s & 1)} offset:{(s >> 1)*8192}")
        for t in range(2):
            slot = EW + 8*s + 4*t
            A(f"ds_read_b64_tr_b16 {vr(slot,2)}, v{18+t} offset:{s*1280}")
            A(f"ds_read_b64_tr_b16 {vr(slot+2,2)}, v{18+t} offset:{s*1280+160}")
    def eloop(swap):
        L = A.label("el")
        A(f"{L}:")
        for s in range(4):
            if s == 2:
                A("s_add_u32 s46, s46, 1")
                A("v_add_u32 v10, 16384, v10")
                A("v_add_u32 v11, 16384, v11")
                A("v_add_u32 v18, 5120, v18")
                A("v_add_u32 v19, 5120, v19")
                A("s_cmp_lt_u32 s46, 5")
                A("s_barrier")
            erd((s + 2) % 4)
            A("s_waitcnt lgkmcnt(10)")
            for t in range(2):
                w, x = vr(EW+8*s+4*t,4), vr(EX+4*s,4)
                A(f"v_mfma_f32_16x16x32_bf16 {vr(VE+4*t,4)}, {x if swap else w}, {w if swap else x}, {vr(VE+4*t,4)}")
        A(f"s_cbranch_scc1 {L}")
    A("s_barrier")
    erd(0); erd(1)
    A("s_cmp_eq_u32 s3, 1")
    A(f"s_cbranch_scc1 {L_ev}")
    eloop(False)
    A(f"s_branch {L_ej}")
    A(f"{L_ev}:")
    eloop(True)
    A(f"{L_ej}:")
    stamp(A, 2)
    A("s_lshl_b32 s32, s30, 1")
    A("s_lshr_b32 s33, s29, 1")
    A("s_add_u32 s51, s32, s33")
    A("s_and_b32 s53, s29, 1")
    A("v_lshrrev_b32 v6, 1, v3")
    A("v_and_b32 v7, 1, v3")
    A("s_nop 1")
    for t in range(2):
        a = VE + 4*t
        A(f"v_cvt_pk_bf16_f32 v{a}, v{a}, v{a+1}")
        A(f"v_cvt_pk_bf16_f32 v{a+1}, v{a+2}, v{a+3}")
    L_sv, L_fin, L_sig = A.label("sv"), A.label("fin"), A.label("sig")
    A("s_cmp_eq_u32 s3, 1")
    A(f"s_cbranch_scc1 {L_sv}")
    A(f"s_mov_b32 s60, {64*SL}")
    A("s_add_u32 s51, s51, 62")
    A("s_and_b32 s51, s51, 63")
    A(f"s_cselect_b32 s34, 0x40000000, s60")
    A(f"s_mul_i32 s51, s51, {SL}")
    A("s_lshl_b32 s33, s53, 4")
    A("v_add_u32 v8, s33, v2")
    A("v_lshl_add_u32 v6, v6, 5, v8")
    A("v_lshlrev_b32 v6, 4, v6")
    A("v_lshl_add_u32 v6, v7, 3, v6")
    A(f"buffer_store_dwordx2 {vr(VE,2)}, v6, s[8:11], s51 offen sc1")
    A(f"buffer_store_dwordx2 {vr(VE,2)}, v6, s[8:11], s34 offen sc1")
    A("v_cmp_eq_u32 vcc, 0, v3")
    A("v_lshlrev_b32 v6, 3, v8")
    A("v_lshl_or_b32 v6, v3, 28, v6")
    A(f"buffer_store_dwordx2 {vr(VE+4,2)}, v6, s[8:11], s51 offen offset:{OFF_A2} sc1")
    A(f"v_cndmask_b32 v8, 0, v{VE+4}, vcc")
    A(f"v_cndmask_b32 v9, 0, v{VE+5}, vcc")
    A("v_mov_b32 v7, 0")
    for r in (VE, VE+1, 8, 9):
        A(f"v_dot2c_f32_bf16 v7, v{r}, v{r}")
    A("s_nop 2")
    A("v_mov_b32 v6, v7")
    A("s_nop 1")
    A("v_permlane32_swap_b32 v6, v7")
    A("s_nop 1")
    A("v_add_f32 v7, v6, v7")
    A("v_mov_b32 v6, v7")
    A("s_nop 1")
    A("v_permlane16_swap_b32 v6, v7")
    A("s_nop 1")
    A("v_add_f32 v7, v6, v7")
    A(f"s_mov_b32 s34, {WS_KMAX}")
    A(f"s_branch {L_fin}")
    A(f"{L_sv}:")
    A("s_add_u32 s51, s51, 63")
    A("s_and_b32 s51, s51, 63")
    A(f"s_mul_i32 s51, s51, {SL}")
    A("s_mul_i32 s33, s53, 656")
    A("s_add_u32 s51, s51, s33")
    A("v_mul_u32_u24 v6, 20, v6")
    A("v_add_u32 v6, v6, v2")
    A("v_lshlrev_b32 v6, 4, v6")
    A("v_lshl_add_u32 v6, v7, 3, v6")
    A(f"buffer_store_dwordx2 {vr(VE,2)}, v6, s[8:11], s51 offen offset:{OFF_V0} sc1")
    A("v_cmp_eq_u32 vcc, 4, v2")
    A("v_mov_b32 v8, 0x3f803f80")
    A(f"v_cndmask_b32 v{VE+4}, v{VE+4}, v8, vcc")
    A(f"v_cndmask_b32 v{VE+5}, v{VE+5}, v8, vcc")
    A("v_lshrrev_b32 v8, 1, v3")
    A("v_add_u32 v8, 4, v8")
    A("v_cmp_gt_u32 vcc, v8, v2")
    A("v_mov_b32 v8, 0x40000000")
    A("v_cndmask_b32 v6, v8, v6, vcc")
    A(f"buffer_store_dwordx2 {vr(VE+4,2)}, v6, s[8:11], s51 offen offset:{OFF_V0+256} sc1")
    A(f"s_branch {L_main}")
    A(f"{L_rg}:")
    A("v_and_b32 v6, 1, v2")
    A("v_mul_u32_u24 v6, 1280, v6")
    A("v_lshl_add_u32 v18, v3, 4, v6")
    A(f"v_add_u32 v18, {VR}, v18")
    A(f"s_branch {L_main}")
    def fin_key():
        row_max_u32(A, 7)
        A("s_lshr_b32 s33, s50, 2")
        A("s_add_u32 s33, s33, s34")
        A("v_lshlrev_b32 v6, 24, v1")
        A("buffer_store_dword v7, v6, s[8:11], s33 offen sc1")
    A(f"{L_fin}:")
    fin_key()
    A(f"{L_main}:")
    stamp(A, 3)
    def wrd1(hh, mt):
        A(f"ds_read_b64_tr_b16 {vr(H[hh]+4*mt,2)}, v{VB1} offset:{hh*5120 + mt*32}")
        A(f"ds_read_b64_tr_b16 {vr(H[hh]+4*mt+2,2)}, v{VB2} offset:{hh*5120 + mt*32}")
    def half(hh):
        A(f"ds_read_b128 {vr(XF[hh^1],4)}, v{VXA1 if hh == 0 else VXA0}")
        for mt in range(5):
            wrd1(hh ^ 1, mt)
            A("s_waitcnt lgkmcnt(11)")
            A(f"v_mfma_f32_16x16x32_bf16 {vr(VACC+4*mt,4)}, {vr(H[hh]+4*mt,4)}, {vr(XF[hh],4)}, {vr(VACC+4*mt,4)}")
    A("s_mov_b32 s46, 0")
    A(f"s_mov_b32 s34, {-(NS-1)*10240}")
    A("s_lshl_b32 s32, s25, 7")
    A("v_add_u32 v6, s32, v18")
    A("s_waitcnt lgkmcnt(0)")
    A("s_barrier")
    A(f"ds_read_b128 {vr(112,4)}, v6")
    A(f"ds_read_b128 {vr(116,4)}, v6 offset:64")
    A(f"ds_read_b128 {vr(XF[0],4)}, v{VXA0}")
    for mt in range(5):
        wrd1(0, mt)
    L_aw, L_awr = A.label("aw"), A.label("awr")
    def qloop(rg):
        L_c = A.label("c")
        A(f"{L_c}:")
        A("s_add_u32 s46, s46, 1")
        A(f"s_cmp_eq_u32 s46, {NS}")
        A("s_cselect_b32 s32, s34, 10240")
        half(0)
        A(f"v_add_u32 v{VB1}, s32, v{VB1}")
        A(f"v_add_u32 v{VB2}, s32, v{VB2}")
        A(f"v_add_u32 v{VXA0}, 8192, v{VXA0}")
        A(f"v_add_u32 v{VXA1}, 8192, v{VXA1}")
        if rg:
            A("s_add_u32 s25, s25, 1")
            A("s_cmp_eq_u32 s25, 10")
            A("s_cselect_b32 s25, 0, s25")
            A("s_lshl_b32 s32, s25, 7")
            A("v_add_u32 v6, s32, v18")
            A("s_waitcnt lgkmcnt(10)")
            for s_ in range(2):
                A(f"v_mfma_f32_16x16x32_bf16 {vr(VE,4)}, {vr(112+4*s_,4)}, {vr(XF[s_],4)}, {vr(VE,4)}")
            A(f"ds_read_b128 {vr(112,4)}, v6")
            A(f"ds_read_b128 {vr(116,4)}, v6 offset:64")
        if not rg:
            A(f"s_cmp_eq_u32 s46, {SIG}")
            A(f"s_cbranch_scc1 {L_aw}")
            A(f"{L_awr}:")
        A("s_cmp_lt_u32 s46, 10")
        A("s_barrier")
        half(1)
        A(f"s_cbranch_scc1 {L_c}")
    L_rgl, L_rgr = A.label("rgl"), A.label("rgr")
    A("s_cmp_eq_u32 s3, 2")
    A(f"s_cbranch_scc1 {L_rgl}")
    qloop(False)
    A(f"{L_rgr}:")
    stamp(A, 4)
    QB1 = [8, 16]; QS = [12, 14]
    VIDX = 4
    VKA, VA2, VVA = 20, 21, 22
    S = [32, 64]
    O = [96, 112]
    KA1 = [128, 136]; KA2 = [132, 140]
    V0 = [144, 152]; V1 = [148, 156]
    A(f"s_mov_b32 s33, {f32bits(QSCALE):#x}")
    A("v_and_b32 v2, 31, v0")
    A("v_lshrrev_b32 v3, 5, v1")
    A("v_cmp_eq_u32 s[44:45], 1, v3")
    A("v_lshlrev_b32 v6, 3, v2")
    A("s_waitcnt lgkmcnt(0)")
    A(f"v_mov_b32 v24, {OFF_V0 + 640 - OFF_A2}")
    A("s_barrier")
    for mt in range(5):
        a = VACC + 4*mt
        for i in range(4):
            A(f"v_mul_f32 v{a+i}, s33, v{a+i}")
        A(f"v_cvt_pk_bf16_f32 v{a}, v{a}, v{a+1}")
        A(f"v_cvt_pk_bf16_f32 v{a+1}, v{a+2}, v{a+3}")
        A(f"ds_write_b64 v13, {vr(a,2)} offset:{mt*1024}")
    A(f"v_cndmask_b32 v{VA2}, v6, v24, s[44:45]")
    A("s_mul_i32 s32, s29, 1280")
    A(f"s_add_u32 s32, s32, {QX}")
    A("v_add_u32 v7, s32, v6")
    A("v_lshl_add_u32 v6, v3, 9, v7")
    A("v_mul_u32_u24 v23, 20, v3")
    A("v_add_u32 v23, v23, v2")
    A("v_cmp_gt_u32 vcc, 20, v2")
    A("v_lshlrev_b32 v26, 3, v1")
    A("v_cndmask_b32 v23, 40, v23, vcc")
    A("v_lshlrev_b32 v23, 4, v23")
    A(f"s_mov_b32 s36, {WS_KMAX}")
    A(f"s_sub_u32 s37, s24, {2*SL}")
    A(f"s_cselect_b32 s37, {62*SL}, s37")
    A(f"s_add_u32 s38, s37, {SL}")
    A("s_waitcnt lgkmcnt(0)")
    A("s_barrier")
    stamp(A, 5)
    A("buffer_load_dwordx2 v[24:25], v26, s[8:11], s36 offen sc1")
    A(f"buffer_load_dwordx4 {vr(KA1[0],4)}, v5, s[8:11], s37 offen sc1")
    A(f"buffer_load_dwordx2 {vr(KA2[0],2)}, v{VA2}, s[8:11], s37 offen offset:{OFF_A2} sc1")
    A(f"buffer_load_dwordx4 {vr(KA1[1],4)}, v5, s[8:11], s38 offen sc1")
    A(f"buffer_load_dwordx2 {vr(KA2[1],2)}, v{VA2}, s[8:11], s38 offen offset:{OFF_A2} sc1")
    A(f"buffer_load_dwordx4 {vr(V0[0],4)}, v23, s[8:11], s38 offen offset:{OFF_V0} sc1")
    A(f"buffer_load_dwordx4 {vr(V1[0],4)}, v23, s[8:11], s38 offen offset:{OFF_V1} sc1")
    A(f"ds_read2_b64 {vr(QB1[0],4)}, v6 offset0:0 offset1:32")
    A(f"ds_read_b64 {vr(QS[0],2)}, v7 offset:1024")
    A("v_add_u32 v6, 5120, v6")
    A(f"ds_read2_b64 {vr(QB1[1],4)}, v6 offset0:0 offset1:32")
    A(f"ds_read_b64 {vr(QS[1],2)}, v7 offset:{1024+5120}")
    A(f"v_mov_b32 v{VKA}, v5")
    A("v_cmp_lt_u32 vcc, 20, v2")
    A("v_mov_b32 v6, 0x40000")
    A(f"v_cndmask_b32 v{VVA}, v23, v6, vcc")
    A(f"v_mov_b32 v{VIDX}, 0xdddd")
    for r in range(O[0], O[0] + 32):
        A(f"v_mov_b32 v{r}, 0")
    for r in range(S[1] + 24, S[1] + 32):
        A(f"v_mov_b32 v{r}, 0")
    for r in range(V1[1], V1[1] + 4):
        A(f"v_mov_b32 v{r}, 0")
    A("v_mov_b32 v26, 0")
    A("v_mov_b32 v28, 0")
    A(f"v_mov_b32 v30, {FCNT}")
    A("v_mov_b32 v31, 1")
    A("s_waitcnt lgkmcnt(0)")
    for b in range(2):
        for r in range(2):
            A(f"v_cndmask_b32 v{QS[b]+r}, v{QS[b]+r}, 0, s[44:45]")
    for r in range(4):
        A(f"v_dot2c_f32_bf16 v26, v{QB1[0]+r}, v{QB1[0]+r}")
        A(f"v_dot2c_f32_bf16 v28, v{QB1[1]+r}, v{QB1[1]+r}")
    for r in range(2):
        A(f"v_dot2c_f32_bf16 v26, v{QS[0]+r}, v{QS[0]+r}")
        A(f"v_dot2c_f32_bf16 v28, v{QS[1]+r}, v{QS[1]+r}")
    A("s_nop 2")
    A("v_mov_b32 v27, v26")
    A("v_mov_b32 v29, v28")
    A("s_nop 1")
    A("v_permlane32_swap_b32 v26, v27")
    A("v_permlane32_swap_b32 v28, v29")
    A("s_nop 1")
    A("v_add_f32 v26, v26, v27")
    A("v_add_f32 v28, v28, v29")
    A("s_waitcnt vmcnt(6)")
    wave_max_u32(A, 24, 25, 34)
    A("v_mul_f32 v26, s34, v26")
    A("v_mul_f32 v28, s34, v28")
    A("v_sqrt_f32 v26, v26")
    A("v_sqrt_f32 v28, v28")
    A("s_nop 0")
    A(f"v_mul_f32 v26, {f32bits(-(1.0 + 2.0**-6)):#x}, v26")
    A(f"v_mul_f32 v28, {f32bits(-(1.0 + 2.0**-6)):#x}, v28")
    A("v_lshrrev_b32 v26, 16, v26")
    A("v_lshrrev_b32 v28, 16, v28")
    A(f"v_cndmask_b32 v{QS[0]}, v{QS[0]}, v26, s[44:45]")
    A(f"v_cndmask_b32 v{QS[1]}, v{QS[1]}, v28, s[44:45]")
    def qs2(buf, par, b):
        A(f"v_mfma_f32_32x32x8_bf16 {vr(S[buf]+16*b,16)}, {vr(KA2[par],2)}, {vr(QS[b],2)}, 0")
    def qk1(buf, par, b):
        A(f"v_mfma_f32_32x32x16_bf16 {vr(S[buf]+16*b,16)}, {vr(KA1[par],4)}, {vr(QB1[b],4)}, {vr(S[buf]+16*b,16)}")
    def pv(buf, b, half, vpar):
        vv = V0[vpar] if half == 0 else V1[vpar]
        A(f"v_smfmac_f32_32x32x32_bf16 {vr(O[b],16)}, {vr(vv,4)}, {vr(S[buf]+16*b+8*half,8)}, v{VIDX}")
    A("s_waitcnt vmcnt(4)")
    qs2(0, 0, 0); qk1(0, 0, 0); qs2(0, 0, 1); qk1(0, 0, 1)
    A("s_mov_b32 s46, 0")
    A("s_waitcnt vmcnt(0)")
    A("s_barrier")
    if X.cprio: A(f"s_setprio {X.cprio}")
    stamp(A, 6)
    A("s_nop 7")
    L_loop, L_sp = A.label("loop"), A.label("sp")
    A(f"{L_loop}:")
    sched = {2: 'pv1p', 6: 's2a', 10: 'q1a', 14: 'pv0a', 18: 'pv1a', 22: 's2b', 26: 'q1b', 30: 'pv0b'}
    for t in range(U_TILES):
        par = t & 1
        off = t * SL
        for e in range(32):
            op = sched.get(e)
            if op == 'pv1p':
                pv(par ^ 1, 1, 1, par ^ 1)
                A("s_waitcnt lgkmcnt(0)")
                A(f"ds_read_b128 {vr(V0[par^1],4)}, v{VVA} offset:{off+OFF_V0}")
                A(f"ds_read_b128 {vr(V1[par^1],4)}, v{VVA} offset:{off+OFF_V1}")
            if op == 's2a': qs2(par ^ 1, par ^ 1, 0)
            if op == 's2b': qs2(par ^ 1, par ^ 1, 1)
            if op == 'pv0a':
                pv(par, 0, 0, par)
                A(f"ds_read_b128 {vr(KA1[par],4)}, v{VKA} offset:{off}")
                A(f"ds_read_b64 {vr(KA2[par],2)}, v{VA2} offset:{off+OFF_A2}")
            if op == 'q1a': qk1(par ^ 1, par ^ 1, 0)
            if op == 'pv1a': pv(par, 0, 1, par)
            if op == 'q1b': qk1(par ^ 1, par ^ 1, 1)
            if op == 'pv0b':
                pv(par, 1, 0, par)
                if t == U_TILES - 1:
                    A("s_add_u32 s46, s46, 1")
                    A("s_bitcmp1_b32 0x14e, s46")
                    A(f"v_add_u32 v{VKA}, {U_TILES*SL}, v{VKA}")
                    A(f"v_add_u32 v{VA2}, {U_TILES*SL}, v{VA2}")
                    A(f"v_add_u32 v{VVA}, {U_TILES*SL}, v{VVA}")
            A(f"v_exp_f32 v{S[par]+e}, v{S[par]+e}")
    A(f"s_cbranch_scc0 {L_loop}")
    A("s_cmp_gt_u32 s46, 2")
    A(f"s_cbranch_scc1 {L_sp}")
    A("s_barrier")
    A(f"s_branch {L_loop}")
    A(f"{L_sp}:")
    A("ds_add_u32 v30, v31 offset:4")
    A("s_cmp_lt_u32 s46, 8")
    A(f"s_cbranch_scc1 {L_loop}")
    if not X.pdiag: stamp(A, 7)
    pv(1, 1, 1, 1)
    A(f"v_mov_b32 v26, {LTHR:#x}")
    A("s_nop 1")
    L_fb, L_norm = A.label("fb"), A.label("norm")
    A(f"v_rcp_f32 v28, v{O[0]+8}")
    A("s_nop 0")
    A("v_mov_b32 v29, v28")
    A("s_nop 1")
    A("v_permlane32_swap_b32 v28, v29")
    A("s_nop 3")
    A(f"v_min_f32 v27, v{O[0]+8}, v{O[1]+8}")
    A(f"v_cmp_nge_f32 vcc, v27, v26")
    A(f"v_cmp_u_f32 s[36:37], v{O[0]+8}, v{O[1]+8}")
    A("s_or_b64 vcc, vcc, s[36:37]")
    A("s_and_b64 vcc, vcc, s[44:45]")
    A(f"s_cbranch_vccnz {L_fb}")
    A(f"{L_norm}:")
    A(f"v_rcp_f32 v26, v{O[1]+8}")
    for r in range(12):
        A(f"v_mul_f32 v{O[0]+r}, v{O[0]+r}, v29")
    A("v_mov_b32 v27, v26")
    for r in range(6):
        A(f"v_cvt_pk_bf16_f32 v{S[0]+r}, v{O[0]+2*r}, v{O[0]+2*r+1}")
    A("v_permlane32_swap_b32 v26, v27")
    A(f"buffer_store_dwordx4 {vr(S[0],4)}, v{POA}, s[8:11], s74 offen sc1")
    A(f"buffer_store_dwordx2 {vr(S[0]+4,2)}, v{POB}, s[8:11], s75 offen sc1")
    for r in range(12):
        A(f"v_mul_f32 v{O[1]+r}, v{O[1]+r}, v27")
    for r in range(6):
        A(f"v_cvt_pk_bf16_f32 v{S[0]+8+r}, v{O[1]+2*r}, v{O[1]+2*r+1}")
    A(f"buffer_store_dwordx4 {vr(S[0]+8,4)}, v{POA}, s[8:11], s58 offen sc1")
    A(f"buffer_store_dwordx2 {vr(S[0]+12,2)}, v{POB}, s[8:11], s59 offen sc1")
    A("s_barrier")
    A(f"{L_op}:")
    ACC = 8; OF = 56
    WFS = list(range(96, 160, 4)) + list(range(176, 256, 4))
    NPRE = 7
    XV = 28; G = 48
    def wslot(s, mt):
        return WFS[5*(s % NPRE) + mt]
    def wrd(s, mt):
        slot = wslot(s, mt)
        if s < 8:
            b, off, o2 = PM, s * 6400 + mt * 32, 1280
        else:
            b, off, o2 = PT, (s - 8) * 25600 + mt * 32, 3200
        A(f"ds_read_b64_tr_b16 {vr(slot,2)}, v{b} offset:{off}")
        A(f"ds_read_b64_tr_b16 {vr(slot+2,2)}, v{b} offset:{off+o2}")
    A("s_mov_b32 s20, s4")
    A("s_and_b32 s21, s5, 0xffff")
    A(f"v_lshlrev_b32 v6, 2, v{PTK}")
    A(f"s_mov_b32 s32, {WS_G}")
    for s in range(NPRE):
        for mt in range(5):
            wrd(s, mt)
    A(f"buffer_load_dword v{G}, v6, s[8:11], s32 offen sc1")
    A(f"buffer_load_dword v{G+1}, v6, s[8:11], s32 offen offset:16 sc1")
    A(f"buffer_load_dwordx4 {vr(XV,4)}, v{PX}, s[20:23], 0 offen")
    A(f"buffer_load_dwordx4 {vr(XV+4,4)}, v{PX}, s[20:23], s55 offen")
    A(f"s_mov_b32 s46, {SPIN}")
    A("s_mov_b32 s71, -1")
    A("s_mov_b32 s47, 0")
    RL = [A.label("rl") for _ in range(10)]
    RC = [A.label("rc") for _ in range(10)]
    RT = [A.label("rt") for _ in range(10)]
    L_disp, L_h2, L_h3 = A.label("disp"), A.label("h2"), A.label("h3")
    A("s_cmp_lg_u32 s72, 0")
    A(f"s_cbranch_scc1 {L_h2}")
    A(f"{L_h3}:")
    if not X.pdiag: stamp(A, 8)
    for s in range(10):
        A(f"{RL[s]}:")
        if s < 8:
            A(f"buffer_load_dwordx4 {vr(OF+4*s,4)}, v5, s[8:11], s{12+s} offen sc1")
        else:
            A(f"buffer_load_dwordx4 {vr(OF+4*s,4)}, v{PO0+s-8}, s[8:11], s70 offen sc1")
    A("s_cmp_lg_u32 s47, 0")
    A(f"s_cbranch_scc1 {L_disp}")
    T = 36
    TT = list(range(36, 48)) + list(range(52, 56))
    A("s_waitcnt vmcnt(10)")
    for j in range(2):
        bf16r(A, G+j, G+j)
        sigmoid(A, G+j, G+j, G+2)
        bf16r(A, G+j, G+j)
    for j in range(2):
        A(f"v_sub_f32 v{G+2+j}, 1.0, v{G+j}")
        bf16r(A, G+2+j, G+2+j)
    for i in range(8):
        A(f"v_lshlrev_b32 v{TT[2*i]}, 16, v{XV+i}")
        A(f"v_and_b32 v{TT[2*i+1]}, 0xffff0000, v{XV+i}")
    L_sel, L_nosel = A.label("sel"), A.label("nosel")
    A(f"v_mov_b32 v6, {FCNT}")
    A("ds_read_b32 v6, v6 offset:12")
    A("s_mov_b32 s20, s6")
    A("s_and_b32 s21, s7, 0xffff")
    A("s_waitcnt lgkmcnt(0)")
    A("v_readfirstlane_b32 s56, v6")
    A("s_lshr_b32 s33, s52, 3")
    A("s_lshr_b32 s32, s56, 3")
    A("s_cmp_eq_u32 s32, s33")
    A(f"s_cbranch_scc1 {L_sel}")
    A(f"{L_nosel}:")
    for i in range(16):
        A(f"v_mul_f32 v{TT[i]}, v{TT[i]}, v{G + 2 + i // 8}")
    for s in range(10):
        A(f"{RC[s]}:")
        A(f"s_waitcnt vmcnt({9-s})" + (" lgkmcnt(0)" if s == NPRE else ""))
        o = OF + 4*s
        A(f"v_max3_u32 v6, v{o}, v{o+1}, v{o+2}")
        A(f"v_max_u32 v6, v6, v{o+3}")
        A("v_cmp_eq_u32 vcc, s71, v6")
        A(f"s_cbranch_vccnz {RT[s]}")
        for mt in range(5):
            A(f"v_mfma_f32_16x16x32_bf16 {vr(ACC+4*mt,4)}, {vr(wslot(s,mt),4)}, {vr(OF+4*s,4)}, {vr(ACC+4*mt,4) if s else 0}")
        if s + NPRE < 10:
            for mt in range(5):
                wrd(s + NPRE, mt)
    A("s_nop 3")
    for mt in range(5):
        A(f"ds_write_b128 v{PPW}, {vr(ACC+4*mt,4)} offset:{mt*64}")
        if mt == 0: A("s_nop 3")
    A("s_waitcnt lgkmcnt(0)")
    if not X.pdiag: stamp(A, 9)
    A("s_barrier")
    P = 96
    for j in range(2):
        for k in range(2):
            for h in range(2):
                A(f"ds_read_b128 {vr(P+16*j+8*k+4*h,4)}, v{PPR} offset:{j*1344 + k*21504 + h*16}")
    for j in range(2):
        A(f"s_waitcnt lgkmcnt({4*(1-j)})")
        for i in range(8):
            A(f"v_add_f32 v{P+16*j+i}, v{P+16*j+i}, v{P+16*j+8+i}")
        for i in range(8):
            A(f"v_fmac_f32 v{TT[8*j+i]}, v{P+16*j+i}, v{G+j}")
        for i in range(4):
            A(f"v_cvt_pk_bf16_f32 v{XV+4*j+i}, v{TT[8*j+2*i]}, v{TT[8*j+2*i+1]}")
        A(f"buffer_store_dwordx4 {vr(XV+4*j,4)}, v{PX}, s[20:23], {'0' if j == 0 else 's55'} offen")
    stamp_rt(A, 10)
    stamp_flush(A, 11, 8, 29)
    A(f"{L_exit}:")
    A("s_endpgm")
    for s_ in range(10):
        A(f"{RT[s_]}:")
        A(f"s_mov_b32 s47, {s_ + 1}")
        A("s_sub_u32 s46, s46, 1")
        A("s_cselect_b32 s71, 0x12345, s71")
        A("s_cselect_b32 s46, 0, s46")
        A("s_waitcnt vmcnt(0)")
        A(f"s_branch {RL[s_]}")
    A(f"{L_disp}:")
    for s_ in range(9):
        A(f"s_cmp_eq_u32 s47, {s_ + 1}")
        A(f"s_cbranch_scc1 {RC[s_]}")
    A(f"s_branch {RC[9]}")
    A(f"{L_sel}:")
    A(f"ds_read_b128 {vr(XV,4)}, v{PY}")
    A(f"ds_read_b128 {vr(XV+4,4)}, v{PY} offset:16")
    A("s_waitcnt lgkmcnt(0)")
    for j in range(2):
        A(f"v_add_u32 v6, {4*j}, v{PTK}")
        A("v_cmp_eq_u32 vcc, s56, v6")
        for i in range(8):
            A(f"v_add_f32 v6, v{TT[8*j+i]}, v{XV+i}")
            bf16r(A, 6, 6)
            A(f"v_cndmask_b32 v{TT[8*j+i]}, v{TT[8*j+i]}, v6, vcc")
    A(f"s_branch {L_nosel}")
    A(f"{L_aw}:")
    A("s_waitcnt vmcnt(0)")
    A(f"s_branch {L_awr}")
    A(f"{L_rgl}:")
    qloop(True)
    A("v_add_u32 v8, s50, v2")
    A("v_lshlrev_b32 v6, 2, v8")
    A("v_lshl_or_b32 v6, v3, 28, v6")
    A("v_sub_u32 v8, 2047, v8")
    A(f"s_mov_b32 s33, {WS_R}")
    A(f"s_mov_b32 s34, {WS_G}")
    A(f"buffer_store_dword v{VE}, v6, s[8:11], s33 offen sc1")
    A(f"buffer_store_dword v{VE+1}, v6, s[8:11], s34 offen sc1")
    A(f"v_ashrrev_i32 v7, 31, v{VE}")
    A("v_or_b32 v7, 0x80000000, v7")
    A(f"v_xor_b32 v7, v7, v{VE}")
    A("v_and_b32 v7, 0xfffff800, v7")
    A("v_or_b32 v7, v7, v8")
    A(f"s_mov_b32 s34, {WS_RKEY}")
    fin_key()
    A("s_mul_i32 s32, s50, 20")
    A(f"s_add_u32 s32, s32, {WS_Y}")
    A("v_cmp_gt_u32 vcc, 20, v1")
    A("v_mov_b32 v7, 0x40000000")
    A("v_cndmask_b32 v6, v7, v5, vcc")
    A(f"buffer_store_dwordx4 {vr(VE+4,4)}, v6, s[8:11], s32 offen sc1")
    A("s_lshl_b32 s32, s30, 7")
    A(f"s_add_u32 s33, s32, {WS_GC}")
    A(f"buffer_store_dword v{VE+4}, v24, s[8:11], s33 offen sc1")
    A(f"s_add_u32 s33, s32, {WS_FC}")
    A(f"buffer_store_dword v{VE+4}, v24, s[8:11], s33 offen sc1")
    A(f"s_branch {L_rgr}")
    A(f"{L_fb}:")
    A("v_lshlrev_b32 v21, 3, v2")
    for b in range(2):
        A(f"v_cndmask_b32 v{QS[b]}, v{QS[b]}, 0, s[44:45]")
    A("v_mov_b32 v30, 0xff800000")
    A("v_mov_b32 v31, 0xff800000")
    L_p1, L_p2 = A.label("p1"), A.label("p2")
    def fb_s():
        A(f"buffer_load_dwordx4 {vr(KA1[0],4)}, v5, s[8:11], s32 offen sc1")
        A(f"buffer_load_dwordx2 {vr(KA2[0],2)}, v21, s[8:11], s32 offen offset:{OFF_A2} sc1")
    def fb_qk():
        A("s_waitcnt vmcnt(0)")
        qs2(0, 0, 0); qk1(0, 0, 0); qs2(0, 0, 1); qk1(0, 0, 1)
        A("s_nop 15")
    A("s_mov_b32 s32, 0")
    A(f"{L_p1}:")
    fb_s(); fb_qk()
    for r in range(0, 16, 2):
        A(f"v_max3_f32 v30, v{S[0]+r}, v{S[0]+r+1}, v30")
        A(f"v_max3_f32 v31, v{S[0]+16+r}, v{S[0]+16+r+1}, v31")
    A(f"s_add_u32 s32, s32, {SL}")
    A(f"s_cmp_lt_u32 s32, {64*SL}")
    A(f"s_cbranch_scc1 {L_p1}")
    A("v_mov_b32 v28, v30")
    A("v_mov_b32 v29, v31")
    A("s_nop 1")
    A("v_permlane32_swap_b32 v30, v28")
    A("v_permlane32_swap_b32 v31, v29")
    A("s_nop 1")
    A("v_max_f32 v30, v30, v28")
    A("v_max_f32 v31, v31, v29")
    for r in range(32):
        A(f"v_mov_b32 v{O[0]+r}, 0")
    A("s_mov_b32 s32, 0")
    A(f"{L_p2}:")
    fb_s()
    A(f"s_add_u32 s32, s32, {SL}")
    A(f"s_cmp_lt_u32 s32, {64*SL}")
    A("s_cselect_b32 s33, s32, 0")
    A(f"buffer_load_dwordx4 {vr(V0[0],4)}, v23, s[8:11], s33 offen offset:{OFF_V0} sc1")
    A(f"buffer_load_dwordx4 {vr(V1[0],4)}, v23, s[8:11], s33 offen offset:{OFF_V1} sc1")
    fb_qk()
    for r in range(32):
        A(f"v_sub_f32 v{S[0]+r}, v{S[0]+r}, v{30 + r // 16}")
    for r in range(32):
        A(f"v_exp_f32 v{S[0]+r}, v{S[0]+r}")
    A("s_nop 2")
    pv(0, 0, 0, 0); pv(0, 1, 0, 0); pv(0, 0, 1, 0); pv(0, 1, 1, 0)
    A(f"s_cmp_lt_u32 s32, {64*SL}")
    A(f"s_cbranch_scc1 {L_p2}")
    A("s_nop 15")
    A(f"v_rcp_f32 v28, v{O[0]+8}")
    A("s_nop 0")
    A("v_mov_b32 v29, v28")
    A("s_nop 1")
    A("v_permlane32_swap_b32 v28, v29")
    A("s_nop 1")
    A(f"s_branch {L_norm}")

    A(f"{L_help}:")
    A("s_mov_b32 s72, 1")
    A("s_sub_u32 s26, s29, 4")
    A("v_lshrrev_b32 v6, 3, v1")
    A("v_and_b32 v7, 7, v1")
    A("v_lshrrev_b32 v8, 1, v6")
    A("v_xor_b32 v7, v7, v8")
    A("v_mul_u32_u24 v6, 1280, v6")
    A("v_lshl_add_u32 v10, v7, 4, v6")
    A("v_xor_b32 v11, 64, v10")
    A("v_add_u32 v11, 9216, v11")
    A("v_mul_u32_u24 v2, 26, v1")
    A("v_lshrrev_b32 v2, 8, v2")
    A("v_mul_u32_u24 v3, 10, v2")
    A("v_sub_u32 v3, v1, v3")
    A("v_mul_u32_u24 v2, 1280, v2")
    A("v_lshl_add_u32 v172, v3, 4, v2")
    A("v_add_u32 v12, 17920, v172")
    A("s_mul_i32 s55, s30, 81920")
    A("s_mul_i32 s32, s26, 20480")
    A("s_add_u32 s55, s55, s32")
    A("s_lshl_b32 s56, s26, 11")
    A("s_lshr_b32 s32, s26, 1")
    A("s_xor_b32 s32, s32, s26")
    A("s_mul_i32 s53, s32, 5120")
    A("s_mul_i32 s33, s31, 160")
    A("s_add_u32 s53, s53, s33")
    A("s_mul_i32 s54, s26, 640")
    A(f"s_add_u32 s54, s54, {WR}")
    A("s_mov_b32 s66, -1")
    A("s_movk_i32 s67, 0xff")
    A(f"s_mov_b32 s14, {X_BYTES}")
    A("s_mov_b32 s15, 0x00020000")
    A(f"s_mov_b32 s18, {W_BYTES}")
    A("s_mov_b32 s19, 0x00020000")
    A("s_mov_b32 s23, 0x00020000")
    A("s_lshl_b32 s35, s26, 10")
    A("s_mov_b32 s57, s25")
    A("s_lshl_b32 s32, s26, 3")
    A("s_or_b32 s32, s32, s3")
    A("s_cmp_lt_u32 s32, 2")
    A(f"s_cselect_b32 s59, {SIG + DN + 1}, 99")
    A("s_waitcnt lgkmcnt(0)")
    hst(A, 1)
    A("s_mov_b32 s12, s36")
    A("s_and_b32 s13, s37, 0xffff")
    A("s_mov_b32 s16, s38")
    A("s_and_b32 s17, s39, 0xffff")
    def xpiece():
        A("s_lshl_b32 s32, s57, 7")
        A("s_mov_b32 m0, s56")
        A("s_add_u32 s32, s32, s55")
        A("s_add_u32 s56, s56, 8192")
        A("buffer_load_dwordx4 v10, s[12:15], s32 offen lds")
        A("buffer_load_dwordx4 v11, s[12:15], s32 offen offset:1024 lds")
        A("s_add_u32 s57, s57, 1")
        A("s_cmp_eq_u32 s57, 10")
        A("s_cselect_b32 s57, 0, s57")
    def wchunk():
        A("s_mul_i32 s33, s25, 81920")
        A("s_mov_b32 m0, s54")
        A("s_add_u32 s33, s33, s53")
        A("s_mov_b64 exec, s[66:67]")
        A("buffer_load_dwordx4 v172, s[16:19], s33 offen lds")
        A("buffer_load_dwordx4 v12, s[16:19], s33 offen offset:2560 lds")
        A("s_add_u32 m0, s54, 5120")
        A("s_add_u32 s33, s33, 40960")
        A("buffer_load_dwordx4 v172, s[16:19], s33 offen lds")
        A("buffer_load_dwordx4 v12, s[16:19], s33 offen offset:2560 lds")
        A("s_mov_b64 exec, -1")
        A("s_add_u32 s54, s54, 10240")
        A(f"s_cmp_ge_u32 s54, {WR + NS*10240}")
        A(f"s_cselect_b32 s32, {NS*10240}, 0")
        A("s_sub_u32 s54, s54, s32")
        A("s_add_u32 s25, s25, 1")
        A("s_cmp_eq_u32 s25, 10")
        A("s_cselect_b32 s25, 0, s25")
    L_prod, L_p1d, L_nv2 = A.label("prod"), A.label("p1d"), A.label("nv2")
    A("s_cmp_lt_u32 s3, 2")
    A(f"s_cbranch_scc1 {L_prod}")
    A("s_cmp_lg_u32 s3, 2")
    A(f"s_cbranch_scc1 {L_nv2}")
    A("s_bitcmp1_b32 s26, 0")
    A("s_cselect_b32 s20, s4, s44")
    A("s_cselect_b32 s21, s5, s45")
    A("s_and_b32 s21, s21, 0xffff")
    A("s_movk_i32 s22, 1280")
    A("s_lshr_b32 s32, s26, 1")
    A("s_mul_i32 s32, s32, 640")
    A("s_and_b32 s33, s26, 1")
    A("s_mul_i32 s33, s33, 1280")
    A("s_add_u32 s33, s33, s32")
    A(f"s_add_u32 m0, s33, {VR}")
    A("s_mov_b64 exec, s[66:67]")
    A(f"buffer_load_dwordx4 v5, s[20:23], s32 offen lds")
    A("s_mov_b64 exec, -1")
    A(f"{L_nv2}:")
    L_l, L_x = A.label("l"), A.label("x")
    A(f"{L_x}:")
    xpiece()
    A("s_cmp_lg_u32 s57, s25")
    A(f"s_cbranch_scc1 {L_x}")
    A("s_mov_b32 s46, 0")
    A("s_mov_b32 s34, 1")
    A(f"{L_l}:")
    wchunk()
    A("s_add_u32 s46, s46, 1")
    A(f"s_cmp_le_u32 s46, {DN}")
    A(f"s_cbranch_scc1 {L_l}")
    def chk():
        L = A.label("chk")
        A("s_cmp_lg_u32 s34, 63")
        A(f"s_cbranch_scc1 {L}")
        A("s_mov_b32 s34, 1")
        A("s_atomic_add s34, s[48:49], 0x80")
        A(f"{L}:")
    L_ns = A.label("ns")
    A(f"s_waitcnt vmcnt({4*DN})")
    chk()
    A("s_barrier")
    A("s_cmp_lg_u32 s46, s59")
    A(f"s_cbranch_scc1 {L_ns}")
    A("s_atomic_add s34, s[48:49], 0x0 glc")
    hst(A, 6)
    A(f"{L_ns}:")
    A("s_cmp_lt_u32 s46, 10")
    A(f"s_cbranch_scc1 {L_l}")
    for d in range(DN - 1, -1, -1):
        A(f"s_waitcnt vmcnt({4*d})" + (" lgkmcnt(0)" if d == 0 else ""))
        chk()
        A("s_barrier")
    A(f"s_branch {L_p1d}")
    A(f"{L_prod}:")
    A("s_cmp_eq_u32 s3, 0")
    A("s_cselect_b32 s20, s40, s42")
    A("s_cselect_b32 s21, s41, s43")
    A("s_and_b32 s21, s21, 0xffff")
    A("s_movk_i32 s22, 25600")
    A("s_mul_i32 s35, s26, 640")
    A(f"s_add_u32 s58, s35, {ER}")
    A("s_mov_b32 s46, 0")
    L_a, L_w = A.label("a"), A.label("w")
    A(f"{L_a}:")
    A("s_mul_i32 s34, s57, 2560")
    A("s_mov_b32 m0, s58")
    A("s_add_u32 s34, s34, s35")
    A("s_mov_b64 exec, s[66:67]")
    A("buffer_load_dwordx4 v5, s[20:23], s34 offen lds")
    A("buffer_load_dwordx4 v5, s[20:23], s34 offen offset:2560 lds")
    A("s_mov_b64 exec, -1")
    A("s_add_u32 s58, s58, 5120")
    xpiece(); xpiece()
    A("s_add_u32 s46, s46, 1")
    A("s_cmp_le_u32 s46, 2")
    A(f"s_cbranch_scc1 {L_a}")
    A("s_waitcnt vmcnt(12)")
    A("s_barrier")
    A("s_cmp_lt_u32 s46, 5")
    A(f"s_cbranch_scc1 {L_a}")
    A("s_mov_b32 s46, 0")
    wchunk()
    A("s_waitcnt vmcnt(10)")
    A("s_barrier")
    wchunk()
    A("s_waitcnt vmcnt(8)")
    A("s_barrier")
    hst(A, 2)
    wchunk()
    A("s_barrier")
    hst(A, 3)
    A("s_mov_b32 s46, 3")
    A("s_mov_b32 s34, 1")
    A(f"s_branch {L_l}")
    A(f"{L_p1d}:")
    A(f"s_load_dwordx2 s[38:39], s[0:1], {KA_WO}")
    A(f"s_load_dwordx4 s[40:43], s[0:1], {KA_WG}")
    A(f"s_load_dwordx2 s[44:45], s[0:1], {KA_WD}")
    A("s_lshr_b32 s28, s2, 6")
    common_setup()
    common_setup2()
    A("v_lshlrev_b32 v174, 24, v1")
    A("buffer_load_dword v29, v174, s[76:79], 0 offen offset:128 sc1")
    A("s_mov_b32 s4, s36")
    A("s_mov_b32 s5, s37")
    A("s_lshl_b32 s32, s26, 10")
    A("s_mov_b32 m0, s32")
    A("s_add_u32 s53, s32, s24")
    A("s_barrier")
    A("s_barrier")
    hst(A, 8)
    L_g1, L_g2 = A.label("g1"), A.label("g2")
    A("s_waitcnt vmcnt(0)")
    A("v_readfirstlane_b32 s32, v29")
    A("s_or_b32 s32, s32, s26")
    A("s_cmp_lg_u32 s32, 0")
    A(f"s_cbranch_scc1 {L_g1}")
    await_go(A, 0, 28, 4)
    A(f"{L_g1}:")
    hst(A, 9)
    A("s_barrier")
    if not X.pdiag: stamp(A, 1)
    def dma(n):
        L = A.label("dma")
        A(f"s_add_u32 s34, m0, {n*4096}")
        A(f"{L}:")
        A("buffer_load_dwordx4 v5, s[8:11], s53 offen sc1 lds")
        A("s_add_u32 m0, m0, 4096")
        A("s_add_u32 s53, s53, 4096")
        A(f"s_cmp_ge_u32 s53, {64*SL}")
        A(f"s_cselect_b32 s32, {64*SL}, 0")
        A("s_sub_u32 s53, s53, s32")
        A("s_cmp_lt_u32 m0, s34")
        A(f"s_cbranch_scc1 {L}")
    def need(tiles):
        return min(40, -(-(-(-tiles*SL // 1024)) // 4))
    n0, n1 = need(U_TILES), need(U_TILES * 2)
    dma(n1)
    oproj_addr()
    o_addr()
    for i in range(4):
        A(f"v_mov_b32 v{176+i}, -1")
    A(f"v_mov_b32 v173, {FCNT}")
    A("v_mov_b32 v6, 0")
    A("v_mov_b32 v7, 0")
    A("v_lshlrev_b32 v10, 3, v1")
    A("v_mul_u32_u24 v11, 3072, v1")
    A("v_cmp_gt_u32 vcc, 40, v1")
    A("v_mov_b32 v4, 0x40000000")
    A("v_cndmask_b32 v4, v4, v10, vcc")
    A("v_mov_b32 v175, 1")
    A("s_mul_i32 s64, s26, 5120")
    A("s_add_u32 s64, s64, s54")
    A("s_mul_i32 s32, s73, 51200")
    A("s_add_u32 s64, s64, s32")
    A(f"s_mov_b32 s69, {320*1280}")
    A("s_mul_i32 s65, s26, 640")
    A("s_waitcnt lgkmcnt(0)")
    srd(A, 60, 38, W_BYTES)
    A(f"s_waitcnt vmcnt({n1 - n0})")
    A("s_barrier")
    dma(40 - n1)
    A(f"s_waitcnt vmcnt({40 - n1})")
    A("s_barrier")
    A(f"buffer_store_dwordx4 v[176:179], v{POA}, s[8:11], s74 offen sc1")
    A(f"buffer_store_dwordx2 v[176:177], v{POB}, s[8:11], s75 offen sc1")
    A(f"buffer_store_dwordx4 v[176:179], v{POA}, s[8:11], s58 offen sc1")
    A(f"buffer_store_dwordx2 v[176:177], v{POB}, s[8:11], s59 offen sc1")
    L_b2, L_b3 = A.label("b2"), A.label("b3")
    A("s_lshl_b32 s32, s26, 3")
    A("s_or_b32 s32, s32, s3")
    A("s_cmp_lg_u32 s32, 2")
    A(f"s_cbranch_scc1 {L_b3}")
    arrive(A, 4, 32, 28)
    A(f"{L_b3}:")
    A("s_waitcnt vmcnt(0)")
    A("s_cmp_lg_u32 s26, 3")
    A(f"s_cbranch_scc1 {L_b2}")
    A("ds_write_b64 v173, v[6:7]")
    A("ds_write_b64 v173, v[6:7] offset:8")
    A("s_waitcnt lgkmcnt(0)")
    A(f"{L_b2}:")
    A("s_barrier")
    if not X.pdiag: stamp(A, 2)
    def lds_wait(off, thr, slp=2):
        Lp = A.label("lw")
        A(f"{Lp}:")
        A(f"ds_read_b32 v171, v173 offset:{off}")
        A("s_waitcnt lgkmcnt(0)")
        A("v_readfirstlane_b32 s32, v171")
        A(f"s_sleep {slp}")
        A(f"s_cmp_lt_u32 s32, {thr}")
        A(f"s_cbranch_scc1 {Lp}")
    def wo_part(thr):
        Lw = A.label("wl")
        lds_wait(4, thr, X.slp)
        if X.nowo: return
        A(f"s_add_u32 s34, s65, 51200")
        A("s_mov_b64 exec, s[66:67]")
        A(f"{Lw}:")
        A("s_mov_b32 m0, s65")
        A("s_add_u32 s32, s64, s69")
        A("buffer_load_dwordx4 v172, s[60:63], s32 offen lds")
        A("s_add_u32 s65, s65, 2560")
        A("s_add_u32 s64, s64, 20480")
        A("s_cmp_ge_u32 s64, 409600")
        A("s_cselect_b32 s32, 409600, 0")
        A("s_sub_u32 s64, s64, s32")
        A("s_cmp_lt_u32 s65, s34")
        A(f"s_cbranch_scc1 {Lw}")
        A("s_mov_b64 exec, -1")
    await_go(A, 4, 28, 8)
    A(f"s_mov_b32 s32, {WS_RKEY}")
    A("buffer_load_dwordx2 v[6:7], v10, s[8:11], s32 offen sc1")
    L_gc = A.label("gc")
    A("s_lshl_b32 s35, s30, 7")
    A(f"s_add_u32 s35, s35, {WS_GC}")
    A("s_cmp_lg_u32 s26, 0")
    A(f"s_cbranch_scc1 {L_gc}")
    A("buffer_atomic_add v175, v174, s[8:11], s35 offen sc1")
    A(f"{L_gc}:")
    A("s_waitcnt vmcnt(0)")
    A("s_setprio 2")
    wave_max_u32(A, 6, 7, 56)
    A("v_lshlrev_b32 v9, 1, v1")
    for j in range(8):
        A(f"v_mov_b32 v{12+j}, 0")
    A("s_setprio 0")
    A("s_and_b32 s56, s56, 2047")
    A("s_sub_u32 s25, 2047, s56")
    L_w1, L_w2 = A.label("w1"), A.label("w2")
    A("s_lshr_b32 s32, s2, 3")
    A("s_and_b32 s33, s2, 7")
    A("s_mul_i32 s47, s33, 24")
    A("s_add_u32 s47, s47, s32")
    A(f"s_cmp_ge_u32 s32, {0 if X.noffn else 24}")
    A(f"s_cbranch_scc1 {L_w1}")
    A("s_cmp_ge_u32 s26, 2")
    A("s_cselect_b32 s16, s42, s40")
    A("s_cselect_b32 s17, s43, s41")
    A("s_and_b32 s17, s17, 0xffff")
    A(f"s_mov_b32 s18, {F_BYTES}")
    srd(A, 20, 44, F_BYTES)
    A("s_and_b32 s46, s26, 1")
    W_, WD_, XL, AC = 32, 56, 72, 12
    A("s_mul_i32 s32, s25, 1280")
    A("s_mul_i32 s33, s46, 640")
    A("s_add_u32 s32, s32, s33")
    for i in range(5):
        A(f"buffer_load_ushort v{XL+i}, v9, s[12:15], s32 offen offset:{i*128}")
    A(f"s_mul_i32 s32, s46, {320*3072}")
    A("s_lshl_b32 s33, s47, 4")
    A("s_add_u32 s32, s32, s33")
    for i in range(5):
        A(f"buffer_load_dwordx4 {vr(W_+4*i,4)}, v11, s[16:19], s32 offen")
        if i < 4: A(f"s_add_u32 s32, s32, {64*3072}")
    A("s_mul_i32 s32, s47, 10240")
    A("s_mul_i32 s33, s26, 320")
    A("s_add_u32 s32, s32, s33")
    for f in range(8):
        if f % 3 == 0 and f: A(f"s_add_u32 s32, s32, {3*1280}")
        A(f"buffer_load_dwordx2 {vr(WD_+2*f,2)}, v4, s[20:23], s32 offen offset:{(f%3)*1280}")
    A("s_waitcnt vmcnt(8)")
    if not X.pdiag: stamp(A, 3)
    A("s_setprio 2")
    for i in range(5):
        A(f"v_lshlrev_b32 v{XL+5}, 16, v{XL+i}")
        for dw in range(4):
            A(f"v_dot2c_f32_bf16 v{AC+2*dw}, v{W_+4*i+dw}, v{XL+i}")
            A(f"v_dot2c_f32_bf16 v{AC+2*dw+1}, v{W_+4*i+dw}, v{XL+5}")
    A("s_nop 3")
    for j in range(4):
        A(f"v_permlane32_swap_b32 v{AC+j}, v{AC+j+4}")
    A("s_nop 1")
    for j in range(4):
        A(f"v_add_f32 v{AC+j}, v{AC+j}, v{AC+j+4}")
    A("s_nop 1")
    for j in range(2):
        A(f"v_permlane16_swap_b32 v{AC+j}, v{AC+j+2}")
    A("s_nop 1")
    for j in range(2):
        A(f"v_add_f32 v{AC+j}, v{AC+j}, v{AC+j+2}")
    for sh in (8, 4, 2, 1):
        A("s_nop 1")
        for j in range(2):
            A(f"v_add_f32_dpp v{AC+j}, v{AC+j}, v{AC+j} row_ror:{sh} row_mask:0xf bank_mask:0xf")
    A("s_lshl_b32 s32, s26, 5")
    A(f"s_add_u32 s32, s32, {FB}")
    A("v_lshl_add_u32 v9, v3, 3, s32")
    A(f"ds_write_b64 v9, {vr(AC,2)}")
    A("v_and_b32 v8, 7, v1")
    A("v_lshlrev_b32 v8, 2, v8")
    A(f"v_add_u32 v8, {FB}, v8")
    A("s_setprio 0")
    A("s_waitcnt lgkmcnt(0)")
    A("ds_add_u32 v173, v175")
    wo_part(256)
    lds_wait(0, 256)
    A("s_setprio 2")
    A("ds_read2_b32 v[12:13], v8 offset0:0 offset1:8")
    A("ds_read2_b32 v[14:15], v8 offset0:16 offset1:24")
    A("s_waitcnt lgkmcnt(0)")
    A("v_add_f32 v12, v12, v13")
    A("v_add_f32 v14, v14, v15")
    bf16r(A, 12, 12)
    sigmoid(A, 16, 12, 17)
    A("v_mul_f32 v12, v12, v16")
    bf16r(A, 12, 12)
    bf16r(A, 14, 14)
    A("v_mul_f32 v12, v12, v14")
    bf16r(A, 12, 12)
    Y = 20
    for j in range(4):
        A(f"v_mov_b32 v{Y+j}, 0")
    def hs(f):
        hi = 13+2*f if f < 4 else 29+2*f
        return hi - 1, hi
    for f in range(8):
        A(f"v_readlane_b32 s{hs(f)[1]}, v12, {f}")
    for f in range(8):
        lo, hi = hs(f)
        A(f"s_lshr_b32 s{lo}, s{hi}, 16")
    A("s_waitcnt vmcnt(20)")
    for f in range(8):
        lo, hi = hs(f)
        for j in range(2):
            A(f"v_dot2c_f32_bf16 v{Y+2*j}, s{lo}, v{WD_+2*f+j}")
            A(f"v_dot2c_f32_bf16 v{Y+2*j+1}, s{hi}, v{WD_+2*f+j}")
    A("s_and_b32 s47, s47, 15")
    A("s_mul_i32 s32, s47, 2560")
    A("s_mul_i32 s33, s26, 640")
    A("s_add_u32 s32, s32, s33")
    A(f"s_add_u32 s32, s32, {WS_Y}")
    A("v_lshlrev_b32 v4, 1, v4")
    A("s_setprio 0")
    A("s_nop 2")
    for j in range(4):
        A(f"buffer_atomic_add_f32 v{Y+j}, v4, s[8:11], s32 offen offset:{j*4}")
    A("s_lshl_b32 s32, s47, 7")
    A(f"s_add_u32 s32, s32, {WS_FC}")
    A("s_waitcnt vmcnt(0)")
    A("buffer_atomic_add v175, v174, s[8:11], s32 offen sc1")
    A(f"s_branch {L_w2}")
    A(f"{L_w1}:")
    wo_part(256)
    A("s_waitcnt vmcnt(0)")
    A(f"{L_w2}:")
    if not X.pdiag: stamp(A, 4)
    A("ds_add_u32 v173, v175 offset:8")
    oproj_saddr()
    lds_wait(8, 256)
    A(f"s_branch {L_op}")
    A(f"{L_h2}:")
    if not X.pdiag: stamp(A, 5)
    A("v_mov_b32 v171, s25")
    A("ds_write_b32 v173, v171 offset:12")
    L_ny, L_sp2, L_sg, L_ng, L_gp = A.label("ny"), A.label("sp2"), A.label("sg"), A.label("ng"), A.label("gp")
    A("s_cmp_lg_u32 s26, 1")
    A(f"s_cbranch_scc1 {L_ng}")
    A(f"{L_gp}:")
    A("buffer_load_dword v171, v174, s[8:11], s35 offen sc1")
    A("s_waitcnt vmcnt(0)")
    A("v_readfirstlane_b32 s32, v171")
    A("s_sub_u32 s46, s46, 1")
    A(f"s_cbranch_scc1 {L_ng}")
    A("s_cmp_lt_u32 s32, 8")
    A(f"s_cbranch_scc1 {L_gp}")
    A(f"{L_ng}:")
    A("s_lshr_b32 s32, s25, 6")
    A("s_lshl_b32 s33, s26, 8")
    A("s_or_b32 s33, s33, s30")
    A("s_cmp_lg_u32 s32, s33")
    A(f"s_cbranch_scc1 {L_ny}")
    A("v_lshlrev_b32 v6, 7, v2")
    A(f"s_mov_b32 s33, {WS_FC}")
    A(f"{L_sp2}:")
    A("buffer_load_dword v171, v6, s[8:11], s33 offen sc1")
    A("s_waitcnt vmcnt(0)")
    A(f"v_cmp_ne_u32 vcc, {0 if X.noffn else 48}, v171")
    A("s_sub_u32 s46, s46, 1")
    A(f"s_cbranch_scc1 {L_sg}")
    A("s_sleep 8")
    A(f"s_cbranch_vccnz {L_sp2}")
    A(f"{L_sg}:")
    A("s_setprio 2")
    Yv = OF
    A("v_mul_u32_u24 v6, 2560, v2")
    A("v_lshl_add_u32 v6, v3, 4, v6")
    A("s_lshl_b32 s32, s54, 1")
    A(f"s_add_u32 s32, s32, {WS_Y}")
    for mt in range(5):
        A(f"buffer_load_dwordx4 {vr(Yv+4*mt,4)}, v6, s[8:11], s32 offen offset:{mt*64} sc1")
    A("s_lshl_b32 s32, s25, 2")
    A(f"s_add_u32 s32, s32, {WS_R}")
    A("v_mov_b32 v6, 0")
    A("buffer_load_dword v171, v6, s[8:11], s32 offen sc1")
    A("s_waitcnt vmcnt(0)")
    for sh in (8, 4, 2, 1):
        A("s_nop 1")
        for j in range(20):
            A(f"v_add_f32_dpp v{Yv+j}, v{Yv+j}, v{Yv+j} row_ror:{sh} row_mask:0xf bank_mask:0xf")
    bf16r(A, 171, 171)
    sigmoid(A, 171, 171, 6)
    bf16r(A, 171, 171)
    for j in range(20):
        bf16r(A, Yv+j, Yv+j)
        A(f"v_mul_f32 v{Yv+j}, v{Yv+j}, v171")
        bf16r(A, Yv+j, Yv+j)
    A("v_lshlrev_b32 v6, 4, v3")
    A(f"v_add_u32 v6, {YB}, v6")
    for mt in range(5):
        A(f"ds_write_b128 v6, {vr(Yv+4*mt,4)} offset:{mt*64}")
    A("s_setprio 0")
    A(f"{L_ny}:")
    A(f"s_mov_b32 s46, {SPIN}")
    A("s_mov_b32 s69, 0")
    wo_part(512)
    A("s_waitcnt vmcnt(0) lgkmcnt(0)")
    if not X.pdiag: stamp(A, 6)
    A("s_barrier")
    if not X.pdiag: stamp(A, 7)
    A("s_sleep 6")
    A(f"s_branch {L_h3}")

def build(path):
    A = Asm()
    fused(A)
    hdr = open("gated_mix__grouped_kv_mqa__moe_arch_mod__prompt.s.ref").read().split("; @launch")[0]
    out = hdr + "; @launch grid=(256,1,1) block=(512,1,1) lds=163840\n" + '.amdgcn_target "amdgcn-amd-amdhsa--gfx950"\n.text\n' + A.text() + '.section .rodata,"a"\n'
    out += kernel_desc(NAME, 256, 256)
    open(path, "w").write(out)

if __name__ == "__main__":
    build("t16.s")
    Cfg.on = True
    build("t16s.s")
```

```python
class Asm:
    def __init__(self):
        self.lines = []
        self.uid = 0
        self.pf = None
        self.pf_step = 56
    @staticmethod
    def size(l):
        op = l.split()[0]
        import re
        lit = False
        for tok in re.findall(r"(?<![\w\[:])(-?0x[0-9a-fA-F]+|-?\d+)(?![\w\]:.])", l.split(None, 1)[1] if " " in l else ""):
            v = int(tok, 0)
            if not (-16 <= v <= 64): lit = True
        if op.startswith(("s_waitcnt", "s_nop", "s_barrier", "s_branch", "s_cbranch", "s_sleep", "s_setprio", "s_endpgm", "s_movk")): return 4
        if op.startswith(("s_load", "s_atomic", "s_mem", "buffer_", "ds_", "global_", "v_mfma", "v_smfmac")): return 8
        if op.startswith("s_"): return 8 if lit else 4
        four = ("v_mov_b32", "v_add_u32", "v_sub_u32", "v_and_b32", "v_or_b32", "v_xor_b32", "v_lshlrev_b32", "v_lshrrev_b32", "v_mul_f32", "v_add_f32",
                "v_sub_f32", "v_exp_f32", "v_rcp_f32", "v_sqrt_f32", "v_max_u32", "v_max_f32", "v_min_f32", "v_fmac_f32", "v_mul_u32_u24", "v_dot2c_f32_bf16",
                "v_readfirstlane_b32", "v_ashrrev_i32", "v_permlane32_swap_b32", "v_permlane16_swap_b32")
        if op in four and not lit: return 4
        return 8
    def pf_start(self, name):
        self.pf = [name, 0, 0]
        self._pad()
    def _pad(self):
        n, c, _ = self.pf
        self.lines.append(f"PF_{n}_{c}:")
        self.lines.append(f"    s_cbranch_execz PF_{n}_{c+1}")
        self.pf = [n, c + 1, 4]
    def pf_stop(self, ret):
        n, c, _ = self.pf
        self.lines.append(f"PF_{n}_{c}:")
        self.lines.append(f"    s_cbranch_execz {ret}")
        self.pf = None
    def __call__(self, s):
        for l in s.split("\n"):
            l = l.strip()
            if not l:
                continue
            if l.endswith(":") or l.startswith("."):
                self.lines.append(l)
            else:
                if self.pf is not None:
                    sz = self.size(l)
                    if self.pf[2] + sz > self.pf_step:
                        self._pad()
                    self.pf[2] += sz
                self.lines.append("    " + l)
    def c(self, s):
        self.lines.append("    ; " + s)
    def label(self, base):
        self.uid += 1
        return f"L_{base}_{self.uid}"
    def text(self):
        return "\n".join(self.lines) + "\n"

def vr(a, n=1):
    return f"v{a}" if n == 1 else f"v[{a}:{a+n-1}]"
def sr(a, n=1):
    return f"s{a}" if n == 1 else f"s[{a}:{a+n-1}]"
def ar(a, n=1):
    return f"a{a}" if n == 1 else f"a[{a}:{a+n-1}]"

def srd(A, d, base, nbytes):
    A(f"s_mov_b32 s{d}, s{base}")
    A(f"s_and_b32 s{d+1}, s{base+1}, 0xffff")
    A(f"s_mov_b32 s{d+2}, {nbytes:#x}")
    A(f"s_mov_b32 s{d+3}, 0x00020000")

def kernel_begin(A, name):
    A(f".globl {name}")
    A(".p2align 8")
    A(f".type {name},@function")
    A(f"{name}:")

def kernel_desc(name, nvgpr, accum, nsgpr=102):
    return f""".p2align 6
.amdhsa_kernel {name}
  .amdhsa_next_free_vgpr {nvgpr}
  .amdhsa_next_free_sgpr {nsgpr}
  .amdhsa_accum_offset {accum}
  .amdhsa_group_segment_fixed_size 0
  .amdhsa_kernarg_size 112
  .amdhsa_user_sgpr_count 2
  .amdhsa_user_sgpr_kernarg_segment_ptr 1
  .amdhsa_system_sgpr_workgroup_id_x 1
.end_amdhsa_kernel
"""
import struct
def f32bits(x):
    return struct.unpack("<I", struct.pack("<f", x))[0]
```

```python
import math, sys
from asmlib import *
from stamp8 import *

NAME = "gated_mix__grouped_kv_mqa__moe_arch_mod__prompt_kernel"
KA_X, KA_WQ, KA_WK, KA_WV, KA_WO, KA_BX, KA_WR, KA_WG, KA_WU, KA_WD, KA_GW, KA_OUT, KA_DBG, KA_WS = [8*i for i in range(14)]
SL = 2592
WS_KV0 = 0x0
WS_KMAX = 0x60000
WS_RKEY = 0x60200
WS_R = 0x61000
WS_G = 0x63000
WS_Y = 0x68000
WS_GC = 0x74000
WS_FC = 0x76000
WS_O = 0x100000
WS_SIZE = 0x1000000
X_BYTES = 2048*640*2
W_BYTES = 640*640*2
F_BYTES = 640*1536*2
QSCALE = (20 ** -0.5) * math.log2(math.e)
LOG2E = math.log2(math.e)
LTHR = f32bits(2.0 ** -30)
OFF_A2, OFF_V0, OFF_V1 = 1024, 1280, 1936
FB = 63*SL
FCNT = FB + 128
YB = FB + 160
XB = 102400
SPIN = 100000
WR = 81920
ER = WR + 5*10240
QX = WR + 7*10240
VR = QX
NS = 7
SIG = 4
DN = 3
PERM = sum(p << (4*i) for i, p in enumerate([0, 4, 5, 9, 3, 7, 2, 6]))
U_TILES = 8
class X:
    noffn = False; st = 0; hprio = 2; cprio = 0; nowo = False; slp = 10; pdiag = False; pfT = True; pfQ = True; tdiag = False; hsl = 0; rothg = False; gprio = True; tprio = True; pad = 0; pre = 0; ost = ''; gsl = 4

def bf16r(A, d, s):
    A(f"v_cvt_pk_bf16_f32 v{d}, v{s}, v{s}")
    A(f"v_and_b32 v{d}, 0xffff0000, v{d}")
def sigmoid(A, d, s, t):
    A(f"v_mul_f32 v{t}, {f32bits(-LOG2E):#x}, v{s}")
    A(f"v_exp_f32 v{t}, v{t}")
    A("s_nop 0")
    A(f"v_add_f32 v{t}, 1.0, v{t}")
    A(f"v_rcp_f32 v{d}, v{t}")
    A("s_nop 0")
def row_max_u32(A, v):
    for sh in (8, 4, 2, 1):
        A("s_nop 1")
        A(f"v_max_u32_dpp v{v}, v{v}, v{v} row_ror:{sh} row_mask:0xf bank_mask:0xf")
def wave_max_u32(A, v, v2, st):
    A(f"v_max_u32 v{v}, v{v}, v{v2}")
    row_max_u32(A, v)
    A("s_nop 1")
    for i in range(4):
        A(f"v_readlane_b32 s{st+i}, v{v}, {16*i}")
    A(f"s_max_u32 s{st}, s{st}, s{st+1}")
    A(f"s_max_u32 s{st+2}, s{st+2}, s{st+3}")
    A(f"s_max_u32 s{st}, s{st}, s{st+2}")

def arrive(A, cnt_off, total, vt):
    L = A.label("arr")
    A(f"v_mov_b32 v{vt}, 1")
    A(f"v_lshlrev_b32 v{vt+1}, 24, v1")
    A(f"buffer_atomic_add v{vt}, v{vt+1}, s[76:79], 0 offen offset:{cnt_off} sc0 sc1")
    A("s_waitcnt vmcnt(0)")
    A(f"v_readfirstlane_b32 s32, v{vt}")
    A(f"v_mov_b32 v{vt}, 1")
    A(f"s_cmp_lg_u32 s32, {total-1}")
    A(f"s_cbranch_scc1 {L}")
    A(f"buffer_store_dword v{vt}, v{vt+1}, s[76:79], 0 offen offset:{128+cnt_off} sc1")
    A(f"{L}:")
def await_go(A, cnt_off, vt, slp):
    L, Ld = A.label("aw"), A.label("awd")
    A(f"v_lshlrev_b32 v{vt+1}, 24, v1")
    A(f"s_mov_b32 s33, {SPIN}")
    A(f"{L}:")
    A(f"buffer_load_dword v{vt}, v{vt+1}, s[76:79], 0 offen offset:{128+cnt_off} sc1")
    A("s_waitcnt vmcnt(0)")
    A(f"v_readfirstlane_b32 s32, v{vt}")
    A("s_sub_u32 s33, s33, 1")
    A(f"s_cbranch_scc1 {Ld}")
    A("s_cmp_lg_u32 s32, 0")
    A(f"s_cbranch_scc1 {Ld}")
    A(f"s_sleep {slp}")
    A(f"s_branch {L}")
    A(f"{Ld}:")

def hst(A, i):
    if X.pdiag: stamp(A, i)
def fused(A):
    kernel_begin(A, NAME)
    L_exit, L_help, L_op = A.label("exit"), A.label("help"), A.label("oproj")
    A("s_cmp_ge_u32 s2, 256")
    A(f"s_cbranch_scc1 {L_exit}")
    stamp_rt(A, 0)
    for i in range(X.pre): A("s_sleep 64")
    A(f"s_load_dwordx4 s[36:39], s[0:1], {KA_X}")
    A(f"s_load_dwordx4 s[40:43], s[0:1], {KA_WK}")
    A(f"s_load_dwordx4 s[48:51], s[0:1], {KA_DBG}")
    A(f"s_load_dwordx2 s[44:45], s[0:1], {KA_WR}")
    A(f"s_load_dwordx4 s[4:7], s[0:1], {KA_GW}")
    A("v_lshrrev_b32 v4, 6, v0")
    A("v_and_b32 v1, 63, v0")
    A("v_readfirstlane_b32 s29, v4")
    A("v_lshlrev_b32 v5, 4, v1")
    A("s_and_b32 s30, s2, 7")
    A("s_lshl_b32 s30, s30, 2")
    A("s_lshr_b32 s28, s2, 6")
    A("s_add_u32 s30, s30, s28")
    A("s_bfe_u32 s31, s2, 0x30003")
    A("s_lshl_b32 s33, s28, 1")
    A("s_sub_u32 s3, s31, s33")
    A("s_and_b32 s3, s3, 7")
    A("s_lshl_b32 s32, s3, 2")
    A(f"s_lshr_b32 s25, {PERM:#x}, s32")
    A("s_and_b32 s25, s25, 15")
    A("s_add_u32 s25, s25, s33")
    A("s_cmp_ge_u32 s25, 10")
    A("s_cselect_b32 s32, 10, 0")
    A("s_sub_u32 s25, s25, s32")
    A("s_cmp_ge_u32 s29, 4")
    A(f"s_cbranch_scc1 {L_help}")

    def common_setup():
        A("s_mov_b32 s10, 0x1000000")
        A("s_mov_b32 s11, 0x00020000")
        A("s_bfe_u32 s24, s2, 0x40003")
        A(f"s_mul_i32 s24, s24, {4*SL}")
        A("s_lshl_b32 s73, s28, 1")
        if X.rothg:
            A("s_add_u32 s73, s73, s31")
            A("s_and_b32 s73, s73, 7")
        A("s_movk_i32 s78, 256")
        A("s_mov_b32 s79, 0x00020000")
    def common_setup2():
        A("s_mov_b32 s8, s50")
        A("s_and_b32 s9, s51, 0xffff")
        A("s_mov_b32 s76, s48")
        A("s_and_b32 s77, s49, 0xffff")
    PM, PT, PX, PTK, PO0, PO1, PPR, PY, PPW, POA, POB = range(160, 171)
    def oproj_addr():
        A("v_and_b32 v2, 15, v0")
        A("v_lshrrev_b32 v3, 4, v1")
        A("s_and_b32 s27, s29, 3")
        A("s_lshr_b32 s28, s29, 2")
        A("v_add_u32 v6, s73, v3")
        A("v_and_b32 v6, 7, v6")
        A("v_lshlrev_b32 v7, 4, v2")
        A(f"v_lshl_add_u32 v{PO0}, v6, 8, v7")
        A(f"v_xor_b32 v{PO1}, 0x400, v{PO0}")
        A("v_lshrrev_b32 v7, 2, v2")
        A("v_and_b32 v8, 3, v2")
        A("v_lshrrev_b32 v9, 1, v3")
        A("v_mul_u32_u24 v9, 20, v9")
        A("v_and_b32 v6, 1, v3")
        A("v_lshl_add_u32 v9, v6, 2, v9")
        A("v_add_u32 v9, v9, v7")
        A("v_mul_u32_u24 v9, 160, v9")
        A("v_lshl_add_u32 v9, v8, 3, v9")
        A("s_xor_b32 s32, s28, 1")
        A("s_mul_i32 s32, s32, 51200")
        A(f"v_add_u32 v{PM}, s32, v9")
        A("v_mul_u32_u24 v9, 40, v3")
        A("v_add3_u32 v9, v9, v7, 16")
        A("v_mul_u32_u24 v9, 160, v9")
        A("v_lshl_add_u32 v9, v8, 3, v9")
        A(f"v_add_u32 v{PT}, s32, v9")
        A("v_mul_u32_u24 v6, 26, v1")
        A("v_lshrrev_b32 v6, 8, v6")
        A("v_mul_u32_u24 v7, 10, v6")
        A("v_sub_u32 v7, v1, v7")
        A("s_lshl_b32 s32, s30, 6")
        A("s_lshl_b32 s33, s29, 3")
        A("s_add_u32 s52, s32, s33")
        A(f"v_add_u32 v{PTK}, s52, v6")
        A(f"v_mul_u32_u24 v8, 1280, v{PTK}")
        A("v_lshl_add_u32 v8, v7, 4, v8")
        A("s_mul_i32 s54, s31, 160")
        A("v_add_u32 v8, s54, v8")
        A("v_cmp_gt_u32 vcc, 40, v1")
        A("v_mov_b32 v9, 0x40000000")
        A(f"v_cndmask_b32 v{PX}, v9, v8, vcc")
        A("v_add_u32 v6, s33, v6")
        A("v_mul_u32_u24 v6, 336, v6")
        A("v_lshl_add_u32 v6, v7, 5, v6")
        A(f"v_add_u32 v{PPR}, {XB}, v6")
        A("v_lshlrev_b32 v7, 5, v7")
        A(f"v_add_u32 v{PY}, {YB}, v7")
        A("s_lshl_b32 s32, s27, 4")
        A("v_add_u32 v6, s32, v2")
        A("v_mul_u32_u24 v6, 336, v6")
        A("v_lshl_add_u32 v6, v3, 4, v6")
        A("s_mul_i32 s32, s28, 21504")
        A(f"s_add_u32 s32, s32, {XB}")
        A(f"v_add_u32 v{PPW}, s32, v6")
    def oproj_saddr():
        A("s_lshl_b32 s33, s30, 2")
        A("s_add_u32 s33, s33, s27")
        A("s_mul_i32 s68, s33, 20480")
        A(f"s_add_u32 s68, s68, {WS_O}")
        A("s_lshl_b32 s33, s28, 11")
        A("s_add_u32 s70, s68, s33")
        A("s_add_u32 s70, s70, 16384")
        A("s_lshl_b32 s33, s28, 13")
        A("s_add_u32 s68, s68, s33")
        for p in range(8):
            A(f"s_add_u32 s32, s73, {p}")
            A("s_and_b32 s32, s32, 7")
            A(f"s_lshl_b32 s{12+p}, s32, 10")
            A(f"s_add_u32 s{12+p}, s{12+p}, s68")
        A("s_movk_i32 s55, 5120")
        A(f"s_mov_b32 s22, {X_BYTES}")
        A("s_mov_b32 s23, 0x00020000")

    def o_addr():
        A("s_lshl_b32 s47, s31, 2")
        A("s_add_u32 s47, s47, s27")
        A("v_bfe_u32 v6, v1, 4, 1")
        A("v_mul_u32_u24 v6, 20480, v6")
        A("v_lshl_add_u32 v6, v2, 4, v6")
        A("v_lshrrev_b32 v7, 5, v1")
        A(f"v_lshl_add_u32 v{POA}, v7, 8, v6")
        A(f"v_lshl_or_b32 v{POB}, v7, 30, v6")
        A("s_mul_i32 s32, s30, 81920")
        A(f"s_add_u32 s32, s32, {WS_O}")
        A("s_lshl_b32 s74, s47, 9")
        A("s_add_u32 s74, s74, s32")
        A("s_lshr_b32 s75, s47, 1")
        A("s_lshl_b32 s75, s75, 8")
        A("s_and_b32 s33, s47, 1")
        A("s_lshl_b32 s33, s33, 3")
        A("s_add_u32 s75, s75, s33")
        A("s_add_u32 s75, s75, s32")
        A("s_add_u32 s75, s75, 16384")
        A("s_add_u32 s58, s74, 40960")
        A("s_add_u32 s59, s75, 40960")

    A("s_mov_b32 s72, 0")
    common_setup()
    oproj_addr()
    oproj_saddr()
    VACC = 32; VE = 52; H = [64, 84]; XF = [104, 108]
    VB1, VB2, VXA0, VXA1 = 14, 15, 16, 17
    A("v_lshrrev_b32 v6, 2, v2")
    A("v_and_b32 v7, 3, v2")
    A("v_lshl_add_u32 v6, v3, 3, v6")
    A("v_and_b32 v8, 1, v3")
    A("v_lshlrev_b32 v8, 2, v8")
    A("v_add_u32 v9, v6, v8")
    A("v_mul_u32_u24 v9, 160, v9")
    A("v_lshl_add_u32 v9, v7, 3, v9")
    A(f"v_add_u32 v{VB1}, {WR}, v9")
    A("v_xor_b32 v8, 4, v8")
    A("v_add_u32 v9, v6, v8")
    A("v_mul_u32_u24 v9, 160, v9")
    A("v_lshl_add_u32 v9, v7, 3, v9")
    A(f"v_add_u32 v{VB2}, {WR}, v9")
    A("v_mul_u32_u24 v9, 40, v6")
    A(f"v_add_u32 v9, {ER}, v9")
    A("v_lshl_add_u32 v18, v7, 3, v9")
    A("v_add_u32 v19, 32, v9")
    A("v_lshrrev_b32 v6, 1, v2")
    A("v_xor_b32 v6, v6, v3")
    A("v_lshlrev_b32 v6, 4, v6")
    A("v_lshl_add_u32 v6, v2, 7, v6")
    A("s_lshl_b32 s32, s29, 11")
    A("v_add_u32 v10, s32, v6")
    A("v_xor_b32 v11, 64, v10")
    A(f"v_mov_b32 v{VXA0}, v10")
    A(f"v_mov_b32 v{VXA1}, v11")
    for i in range(VACC, VE + 8):
        A(f"v_mov_b32 v{i}, 0")
    A("s_lshr_b32 s32, s29, 1")
    A("s_mul_i32 s32, s32, 5120")
    A("s_and_b32 s33, s29, 1")
    A("s_lshl_b32 s33, s33, 7")
    A("s_add_u32 s32, s32, s33")
    A(f"s_add_u32 s32, s32, {QX}")
    A("v_lshlrev_b32 v6, 3, v2")
    A("v_lshl_add_u32 v6, v3, 8, v6")
    A("v_add_u32 v13, s32, v6")
    o_addr()
    A("s_waitcnt lgkmcnt(0)")
    common_setup2()
    A("s_mov_b32 s4, s36")
    A("s_mov_b32 s5, s37")
    A("v_lshlrev_b32 v24, 24, v1")
    A("s_lshl_b32 s32, s30, 6")
    A("s_lshl_b32 s33, s29, 4")
    A("s_add_u32 s50, s32, s33")
    if X.pfQ:
        A("s_cmp_lg_u32 s29, 3")
        A("s_cbranch_scc1 PFRET_Q")
        A("s_mov_b64 exec, 0")
        A("s_branch PF_Q_0")
        A("PFRET_Q:")
        A("s_mov_b64 exec, -1")
    stamp(A, 1)
    L_main, L_rg, L_ev, L_ej = A.label("main"), A.label("rg"), A.label("ev"), A.label("ej")
    A("s_cmp_gt_u32 s3, 2")
    A(f"s_cbranch_scc1 {L_main}")
    A("s_cmp_eq_u32 s3, 2")
    A(f"s_cbranch_scc1 {L_rg}")
    EW = 64; EX = 112
    A("s_mov_b32 s46, 0")
    def erd(s):
        A(f"ds_read_b128 {vr(EX+4*s,4)}, v{10 + (s & 1)} offset:{(s >> 1)*8192}")
        for t in range(2):
            slot = EW + 8*s + 4*t
            A(f"ds_read_b64_tr_b16 {vr(slot,2)}, v{18+t} offset:{s*1280}")
            A(f"ds_read_b64_tr_b16 {vr(slot+2,2)}, v{18+t} offset:{s*1280+160}")
    def eloop(swap):
        L = A.label("el")
        A(f"{L}:")
        for s in range(4):
            if s == 2:
                A("s_add_u32 s46, s46, 1")
                A("v_add_u32 v10, 16384, v10")
                A("v_add_u32 v11, 16384, v11")
                A("v_add_u32 v18, 5120, v18")
                A("v_add_u32 v19, 5120, v19")
                A("s_cmp_lt_u32 s46, 5")
                A("s_barrier")
            erd((s + 2) % 4)
            A("s_waitcnt lgkmcnt(10)")
            for t in range(2):
                w, x = vr(EW+8*s+4*t,4), vr(EX+4*s,4)
                A(f"v_mfma_f32_16x16x32_bf16 {vr(VE+4*t,4)}, {x if swap else w}, {w if swap else x}, {vr(VE+4*t,4)}")
        A(f"s_cbranch_scc1 {L}")
    A("s_barrier")
    erd(0); erd(1)
    A("s_cmp_eq_u32 s3, 1")
    A(f"s_cbranch_scc1 {L_ev}")
    eloop(False)
    A(f"s_branch {L_ej}")
    A(f"{L_ev}:")
    eloop(True)
    A(f"{L_ej}:")
    stamp(A, 2)
    A("s_lshl_b32 s32, s30, 1")
    A("s_lshr_b32 s33, s29, 1")
    A("s_add_u32 s51, s32, s33")
    A("s_and_b32 s53, s29, 1")
    A("v_lshrrev_b32 v6, 1, v3")
    A("v_and_b32 v7, 1, v3")
    A("s_nop 1")
    for t in range(2):
        a = VE + 4*t
        A(f"v_cvt_pk_bf16_f32 v{a}, v{a}, v{a+1}")
        A(f"v_cvt_pk_bf16_f32 v{a+1}, v{a+2}, v{a+3}")
    L_sv, L_fin, L_sig = A.label("sv"), A.label("fin"), A.label("sig")
    A("s_cmp_eq_u32 s3, 1")
    A(f"s_cbranch_scc1 {L_sv}")
    A(f"s_mov_b32 s60, {64*SL}")
    A("s_add_u32 s51, s51, 62")
    A("s_and_b32 s51, s51, 63")
    A(f"s_cselect_b32 s34, 0x40000000, s60")
    A(f"s_mul_i32 s51, s51, {SL}")
    A("s_lshl_b32 s33, s53, 4")
    A("v_add_u32 v8, s33, v2")
    A("v_lshl_add_u32 v6, v6, 5, v8")
    A("v_lshlrev_b32 v6, 4, v6")
    A("v_lshl_add_u32 v6, v7, 3, v6")
    A(f"buffer_store_dwordx2 {vr(VE,2)}, v6, s[8:11], s51 offen sc1")
    A(f"buffer_store_dwordx2 {vr(VE,2)}, v6, s[8:11], s34 offen sc1")
    A("v_cmp_eq_u32 vcc, 0, v3")
    A("v_lshlrev_b32 v6, 3, v8")
    A("v_lshl_or_b32 v6, v3, 28, v6")
    A(f"buffer_store_dwordx2 {vr(VE+4,2)}, v6, s[8:11], s51 offen offset:{OFF_A2} sc1")
    A(f"v_cndmask_b32 v8, 0, v{VE+4}, vcc")
    A(f"v_cndmask_b32 v9, 0, v{VE+5}, vcc")
    A("v_mov_b32 v7, 0")
    for r in (VE, VE+1, 8, 9):
        A(f"v_dot2c_f32_bf16 v7, v{r}, v{r}")
    A("s_nop 2")
    A("v_mov_b32 v6, v7")
    A("s_nop 1")
    A("v_permlane32_swap_b32 v6, v7")
    A("s_nop 1")
    A("v_add_f32 v7, v6, v7")
    A("v_mov_b32 v6, v7")
    A("s_nop 1")
    A("v_permlane16_swap_b32 v6, v7")
    A("s_nop 1")
    A("v_add_f32 v7, v6, v7")
    A(f"s_mov_b32 s34, {WS_KMAX}")
    A(f"s_branch {L_fin}")
    A(f"{L_sv}:")
    A("s_add_u32 s51, s51, 63")
    A("s_and_b32 s51, s51, 63")
    A(f"s_mul_i32 s51, s51, {SL}")
    A("s_mul_i32 s33, s53, 656")
    A("s_add_u32 s51, s51, s33")
    A("v_mul_u32_u24 v6, 20, v6")
    A("v_add_u32 v6, v6, v2")
    A("v_lshlrev_b32 v6, 4, v6")
    A("v_lshl_add_u32 v6, v7, 3, v6")
    A(f"buffer_store_dwordx2 {vr(VE,2)}, v6, s[8:11], s51 offen offset:{OFF_V0} sc1")
    A("v_cmp_eq_u32 vcc, 4, v2")
    A("v_mov_b32 v8, 0x3f803f80")
    A(f"v_cndmask_b32 v{VE+4}, v{VE+4}, v8, vcc")
    A(f"v_cndmask_b32 v{VE+5}, v{VE+5}, v8, vcc")
    A("v_lshrrev_b32 v8, 1, v3")
    A("v_add_u32 v8, 4, v8")
    A("v_cmp_gt_u32 vcc, v8, v2")
    A("v_mov_b32 v8, 0x40000000")
    A("v_cndmask_b32 v6, v8, v6, vcc")
    A(f"buffer_store_dwordx2 {vr(VE+4,2)}, v6, s[8:11], s51 offen offset:{OFF_V0+256} sc1")
    A(f"s_branch {L_main}")
    A(f"{L_rg}:")
    A("v_and_b32 v6, 1, v2")
    A("v_mul_u32_u24 v6, 1280, v6")
    A("v_lshl_add_u32 v18, v3, 4, v6")
    A(f"v_add_u32 v18, {VR}, v18")
    A(f"s_branch {L_main}")
    def fin_key():
        row_max_u32(A, 7)
        A("s_lshr_b32 s33, s50, 2")
        A("s_add_u32 s33, s33, s34")
        A("v_lshlrev_b32 v6, 24, v1")
        A("buffer_store_dword v7, v6, s[8:11], s33 offen sc1")
    A(f"{L_fin}:")
    fin_key()
    A(f"{L_main}:")
    stamp(A, 3)
    def wrd1(hh, mt):
        A(f"ds_read_b64_tr_b16 {vr(H[hh]+4*mt,2)}, v{VB1} offset:{hh*5120 + mt*32}")
        A(f"ds_read_b64_tr_b16 {vr(H[hh]+4*mt+2,2)}, v{VB2} offset:{hh*5120 + mt*32}")
    def half(hh):
        A(f"ds_read_b128 {vr(XF[hh^1],4)}, v{VXA1 if hh == 0 else VXA0}")
        for mt in range(5):
            wrd1(hh ^ 1, mt)
            A("s_waitcnt lgkmcnt(11)")
            A(f"v_mfma_f32_16x16x32_bf16 {vr(VACC+4*mt,4)}, {vr(H[hh]+4*mt,4)}, {vr(XF[hh],4)}, {vr(VACC+4*mt,4)}")
    A("s_mov_b32 s46, 0")
    A(f"s_mov_b32 s34, {-(NS-1)*10240}")
    A("s_lshl_b32 s32, s25, 7")
    A("v_add_u32 v6, s32, v18")
    A("s_waitcnt lgkmcnt(0)")
    A("s_barrier")
    A(f"ds_read_b128 {vr(112,4)}, v6")
    A(f"ds_read_b128 {vr(116,4)}, v6 offset:64")
    A(f"ds_read_b128 {vr(XF[0],4)}, v{VXA0}")
    for mt in range(5):
        wrd1(0, mt)
    L_aw, L_awr = A.label("aw"), A.label("awr")
    def qloop(rg):
        L_c = A.label("c")
        A(f"{L_c}:")
        A("s_add_u32 s46, s46, 1")
        A(f"s_cmp_eq_u32 s46, {NS}")
        A("s_cselect_b32 s32, s34, 10240")
        half(0)
        A(f"v_add_u32 v{VB1}, s32, v{VB1}")
        A(f"v_add_u32 v{VB2}, s32, v{VB2}")
        A(f"v_add_u32 v{VXA0}, 8192, v{VXA0}")
        A(f"v_add_u32 v{VXA1}, 8192, v{VXA1}")
        if rg:
            A("s_add_u32 s25, s25, 1")
            A("s_cmp_eq_u32 s25, 10")
            A("s_cselect_b32 s25, 0, s25")
            A("s_lshl_b32 s32, s25, 7")
            A("v_add_u32 v6, s32, v18")
            A("s_waitcnt lgkmcnt(10)")
            for s_ in range(2):
                A(f"v_mfma_f32_16x16x32_bf16 {vr(VE,4)}, {vr(112+4*s_,4)}, {vr(XF[s_],4)}, {vr(VE,4)}")
            A(f"ds_read_b128 {vr(112,4)}, v6")
            A(f"ds_read_b128 {vr(116,4)}, v6 offset:64")
        if not rg:
            A(f"s_cmp_eq_u32 s46, {SIG}")
            A(f"s_cbranch_scc1 {L_aw}")
            A(f"{L_awr}:")
        A("s_cmp_lt_u32 s46, 10")
        A("s_barrier")
        half(1)
        A(f"s_cbranch_scc1 {L_c}")
    L_rgl, L_rgr = A.label("rgl"), A.label("rgr")
    A("s_cmp_eq_u32 s3, 2")
    A(f"s_cbranch_scc1 {L_rgl}")
    qloop(False)
    A(f"{L_rgr}:")
    stamp(A, 4)
    if X.pfQ: A.pf_start("Q")
    QB1 = [8, 16]; QS = [12, 14]
    VIDX = 4
    VKA, VA2, VVA = 20, 21, 22
    S = [32, 64]
    O = [96, 112]
    KA1 = [128, 136]; KA2 = [132, 140]
    V0 = [144, 152]; V1 = [148, 156]
    A(f"s_mov_b32 s33, {f32bits(QSCALE):#x}")
    A("v_and_b32 v2, 31, v0")
    A("v_lshrrev_b32 v3, 5, v1")
    A("v_cmp_eq_u32 s[44:45], 1, v3")
    A("v_lshlrev_b32 v6, 3, v2")
    A("s_waitcnt lgkmcnt(0)")
    A(f"v_mov_b32 v24, {OFF_V0 + 640 - OFF_A2}")
    A("s_barrier")
    for mt in range(5):
        a = VACC + 4*mt
        for i in range(4):
            A(f"v_mul_f32 v{a+i}, s33, v{a+i}")
        A(f"v_cvt_pk_bf16_f32 v{a}, v{a}, v{a+1}")
        A(f"v_cvt_pk_bf16_f32 v{a+1}, v{a+2}, v{a+3}")
        A(f"ds_write_b64 v13, {vr(a,2)} offset:{mt*1024}")
    A(f"v_cndmask_b32 v{VA2}, v6, v24, s[44:45]")
    A("s_mul_i32 s32, s29, 1280")
    A(f"s_add_u32 s32, s32, {QX}")
    A("v_add_u32 v7, s32, v6")
    A("v_lshl_add_u32 v6, v3, 9, v7")
    A("v_mul_u32_u24 v23, 20, v3")
    A("v_add_u32 v23, v23, v2")
    A("v_cmp_gt_u32 vcc, 20, v2")
    A("v_lshlrev_b32 v26, 3, v1")
    A("v_cndmask_b32 v23, 40, v23, vcc")
    A("v_lshlrev_b32 v23, 4, v23")
    A(f"s_mov_b32 s36, {WS_KMAX}")
    A(f"s_sub_u32 s37, s24, {2*SL}")
    A(f"s_cselect_b32 s37, {62*SL}, s37")
    A(f"s_add_u32 s38, s37, {SL}")
    A("s_waitcnt lgkmcnt(0)")
    A("s_barrier")
    stamp(A, 5)
    A("buffer_load_dwordx2 v[24:25], v26, s[8:11], s36 offen sc1")
    A(f"buffer_load_dwordx4 {vr(KA1[0],4)}, v5, s[8:11], s37 offen sc1")
    A(f"buffer_load_dwordx2 {vr(KA2[0],2)}, v{VA2}, s[8:11], s37 offen offset:{OFF_A2} sc1")
    A(f"buffer_load_dwordx4 {vr(KA1[1],4)}, v5, s[8:11], s38 offen sc1")
    A(f"buffer_load_dwordx2 {vr(KA2[1],2)}, v{VA2}, s[8:11], s38 offen offset:{OFF_A2} sc1")
    A(f"buffer_load_dwordx4 {vr(V0[0],4)}, v23, s[8:11], s38 offen offset:{OFF_V0} sc1")
    A(f"buffer_load_dwordx4 {vr(V1[0],4)}, v23, s[8:11], s38 offen offset:{OFF_V1} sc1")
    A(f"ds_read2_b64 {vr(QB1[0],4)}, v6 offset0:0 offset1:32")
    A(f"ds_read_b64 {vr(QS[0],2)}, v7 offset:1024")
    A("v_add_u32 v6, 5120, v6")
    A(f"ds_read2_b64 {vr(QB1[1],4)}, v6 offset0:0 offset1:32")
    A(f"ds_read_b64 {vr(QS[1],2)}, v7 offset:{1024+5120}")
    A(f"v_mov_b32 v{VKA}, v5")
    A("v_cmp_lt_u32 vcc, 20, v2")
    A("v_mov_b32 v6, 0x40000")
    A(f"v_cndmask_b32 v{VVA}, v23, v6, vcc")
    A(f"v_mov_b32 v{VIDX}, 0xdddd")
    for r in range(O[0], O[0] + 32):
        A(f"v_mov_b32 v{r}, 0")
    for r in range(S[1] + 24, S[1] + 32):
        A(f"v_mov_b32 v{r}, 0")
    for r in range(V1[1], V1[1] + 4):
        A(f"v_mov_b32 v{r}, 0")
    A("v_mov_b32 v26, 0")
    A("v_mov_b32 v28, 0")
    A(f"v_mov_b32 v30, {FCNT}")
    A("v_mov_b32 v31, 1")
    A("s_waitcnt lgkmcnt(0)")
    for b in range(2):
        for r in range(2):
            A(f"v_cndmask_b32 v{QS[b]+r}, v{QS[b]+r}, 0, s[44:45]")
    for r in range(4):
        A(f"v_dot2c_f32_bf16 v26, v{QB1[0]+r}, v{QB1[0]+r}")
        A(f"v_dot2c_f32_bf16 v28, v{QB1[1]+r}, v{QB1[1]+r}")
    for r in range(2):
        A(f"v_dot2c_f32_bf16 v26, v{QS[0]+r}, v{QS[0]+r}")
        A(f"v_dot2c_f32_bf16 v28, v{QS[1]+r}, v{QS[1]+r}")
    A("s_nop 2")
    A("v_mov_b32 v27, v26")
    A("v_mov_b32 v29, v28")
    A("s_nop 1")
    A("v_permlane32_swap_b32 v26, v27")
    A("v_permlane32_swap_b32 v28, v29")
    A("s_nop 1")
    A("v_add_f32 v26, v26, v27")
    A("v_add_f32 v28, v28, v29")
    A("s_waitcnt vmcnt(6)")
    wave_max_u32(A, 24, 25, 34)
    A("v_mul_f32 v26, s34, v26")
    A("v_mul_f32 v28, s34, v28")
    A("v_sqrt_f32 v26, v26")
    A("v_sqrt_f32 v28, v28")
    A("s_nop 0")
    A(f"v_mul_f32 v26, {f32bits(-(1.0 + 2.0**-6)):#x}, v26")
    A(f"v_mul_f32 v28, {f32bits(-(1.0 + 2.0**-6)):#x}, v28")
    A("v_lshrrev_b32 v26, 16, v26")
    A("v_lshrrev_b32 v28, 16, v28")
    A(f"v_cndmask_b32 v{QS[0]}, v{QS[0]}, v26, s[44:45]")
    A(f"v_cndmask_b32 v{QS[1]}, v{QS[1]}, v28, s[44:45]")
    def qs2(buf, par, b):
        A(f"v_mfma_f32_32x32x8_bf16 {vr(S[buf]+16*b,16)}, {vr(KA2[par],2)}, {vr(QS[b],2)}, 0")
    def qk1(buf, par, b):
        A(f"v_mfma_f32_32x32x16_bf16 {vr(S[buf]+16*b,16)}, {vr(KA1[par],4)}, {vr(QB1[b],4)}, {vr(S[buf]+16*b,16)}")
    def pv(buf, b, half, vpar):
        vv = V0[vpar] if half == 0 else V1[vpar]
        A(f"v_smfmac_f32_32x32x32_bf16 {vr(O[b],16)}, {vr(vv,4)}, {vr(S[buf]+16*b+8*half,8)}, v{VIDX}")
    A("s_waitcnt vmcnt(4)")
    qs2(0, 0, 0); qk1(0, 0, 0); qs2(0, 0, 1); qk1(0, 0, 1)
    A("s_mov_b32 s46, 0")
    A("s_waitcnt vmcnt(0)")
    A("s_barrier")
    if X.cprio: A(f"s_setprio {X.cprio}")
    stamp(A, 6)
    if X.pfQ: A.pf_stop("PFRET_Q")
    A("s_nop 7")
    L_loop, L_sp, L_kr = A.label("loop"), A.label("sp"), A.label("kr")
    A(f"{L_loop}:")
    sched = {2: 'pv1p', 6: 's2a', 10: 'q1a', 14: 'pv0a', 18: 'pv1a', 22: 's2b', 26: 'q1b', 30: 'pv0b'}
    for t in range(U_TILES):
        par = t & 1
        off = t * SL
        for e in range(32):
            op = sched.get(e)
            if op == 'pv1p':
                pv(par ^ 1, 1, 1, par ^ 1)
                A("s_waitcnt lgkmcnt(0)")
                A(f"ds_read_b128 {vr(V0[par^1],4)}, v{VVA} offset:{off+OFF_V0}")
                A(f"ds_read_b128 {vr(V1[par^1],4)}, v{VVA} offset:{off+OFF_V1}")
            if op == 's2a': qs2(par ^ 1, par ^ 1, 0)
            if op == 's2b': qs2(par ^ 1, par ^ 1, 1)
            if op == 'pv0a':
                pv(par, 0, 0, par)
                A(f"ds_read_b128 {vr(KA1[par],4)}, v{VKA} offset:{off}")
                A(f"ds_read_b64 {vr(KA2[par],2)}, v{VA2} offset:{off+OFF_A2}")
            if op == 'q1a': qk1(par ^ 1, par ^ 1, 0)
            if op == 'pv1a': pv(par, 0, 1, par)
            if op == 'q1b': qk1(par ^ 1, par ^ 1, 1)
            if op in ('q1a', 'q1b') and X.pad: A(f"s_nop {X.pad - 1}")
            if op == 'pv0b':
                pv(par, 1, 0, par)
                if t == U_TILES - 1:
                    A("s_add_u32 s46, s46, 1")
                    A("s_bitcmp1_b32 0x12e, s46")
                    A(f"v_add_u32 v{VKA}, {U_TILES*SL}, v{VKA}")
                    A(f"v_add_u32 v{VA2}, {U_TILES*SL}, v{VA2}")
                    A(f"v_add_u32 v{VVA}, {U_TILES*SL}, v{VVA}")
            A(f"v_exp_f32 v{S[par]+e}, v{S[par]+e}")
    A(f"s_cbranch_scc0 {L_loop}")
    A("s_cmp_gt_u32 s46, 1")
    A(f"s_cbranch_scc1 {L_sp}")
    A("s_barrier")
    A(f"s_branch {L_loop}")
    A(f"{L_kr}:")
    A("ds_read_b32 v24, v30 offset:16")
    A("s_waitcnt lgkmcnt(0)")
    A("v_readfirstlane_b32 s32, v24")
    A("s_cmp_lt_u32 s32, 256")
    A(f"s_cbranch_scc1 {L_kr}")
    A(f"s_branch {L_loop}")
    A(f"{L_sp}:")
    A("s_cmp_eq_u32 s46, 2")
    A(f"s_cbranch_scc1 {L_kr}")
    A("s_waitcnt lgkmcnt(0)")
    A("ds_add_u32 v30, v31 offset:4")
    A("s_cmp_lt_u32 s46, 8")
    A(f"s_cbranch_scc1 {L_loop}")
    if not X.pdiag: stamp(A, 7)
    if X.pfT: A.pf_start("T")
    pv(1, 1, 1, 1)
    A(f"v_mov_b32 v26, {LTHR:#x}")
    A("s_nop 1")
    L_fb, L_norm = A.label("fb"), A.label("norm")
    A(f"v_rcp_f32 v28, v{O[0]+8}")
    A("s_nop 0")
    A("v_mov_b32 v29, v28")
    A("s_nop 1")
    A("v_permlane32_swap_b32 v28, v29")
    A("s_nop 3")
    A(f"v_min_f32 v27, v{O[0]+8}, v{O[1]+8}")
    A(f"v_cmp_nge_f32 vcc, v27, v26")
    A(f"v_cmp_u_f32 s[36:37], v{O[0]+8}, v{O[1]+8}")
    A("s_or_b64 vcc, vcc, s[36:37]")
    A("s_and_b64 vcc, vcc, s[44:45]")
    A(f"s_cbranch_vccnz {L_fb}")
    A(f"{L_norm}:")
    A(f"v_rcp_f32 v26, v{O[1]+8}")
    for r in range(12):
        A(f"v_mul_f32 v{O[0]+r}, v{O[0]+r}, v29")
    A("v_mov_b32 v27, v26")
    for r in range(6):
        A(f"v_cvt_pk_bf16_f32 v{S[0]+r}, v{O[0]+2*r}, v{O[0]+2*r+1}")
    A("v_permlane32_swap_b32 v26, v27")
    A(f"buffer_store_dwordx4 {vr(S[0],4)}, v{POA}, s[8:11], s74 offen sc1")
    A(f"buffer_store_dwordx2 {vr(S[0]+4,2)}, v{POB}, s[8:11], s75 offen sc1")
    for r in range(12):
        A(f"v_mul_f32 v{O[1]+r}, v{O[1]+r}, v27")
    for r in range(6):
        A(f"v_cvt_pk_bf16_f32 v{S[0]+8+r}, v{O[1]+2*r}, v{O[1]+2*r+1}")
    A(f"buffer_store_dwordx4 {vr(S[0]+8,4)}, v{POA}, s[8:11], s58 offen sc1")
    A(f"buffer_store_dwordx2 {vr(S[0]+12,2)}, v{POB}, s[8:11], s59 offen sc1")
    ACC = 8; OF = 56
    WFS = list(range(96, 160, 4)) + list(range(176, 256, 4))
    NPRE = 7
    XV = 28; G = 48
    TT = list(range(36, 48)) + list(range(52, 56))
    def wslot(s, mt):
        return WFS[5*(s % NPRE) + mt]
    def wrd(s, mt):
        slot = wslot(s, mt)
        if s < 8:
            b, off, o2 = PM, s * 6400 + mt * 32, 1280
        else:
            b, off, o2 = PT, (s - 8) * 25600 + mt * 32, 3200
        A(f"ds_read_b64_tr_b16 {vr(slot,2)}, v{b} offset:{off}")
        A(f"ds_read_b64_tr_b16 {vr(slot+2,2)}, v{b} offset:{off+o2}")
    def gx_loads(xv):
        A("s_mov_b32 s20, s4")
        A("s_and_b32 s21, s5, 0xffff")
        A(f"v_lshlrev_b32 v6, 2, v{PTK}")
        A(f"s_mov_b32 s32, {WS_G}")
        A(f"buffer_load_dword v{G}, v6, s[8:11], s32 offen sc1")
        A(f"buffer_load_dword v{G+1}, v6, s[8:11], s32 offen offset:16 sc1")
        A(f"buffer_load_dwordx4 {vr(xv,4)}, v{PX}, s[20:23], 0 offen")
        A(f"buffer_load_dwordx4 {vr(xv+4,4)}, v{PX}, s[20:23], s55 offen")
        A(f"s_mov_b32 s46, {SPIN}")
        A("s_mov_b32 s71, -1")
        A("s_mov_b32 s47, 0")
    def gate_math():
        for j in range(2):
            bf16r(A, G+j, G+j)
            sigmoid(A, G+j, G+j, G+2)
            bf16r(A, G+j, G+j)
        for j in range(2):
            A(f"v_sub_f32 v{G+2+j}, 1.0, v{G+j}")
            bf16r(A, G+2+j, G+2+j)
        for i in range(8):
            A(f"v_lshlrev_b32 v{TT[2*i]}, 16, v{XV+i}")
            A(f"v_and_b32 v{TT[2*i+1]}, 0xffff0000, v{XV+i}")
        A("s_mov_b32 s20, s6")
        A("s_and_b32 s21, s7, 0xffff")
    RL = [A.label("rl") for _ in range(10)]
    RC = [A.label("rc") for _ in range(10)]
    RT = [A.label("rt") for _ in range(10)]
    L_disp, L_h2, L_h3, L_ng2 = A.label("disp"), A.label("h2"), A.label("h3"), A.label("ng2")
    A("s_barrier")
    A(f"{L_op}:")
    for s in range(NPRE):
        for mt in range(5):
            wrd(s, mt)
    gx_loads(XV)
    A("s_cmp_lg_u32 s72, 0")
    A(f"s_cbranch_scc1 {L_h2}")
    A("s_waitcnt vmcnt(4)")
    A("s_barrier")
    L_rl, L_mm, L_rt, L_sel, L_nosel = A.label("rl"), A.label("mm"), A.label("rt"), A.label("sel"), A.label("nosel")
    A("s_waitcnt vmcnt(0)")
    gate_math()
    A(f"{L_h3}:")
    A(f"v_mov_b32 v6, {FCNT}")
    A("ds_read_b32 v6, v6 offset:12")
    A("s_waitcnt lgkmcnt(0)")
    A("v_readfirstlane_b32 s56, v6")
    A("s_lshr_b32 s33, s52, 3")
    A("s_lshr_b32 s32, s56, 3")
    A("s_cmp_eq_u32 s32, s33")
    A(f"s_cbranch_scc1 {L_sel}")
    A(f"{L_nosel}:")
    for i in range(0, 16, 2):
        A(f"v_pk_mul_f32 {vr(TT[i],2)}, {vr(TT[i],2)}, {vr(G+2,2)} " + ("op_sel:[0,0] op_sel_hi:[1,0]" if i < 8 else "op_sel:[0,1] op_sel_hi:[1,1]"))
    A("s_cmp_eq_u32 s72, 0")
    A(f"s_cbranch_scc1 {L_rl}")
    A("s_barrier")
    A(f"{L_rl}:")
    if not X.pdiag: stamp(A, 8)
    for s in range(10):
        if s < 8:
            A(f"buffer_load_dwordx4 {vr(OF+4*s,4)}, v5, s[8:11], s{12+s} offen sc1")
        else:
            A(f"buffer_load_dwordx4 {vr(OF+4*s,4)}, v{PO0+s-8}, s[8:11], s70 offen sc1")
    A(f"{L_mm}:")
    if X.tdiag: stamp(A, 1)
    A("v_mov_b32 v6, 0")
    for s in range(10):
        A(f"s_waitcnt vmcnt({9-s})" + (" lgkmcnt(0)" if s in (0, NPRE) else ""))
        if X.tdiag and s in (0, 4, 9): stamp(A, {0: 2, 4: 3, 9: 4}[s])
        o = OF + 4*s
        for mt in range(5):
            A(f"v_mfma_f32_16x16x32_bf16 {vr(ACC+4*mt,4)}, {vr(wslot(s,mt),4)}, {vr(OF+4*s,4)}, {vr(ACC+4*mt,4) if s else 0}")
            if mt < 2: A(f"v_max3_u32 v6, v{o+2*mt}, v{o+2*mt+1}, v6")
            if s + NPRE < 10 and mt > 0: wrd(s + NPRE, mt - 1)
        if s + NPRE < 10: wrd(s + NPRE, 4)
    A("v_cmp_eq_u32 vcc, s71, v6")
    A(f"s_cbranch_vccnz {L_rt}")
    A("s_nop 1")
    for mt in range(5):
        A(f"ds_write_b128 v{PPW}, {vr(ACC+4*mt,4)} offset:{mt*64}")
        if mt == 0: A("s_nop 3")
    A("s_waitcnt lgkmcnt(0)")
    if not X.pdiag: stamp(A, 9)
    A("s_barrier")
    if X.tdiag:
        stamp(A, 5)
        A("s_waitcnt lgkmcnt(0)")
        A(f"s_mov_b32 s{SB+12}, s46")
        A(f"s_mov_b32 s{SB+13}, 0")
    P = 96
    for j in range(2):
        for k in range(2):
            for h in range(2):
                A(f"ds_read_b128 {vr(P+16*j+8*k+4*h,4)}, v{PPR} offset:{j*1344 + k*21504 + h*16}")
    for j in range(2):
        A(f"s_waitcnt lgkmcnt({4*(1-j)})")
        for i in range(0, 8, 2):
            A(f"v_pk_add_f32 {vr(P+16*j+i,2)}, {vr(P+16*j+i,2)}, {vr(P+16*j+8+i,2)}")
        for i in range(0, 8, 2):
            A(f"v_pk_fma_f32 {vr(TT[8*j+i],2)}, {vr(P+16*j+i,2)}, {vr(G,2)}, {vr(TT[8*j+i],2)} " + ("op_sel:[0,0,0] op_sel_hi:[1,0,1]" if j == 0 else "op_sel:[0,1,0] op_sel_hi:[1,1,1]"))
        for i in range(4):
            A(f"v_cvt_pk_bf16_f32 v{XV+4*j+i}, v{TT[8*j+2*i]}, v{TT[8*j+2*i+1]}")
        A(f"buffer_store_dwordx4 {vr(XV+4*j,4)}, v{PX}, s[20:23], {'0' if j == 0 else 's55'} offen {X.ost}")
    if X.pfT: A.pf_stop("PFRET_T")
    stamp_rt(A, 10)
    stamp_flush(A, 11, 8, 29)
    A(f"{L_exit}:")
    A("s_endpgm")
    A(f"{L_rt}:")
    A("s_mov_b32 s47, 1")
    A("s_sub_u32 s46, s46, 1")
    A("s_cselect_b32 s71, 0x12345, s71")
    A("s_cselect_b32 s46, 0, s46")
    for s_ in range(10 - NPRE):
        for mt in range(5):
            wrd(s_, mt)
    A(f"s_branch {L_rl}")
    A(f"{L_sel}:")
    A(f"ds_read_b128 {vr(XV,4)}, v{PY}")
    A(f"ds_read_b128 {vr(XV+4,4)}, v{PY} offset:16")
    A("s_waitcnt lgkmcnt(0)")
    for j in range(2):
        A(f"v_add_u32 v6, {4*j}, v{PTK}")
        A("v_cmp_eq_u32 vcc, s56, v6")
        for i in range(8):
            A(f"v_add_f32 v6, v{TT[8*j+i]}, v{XV+i}")
            bf16r(A, 6, 6)
            A(f"v_cndmask_b32 v{TT[8*j+i]}, v{TT[8*j+i]}, v6, vcc")
    A(f"s_branch {L_nosel}")
    A(f"{L_aw}:")
    A("s_waitcnt vmcnt(0)")
    A(f"s_branch {L_awr}")
    A(f"{L_rgl}:")
    qloop(True)
    A("v_add_u32 v8, s50, v2")
    A("v_lshlrev_b32 v6, 2, v8")
    A("v_lshl_or_b32 v6, v3, 28, v6")
    A("v_sub_u32 v8, 2047, v8")
    A(f"s_mov_b32 s33, {WS_R}")
    A(f"s_mov_b32 s34, {WS_G}")
    A(f"buffer_store_dword v{VE}, v6, s[8:11], s33 offen sc1")
    A(f"buffer_store_dword v{VE+1}, v6, s[8:11], s34 offen sc1")
    A(f"v_ashrrev_i32 v7, 31, v{VE}")
    A("v_or_b32 v7, 0x80000000, v7")
    A(f"v_xor_b32 v7, v7, v{VE}")
    A("v_and_b32 v7, 0xfffff800, v7")
    A("v_or_b32 v7, v7, v8")
    A(f"s_mov_b32 s34, {WS_RKEY}")
    fin_key()
    A("s_mul_i32 s32, s50, 20")
    A(f"s_add_u32 s32, s32, {WS_Y}")
    A("v_cmp_gt_u32 vcc, 20, v1")
    A("v_mov_b32 v7, 0x40000000")
    A("v_cndmask_b32 v6, v7, v5, vcc")
    A(f"buffer_store_dwordx4 {vr(VE+4,4)}, v6, s[8:11], s32 offen sc1")
    A("s_lshl_b32 s32, s30, 7")
    A(f"s_add_u32 s33, s32, {WS_GC}")
    A(f"buffer_store_dword v{VE+4}, v24, s[8:11], s33 offen sc1")
    A(f"s_add_u32 s33, s32, {WS_FC}")
    A(f"buffer_store_dword v{VE+4}, v24, s[8:11], s33 offen sc1")
    A(f"s_branch {L_rgr}")
    A(f"{L_fb}:")
    A("v_lshlrev_b32 v21, 3, v2")
    for b in range(2):
        A(f"v_cndmask_b32 v{QS[b]}, v{QS[b]}, 0, s[44:45]")
    A("v_mov_b32 v30, 0xff800000")
    A("v_mov_b32 v31, 0xff800000")
    L_p1, L_p2 = A.label("p1"), A.label("p2")
    def fb_s():
        A(f"buffer_load_dwordx4 {vr(KA1[0],4)}, v5, s[8:11], s32 offen sc1")
        A(f"buffer_load_dwordx2 {vr(KA2[0],2)}, v21, s[8:11], s32 offen offset:{OFF_A2} sc1")
    def fb_qk():
        A("s_waitcnt vmcnt(0)")
        qs2(0, 0, 0); qk1(0, 0, 0); qs2(0, 0, 1); qk1(0, 0, 1)
        A("s_nop 15")
    A("s_mov_b32 s32, 0")
    A(f"{L_p1}:")
    fb_s(); fb_qk()
    for r in range(0, 16, 2):
        A(f"v_max3_f32 v30, v{S[0]+r}, v{S[0]+r+1}, v30")
        A(f"v_max3_f32 v31, v{S[0]+16+r}, v{S[0]+16+r+1}, v31")
    A(f"s_add_u32 s32, s32, {SL}")
    A(f"s_cmp_lt_u32 s32, {64*SL}")
    A(f"s_cbranch_scc1 {L_p1}")
    A("v_mov_b32 v28, v30")
    A("v_mov_b32 v29, v31")
    A("s_nop 1")
    A("v_permlane32_swap_b32 v30, v28")
    A("v_permlane32_swap_b32 v31, v29")
    A("s_nop 1")
    A("v_max_f32 v30, v30, v28")
    A("v_max_f32 v31, v31, v29")
    for r in range(32):
        A(f"v_mov_b32 v{O[0]+r}, 0")
    A("s_mov_b32 s32, 0")
    A(f"{L_p2}:")
    fb_s()
    A(f"s_add_u32 s32, s32, {SL}")
    A(f"s_cmp_lt_u32 s32, {64*SL}")
    A("s_cselect_b32 s33, s32, 0")
    A(f"buffer_load_dwordx4 {vr(V0[0],4)}, v23, s[8:11], s33 offen offset:{OFF_V0} sc1")
    A(f"buffer_load_dwordx4 {vr(V1[0],4)}, v23, s[8:11], s33 offen offset:{OFF_V1} sc1")
    fb_qk()
    for r in range(32):
        A(f"v_sub_f32 v{S[0]+r}, v{S[0]+r}, v{30 + r // 16}")
    for r in range(32):
        A(f"v_exp_f32 v{S[0]+r}, v{S[0]+r}")
    A("s_nop 2")
    pv(0, 0, 0, 0); pv(0, 1, 0, 0); pv(0, 0, 1, 0); pv(0, 1, 1, 0)
    A(f"s_cmp_lt_u32 s32, {64*SL}")
    A(f"s_cbranch_scc1 {L_p2}")
    A("s_nop 15")
    A(f"v_rcp_f32 v28, v{O[0]+8}")
    A("s_nop 0")
    A("v_mov_b32 v29, v28")
    A("s_nop 1")
    A("v_permlane32_swap_b32 v28, v29")
    A("s_nop 1")
    A(f"s_branch {L_norm}")

    A(f"{L_help}:")
    A("s_mov_b32 s72, 1")
    A("s_sub_u32 s26, s29, 4")
    A("v_lshrrev_b32 v6, 3, v1")
    A("v_and_b32 v7, 7, v1")
    A("v_lshrrev_b32 v8, 1, v6")
    A("v_xor_b32 v7, v7, v8")
    A("v_mul_u32_u24 v6, 1280, v6")
    A("v_lshl_add_u32 v10, v7, 4, v6")
    A("v_xor_b32 v11, 64, v10")
    A("v_add_u32 v11, 9216, v11")
    A("v_mul_u32_u24 v2, 26, v1")
    A("v_lshrrev_b32 v2, 8, v2")
    A("v_mul_u32_u24 v3, 10, v2")
    A("v_sub_u32 v3, v1, v3")
    A("v_mul_u32_u24 v2, 1280, v2")
    A("v_lshl_add_u32 v172, v3, 4, v2")
    A("v_add_u32 v12, 17920, v172")
    A("s_mul_i32 s55, s30, 81920")
    A("s_mul_i32 s32, s26, 20480")
    A("s_add_u32 s55, s55, s32")
    A("s_lshl_b32 s56, s26, 11")
    A("s_lshr_b32 s32, s26, 1")
    A("s_xor_b32 s32, s32, s26")
    A("s_mul_i32 s53, s32, 5120")
    A("s_mul_i32 s33, s31, 160")
    A("s_add_u32 s53, s53, s33")
    A("s_mul_i32 s54, s26, 640")
    A(f"s_add_u32 s54, s54, {WR}")
    A("s_mov_b32 s66, -1")
    A("s_movk_i32 s67, 0xff")
    A(f"s_mov_b32 s14, {X_BYTES}")
    A("s_mov_b32 s15, 0x00020000")
    A(f"s_mov_b32 s18, {W_BYTES}")
    A("s_mov_b32 s19, 0x00020000")
    A("s_mov_b32 s23, 0x00020000")
    A("s_lshl_b32 s35, s26, 10")
    A("s_mov_b32 s57, s25")
    A("s_lshl_b32 s32, s26, 3")
    A("s_or_b32 s32, s32, s3")
    A("s_cmp_lt_u32 s32, 2")
    A(f"s_cselect_b32 s59, {SIG + DN + 1}, 99")
    A("s_waitcnt lgkmcnt(0)")
    hst(A, 1)
    A("s_mov_b32 s12, s36")
    A("s_and_b32 s13, s37, 0xffff")
    A("s_mov_b32 s16, s38")
    A("s_and_b32 s17, s39, 0xffff")
    def xpiece():
        A("s_lshl_b32 s32, s57, 7")
        A("s_mov_b32 m0, s56")
        A("s_add_u32 s32, s32, s55")
        A("s_add_u32 s56, s56, 8192")
        A("buffer_load_dwordx4 v10, s[12:15], s32 offen lds")
        A("buffer_load_dwordx4 v11, s[12:15], s32 offen offset:1024 lds")
        A("s_add_u32 s57, s57, 1")
        A("s_cmp_eq_u32 s57, 10")
        A("s_cselect_b32 s57, 0, s57")
    def wchunk():
        A("s_mul_i32 s33, s25, 81920")
        A("s_mov_b32 m0, s54")
        A("s_add_u32 s33, s33, s53")
        A("s_mov_b64 exec, s[66:67]")
        A("buffer_load_dwordx4 v172, s[16:19], s33 offen lds")
        A("buffer_load_dwordx4 v12, s[16:19], s33 offen offset:2560 lds")
        A("s_add_u32 m0, s54, 5120")
        A("s_add_u32 s33, s33, 40960")
        A("buffer_load_dwordx4 v172, s[16:19], s33 offen lds")
        A("buffer_load_dwordx4 v12, s[16:19], s33 offen offset:2560 lds")
        A("s_mov_b64 exec, -1")
        A("s_add_u32 s54, s54, 10240")
        A(f"s_cmp_ge_u32 s54, {WR + NS*10240}")
        A(f"s_cselect_b32 s32, {NS*10240}, 0")
        A("s_sub_u32 s54, s54, s32")
        A("s_add_u32 s25, s25, 1")
        A("s_cmp_eq_u32 s25, 10")
        A("s_cselect_b32 s25, 0, s25")
    L_prod, L_p1d, L_nv2 = A.label("prod"), A.label("p1d"), A.label("nv2")
    A("s_cmp_lt_u32 s3, 2")
    A(f"s_cbranch_scc1 {L_prod}")
    A("s_cmp_lg_u32 s3, 2")
    A(f"s_cbranch_scc1 {L_nv2}")
    A("s_bitcmp1_b32 s26, 0")
    A("s_cselect_b32 s20, s4, s44")
    A("s_cselect_b32 s21, s5, s45")
    A("s_and_b32 s21, s21, 0xffff")
    A("s_movk_i32 s22, 1280")
    A("s_lshr_b32 s32, s26, 1")
    A("s_mul_i32 s32, s32, 640")
    A("s_and_b32 s33, s26, 1")
    A("s_mul_i32 s33, s33, 1280")
    A("s_add_u32 s33, s33, s32")
    A(f"s_add_u32 m0, s33, {VR}")
    A("s_mov_b64 exec, s[66:67]")
    A(f"buffer_load_dwordx4 v5, s[20:23], s32 offen lds")
    A("s_mov_b64 exec, -1")
    A(f"{L_nv2}:")
    L_l, L_x = A.label("l"), A.label("x")
    A(f"{L_x}:")
    xpiece()
    A("s_cmp_lg_u32 s57, s25")
    A(f"s_cbranch_scc1 {L_x}")
    A("s_mov_b32 s46, 0")
    A("s_mov_b32 s34, 1")
    A(f"{L_l}:")
    wchunk()
    A("s_add_u32 s46, s46, 1")
    A(f"s_cmp_le_u32 s46, {DN}")
    A(f"s_cbranch_scc1 {L_l}")
    def chk():
        L = A.label("chk")
        A("s_cmp_lg_u32 s34, 63")
        A(f"s_cbranch_scc1 {L}")
        A("s_mov_b32 s34, 1")
        A("s_atomic_add s34, s[48:49], 0x80")
        A(f"{L}:")
    L_ns = A.label("ns")
    A(f"s_waitcnt vmcnt({4*DN})")
    chk()
    A("s_barrier")
    A("s_cmp_lg_u32 s46, s59")
    A(f"s_cbranch_scc1 {L_ns}")
    A("s_atomic_add s34, s[48:49], 0x0 glc")
    hst(A, 6)
    A(f"{L_ns}:")
    A("s_cmp_lt_u32 s46, 10")
    A(f"s_cbranch_scc1 {L_l}")
    for d in range(DN - 1, -1, -1):
        A(f"s_waitcnt vmcnt({4*d})" + (" lgkmcnt(0)" if d == 0 else ""))
        chk()
        A("s_barrier")
    A(f"s_branch {L_p1d}")
    A(f"{L_prod}:")
    A("s_cmp_eq_u32 s3, 0")
    A("s_cselect_b32 s20, s40, s42")
    A("s_cselect_b32 s21, s41, s43")
    A("s_and_b32 s21, s21, 0xffff")
    A("s_movk_i32 s22, 25600")
    A("s_mul_i32 s35, s26, 640")
    A(f"s_add_u32 s58, s35, {ER}")
    A("s_mov_b32 s46, 0")
    L_a, L_w = A.label("a"), A.label("w")
    A(f"{L_a}:")
    A("s_mul_i32 s34, s57, 2560")
    A("s_mov_b32 m0, s58")
    A("s_add_u32 s34, s34, s35")
    A("s_mov_b64 exec, s[66:67]")
    A("buffer_load_dwordx4 v5, s[20:23], s34 offen lds")
    A("buffer_load_dwordx4 v5, s[20:23], s34 offen offset:2560 lds")
    A("s_mov_b64 exec, -1")
    A("s_add_u32 s58, s58, 5120")
    xpiece(); xpiece()
    A("s_add_u32 s46, s46, 1")
    A("s_cmp_le_u32 s46, 2")
    A(f"s_cbranch_scc1 {L_a}")
    A("s_waitcnt vmcnt(12)")
    A("s_barrier")
    A("s_cmp_lt_u32 s46, 5")
    A(f"s_cbranch_scc1 {L_a}")
    A("s_mov_b32 s46, 0")
    wchunk()
    A("s_waitcnt vmcnt(10)")
    A("s_barrier")
    wchunk()
    A("s_waitcnt vmcnt(8)")
    A("s_barrier")
    hst(A, 2)
    wchunk()
    A("s_barrier")
    hst(A, 3)
    A("s_mov_b32 s46, 3")
    A("s_mov_b32 s34, 1")
    A(f"s_branch {L_l}")
    A(f"{L_p1d}:")
    A(f"s_load_dwordx2 s[38:39], s[0:1], {KA_WO}")
    A(f"s_load_dwordx4 s[40:43], s[0:1], {KA_WG}")
    A(f"s_load_dwordx2 s[44:45], s[0:1], {KA_WD}")
    A("s_lshr_b32 s28, s2, 6")
    common_setup()
    common_setup2()
    A("v_lshlrev_b32 v174, 24, v1")
    A("buffer_load_dword v29, v174, s[76:79], 0 offen offset:128 sc1")
    A("s_mov_b32 s4, s36")
    A("s_mov_b32 s5, s37")
    A("s_lshl_b32 s32, s26, 10")
    A("s_mov_b32 m0, s32")
    A("s_add_u32 s53, s32, s24")
    A("s_barrier")
    A("s_barrier")
    hst(A, 8)
    L_g1, L_g2 = A.label("g1"), A.label("g2")
    A("s_waitcnt vmcnt(0)")
    A("v_readfirstlane_b32 s32, v29")
    A("s_or_b32 s32, s32, s26")
    A("s_cmp_lg_u32 s32, 0")
    A(f"s_cbranch_scc1 {L_g1}")
    await_go(A, 0, 28, X.gsl)
    A(f"{L_g1}:")
    hst(A, 9)
    A("s_barrier")
    if not X.pdiag: stamp(A, 1)
    def dma(n):
        L = A.label("dma")
        A(f"s_add_u32 s34, m0, {n*4096}")
        A(f"{L}:")
        A("buffer_load_dwordx4 v5, s[8:11], s53 offen sc1 lds")
        A("s_add_u32 m0, m0, 4096")
        A("s_add_u32 s53, s53, 4096")
        A(f"s_cmp_ge_u32 s53, {64*SL}")
        A(f"s_cselect_b32 s32, {64*SL}, 0")
        A("s_sub_u32 s53, s53, s32")
        A("s_cmp_lt_u32 m0, s34")
        A(f"s_cbranch_scc1 {L}")
    def need(tiles):
        return min(40, -(-(-(-tiles*SL // 1024)) // 4))
    n0, n1 = need(U_TILES), need(U_TILES * 2)
    dma(n1)
    oproj_addr()
    o_addr()
    for i in range(4):
        A(f"v_mov_b32 v{176+i}, -1")
    A(f"v_mov_b32 v173, {FCNT}")
    A("v_mov_b32 v6, 0")
    A("v_mov_b32 v7, 0")
    A("v_lshlrev_b32 v10, 3, v1")
    A("v_mul_u32_u24 v11, 3072, v1")
    A("v_cmp_gt_u32 vcc, 40, v1")
    A("v_mov_b32 v4, 0x40000000")
    A("v_cndmask_b32 v4, v4, v10, vcc")
    A("v_mov_b32 v175, 1")
    A("v_lshlrev_b32 v9, 1, v1")
    for j in range(12):
        A(f"v_mov_b32 v{12+j}, 0")
    A("v_and_b32 v8, 7, v1")
    A("v_lshlrev_b32 v8, 2, v8")
    A(f"v_add_u32 v8, {FB}, v8")
    A("s_lshl_b32 s32, s26, 5")
    A(f"s_add_u32 s32, s32, {FB}")
    A("v_lshl_add_u32 v25, v3, 3, s32")
    A("v_lshlrev_b32 v26, 1, v4")
    A("s_mul_i32 s64, s26, 5120")
    A("s_add_u32 s64, s64, s54")
    A("s_mul_i32 s32, s73, 51200")
    A("s_add_u32 s64, s64, s32")
    A(f"s_mov_b32 s69, {320*1280}")
    A("s_mul_i32 s65, s26, 640")
    A("s_waitcnt lgkmcnt(0)")
    srd(A, 60, 38, W_BYTES)
    A(f"s_waitcnt vmcnt({n1 - n0})")
    A("s_barrier")
    L_b2, L_b3, L_b4 = A.label("b2"), A.label("b3"), A.label("b4")
    A("s_lshl_b32 s32, s26, 3")
    A("s_or_b32 s32, s32, s3")
    A("s_mov_b32 s35, 1")
    A("s_cmp_lg_u32 s32, 2")
    A(f"s_cbranch_scc1 {L_b3}")
    A("s_atomic_add s35, s[48:49], 0x4 glc")
    A(f"{L_b3}:")
    A("ds_write_b64 v173, v[6:7]")
    A("ds_write_b64 v173, v[6:7] offset:8")
    A("ds_write_b32 v173, v6 offset:16")
    dma(40 - n1 - 1)
    A("s_cmp_eq_u32 s26, 3")
    A("s_cselect_b32 s32, 0x3fffffff, -1")
    A("s_cselect_b32 s33, 0, -1")
    A("s_mov_b64 exec, s[32:33]")
    A("buffer_load_dwordx4 v5, s[8:11], s53 offen sc1 lds")
    A("s_mov_b64 exec, -1")
    A(f"s_waitcnt vmcnt({40 - n1}) lgkmcnt(0)")
    A("s_cmp_lg_u32 s35, 31")
    A(f"s_cbranch_scc1 {L_b4}")
    A("s_atomic_add s35, s[48:49], 0x84")
    A(f"{L_b4}:")
    A("s_barrier")
    A(f"buffer_store_dwordx4 v[176:179], v{POA}, s[8:11], s74 offen sc1")
    A(f"buffer_store_dwordx2 v[176:177], v{POB}, s[8:11], s75 offen sc1")
    A(f"buffer_store_dwordx4 v[176:179], v{POA}, s[8:11], s58 offen sc1")
    A(f"buffer_store_dwordx2 v[176:177], v{POB}, s[8:11], s59 offen sc1")
    if not X.pdiag: stamp(A, 2)
    def lds_wait(off, thr, slp=2):
        Lp = A.label("lw")
        A(f"{Lp}:")
        A(f"ds_read_b32 v171, v173 offset:{off}")
        A("s_waitcnt lgkmcnt(0)")
        A("v_readfirstlane_b32 s32, v171")
        A(f"s_sleep {slp}")
        A(f"s_cmp_lt_u32 s32, {thr}")
        A(f"s_cbranch_scc1 {Lp}")
    def wo_part(thr):
        Lw = A.label("wl")
        lds_wait(4, thr, X.slp)
        if X.nowo: return
        A(f"s_add_u32 s34, s65, 51200")
        A("s_mov_b64 exec, s[66:67]")
        A(f"{Lw}:")
        A("s_mov_b32 m0, s65")
        A("s_add_u32 s32, s64, s69")
        A("buffer_load_dwordx4 v172, s[60:63], s32 offen lds")
        A("s_add_u32 s65, s65, 2560")
        A("s_add_u32 s64, s64, 20480")
        A("s_cmp_ge_u32 s64, 409600")
        A("s_cselect_b32 s32, 409600, 0")
        A("s_sub_u32 s64, s64, s32")
        A("s_cmp_lt_u32 s65, s34")
        A(f"s_cbranch_scc1 {Lw}")
        A("s_mov_b64 exec, -1")
    A("buffer_load_dword v28, v174, s[76:79], 0 offen offset:132 sc1")
    A("s_waitcnt vmcnt(0)")
    A("ds_add_u32 v173, v175 offset:16")
    A("v_readfirstlane_b32 s32, v28")
    A("s_cmp_lg_u32 s32, 0")
    A(f"s_cbranch_scc1 {L_b2}")
    await_go(A, 4, 28, 8)
    A(f"{L_b2}:")
    A(f"s_mov_b32 s32, {WS_RKEY}")
    A("buffer_load_dwordx2 v[6:7], v10, s[8:11], s32 offen sc1")
    A("s_lshl_b32 s35, s30, 7")
    A(f"s_add_u32 s35, s35, {WS_GC}")
    A("buffer_atomic_add v175, v174, s[8:11], s35 offen sc1")
    def getidx():
        A("s_setprio 2")
        wave_max_u32(A, 6, 7, 56)
        A("s_setprio 0")
        A("s_and_b32 s56, s56, 2047")
        A("s_sub_u32 s25, 2047, s56")
    L_w1, L_w2 = A.label("w1"), A.label("w2")
    A("s_lshr_b32 s32, s2, 3")
    A("s_and_b32 s33, s2, 7")
    A("s_mul_i32 s47, s33, 24")
    A("s_add_u32 s47, s47, s32")
    A(f"s_cmp_ge_u32 s32, {0 if X.noffn else 24}")
    A(f"s_cbranch_scc1 {L_w1}")
    A("s_cmp_ge_u32 s26, 2")
    A("s_cselect_b32 s16, s42, s40")
    A("s_cselect_b32 s17, s43, s41")
    A("s_and_b32 s17, s17, 0xffff")
    A(f"s_mov_b32 s18, {F_BYTES}")
    srd(A, 20, 44, F_BYTES)
    A("s_and_b32 s46, s26, 1")
    W_, WD_, XL, AC = 32, 56, 72, 12
    A(f"s_mul_i32 s32, s46, {320*3072}")
    A("s_lshl_b32 s33, s47, 4")
    A("s_add_u32 s32, s32, s33")
    for i in range(5):
        A(f"buffer_load_dwordx4 {vr(W_+4*i,4)}, v11, s[16:19], s32 offen")
        if i < 4: A(f"s_add_u32 s32, s32, {64*3072}")
    A("s_waitcnt vmcnt(5)")
    getidx()
    A("s_mul_i32 s32, s25, 1280")
    A("s_mul_i32 s33, s46, 640")
    A("s_add_u32 s32, s32, s33")
    for i in range(5):
        A(f"buffer_load_ushort v{XL+i}, v9, s[12:15], s32 offen offset:{i*128}")
    A("s_mul_i32 s32, s47, 10240")
    A("s_mul_i32 s33, s26, 320")
    A("s_add_u32 s32, s32, s33")
    for f in range(8):
        if f % 3 == 0 and f: A(f"s_add_u32 s32, s32, {3*1280}")
        A(f"buffer_load_dwordx2 {vr(WD_+2*f,2)}, v4, s[20:23], s32 offen offset:{(f%3)*1280}")
    A("s_waitcnt vmcnt(8)")
    if not X.pdiag: stamp(A, 3)
    A("s_setprio 2")
    for i in range(5):
        A(f"v_lshlrev_b32 v{XL+5}, 16, v{XL+i}")
        for dw in range(4):
            A(f"v_dot2c_f32_bf16 v{AC+2*dw}, v{W_+4*i+dw}, v{XL+i}")
            A(f"v_dot2c_f32_bf16 v{AC+2*dw+1}, v{W_+4*i+dw}, v{XL+5}")
    A("s_nop 3")
    for j in range(4):
        A(f"v_permlane32_swap_b32 v{AC+j}, v{AC+j+4}")
    A("s_nop 1")
    for j in range(4):
        A(f"v_add_f32 v{AC+j}, v{AC+j}, v{AC+j+4}")
    A("s_nop 1")
    for j in range(2):
        A(f"v_permlane16_swap_b32 v{AC+j}, v{AC+j+2}")
    A("s_nop 1")
    for j in range(2):
        A(f"v_add_f32 v{AC+j}, v{AC+j}, v{AC+j+2}")
    for sh in (8, 4, 2, 1):
        A("s_nop 1")
        for j in range(2):
            A(f"v_add_f32_dpp v{AC+j}, v{AC+j}, v{AC+j} row_ror:{sh} row_mask:0xf bank_mask:0xf")
    A(f"ds_write_b64 v25, {vr(AC,2)}")
    A("s_setprio 0")
    A("s_waitcnt lgkmcnt(0)")
    A("ds_add_u32 v173, v175")
    wo_part(256)
    lds_wait(0, 256)
    A("s_setprio 2")
    A("ds_read2_b32 v[12:13], v8 offset0:0 offset1:8")
    A("ds_read2_b32 v[14:15], v8 offset0:16 offset1:24")
    A("s_waitcnt lgkmcnt(0)")
    A("v_add_f32 v12, v12, v13")
    A("v_add_f32 v14, v14, v15")
    bf16r(A, 12, 12)
    sigmoid(A, 16, 12, 17)
    A("v_mul_f32 v12, v12, v16")
    bf16r(A, 12, 12)
    bf16r(A, 14, 14)
    A("v_mul_f32 v12, v12, v14")
    bf16r(A, 12, 12)
    Y = 20
    A("s_nop 0")
    def hs(f):
        hi = 13+2*f if f < 4 else 29+2*f
        return hi - 1, hi
    for f in range(8):
        A(f"v_readlane_b32 s{hs(f)[1]}, v12, {f}")
    for f in range(8):
        lo, hi = hs(f)
        A(f"s_lshr_b32 s{lo}, s{hi}, 16")
    A("s_waitcnt vmcnt(20)")
    for f in range(8):
        lo, hi = hs(f)
        for j in range(2):
            A(f"v_dot2c_f32_bf16 v{Y+2*j}, s{lo}, v{WD_+2*f+j}")
            A(f"v_dot2c_f32_bf16 v{Y+2*j+1}, s{hi}, v{WD_+2*f+j}")
    A("s_and_b32 s47, s47, 15")
    A("s_mul_i32 s32, s47, 2560")
    A("s_mul_i32 s33, s26, 640")
    A("s_add_u32 s32, s32, s33")
    A(f"s_add_u32 s32, s32, {WS_Y}")
    A("s_setprio 0")
    A("s_nop 2")
    for j in range(4):
        A(f"buffer_atomic_add_f32 v{Y+j}, v26, s[8:11], s32 offen offset:{j*4}")
    A("s_lshl_b32 s32, s47, 7")
    A(f"s_add_u32 s32, s32, {WS_FC}")
    A("s_waitcnt vmcnt(0)")
    A("buffer_atomic_add v175, v174, s[8:11], s32 offen sc1")
    A(f"s_branch {L_w2}")
    A(f"{L_w1}:")
    A("s_waitcnt vmcnt(0)")
    getidx()
    wo_part(256)
    A("s_waitcnt vmcnt(0)")
    A(f"{L_w2}:")
    if not X.pdiag: stamp(A, 4)
    A("ds_add_u32 v173, v175 offset:8")
    oproj_saddr()
    lds_wait(8, 256)
    A(f"s_branch {L_op}")
    A(f"{L_h2}:")
    if not X.pdiag: stamp(A, 5)
    A("v_mov_b32 v171, s25")
    A("ds_write_b32 v173, v171 offset:12")
    if X.pfT:
        A("s_cmp_lg_u32 s26, 2")
        A("s_cbranch_scc1 PFRET_T")
        A("s_mov_b64 exec, 0")
        A("s_branch PF_T_0")
        A("PFRET_T:")
        A("s_mov_b64 exec, -1")
    L_ny, L_sp2, L_sg, L_ng, L_gp = A.label("ny"), A.label("sp2"), A.label("sg"), A.label("ng"), A.label("gp")
    A("s_mov_b32 s69, 0")
    wo_part(512)
    A("s_waitcnt vmcnt(20)")
    if X.gprio: A("s_setprio 2")
    gate_math()
    A("s_setprio 0")
    A("s_cmp_lg_u32 s26, 1")
    A(f"s_cbranch_scc1 {L_ng}")
    A(f"{L_gp}:")
    A("buffer_load_dword v171, v174, s[8:11], s35 offen sc1")
    A("s_waitcnt vmcnt(0)")
    A("v_readfirstlane_b32 s32, v171")
    A("s_sub_u32 s46, s46, 1")
    A(f"s_cbranch_scc1 {L_ng}")
    A("s_cmp_lt_u32 s32, 32")
    A(f"s_cbranch_scc1 {L_gp}")
    A(f"{L_ng}:")
    A("s_lshr_b32 s32, s25, 6")
    A("s_lshl_b32 s33, s26, 8")
    A("s_or_b32 s33, s33, s30")
    A("s_cmp_lg_u32 s32, s33")
    A(f"s_cbranch_scc1 {L_ny}")
    A("v_lshlrev_b32 v6, 7, v2")
    A(f"s_mov_b32 s33, {WS_FC}")
    A(f"{L_sp2}:")
    A("buffer_load_dword v171, v6, s[8:11], s33 offen sc1")
    A("s_waitcnt vmcnt(0)")
    A(f"v_cmp_ne_u32 vcc, {0 if X.noffn else 48}, v171")
    A("s_sub_u32 s46, s46, 1")
    A(f"s_cbranch_scc1 {L_sg}")
    A("s_sleep 8")
    A(f"s_cbranch_vccnz {L_sp2}")
    A(f"{L_sg}:")
    A("s_setprio 2")
    Yv = OF
    A("v_mul_u32_u24 v6, 2560, v2")
    A("v_lshl_add_u32 v6, v3, 4, v6")
    A("s_lshl_b32 s32, s54, 1")
    A(f"s_add_u32 s32, s32, {WS_Y}")
    for mt in range(5):
        A(f"buffer_load_dwordx4 {vr(Yv+4*mt,4)}, v6, s[8:11], s32 offen offset:{mt*64} sc1")
    A("s_lshl_b32 s32, s25, 2")
    A(f"s_add_u32 s32, s32, {WS_R}")
    A("v_mov_b32 v6, 0")
    A("buffer_load_dword v171, v6, s[8:11], s32 offen sc1")
    A("s_waitcnt vmcnt(0)")
    for sh in (8, 4, 2, 1):
        A("s_nop 1")
        for j in range(20):
            A(f"v_add_f32_dpp v{Yv+j}, v{Yv+j}, v{Yv+j} row_ror:{sh} row_mask:0xf bank_mask:0xf")
    bf16r(A, 171, 171)
    sigmoid(A, 171, 171, 6)
    bf16r(A, 171, 171)
    for j in range(20):
        bf16r(A, Yv+j, Yv+j)
        A(f"v_mul_f32 v{Yv+j}, v{Yv+j}, v171")
        bf16r(A, Yv+j, Yv+j)
    A("v_lshlrev_b32 v6, 4, v3")
    A(f"v_add_u32 v6, {YB}, v6")
    for mt in range(5):
        A(f"ds_write_b128 v6, {vr(Yv+4*mt,4)} offset:{mt*64}")
    A("s_setprio 0")
    A(f"{L_ny}:")
    A(f"s_mov_b32 s46, {SPIN}")
    A("s_waitcnt vmcnt(0) lgkmcnt(0)")
    if not X.pdiag: stamp(A, 6)
    A("s_barrier")
    if not X.pdiag: stamp(A, 7)
    if X.tprio: A("s_setprio 2")
    A(f"s_branch {L_h3}")

def build(path):
    A = Asm()
    fused(A)
    hdr = open("gated_mix__grouped_kv_mqa__moe_arch_mod__prompt.s.ref").read().split("; @launch")[0]
    out = hdr + "; @launch grid=(256,1,1) block=(512,1,1) lds=163840\n" + '.amdgcn_target "amdgcn-amd-amdhsa--gfx950"\n.text\n' + A.text() + '.section .rodata,"a"\n'
    out += kernel_desc(NAME, 256, 256)
    open(path, "w").write(out)

if __name__ == "__main__":
    build("t23.s")
    Cfg.on = True
    build("t23s.s")
    Cfg.rt = True
    build("t23r.s")
    X.tdiag = True
    build("t23t.s")
```

```python
class Cfg:
    on = False
    rt = False
    amp = None
    dbg = None
WS_ST = 0x700000
SB = 80
def stamp(A, idx):
    if Cfg.on:
        A(f"{'s_memrealtime' if (Cfg.dbg is not None or Cfg.rt) else 's_memtime'} s[{SB+2*idx}:{SB+1+2*idx}]")
def stamp_rt(A, idx):
    if Cfg.on:
        A(f"s_memrealtime s[{SB+2*idx}:{SB+1+2*idx}]")
def stamp_flush(A, n, srdbase, wave_sgpr, vt=250):
    if Cfg.on and Cfg.amp is not None:
        a, b = Cfg.amp
        L, L2 = A.label("amp"), A.label("amp2")
        A("s_waitcnt lgkmcnt(0)")
        A(f"s_cmp_ge_u32 s{wave_sgpr}, 4")
        A(f"s_cbranch_scc1 {L2}")
        A(f"s_sub_u32 s32, s{SB+2*b}, s{SB+2*a}")
        A(f"s_add_u32 s32, s32, s{SB+20}")
        A(f"{L}:")
        A("s_memrealtime s[34:35]")
        A("s_waitcnt lgkmcnt(0)")
        A("s_sub_u32 s33, s32, s34")
        A("s_cmp_gt_i32 s33, 0")
        A(f"s_cbranch_scc1 {L}")
        A(f"{L2}:")
        return
    if Cfg.on and Cfg.dbg is not None:
        L = A.label("nodbg")
        A("s_waitcnt lgkmcnt(0)")
        A(f"s_lshl_b32 s32, s{wave_sgpr}, 8")
        A("s_or_b32 s32, s32, s2")
        A(f"s_cmp_lg_u32 s32, {Cfg.dbg}")
        A(f"s_cbranch_scc1 {L}")
        A("s_mov_b64 exec, 1")
        A(f"v_mov_b32 v{vt}, 0")
        for i in range(1, n):
            A(f"s_sub_u32 s33, s{SB+2*i}, s{SB}")
            A(f"v_mov_b32 v{vt+2}, s33")
            A(f"buffer_store_dword v{vt+2}, v{vt}, s[76:79], 0 offen offset:{12+4*i}")
            A("s_nop 1")
        A(f"{L}:")
        return
    if Cfg.on:
        A("s_waitcnt lgkmcnt(0)")
        A("s_mov_b64 exec, 1")
        A(f"s_lshl_b32 s32, s2, 4")
        A(f"s_add_u32 s32, s32, s{wave_sgpr}")
        A(f"s_lshl_b32 s32, s32, 7")
        A(f"s_add_u32 s32, s32, {WS_ST}")
        A(f"v_mov_b32 v{vt}, 0")
        for i in range(n):
            A(f"v_mov_b32 v{vt+2}, s{SB+2*i}")
            A(f"v_mov_b32 v{vt+3}, s{SB+1+2*i}")
            A(f"buffer_store_dwordx2 v[{vt+2}:{vt+3}], v{vt}, s[{srdbase}:{srdbase+3}], s32 offen offset:{8*i}")
            A("s_nop 1")
```

```python
import g23
from g23 import *
X.gsl = 1; build("v1.s")
X.gsl = 4; g23.SIG = 3; build("v2.s")
g23.SIG = 2; build("v3.s")
g23.SIG = 4; g23.DN = 2
try:
    build("v4.s")
except Exception as e: print(e)
g23.DN = 3; X.pfT = False; X.pfQ = False; build("v5.s")
```

```python
import math, sys
from asmlib import *
from stamp8 import *

NAME = "gated_mix__grouped_kv_mqa__moe_arch_mod__prompt_kernel"
KA_X, KA_WQ, KA_WK, KA_WV, KA_WO, KA_BX, KA_WR, KA_WG, KA_WU, KA_WD, KA_GW, KA_OUT, KA_DBG, KA_WS = [8*i for i in range(14)]
SL = 2592
WS_KV0 = 0x0
WS_KMAX = 0x60000
WS_RKEY = 0x60200
WS_R = 0x61000
WS_G = 0x63000
WS_Y = 0x68000
WS_GC = 0x74000
WS_FC = 0x76000
WS_O = 0x100000
WS_SIZE = 0x1000000
X_BYTES = 2048*640*2
W_BYTES = 640*640*2
F_BYTES = 640*1536*2
QSCALE = (20 ** -0.5) * math.log2(math.e)
LOG2E = math.log2(math.e)
LTHR = f32bits(2.0 ** -30)
OFF_A2, OFF_V0, OFF_V1 = 1024, 1280, 1936
FB = 63*SL
FCNT = FB + 128
YB = FB + 160
XB = 102400
SPIN = 100000
WR = 81920
ER = WR + 5*10240
QX = WR + 7*10240
VR = QX
NS = 7
SIG = 3
DN = 3
PERM = sum(p << (4*i) for i, p in enumerate([0, 4, 5, 9, 3, 7, 2, 6]))
U_TILES = 8
class X:
    noffn = False; st = 0; hprio = 2; cprio = 0; nowo = False; slp = 10; pdiag = False; pfT = True; pfQ = True; tdiag = False; hsl = 0; rothg = False; gprio = True; tprio = True; pad = 0; pre = 0; ost = ''; gsl = 4; l2pf = True; first = True; nb0 = 8; itst = False; direct = True

def bf16r(A, d, s):
    A(f"v_cvt_pk_bf16_f32 v{d}, v{s}, v{s}")
    A(f"v_and_b32 v{d}, 0xffff0000, v{d}")
def sigmoid(A, d, s, t):
    A(f"v_mul_f32 v{t}, {f32bits(-LOG2E):#x}, v{s}")
    A(f"v_exp_f32 v{t}, v{t}")
    A("s_nop 0")
    A(f"v_add_f32 v{t}, 1.0, v{t}")
    A(f"v_rcp_f32 v{d}, v{t}")
    A("s_nop 0")
def row_max_u32(A, v):
    for sh in (8, 4, 2, 1):
        A("s_nop 1")
        A(f"v_max_u32_dpp v{v}, v{v}, v{v} row_ror:{sh} row_mask:0xf bank_mask:0xf")
def wave_max_u32(A, v, v2, st):
    A(f"v_max_u32 v{v}, v{v}, v{v2}")
    row_max_u32(A, v)
    A("s_nop 1")
    for i in range(4):
        A(f"v_readlane_b32 s{st+i}, v{v}, {16*i}")
    A(f"s_max_u32 s{st}, s{st}, s{st+1}")
    A(f"s_max_u32 s{st+2}, s{st+2}, s{st+3}")
    A(f"s_max_u32 s{st}, s{st}, s{st+2}")

def arrive(A, cnt_off, total, vt):
    L = A.label("arr")
    A(f"v_mov_b32 v{vt}, 1")
    A(f"v_lshlrev_b32 v{vt+1}, 24, v1")
    A(f"buffer_atomic_add v{vt}, v{vt+1}, s[76:79], 0 offen offset:{cnt_off} sc0 sc1")
    A("s_waitcnt vmcnt(0)")
    A(f"v_readfirstlane_b32 s32, v{vt}")
    A(f"v_mov_b32 v{vt}, 1")
    A(f"s_cmp_lg_u32 s32, {total-1}")
    A(f"s_cbranch_scc1 {L}")
    A(f"buffer_store_dword v{vt}, v{vt+1}, s[76:79], 0 offen offset:{128+cnt_off} sc1")
    A(f"{L}:")
def await_cnt(A, vt, slp):
    L, Ld = A.label("aw"), A.label("awd")
    A(f"v_lshlrev_b32 v{vt+1}, 24, v1")
    A(f"s_mov_b32 s33, {SPIN}")
    A(f"{L}:")
    A(f"buffer_load_dword v{vt}, v{vt+1}, s[76:79], 0 offen sc1")
    A("s_waitcnt vmcnt(0)")
    A(f"v_readfirstlane_b32 s32, v{vt}")
    A("s_sub_u32 s33, s33, 1")
    A(f"s_cbranch_scc1 {Ld}")
    A("s_cmp_ge_u32 s32, 64")
    A(f"s_cbranch_scc1 {Ld}")
    A(f"s_sleep {slp}")
    A(f"s_branch {L}")
    A(f"{Ld}:")
def await_go(A, cnt_off, vt, slp):
    L, Ld = A.label("aw"), A.label("awd")
    A(f"v_lshlrev_b32 v{vt+1}, 24, v1")
    A(f"s_mov_b32 s33, {SPIN}")
    A(f"{L}:")
    A(f"buffer_load_dword v{vt}, v{vt+1}, s[76:79], 0 offen offset:{128+cnt_off} sc1")
    A("s_waitcnt vmcnt(0)")
    A(f"v_readfirstlane_b32 s32, v{vt}")
    A("s_sub_u32 s33, s33, 1")
    A(f"s_cbranch_scc1 {Ld}")
    A("s_cmp_lg_u32 s32, 0")
    A(f"s_cbranch_scc1 {Ld}")
    A(f"s_sleep {slp}")
    A(f"s_branch {L}")
    A(f"{Ld}:")

def hst(A, i):
    if X.pdiag: stamp(A, i)
def fused(A):
    kernel_begin(A, NAME)
    L_exit, L_help, L_op = A.label("exit"), A.label("help"), A.label("oproj")
    A("s_cmp_ge_u32 s2, 256")
    A(f"s_cbranch_scc1 {L_exit}")
    stamp_rt(A, 0)
    for i in range(X.pre): A("s_sleep 64")
    A(f"s_load_dwordx4 s[36:39], s[0:1], {KA_X}")
    A(f"s_load_dwordx4 s[40:43], s[0:1], {KA_WK}")
    A(f"s_load_dwordx4 s[48:51], s[0:1], {KA_DBG}")
    A(f"s_load_dwordx2 s[44:45], s[0:1], {KA_WR}")
    A(f"s_load_dwordx4 s[4:7], s[0:1], {KA_GW}")
    A("v_lshrrev_b32 v4, 6, v0")
    A("v_and_b32 v1, 63, v0")
    A("v_readfirstlane_b32 s29, v4")
    A("v_lshlrev_b32 v5, 4, v1")
    A("s_and_b32 s30, s2, 7")
    A("s_lshl_b32 s30, s30, 2")
    A("s_lshr_b32 s28, s2, 6")
    A("s_add_u32 s30, s30, s28")
    A("s_bfe_u32 s31, s2, 0x30003")
    A("s_lshl_b32 s33, s28, 1")
    A("s_sub_u32 s3, s31, s33")
    A("s_and_b32 s3, s3, 7")
    A("s_lshl_b32 s32, s3, 2")
    A(f"s_lshr_b32 s25, {PERM:#x}, s32")
    A("s_and_b32 s25, s25, 15")
    A("s_add_u32 s25, s25, s33")
    A("s_cmp_ge_u32 s25, 10")
    A("s_cselect_b32 s32, 10, 0")
    A("s_sub_u32 s25, s25, s32")
    if X.first:
        A("s_cmp_lt_u32 s29, 4")
        A("s_cbranch_scc1 L_COMPUTE")
        A(".MARK_ENTRY_END")
        A("L_COMPUTE:")
    else:
        A("s_cmp_ge_u32 s29, 4")
        A(f"s_cbranch_scc1 {L_help}")

    def common_setup():
        A("s_mov_b32 s10, 0x1000000")
        A("s_mov_b32 s11, 0x00020000")
        A("s_bfe_u32 s24, s2, 0x40003")
        A(f"s_mul_i32 s24, s24, {4*SL}")
        A("s_lshl_b32 s73, s28, 1")
        if X.rothg:
            A("s_add_u32 s73, s73, s31")
            A("s_and_b32 s73, s73, 7")
        A("s_movk_i32 s78, 256")
        A("s_mov_b32 s79, 0x00020000")
    def common_setup2():
        A("s_mov_b32 s8, s50")
        A("s_and_b32 s9, s51, 0xffff")
        A("s_mov_b32 s76, s48")
        A("s_and_b32 s77, s49, 0xffff")
    PM, PT, PX, PTK, PO0, PO1, PPR, PY, PPW, POA, POB = range(160, 171)
    def oproj_addr():
        A("v_and_b32 v2, 15, v0")
        A("v_lshrrev_b32 v3, 4, v1")
        A("s_and_b32 s27, s29, 3")
        A("s_lshr_b32 s28, s29, 2")
        A("v_add_u32 v6, s73, v3")
        A("v_and_b32 v6, 7, v6")
        A("v_lshlrev_b32 v7, 4, v2")
        A(f"v_lshl_add_u32 v{PO0}, v6, 8, v7")
        A(f"v_xor_b32 v{PO1}, 0x400, v{PO0}")
        A("v_lshrrev_b32 v7, 2, v2")
        A("v_and_b32 v8, 3, v2")
        A("v_lshrrev_b32 v9, 1, v3")
        A("v_mul_u32_u24 v9, 20, v9")
        A("v_and_b32 v6, 1, v3")
        A("v_lshl_add_u32 v9, v6, 2, v9")
        A("v_add_u32 v9, v9, v7")
        A("v_mul_u32_u24 v9, 160, v9")
        A("v_lshl_add_u32 v9, v8, 3, v9")
        A("s_xor_b32 s32, s28, 1")
        A("s_mul_i32 s32, s32, 51200")
        A(f"v_add_u32 v{PM}, s32, v9")
        A("v_mul_u32_u24 v9, 40, v3")
        A("v_add3_u32 v9, v9, v7, 16")
        A("v_mul_u32_u24 v9, 160, v9")
        A("v_lshl_add_u32 v9, v8, 3, v9")
        A(f"v_add_u32 v{PT}, s32, v9")
        A("v_mul_u32_u24 v6, 26, v1")
        A("v_lshrrev_b32 v6, 8, v6")
        A("v_mul_u32_u24 v7, 10, v6")
        A("v_sub_u32 v7, v1, v7")
        A("s_lshl_b32 s32, s30, 6")
        A("s_lshl_b32 s33, s29, 3")
        A("s_add_u32 s52, s32, s33")
        A(f"v_add_u32 v{PTK}, s52, v6")
        A(f"v_mul_u32_u24 v8, 1280, v{PTK}")
        A("v_lshl_add_u32 v8, v7, 4, v8")
        A("s_mul_i32 s54, s31, 160")
        A("v_add_u32 v8, s54, v8")
        A("v_cmp_gt_u32 vcc, 40, v1")
        A("v_mov_b32 v9, 0x40000000")
        A(f"v_cndmask_b32 v{PX}, v9, v8, vcc")
        A("v_add_u32 v6, s33, v6")
        A("v_mul_u32_u24 v6, 336, v6")
        A("v_lshl_add_u32 v6, v7, 5, v6")
        A(f"v_add_u32 v{PPR}, {XB}, v6")
        A("v_lshlrev_b32 v7, 5, v7")
        A(f"v_add_u32 v{PY}, {YB}, v7")
        A("s_lshl_b32 s32, s27, 4")
        A("v_add_u32 v6, s32, v2")
        A("v_mul_u32_u24 v6, 336, v6")
        A("v_lshl_add_u32 v6, v3, 4, v6")
        A("s_mul_i32 s32, s28, 21504")
        A(f"s_add_u32 s32, s32, {XB}")
        A(f"v_add_u32 v{PPW}, s32, v6")
    def oproj_saddr():
        A("s_lshl_b32 s33, s30, 2")
        A("s_add_u32 s33, s33, s27")
        A("s_mul_i32 s68, s33, 20480")
        A(f"s_add_u32 s68, s68, {WS_O}")
        A("s_lshl_b32 s33, s28, 11")
        A("s_add_u32 s70, s68, s33")
        A("s_add_u32 s70, s70, 16384")
        A("s_lshl_b32 s33, s28, 13")
        A("s_add_u32 s68, s68, s33")
        for p in range(8):
            A(f"s_add_u32 s32, s73, {p}")
            A("s_and_b32 s32, s32, 7")
            A(f"s_lshl_b32 s{12+p}, s32, 10")
            A(f"s_add_u32 s{12+p}, s{12+p}, s68")
        A("s_movk_i32 s55, 5120")
        A(f"s_mov_b32 s22, {X_BYTES}")
        A("s_mov_b32 s23, 0x00020000")

    def o_addr():
        A("s_lshl_b32 s47, s31, 2")
        A("s_add_u32 s47, s47, s27")
        A("v_bfe_u32 v6, v1, 4, 1")
        A("v_mul_u32_u24 v6, 20480, v6")
        A("v_lshl_add_u32 v6, v2, 4, v6")
        A("v_lshrrev_b32 v7, 5, v1")
        A(f"v_lshl_add_u32 v{POA}, v7, 8, v6")
        A(f"v_lshl_or_b32 v{POB}, v7, 30, v6")
        A("s_mul_i32 s32, s30, 81920")
        A(f"s_add_u32 s32, s32, {WS_O}")
        A("s_lshl_b32 s74, s47, 9")
        A("s_add_u32 s74, s74, s32")
        A("s_lshr_b32 s75, s47, 1")
        A("s_lshl_b32 s75, s75, 8")
        A("s_and_b32 s33, s47, 1")
        A("s_lshl_b32 s33, s33, 3")
        A("s_add_u32 s75, s75, s33")
        A("s_add_u32 s75, s75, s32")
        A("s_add_u32 s75, s75, 16384")
        A("s_add_u32 s58, s74, 40960")
        A("s_add_u32 s59, s75, 40960")

    A("s_mov_b32 s72, 0")
    if X.l2pf:
        A("s_getpc_b64 s[32:33]")
        A("L_PC0:")
        A(f"s_sub_u32 s32, s32, L_PC0-{NAME}")
        A("s_subb_u32 s33, s33, 0")
        A("s_lshr_b32 s34, s2, 3")
        A("v_lshl_add_u32 v6, v0, 5, s34")
        A("v_lshlrev_b32 v6, 7, v6")
        A(f"v_min_u32 v6, L_CODE_END-{NAME}-4, v6")
        A("global_load_dword v180, v6, s[32:33]")
    common_setup()
    oproj_addr()
    oproj_saddr()
    VACC = 32; VE = 52; H = [64, 84]; XF = [104, 108]
    VB1, VB2, VXA0, VXA1 = 14, 15, 16, 17
    A("v_lshrrev_b32 v6, 2, v2")
    A("v_and_b32 v7, 3, v2")
    A("v_lshl_add_u32 v6, v3, 3, v6")
    A("v_and_b32 v8, 1, v3")
    A("v_lshlrev_b32 v8, 2, v8")
    A("v_add_u32 v9, v6, v8")
    A("v_mul_u32_u24 v9, 160, v9")
    A("v_lshl_add_u32 v9, v7, 3, v9")
    A(f"v_add_u32 v{VB1}, {WR}, v9")
    A("v_xor_b32 v8, 4, v8")
    A("v_add_u32 v9, v6, v8")
    A("v_mul_u32_u24 v9, 160, v9")
    A("v_lshl_add_u32 v9, v7, 3, v9")
    A(f"v_add_u32 v{VB2}, {WR}, v9")
    A("v_mul_u32_u24 v9, 40, v6")
    A(f"v_add_u32 v9, {ER}, v9")
    A("v_lshl_add_u32 v18, v7, 3, v9")
    A("v_add_u32 v19, 32, v9")
    A("v_lshrrev_b32 v6, 1, v2")
    A("v_xor_b32 v6, v6, v3")
    A("v_lshlrev_b32 v6, 4, v6")
    A("v_lshl_add_u32 v6, v2, 7, v6")
    A("s_lshl_b32 s32, s29, 11")
    A("v_add_u32 v10, s32, v6")
    A("v_xor_b32 v11, 64, v10")
    A(f"v_mov_b32 v{VXA0}, v10")
    A(f"v_mov_b32 v{VXA1}, v11")
    for i in range(VACC, VE + 8):
        A(f"v_mov_b32 v{i}, 0")
    A("s_lshr_b32 s32, s29, 1")
    A("s_mul_i32 s32, s32, 5120")
    A("s_and_b32 s33, s29, 1")
    A("s_lshl_b32 s33, s33, 7")
    A("s_add_u32 s32, s32, s33")
    A(f"s_add_u32 s32, s32, {QX}")
    A("v_lshlrev_b32 v6, 3, v2")
    A("v_lshl_add_u32 v6, v3, 8, v6")
    A("v_add_u32 v13, s32, v6")
    o_addr()
    A("s_waitcnt lgkmcnt(0)")
    common_setup2()
    A("s_mov_b32 s4, s36")
    A("s_mov_b32 s5, s37")
    A("v_lshlrev_b32 v24, 24, v1")
    A("s_lshl_b32 s32, s30, 6")
    A("s_lshl_b32 s33, s29, 4")
    A("s_add_u32 s50, s32, s33")
    if X.pfQ:
        A("s_cmp_lg_u32 s29, 3")
        A("s_cbranch_scc1 PFRET_Q")
        A("s_mov_b64 exec, 0")
        A("s_branch PF_Q_0")
        A("PFRET_Q:")
        A("s_mov_b64 exec, -1")
    stamp(A, 1)
    L_main, L_rg, L_ev, L_ej = A.label("main"), A.label("rg"), A.label("ev"), A.label("ej")
    A("s_cmp_gt_u32 s3, 2")
    A(f"s_cbranch_scc1 {L_main}")
    A("s_cmp_eq_u32 s3, 2")
    A(f"s_cbranch_scc1 {L_rg}")
    EW = 64; EX = 112
    A("s_mov_b32 s46, 0")
    def erd(s):
        A(f"ds_read_b128 {vr(EX+4*s,4)}, v{10 + (s & 1)} offset:{(s >> 1)*8192}")
        for t in range(2):
            slot = EW + 8*s + 4*t
            A(f"ds_read_b64_tr_b16 {vr(slot,2)}, v{18+t} offset:{s*1280}")
            A(f"ds_read_b64_tr_b16 {vr(slot+2,2)}, v{18+t} offset:{s*1280+160}")
    def eloop(swap):
        L = A.label("el")
        A(f"{L}:")
        for s in range(4):
            if s == 2:
                A("s_add_u32 s46, s46, 1")
                A("v_add_u32 v10, 16384, v10")
                A("v_add_u32 v11, 16384, v11")
                A("v_add_u32 v18, 5120, v18")
                A("v_add_u32 v19, 5120, v19")
                A("s_cmp_lt_u32 s46, 5")
                A("s_barrier")
            erd((s + 2) % 4)
            A("s_waitcnt lgkmcnt(10)")
            for t in range(2):
                w, x = vr(EW+8*s+4*t,4), vr(EX+4*s,4)
                A(f"v_mfma_f32_16x16x32_bf16 {vr(VE+4*t,4)}, {x if swap else w}, {w if swap else x}, {vr(VE+4*t,4)}")
        A(f"s_cbranch_scc1 {L}")
    A("s_barrier")
    erd(0); erd(1)
    A("s_cmp_eq_u32 s3, 1")
    A(f"s_cbranch_scc1 {L_ev}")
    eloop(False)
    A(f"s_branch {L_ej}")
    A(f"{L_ev}:")
    eloop(True)
    A(f"{L_ej}:")
    stamp(A, 2)
    A("s_lshl_b32 s32, s30, 1")
    A("s_lshr_b32 s33, s29, 1")
    A("s_add_u32 s51, s32, s33")
    A("s_and_b32 s53, s29, 1")
    A("v_lshrrev_b32 v6, 1, v3")
    A("v_and_b32 v7, 1, v3")
    A("s_nop 1")
    for t in range(2):
        a = VE + 4*t
        A(f"v_cvt_pk_bf16_f32 v{a}, v{a}, v{a+1}")
        A(f"v_cvt_pk_bf16_f32 v{a+1}, v{a+2}, v{a+3}")
    L_sv, L_fin, L_sig = A.label("sv"), A.label("fin"), A.label("sig")
    A("s_cmp_eq_u32 s3, 1")
    A(f"s_cbranch_scc1 {L_sv}")
    A(f"s_mov_b32 s60, {64*SL}")
    A("s_add_u32 s51, s51, 62")
    A("s_and_b32 s51, s51, 63")
    A(f"s_cselect_b32 s34, 0x40000000, s60")
    A(f"s_mul_i32 s51, s51, {SL}")
    A("s_lshl_b32 s33, s53, 4")
    A("v_add_u32 v8, s33, v2")
    A("v_lshl_add_u32 v6, v6, 5, v8")
    A("v_lshlrev_b32 v6, 4, v6")
    A("v_lshl_add_u32 v6, v7, 3, v6")
    A(f"buffer_store_dwordx2 {vr(VE,2)}, v6, s[8:11], s51 offen sc1")
    A(f"buffer_store_dwordx2 {vr(VE,2)}, v6, s[8:11], s34 offen sc1")
    A("v_cmp_eq_u32 vcc, 0, v3")
    A("v_lshlrev_b32 v6, 3, v8")
    A("v_lshl_or_b32 v6, v3, 28, v6")
    A(f"buffer_store_dwordx2 {vr(VE+4,2)}, v6, s[8:11], s51 offen offset:{OFF_A2} sc1")
    A(f"v_cndmask_b32 v8, 0, v{VE+4}, vcc")
    A(f"v_cndmask_b32 v9, 0, v{VE+5}, vcc")
    A("v_mov_b32 v7, 0")
    for r in (VE, VE+1, 8, 9):
        A(f"v_dot2c_f32_bf16 v7, v{r}, v{r}")
    A("s_nop 2")
    A("v_mov_b32 v6, v7")
    A("s_nop 1")
    A("v_permlane32_swap_b32 v6, v7")
    A("s_nop 1")
    A("v_add_f32 v7, v6, v7")
    A("v_mov_b32 v6, v7")
    A("s_nop 1")
    A("v_permlane16_swap_b32 v6, v7")
    A("s_nop 1")
    A("v_add_f32 v7, v6, v7")
    A(f"s_mov_b32 s34, {WS_KMAX}")
    A(f"s_branch {L_fin}")
    A(f"{L_sv}:")
    A("s_add_u32 s51, s51, 63")
    A("s_and_b32 s51, s51, 63")
    A(f"s_mul_i32 s51, s51, {SL}")
    A("s_mul_i32 s33, s53, 656")
    A("s_add_u32 s51, s51, s33")
    A("v_mul_u32_u24 v6, 20, v6")
    A("v_add_u32 v6, v6, v2")
    A("v_lshlrev_b32 v6, 4, v6")
    A("v_lshl_add_u32 v6, v7, 3, v6")
    A(f"buffer_store_dwordx2 {vr(VE,2)}, v6, s[8:11], s51 offen offset:{OFF_V0} sc1")
    A("v_cmp_eq_u32 vcc, 4, v2")
    A("v_mov_b32 v8, 0x3f803f80")
    A(f"v_cndmask_b32 v{VE+4}, v{VE+4}, v8, vcc")
    A(f"v_cndmask_b32 v{VE+5}, v{VE+5}, v8, vcc")
    A("v_lshrrev_b32 v8, 1, v3")
    A("v_add_u32 v8, 4, v8")
    A("v_cmp_gt_u32 vcc, v8, v2")
    A("v_mov_b32 v8, 0x40000000")
    A("v_cndmask_b32 v6, v8, v6, vcc")
    A(f"buffer_store_dwordx2 {vr(VE+4,2)}, v6, s[8:11], s51 offen offset:{OFF_V0+256} sc1")
    A(f"s_branch {L_main}")
    A(f"{L_rg}:")
    A("v_and_b32 v6, 1, v2")
    A("v_mul_u32_u24 v6, 1280, v6")
    A("v_lshl_add_u32 v18, v3, 4, v6")
    A(f"v_add_u32 v18, {VR}, v18")
    A(f"s_branch {L_main}")
    def fin_key():
        row_max_u32(A, 7)
        A("s_lshr_b32 s33, s50, 2")
        A("s_add_u32 s33, s33, s34")
        A("v_lshlrev_b32 v6, 24, v1")
        A("buffer_store_dword v7, v6, s[8:11], s33 offen sc1")
    A(f"{L_fin}:")
    fin_key()
    A(f"{L_main}:")
    stamp(A, 3)
    def wrd1(hh, mt):
        A(f"ds_read_b64_tr_b16 {vr(H[hh]+4*mt,2)}, v{VB1} offset:{hh*5120 + mt*32}")
        A(f"ds_read_b64_tr_b16 {vr(H[hh]+4*mt+2,2)}, v{VB2} offset:{hh*5120 + mt*32}")
    def half(hh):
        A(f"ds_read_b128 {vr(XF[hh^1],4)}, v{VXA1 if hh == 0 else VXA0}")
        for mt in range(5):
            wrd1(hh ^ 1, mt)
            A("s_waitcnt lgkmcnt(11)")
            A(f"v_mfma_f32_16x16x32_bf16 {vr(VACC+4*mt,4)}, {vr(H[hh]+4*mt,4)}, {vr(XF[hh],4)}, {vr(VACC+4*mt,4)}")
    A("s_mov_b32 s46, 0")
    A(f"s_mov_b32 s34, {-(NS-1)*10240}")
    A("s_lshl_b32 s32, s25, 7")
    A("v_add_u32 v6, s32, v18")
    A("s_waitcnt lgkmcnt(0)")
    A("s_barrier")
    A(f"ds_read_b128 {vr(112,4)}, v6")
    A(f"ds_read_b128 {vr(116,4)}, v6 offset:64")
    A(f"ds_read_b128 {vr(XF[0],4)}, v{VXA0}")
    for mt in range(5):
        wrd1(0, mt)
    L_aw, L_awr = A.label("aw"), A.label("awr")
    def qloop(rg):
        L_c = A.label("c")
        A(f"{L_c}:")
        A("s_add_u32 s46, s46, 1")
        A(f"s_cmp_eq_u32 s46, {NS}")
        A("s_cselect_b32 s32, s34, 10240")
        half(0)
        A(f"v_add_u32 v{VB1}, s32, v{VB1}")
        A(f"v_add_u32 v{VB2}, s32, v{VB2}")
        A(f"v_add_u32 v{VXA0}, 8192, v{VXA0}")
        A(f"v_add_u32 v{VXA1}, 8192, v{VXA1}")
        if rg:
            A("s_add_u32 s25, s25, 1")
            A("s_cmp_eq_u32 s25, 10")
            A("s_cselect_b32 s25, 0, s25")
            A("s_lshl_b32 s32, s25, 7")
            A("v_add_u32 v6, s32, v18")
            A("s_waitcnt lgkmcnt(10)")
            for s_ in range(2):
                A(f"v_mfma_f32_16x16x32_bf16 {vr(VE,4)}, {vr(112+4*s_,4)}, {vr(XF[s_],4)}, {vr(VE,4)}")
            A(f"ds_read_b128 {vr(112,4)}, v6")
            A(f"ds_read_b128 {vr(116,4)}, v6 offset:64")
        if not rg:
            A(f"s_cmp_eq_u32 s46, {SIG}")
            A(f"s_cbranch_scc1 {L_aw}")
            A(f"{L_awr}:")
        A("s_cmp_lt_u32 s46, 10")
        A("s_barrier")
        half(1)
        A(f"s_cbranch_scc1 {L_c}")
    L_rgl, L_rgr = A.label("rgl"), A.label("rgr")
    A("s_cmp_eq_u32 s3, 2")
    A(f"s_cbranch_scc1 {L_rgl}")
    qloop(False)
    A(f"{L_rgr}:")
    stamp(A, 4)
    if X.pfQ: A.pf_start("Q")
    QB1 = [8, 16]; QS = [12, 14]
    VIDX = 4
    VKA, VA2, VVA = 20, 21, 22
    S = [32, 64]
    O = [96, 112]
    KA1 = [128, 136]; KA2 = [132, 140]
    V0 = [144, 152]; V1 = [148, 156]
    A(f"s_mov_b32 s33, {f32bits(QSCALE):#x}")
    A("v_and_b32 v2, 31, v0")
    A("v_lshrrev_b32 v3, 5, v1")
    A("v_cmp_eq_u32 s[44:45], 1, v3")
    A("v_lshlrev_b32 v6, 3, v2")
    A("s_waitcnt lgkmcnt(0)")
    A(f"v_mov_b32 v24, {OFF_V0 + 640 - OFF_A2}")
    A("s_barrier")
    for mt in range(5):
        a = VACC + 4*mt
        for i in range(4):
            A(f"v_mul_f32 v{a+i}, s33, v{a+i}")
        A(f"v_cvt_pk_bf16_f32 v{a}, v{a}, v{a+1}")
        A(f"v_cvt_pk_bf16_f32 v{a+1}, v{a+2}, v{a+3}")
        A(f"ds_write_b64 v13, {vr(a,2)} offset:{mt*1024}")
    A(f"v_cndmask_b32 v{VA2}, v6, v24, s[44:45]")
    A("s_mul_i32 s32, s29, 1280")
    A(f"s_add_u32 s32, s32, {QX}")
    A("v_add_u32 v7, s32, v6")
    A("v_lshl_add_u32 v6, v3, 9, v7")
    A("v_mul_u32_u24 v23, 20, v3")
    A("v_add_u32 v23, v23, v2")
    A("v_cmp_gt_u32 vcc, 20, v2")
    A("v_lshlrev_b32 v26, 3, v1")
    A("v_cndmask_b32 v23, 40, v23, vcc")
    A("v_lshlrev_b32 v23, 4, v23")
    A(f"s_mov_b32 s36, {WS_KMAX}")
    A(f"s_sub_u32 s37, s24, {2*SL}")
    A(f"s_cselect_b32 s37, {62*SL}, s37")
    A(f"s_add_u32 s38, s37, {SL}")
    A("s_waitcnt lgkmcnt(0)")
    A("s_barrier")
    stamp(A, 5)
    A("buffer_load_dwordx2 v[24:25], v26, s[8:11], s36 offen sc1")
    A(f"buffer_load_dwordx4 {vr(KA1[0],4)}, v5, s[8:11], s37 offen sc1")
    A(f"buffer_load_dwordx2 {vr(KA2[0],2)}, v{VA2}, s[8:11], s37 offen offset:{OFF_A2} sc1")
    A(f"buffer_load_dwordx4 {vr(KA1[1],4)}, v5, s[8:11], s38 offen sc1")
    A(f"buffer_load_dwordx2 {vr(KA2[1],2)}, v{VA2}, s[8:11], s38 offen offset:{OFF_A2} sc1")
    A(f"buffer_load_dwordx4 {vr(V0[0],4)}, v23, s[8:11], s38 offen offset:{OFF_V0} sc1")
    A(f"buffer_load_dwordx4 {vr(V1[0],4)}, v23, s[8:11], s38 offen offset:{OFF_V1} sc1")
    A(f"ds_read2_b64 {vr(QB1[0],4)}, v6 offset0:0 offset1:32")
    A(f"ds_read_b64 {vr(QS[0],2)}, v7 offset:1024")
    A("v_add_u32 v6, 5120, v6")
    A(f"ds_read2_b64 {vr(QB1[1],4)}, v6 offset0:0 offset1:32")
    A(f"ds_read_b64 {vr(QS[1],2)}, v7 offset:{1024+5120}")
    A(f"v_mov_b32 v{VKA}, v5")
    A("v_cmp_lt_u32 vcc, 20, v2")
    A("v_mov_b32 v6, 0x40000")
    A(f"v_cndmask_b32 v{VVA}, v23, v6, vcc")
    A(f"v_mov_b32 v{VIDX}, 0xdddd")
    for r in range(O[0], O[0] + 32):
        A(f"v_mov_b32 v{r}, 0")
    for r in range(S[1] + 24, S[1] + 32):
        A(f"v_mov_b32 v{r}, 0")
    for r in range(V1[1], V1[1] + 4):
        A(f"v_mov_b32 v{r}, 0")
    A("v_mov_b32 v26, 0")
    A("v_mov_b32 v28, 0")
    A(f"v_mov_b32 v30, {FCNT}")
    A("s_lshl_b32 s32, s29, 3")
    A("s_lshl_b32 s32, 1, s32")
    A("v_mov_b32 v31, 0")
    A("v_writelane_b32 v31, s32, 0")
    A("s_waitcnt lgkmcnt(0)")
    for b in range(2):
        for r in range(2):
            A(f"v_cndmask_b32 v{QS[b]+r}, v{QS[b]+r}, 0, s[44:45]")
    for r in range(4):
        A(f"v_dot2c_f32_bf16 v26, v{QB1[0]+r}, v{QB1[0]+r}")
        A(f"v_dot2c_f32_bf16 v28, v{QB1[1]+r}, v{QB1[1]+r}")
    for r in range(2):
        A(f"v_dot2c_f32_bf16 v26, v{QS[0]+r}, v{QS[0]+r}")
        A(f"v_dot2c_f32_bf16 v28, v{QS[1]+r}, v{QS[1]+r}")
    A("s_nop 2")
    A("v_mov_b32 v27, v26")
    A("v_mov_b32 v29, v28")
    A("s_nop 1")
    A("v_permlane32_swap_b32 v26, v27")
    A("v_permlane32_swap_b32 v28, v29")
    A("s_nop 1")
    A("v_add_f32 v26, v26, v27")
    A("v_add_f32 v28, v28, v29")
    A("s_waitcnt vmcnt(6)")
    wave_max_u32(A, 24, 25, 34)
    A("v_mul_f32 v26, s34, v26")
    A("v_mul_f32 v28, s34, v28")
    A("v_sqrt_f32 v26, v26")
    A("v_sqrt_f32 v28, v28")
    A("s_nop 0")
    A(f"v_mul_f32 v26, {f32bits(-(1.0 + 2.0**-6)):#x}, v26")
    A(f"v_mul_f32 v28, {f32bits(-(1.0 + 2.0**-6)):#x}, v28")
    A("v_lshrrev_b32 v26, 16, v26")
    A("v_lshrrev_b32 v28, 16, v28")
    A(f"v_cndmask_b32 v{QS[0]}, v{QS[0]}, v26, s[44:45]")
    A(f"v_cndmask_b32 v{QS[1]}, v{QS[1]}, v28, s[44:45]")
    def qs2(buf, par, b):
        A(f"v_mfma_f32_32x32x8_bf16 {vr(S[buf]+16*b,16)}, {vr(KA2[par],2)}, {vr(QS[b],2)}, 0")
    def qk1(buf, par, b):
        A(f"v_mfma_f32_32x32x16_bf16 {vr(S[buf]+16*b,16)}, {vr(KA1[par],4)}, {vr(QB1[b],4)}, {vr(S[buf]+16*b,16)}")
    def pv(buf, b, half, vpar):
        vv = V0[vpar] if half == 0 else V1[vpar]
        A(f"v_smfmac_f32_32x32x32_bf16 {vr(O[b],16)}, {vr(vv,4)}, {vr(S[buf]+16*b+8*half,8)}, v{VIDX}")
    A("s_waitcnt vmcnt(4)")
    qs2(0, 0, 0); qk1(0, 0, 0); qs2(0, 0, 1); qk1(0, 0, 1)
    A("s_mov_b32 s46, 0")
    A("s_waitcnt vmcnt(0)")
    A("s_barrier")
    if X.cprio: A(f"s_setprio {X.cprio}")
    stamp(A, 6)
    if X.pfQ: A.pf_stop("PFRET_Q")
    A("s_nop 7")
    L_loop, L_sp, L_kr = A.label("loop"), A.label("sp"), A.label("kr")
    A(f"{L_loop}:")
    if X.itst:
        A("s_memtime s[60:61]")
        A("s_lshl_b32 s64, s2, 2")
        A("s_add_u32 s64, s64, s29")
        A("s_lshl_b32 s64, s64, 7")
        A("s_lshl_b32 s65, s46, 3")
        A("s_add_u32 s64, s64, s65")
        A(f"s_add_u32 s64, s64, {WS_ST + 0x200000}")
        A("s_waitcnt lgkmcnt(0)")
        A("v_mov_b32 v200, s60")
        A("v_mov_b32 v201, s61")
        A("v_lshlrev_b32 v204, 24, v1")
        A("buffer_store_dwordx2 v[200:201], v204, s[8:11], s64 offen")
    sched = {2: 'pv1p', 6: 's2a', 10: 'q1a', 14: 'pv0a', 18: 'pv1a', 22: 's2b', 26: 'q1b', 30: 'pv0b'}
    for t in range(U_TILES):
        par = t & 1
        off = t * SL
        for e in range(32):
            op = sched.get(e)
            if op == 'pv1p':
                pv(par ^ 1, 1, 1, par ^ 1)
                A("s_waitcnt lgkmcnt(0)")
                A(f"ds_read_b128 {vr(V0[par^1],4)}, v{VVA} offset:{off+OFF_V0}")
                A(f"ds_read_b128 {vr(V1[par^1],4)}, v{VVA} offset:{off+OFF_V1}")
            if op == 's2a': qs2(par ^ 1, par ^ 1, 0)
            if op == 's2b': qs2(par ^ 1, par ^ 1, 1)
            if op == 'pv0a':
                pv(par, 0, 0, par)
                A(f"ds_read_b128 {vr(KA1[par],4)}, v{VKA} offset:{off}")
                A(f"ds_read_b64 {vr(KA2[par],2)}, v{VA2} offset:{off+OFF_A2}")
            if op == 'q1a': qk1(par ^ 1, par ^ 1, 0)
            if op == 'pv1a': pv(par, 0, 1, par)
            if op == 'q1b': qk1(par ^ 1, par ^ 1, 1)
            if op in ('q1a', 'q1b') and X.pad: A(f"s_nop {X.pad - 1}")
            if op == 'pv0b':
                pv(par, 1, 0, par)
                if t == U_TILES - 1:
                    A("s_add_u32 s46, s46, 1")
                    A("s_bitcmp1_b32 0x12e, s46")
                    A(f"v_add_u32 v{VKA}, {U_TILES*SL}, v{VKA}")
                    A(f"v_add_u32 v{VA2}, {U_TILES*SL}, v{VA2}")
                    A(f"v_add_u32 v{VVA}, {U_TILES*SL}, v{VVA}")
            A(f"v_exp_f32 v{S[par]+e}, v{S[par]+e}")
    A(f"s_cbranch_scc0 {L_loop}")
    A("s_cmp_gt_u32 s46, 1")
    A(f"s_cbranch_scc1 {L_sp}")
    A("s_barrier")
    A(f"s_branch {L_loop}")
    A(f"{L_kr}:")
    A("ds_read_b32 v24, v30 offset:16")
    A("s_waitcnt lgkmcnt(0)")
    A("v_readfirstlane_b32 s32, v24")
    A("s_cmp_lt_u32 s32, 256")
    A(f"s_cbranch_scc1 {L_kr}")
    A(f"s_branch {L_loop}")
    A(f"{L_sp}:")
    A("s_cmp_eq_u32 s46, 2")
    A(f"s_cbranch_scc1 {L_kr}")
    A("s_waitcnt lgkmcnt(0)")
    A("ds_add_u32 v30, v31 offset:4")
    A("s_cmp_lt_u32 s46, 8")
    A(f"s_cbranch_scc1 {L_loop}")
    if not X.pdiag: stamp(A, 7)
    if X.pfT: A.pf_start("T")
    pv(1, 1, 1, 1)
    A(f"v_mov_b32 v26, {LTHR:#x}")
    A("s_nop 1")
    L_fb, L_norm = A.label("fb"), A.label("norm")
    A(f"v_rcp_f32 v28, v{O[0]+8}")
    A("s_nop 0")
    A("v_mov_b32 v29, v28")
    A("s_nop 1")
    A("v_permlane32_swap_b32 v28, v29")
    A("s_nop 3")
    A(f"v_min_f32 v27, v{O[0]+8}, v{O[1]+8}")
    A(f"v_cmp_nge_f32 vcc, v27, v26")
    A(f"v_cmp_u_f32 s[36:37], v{O[0]+8}, v{O[1]+8}")
    A("s_or_b64 vcc, vcc, s[36:37]")
    A("s_and_b64 vcc, vcc, s[44:45]")
    A(f"s_cbranch_vccnz {L_fb}")
    A(f"{L_norm}:")
    A(f"v_rcp_f32 v26, v{O[1]+8}")
    for r in range(12):
        A(f"v_mul_f32 v{O[0]+r}, v{O[0]+r}, v29")
    A("v_mov_b32 v27, v26")
    for r in range(6):
        A(f"v_cvt_pk_bf16_f32 v{S[0]+r}, v{O[0]+2*r}, v{O[0]+2*r+1}")
    A("v_permlane32_swap_b32 v26, v27")
    A(f"buffer_store_dwordx4 {vr(S[0],4)}, v{POA}, s[8:11], s74 offen sc1")
    A(f"buffer_store_dwordx2 {vr(S[0]+4,2)}, v{POB}, s[8:11], s75 offen sc1")
    for r in range(12):
        A(f"v_mul_f32 v{O[1]+r}, v{O[1]+r}, v27")
    for r in range(6):
        A(f"v_cvt_pk_bf16_f32 v{S[0]+8+r}, v{O[1]+2*r}, v{O[1]+2*r+1}")
    A(f"buffer_store_dwordx4 {vr(S[0]+8,4)}, v{POA}, s[8:11], s58 offen sc1")
    A(f"buffer_store_dwordx2 {vr(S[0]+12,2)}, v{POB}, s[8:11], s59 offen sc1")
    ACC = 8; OF = 56
    WFS = list(range(96, 160, 4)) + list(range(176, 256, 4))
    NPRE = 7
    XV = 28; G = 48
    TT = list(range(36, 48)) + list(range(52, 56))
    def wslot(s, mt):
        return WFS[5*(s % NPRE) + mt]
    def wrd(s, mt):
        slot = wslot(s, mt)
        if s < 8:
            b, off, o2 = PM, s * 6400 + mt * 32, 1280
        else:
            b, off, o2 = PT, (s - 8) * 25600 + mt * 32, 3200
        A(f"ds_read_b64_tr_b16 {vr(slot,2)}, v{b} offset:{off}")
        A(f"ds_read_b64_tr_b16 {vr(slot+2,2)}, v{b} offset:{off+o2}")
    def gx_loads(xv):
        A("s_mov_b32 s20, s4")
        A("s_and_b32 s21, s5, 0xffff")
        A(f"v_lshlrev_b32 v6, 2, v{PTK}")
        A(f"s_mov_b32 s32, {WS_G}")
        A(f"buffer_load_dword v{G}, v6, s[8:11], s32 offen sc1")
        A(f"buffer_load_dword v{G+1}, v6, s[8:11], s32 offen offset:16 sc1")
        A(f"buffer_load_dwordx4 {vr(xv,4)}, v{PX}, s[20:23], 0 offen")
        A(f"buffer_load_dwordx4 {vr(xv+4,4)}, v{PX}, s[20:23], s55 offen")
        A(f"s_mov_b32 s46, {SPIN}")
        A("s_mov_b32 s71, -1")
        A("s_mov_b32 s47, 0")
    def gate_math():
        for j in range(2):
            bf16r(A, G+j, G+j)
            sigmoid(A, G+j, G+j, G+2)
            bf16r(A, G+j, G+j)
        for j in range(2):
            A(f"v_sub_f32 v{G+2+j}, 1.0, v{G+j}")
            bf16r(A, G+2+j, G+2+j)
        for i in range(8):
            A(f"v_lshlrev_b32 v{TT[2*i]}, 16, v{XV+i}")
            A(f"v_and_b32 v{TT[2*i+1]}, 0xffff0000, v{XV+i}")
        A("s_mov_b32 s20, s6")
        A("s_and_b32 s21, s7, 0xffff")
    RL = [A.label("rl") for _ in range(10)]
    RC = [A.label("rc") for _ in range(10)]
    RT = [A.label("rt") for _ in range(10)]
    L_disp, L_h2, L_h3, L_ng2 = A.label("disp"), A.label("h2"), A.label("h3"), A.label("ng2")
    A("s_barrier")
    A(f"{L_op}:")
    for s in range(NPRE):
        for mt in range(5):
            wrd(s, mt)
    gx_loads(XV)
    A("s_cmp_lg_u32 s72, 0")
    A(f"s_cbranch_scc1 {L_h2}")
    A("s_waitcnt vmcnt(4)")
    A("s_barrier")
    L_rl, L_mm, L_rt, L_sel, L_nosel = A.label("rl"), A.label("mm"), A.label("rt"), A.label("sel"), A.label("nosel")
    A("s_waitcnt vmcnt(0)")
    gate_math()
    A(f"{L_h3}:")
    A(f"v_mov_b32 v6, {FCNT}")
    A("ds_read_b32 v6, v6 offset:12")
    A("s_waitcnt lgkmcnt(0)")
    A("v_readfirstlane_b32 s56, v6")
    A("s_lshr_b32 s33, s52, 3")
    A("s_lshr_b32 s32, s56, 3")
    A("s_cmp_eq_u32 s32, s33")
    A(f"s_cbranch_scc1 {L_sel}")
    A(f"{L_nosel}:")
    for i in range(0, 16, 2):
        A(f"v_pk_mul_f32 {vr(TT[i],2)}, {vr(TT[i],2)}, {vr(G+2,2)} " + ("op_sel:[0,0] op_sel_hi:[1,0]" if i < 8 else "op_sel:[0,1] op_sel_hi:[1,1]"))
    A("s_cmp_eq_u32 s72, 0")
    A(f"s_cbranch_scc1 {L_rl}")
    A("s_barrier")
    A(f"{L_rl}:")
    if not X.pdiag: stamp(A, 8)
    for s in range(10):
        if s < 8:
            A(f"buffer_load_dwordx4 {vr(OF+4*s,4)}, v5, s[8:11], s{12+s} offen sc1")
        else:
            A(f"buffer_load_dwordx4 {vr(OF+4*s,4)}, v{PO0+s-8}, s[8:11], s70 offen sc1")
    A(f"{L_mm}:")
    if X.tdiag: stamp(A, 1)
    A("v_mov_b32 v6, 0")
    for s in range(10):
        A(f"s_waitcnt vmcnt({9-s})" + (" lgkmcnt(0)" if s in (0, NPRE) else ""))
        if X.tdiag and s in (0, 4, 9): stamp(A, {0: 2, 4: 3, 9: 4}[s])
        o = OF + 4*s
        for mt in range(5):
            A(f"v_mfma_f32_16x16x32_bf16 {vr(ACC+4*mt,4)}, {vr(wslot(s,mt),4)}, {vr(OF+4*s,4)}, {vr(ACC+4*mt,4) if s else 0}")
            if mt < 2: A(f"v_max3_u32 v6, v{o+2*mt}, v{o+2*mt+1}, v6")
            if s + NPRE < 10 and mt > 0: wrd(s + NPRE, mt - 1)
        if s + NPRE < 10: wrd(s + NPRE, 4)
    A("v_cmp_eq_u32 vcc, s71, v6")
    A(f"s_cbranch_vccnz {L_rt}")
    A("s_nop 1")
    for mt in range(5):
        A(f"ds_write_b128 v{PPW}, {vr(ACC+4*mt,4)} offset:{mt*64}")
        if mt == 0: A("s_nop 3")
    A("s_waitcnt lgkmcnt(0)")
    if not X.pdiag: stamp(A, 9)
    A("s_barrier")
    if X.tdiag:
        stamp(A, 5)
        A("s_waitcnt lgkmcnt(0)")
        A(f"s_mov_b32 s{SB+12}, s46")
        A(f"s_mov_b32 s{SB+13}, 0")
    P = 96
    for j in range(2):
        for k in range(2):
            for h in range(2):
                A(f"ds_read_b128 {vr(P+16*j+8*k+4*h,4)}, v{PPR} offset:{j*1344 + k*21504 + h*16}")
    for j in range(2):
        A(f"s_waitcnt lgkmcnt({4*(1-j)})")
        for i in range(0, 8, 2):
            A(f"v_pk_add_f32 {vr(P+16*j+i,2)}, {vr(P+16*j+i,2)}, {vr(P+16*j+8+i,2)}")
        for i in range(0, 8, 2):
            A(f"v_pk_fma_f32 {vr(TT[8*j+i],2)}, {vr(P+16*j+i,2)}, {vr(G,2)}, {vr(TT[8*j+i],2)} " + ("op_sel:[0,0,0] op_sel_hi:[1,0,1]" if j == 0 else "op_sel:[0,1,0] op_sel_hi:[1,1,1]"))
        for i in range(4):
            A(f"v_cvt_pk_bf16_f32 v{XV+4*j+i}, v{TT[8*j+2*i]}, v{TT[8*j+2*i+1]}")
        A(f"buffer_store_dwordx4 {vr(XV+4*j,4)}, v{PX}, s[20:23], {'0' if j == 0 else 's55'} offen {X.ost}")
    if X.pfT: A.pf_stop("PFRET_T")
    stamp_rt(A, 10)
    stamp_flush(A, 11, 8, 29)
    A(f"{L_exit}:")
    A("s_endpgm")
    A(f"{L_rt}:")
    A("s_mov_b32 s47, 1")
    A("s_sub_u32 s46, s46, 1")
    A("s_cselect_b32 s71, 0x12345, s71")
    A("s_cselect_b32 s46, 0, s46")
    for s_ in range(10 - NPRE):
        for mt in range(5):
            wrd(s_, mt)
    A(f"s_branch {L_rl}")
    A(f"{L_sel}:")
    A(f"ds_read_b128 {vr(XV,4)}, v{PY}")
    A(f"ds_read_b128 {vr(XV+4,4)}, v{PY} offset:16")
    A("s_waitcnt lgkmcnt(0)")
    for j in range(2):
        A(f"v_add_u32 v6, {4*j}, v{PTK}")
        A("v_cmp_eq_u32 vcc, s56, v6")
        for i in range(8):
            A(f"v_add_f32 v6, v{TT[8*j+i]}, v{XV+i}")
            bf16r(A, 6, 6)
            A(f"v_cndmask_b32 v{TT[8*j+i]}, v{TT[8*j+i]}, v6, vcc")
    A(f"s_branch {L_nosel}")
    A(f"{L_aw}:")
    A("s_waitcnt vmcnt(0)")
    A(f"s_branch {L_awr}")
    A(f"{L_rgl}:")
    qloop(True)
    A("v_add_u32 v8, s50, v2")
    A("v_lshlrev_b32 v6, 2, v8")
    A("v_lshl_or_b32 v6, v3, 28, v6")
    A("v_sub_u32 v8, 2047, v8")
    A(f"s_mov_b32 s33, {WS_R}")
    A(f"s_mov_b32 s34, {WS_G}")
    A(f"buffer_store_dword v{VE}, v6, s[8:11], s33 offen sc1")
    A(f"buffer_store_dword v{VE+1}, v6, s[8:11], s34 offen sc1")
    A(f"v_ashrrev_i32 v7, 31, v{VE}")
    A("v_or_b32 v7, 0x80000000, v7")
    A(f"v_xor_b32 v7, v7, v{VE}")
    A("v_and_b32 v7, 0xfffff800, v7")
    A("v_or_b32 v7, v7, v8")
    A(f"s_mov_b32 s34, {WS_RKEY}")
    fin_key()
    A("s_mul_i32 s32, s50, 20")
    A(f"s_add_u32 s32, s32, {WS_Y}")
    A("v_cmp_gt_u32 vcc, 20, v1")
    A("v_mov_b32 v7, 0x40000000")
    A("v_cndmask_b32 v6, v7, v5, vcc")
    A(f"buffer_store_dwordx4 {vr(VE+4,4)}, v6, s[8:11], s32 offen sc1")
    A("s_lshl_b32 s32, s30, 7")
    A(f"s_add_u32 s33, s32, {WS_GC}")
    A(f"buffer_store_dword v{VE+4}, v24, s[8:11], s33 offen sc1")
    A(f"s_add_u32 s33, s32, {WS_FC}")
    A(f"buffer_store_dword v{VE+4}, v24, s[8:11], s33 offen sc1")
    A(f"s_branch {L_rgr}")
    A(f"{L_fb}:")
    A("v_lshlrev_b32 v21, 3, v2")
    for b in range(2):
        A(f"v_cndmask_b32 v{QS[b]}, v{QS[b]}, 0, s[44:45]")
    A("v_mov_b32 v30, 0xff800000")
    A("v_mov_b32 v31, 0xff800000")
    L_p1, L_p2 = A.label("p1"), A.label("p2")
    def fb_s():
        A(f"buffer_load_dwordx4 {vr(KA1[0],4)}, v5, s[8:11], s32 offen sc1")
        A(f"buffer_load_dwordx2 {vr(KA2[0],2)}, v21, s[8:11], s32 offen offset:{OFF_A2} sc1")
    def fb_qk():
        A("s_waitcnt vmcnt(0)")
        qs2(0, 0, 0); qk1(0, 0, 0); qs2(0, 0, 1); qk1(0, 0, 1)
        A("s_nop 15")
    A("s_mov_b32 s32, 0")
    A(f"{L_p1}:")
    fb_s(); fb_qk()
    for r in range(0, 16, 2):
        A(f"v_max3_f32 v30, v{S[0]+r}, v{S[0]+r+1}, v30")
        A(f"v_max3_f32 v31, v{S[0]+16+r}, v{S[0]+16+r+1}, v31")
    A(f"s_add_u32 s32, s32, {SL}")
    A(f"s_cmp_lt_u32 s32, {64*SL}")
    A(f"s_cbranch_scc1 {L_p1}")
    A("v_mov_b32 v28, v30")
    A("v_mov_b32 v29, v31")
    A("s_nop 1")
    A("v_permlane32_swap_b32 v30, v28")
    A("v_permlane32_swap_b32 v31, v29")
    A("s_nop 1")
    A("v_max_f32 v30, v30, v28")
    A("v_max_f32 v31, v31, v29")
    for r in range(32):
        A(f"v_mov_b32 v{O[0]+r}, 0")
    A("s_mov_b32 s32, 0")
    A(f"{L_p2}:")
    fb_s()
    A(f"s_add_u32 s32, s32, {SL}")
    A(f"s_cmp_lt_u32 s32, {64*SL}")
    A("s_cselect_b32 s33, s32, 0")
    A(f"buffer_load_dwordx4 {vr(V0[0],4)}, v23, s[8:11], s33 offen offset:{OFF_V0} sc1")
    A(f"buffer_load_dwordx4 {vr(V1[0],4)}, v23, s[8:11], s33 offen offset:{OFF_V1} sc1")
    fb_qk()
    for r in range(32):
        A(f"v_sub_f32 v{S[0]+r}, v{S[0]+r}, v{30 + r // 16}")
    for r in range(32):
        A(f"v_exp_f32 v{S[0]+r}, v{S[0]+r}")
    A("s_nop 2")
    pv(0, 0, 0, 0); pv(0, 1, 0, 0); pv(0, 0, 1, 0); pv(0, 1, 1, 0)
    A(f"s_cmp_lt_u32 s32, {64*SL}")
    A(f"s_cbranch_scc1 {L_p2}")
    A("s_nop 15")
    A(f"v_rcp_f32 v28, v{O[0]+8}")
    A("s_nop 0")
    A("v_mov_b32 v29, v28")
    A("s_nop 1")
    A("v_permlane32_swap_b32 v28, v29")
    A("s_nop 1")
    A(f"s_branch {L_norm}")

    def early_setup():
        common_setup()
        oproj_addr()
        o_addr()
        for i in range(4):
            A(f"v_mov_b32 v{176+i}, -1")
        A(f"v_mov_b32 v173, {FCNT}")
        A("v_mov_b32 v6, 0")
        A("v_mov_b32 v7, 0")
        A("v_lshlrev_b32 v10, 3, v1")
        A("v_mul_u32_u24 v11, 3072, v1")
        A("v_cmp_gt_u32 vcc, 40, v1")
        A("v_mov_b32 v4, 0x40000000")
        A("v_cndmask_b32 v4, v4, v10, vcc")
        A("v_mov_b32 v175, 1")
        A("v_lshlrev_b32 v9, 1, v1")
        for j in range(12):
            A(f"v_mov_b32 v{12+j}, 0")
        A("v_and_b32 v8, 7, v1")
        A("v_lshlrev_b32 v8, 2, v8")
        A(f"v_add_u32 v8, {FB}, v8")
        A("s_lshl_b32 s32, s26, 5")
        A(f"s_add_u32 s32, s32, {FB}")
        A("v_lshl_add_u32 v25, v3, 3, s32")
        A("v_lshlrev_b32 v26, 1, v4")

    A(".MARK_H_BEGIN")
    A(f"{L_help}:")
    A("s_mov_b32 s72, 1")
    A("s_sub_u32 s26, s29, 4")
    A("v_lshrrev_b32 v6, 3, v1")
    A("v_and_b32 v7, 7, v1")
    A("v_lshrrev_b32 v8, 1, v6")
    A("v_xor_b32 v7, v7, v8")
    A("v_mul_u32_u24 v6, 1280, v6")
    A("v_lshl_add_u32 v181, v7, 4, v6")
    A("v_xor_b32 v182, 64, v181")
    A("v_add_u32 v182, 9216, v182")
    A("v_mul_u32_u24 v2, 26, v1")
    A("v_lshrrev_b32 v2, 8, v2")
    A("v_mul_u32_u24 v3, 10, v2")
    A("v_sub_u32 v3, v1, v3")
    A("v_mul_u32_u24 v2, 1280, v2")
    A("v_lshl_add_u32 v172, v3, 4, v2")
    A("v_add_u32 v183, 17920, v172")
    A("s_mul_i32 s63, s30, 81920")
    A("s_mul_i32 s32, s26, 20480")
    A("s_add_u32 s63, s63, s32")
    A("s_lshl_b32 s64, s26, 11")
    A("s_lshr_b32 s32, s26, 1")
    A("s_xor_b32 s32, s32, s26")
    A("s_mul_i32 s61, s32, 5120")
    A("s_mul_i32 s33, s31, 160")
    A("s_add_u32 s61, s61, s33")
    A("s_mul_i32 s62, s26, 640")
    A(f"s_add_u32 s62, s62, {WR}")
    A("s_mov_b32 s66, -1")
    A("s_movk_i32 s67, 0xff")
    A(f"s_mov_b32 s14, {X_BYTES}")
    A("s_mov_b32 s15, 0x00020000")
    A(f"s_mov_b32 s18, {W_BYTES}")
    A("s_mov_b32 s19, 0x00020000")
    A("s_mov_b32 s23, 0x00020000")
    A("s_lshl_b32 s35, s26, 10")
    A("s_mov_b32 s65, s25")
    A("s_lshl_b32 s32, s26, 3")
    A("s_or_b32 s32, s32, s3")
    A("s_cmp_lt_u32 s32, 2")
    A(f"s_cselect_b32 s69, {SIG + DN + 1}, 99")
    A("s_waitcnt lgkmcnt(0)")
    hst(A, 1)
    A("s_mov_b32 s12, s36")
    A("s_and_b32 s13, s37, 0xffff")
    A("s_mov_b32 s16, s38")
    A("s_and_b32 s17, s39, 0xffff")
    def xpiece():
        A("s_lshl_b32 s32, s65, 7")
        A("s_mov_b32 m0, s64")
        A("s_add_u32 s32, s32, s63")
        A("s_add_u32 s64, s64, 8192")
        A("buffer_load_dwordx4 v181, s[12:15], s32 offen lds")
        A("buffer_load_dwordx4 v182, s[12:15], s32 offen offset:1024 lds")
        A("s_add_u32 s65, s65, 1")
        A("s_cmp_eq_u32 s65, 10")
        A("s_cselect_b32 s65, 0, s65")
    def wchunk():
        A("s_mul_i32 s33, s25, 81920")
        A("s_mov_b32 m0, s62")
        A("s_add_u32 s33, s33, s61")
        A("s_mov_b64 exec, s[66:67]")
        A("buffer_load_dwordx4 v172, s[16:19], s33 offen lds")
        A("buffer_load_dwordx4 v183, s[16:19], s33 offen offset:2560 lds")
        A("s_add_u32 m0, s62, 5120")
        A("s_add_u32 s33, s33, 40960")
        A("buffer_load_dwordx4 v172, s[16:19], s33 offen lds")
        A("buffer_load_dwordx4 v183, s[16:19], s33 offen offset:2560 lds")
        A("s_mov_b64 exec, -1")
        A("s_add_u32 s62, s62, 10240")
        A(f"s_cmp_ge_u32 s62, {WR + NS*10240}")
        A(f"s_cselect_b32 s32, {NS*10240}, 0")
        A("s_sub_u32 s62, s62, s32")
        A("s_add_u32 s25, s25, 1")
        A("s_cmp_eq_u32 s25, 10")
        A("s_cselect_b32 s25, 0, s25")
    L_prod, L_p1d, L_nv2 = A.label("prod"), A.label("p1d"), A.label("nv2")
    A("s_cmp_lt_u32 s3, 2")
    A(f"s_cbranch_scc1 {L_prod}")
    A("s_cmp_lg_u32 s3, 2")
    A(f"s_cbranch_scc1 {L_nv2}")
    A("s_bitcmp1_b32 s26, 0")
    A("s_cselect_b32 s20, s4, s44")
    A("s_cselect_b32 s21, s5, s45")
    A("s_and_b32 s21, s21, 0xffff")
    A("s_movk_i32 s22, 1280")
    A("s_lshr_b32 s32, s26, 1")
    A("s_mul_i32 s32, s32, 640")
    A("s_and_b32 s33, s26, 1")
    A("s_mul_i32 s33, s33, 1280")
    A("s_add_u32 s33, s33, s32")
    A(f"s_add_u32 m0, s33, {VR}")
    A("s_mov_b64 exec, s[66:67]")
    A(f"buffer_load_dwordx4 v5, s[20:23], s32 offen lds")
    A("s_mov_b64 exec, -1")
    A(f"{L_nv2}:")
    L_l, L_x = A.label("l"), A.label("x")
    A(f"{L_x}:")
    xpiece()
    A("s_cmp_lg_u32 s65, s25")
    A(f"s_cbranch_scc1 {L_x}")
    early_setup()
    A("s_mov_b32 s46, 0")
    A("s_mov_b32 s34, 1")
    A(f"{L_l}:")
    wchunk()
    A("s_add_u32 s46, s46, 1")
    A(f"s_cmp_le_u32 s46, {DN}")
    A(f"s_cbranch_scc1 {L_l}")
    def chk():
        if X.direct: return
        L = A.label("chk")
        A("s_cmp_lg_u32 s34, 63")
        A(f"s_cbranch_scc1 {L}")
        A("s_mov_b32 s34, 1")
        A("s_atomic_add s34, s[48:49], 0x80")
        A(f"{L}:")
    L_ns, L_lw = A.label("ns"), A.label("lw")
    A(f"{L_lw}:")
    A(f"s_waitcnt vmcnt({4*DN})")
    chk()
    A("s_barrier")
    A("s_cmp_lg_u32 s46, s69")
    A(f"s_cbranch_scc1 {L_ns}")
    A("s_atomic_add s34, s[48:49], 0x0" + ("" if X.direct else " glc"))
    hst(A, 6)
    A(f"{L_ns}:")
    A("s_cmp_lt_u32 s46, 10")
    A(f"s_cbranch_scc1 {L_l}")
    for d in range(DN - 1, -1, -1):
        A(f"s_waitcnt vmcnt({4*d})" + (" lgkmcnt(0)" if d == 0 else ""))
        chk()
        A("s_barrier")
    A(f"s_branch {L_p1d}")
    A(f"{L_prod}:")
    A("s_cmp_eq_u32 s3, 0")
    A("s_cselect_b32 s20, s40, s42")
    A("s_cselect_b32 s21, s41, s43")
    A("s_and_b32 s21, s21, 0xffff")
    A("s_movk_i32 s22, 25600")
    A("s_mul_i32 s35, s26, 640")
    A(f"s_add_u32 s68, s35, {ER}")
    A("s_mov_b32 s46, 0")
    L_a, L_w = A.label("a"), A.label("w")
    A(f"{L_a}:")
    A("s_mul_i32 s34, s65, 2560")
    A("s_mov_b32 m0, s68")
    A("s_add_u32 s34, s34, s35")
    A("s_mov_b64 exec, s[66:67]")
    A("buffer_load_dwordx4 v5, s[20:23], s34 offen lds")
    A("buffer_load_dwordx4 v5, s[20:23], s34 offen offset:2560 lds")
    A("s_mov_b64 exec, -1")
    A("s_add_u32 s68, s68, 5120")
    xpiece(); xpiece()
    A("s_add_u32 s46, s46, 1")
    A("s_cmp_le_u32 s46, 2")
    A(f"s_cbranch_scc1 {L_a}")
    A("s_waitcnt vmcnt(12)")
    A("s_barrier")
    A("s_cmp_lt_u32 s46, 5")
    A(f"s_cbranch_scc1 {L_a}")
    A("s_mov_b32 s46, 0")
    wchunk()
    A("s_waitcnt vmcnt(10)")
    A("s_barrier")
    wchunk()
    A("s_waitcnt vmcnt(8)")
    A("s_barrier")
    hst(A, 2)
    wchunk()
    A("s_barrier")
    hst(A, 3)
    wchunk()
    early_setup()
    A("s_mov_b32 s46, 4")
    A("s_mov_b32 s34, 1")
    A(f"s_branch {L_lw}")
    A(f"{L_p1d}:")
    A("s_branch L_HELP2")
    A(".MARK_H_END")
    A("L_HELP2:")
    A(f"s_load_dwordx2 s[38:39], s[0:1], {KA_WO}")
    A(f"s_load_dwordx4 s[40:43], s[0:1], {KA_WG}")
    A(f"s_load_dwordx2 s[44:45], s[0:1], {KA_WD}")
    common_setup2()
    A("v_lshlrev_b32 v174, 24, v1")
    if not X.direct: A("buffer_load_dword v29, v174, s[76:79], 0 offen offset:128 sc1")
    A("s_mov_b32 s4, s36")
    A("s_mov_b32 s5, s37")
    A("s_lshl_b32 s32, s26, 10")
    A("s_mov_b32 m0, s32")
    A("s_add_u32 s53, s32, s24")
    A("s_barrier")
    A("s_barrier")
    hst(A, 8)
    A("s_mul_i32 s64, s26, 5120")
    A("s_add_u32 s64, s64, s54")
    A("s_mul_i32 s32, s73, 51200")
    A("s_add_u32 s64, s64, s32")
    A(f"s_mov_b32 s69, {320*1280}")
    A("s_mul_i32 s65, s26, 640")
    A("s_waitcnt lgkmcnt(0)")
    srd(A, 60, 38, W_BYTES)
    L_g1, L_g2 = A.label("g1"), A.label("g2")
    if X.direct:
        A("s_cmp_lg_u32 s26, 0")
        A(f"s_cbranch_scc1 {L_g1}")
        await_cnt(A, 28, X.gsl)
    else:
        A("s_waitcnt vmcnt(0)")
        A("v_readfirstlane_b32 s32, v29")
        A("s_or_b32 s32, s32, s26")
        A("s_cmp_lg_u32 s32, 0")
        A(f"s_cbranch_scc1 {L_g1}")
        await_go(A, 0, 28, X.gsl)
    A(f"{L_g1}:")
    hst(A, 9)
    A("s_barrier")
    if not X.pdiag: stamp(A, 1)
    def dma(n):
        L = A.label("dma")
        A(f"s_add_u32 s34, m0, {n*4096}")
        A(f"{L}:")
        A("buffer_load_dwordx4 v5, s[8:11], s53 offen sc1 lds")
        A("s_add_u32 m0, m0, 4096")
        A("s_add_u32 s53, s53, 4096")
        A(f"s_cmp_ge_u32 s53, {64*SL}")
        A(f"s_cselect_b32 s32, {64*SL}, 0")
        A("s_sub_u32 s53, s53, s32")
        A("s_cmp_lt_u32 m0, s34")
        A(f"s_cbranch_scc1 {L}")
    def need(tiles):
        return min(40, -(-(-(-tiles*SL // 1024)) // 4))
    n0, n1 = need(U_TILES), need(U_TILES * 2)
    nb = X.nb0
    dma(nb)
    A(f"s_waitcnt vmcnt({nb - n0})")
    A("s_barrier")
    L_b2, L_b3, L_b4 = A.label("b2"), A.label("b3"), A.label("b4")
    A("s_lshl_b32 s32, s26, 3")
    A("s_or_b32 s32, s32, s3")
    A("s_mov_b32 s35, 1")
    A("s_cmp_lg_u32 s32, 2")
    A(f"s_cbranch_scc1 {L_b3}")
    A("s_atomic_add s35, s[48:49], 0x4 glc")
    A(f"{L_b3}:")
    A("ds_write_b64 v173, v[6:7]")
    A("ds_write_b64 v173, v[6:7] offset:8")
    A("ds_write_b32 v173, v6 offset:16")
    dma(40 - nb - 1)
    A("s_cmp_eq_u32 s26, 3")
    A("s_cselect_b32 s32, 0x3fffffff, -1")
    A("s_cselect_b32 s33, 0, -1")
    A("s_mov_b64 exec, s[32:33]")
    A("buffer_load_dwordx4 v5, s[8:11], s53 offen sc1 lds")
    A("s_mov_b64 exec, -1")
    A(f"s_waitcnt vmcnt({40 - n1}) lgkmcnt(0)")
    A("s_cmp_lg_u32 s35, 31")
    A(f"s_cbranch_scc1 {L_b4}")
    A("s_atomic_add s35, s[48:49], 0x84")
    A(f"{L_b4}:")
    A("s_barrier")
    A(f"buffer_store_dwordx4 v[176:179], v{POA}, s[8:11], s74 offen sc1")
    A(f"buffer_store_dwordx2 v[176:177], v{POB}, s[8:11], s75 offen sc1")
    A(f"buffer_store_dwordx4 v[176:179], v{POA}, s[8:11], s58 offen sc1")
    A(f"buffer_store_dwordx2 v[176:177], v{POB}, s[8:11], s59 offen sc1")
    if not X.pdiag: stamp(A, 2)
    def lds_wait(off, thr, slp=2):
        Lp = A.label("lw")
        A(f"{Lp}:")
        A(f"ds_read_b32 v171, v173 offset:{off}")
        A("s_waitcnt lgkmcnt(0)")
        A("v_readfirstlane_b32 s32, v171")
        A(f"s_sleep {slp}")
        A(f"s_cmp_lt_u32 s32, {thr}")
        A(f"s_cbranch_scc1 {Lp}")
    def wo_part(thr):
        Lw = A.label("wl")
        Lp = A.label("pw")
        A(f"{Lp}:")
        A("ds_read_b32 v171, v173 offset:4")
        A("s_waitcnt lgkmcnt(0)")
        A("v_readfirstlane_b32 s32, v171")
        A(f"s_sleep {X.slp}")
        if thr == 256:
            A("s_lshl_b32 s33, s32, 1")
            A("s_or_b32 s32, s32, s33")
        A("s_andn2_b32 s32, 0x02020202, s32")
        A(f"s_cbranch_scc1 {Lp}")
        if X.nowo: return
        A(f"s_add_u32 s34, s65, 51200")
        A("s_mov_b64 exec, s[66:67]")
        A(f"{Lw}:")
        A("s_mov_b32 m0, s65")
        A("s_add_u32 s32, s64, s69")
        A("buffer_load_dwordx4 v172, s[60:63], s32 offen lds")
        A("s_add_u32 s65, s65, 2560")
        A("s_add_u32 s64, s64, 20480")
        A("s_cmp_ge_u32 s64, 409600")
        A("s_cselect_b32 s32, 409600, 0")
        A("s_sub_u32 s64, s64, s32")
        A("s_cmp_lt_u32 s65, s34")
        A(f"s_cbranch_scc1 {Lw}")
        A("s_mov_b64 exec, -1")
    A("buffer_load_dword v28, v174, s[76:79], 0 offen offset:132 sc1")
    A("s_waitcnt vmcnt(0)")
    A("ds_add_u32 v173, v175 offset:16")
    A("v_readfirstlane_b32 s32, v28")
    A("s_cmp_lg_u32 s32, 0")
    A(f"s_cbranch_scc1 {L_b2}")
    await_go(A, 4, 28, 8)
    A(f"{L_b2}:")
    A(f"s_mov_b32 s32, {WS_RKEY}")
    A("buffer_load_dwordx2 v[6:7], v10, s[8:11], s32 offen sc1")
    A("s_lshl_b32 s35, s30, 7")
    A(f"s_add_u32 s35, s35, {WS_GC}")
    A("buffer_atomic_add v175, v174, s[8:11], s35 offen sc1")
    def getidx():
        A("s_setprio 2")
        wave_max_u32(A, 6, 7, 56)
        A("s_setprio 0")
        A("s_and_b32 s56, s56, 2047")
        A("s_sub_u32 s25, 2047, s56")
    L_w1, L_w2 = A.label("w1"), A.label("w2")
    A("s_lshr_b32 s32, s2, 3")
    A("s_and_b32 s33, s2, 7")
    A("s_mul_i32 s47, s33, 24")
    A("s_add_u32 s47, s47, s32")
    A(f"s_cmp_ge_u32 s32, {0 if X.noffn else 24}")
    A(f"s_cbranch_scc1 {L_w1}")
    A("s_cmp_ge_u32 s26, 2")
    A("s_cselect_b32 s16, s42, s40")
    A("s_cselect_b32 s17, s43, s41")
    A("s_and_b32 s17, s17, 0xffff")
    A(f"s_mov_b32 s18, {F_BYTES}")
    srd(A, 20, 44, F_BYTES)
    A("s_and_b32 s46, s26, 1")
    W_, WD_, XL, AC = 32, 56, 72, 12
    A(f"s_mul_i32 s32, s46, {320*3072}")
    A("s_lshl_b32 s33, s47, 4")
    A("s_add_u32 s32, s32, s33")
    for i in range(5):
        A(f"buffer_load_dwordx4 {vr(W_+4*i,4)}, v11, s[16:19], s32 offen")
        if i < 4: A(f"s_add_u32 s32, s32, {64*3072}")
    A("s_waitcnt vmcnt(5)")
    getidx()
    A("s_mul_i32 s32, s25, 1280")
    A("s_mul_i32 s33, s46, 640")
    A("s_add_u32 s32, s32, s33")
    for i in range(5):
        A(f"buffer_load_ushort v{XL+i}, v9, s[12:15], s32 offen offset:{i*128}")
    A("s_mul_i32 s32, s47, 10240")
    A("s_mul_i32 s33, s26, 320")
    A("s_add_u32 s32, s32, s33")
    for f in range(8):
        if f % 3 == 0 and f: A(f"s_add_u32 s32, s32, {3*1280}")
        A(f"buffer_load_dwordx2 {vr(WD_+2*f,2)}, v4, s[20:23], s32 offen offset:{(f%3)*1280}")
    A("s_waitcnt vmcnt(8)")
    if not X.pdiag: stamp(A, 3)
    A("s_setprio 2")
    for i in range(5):
        A(f"v_lshlrev_b32 v{XL+5}, 16, v{XL+i}")
        for dw in range(4):
            A(f"v_dot2c_f32_bf16 v{AC+2*dw}, v{W_+4*i+dw}, v{XL+i}")
            A(f"v_dot2c_f32_bf16 v{AC+2*dw+1}, v{W_+4*i+dw}, v{XL+5}")
    A("s_nop 3")
    for j in range(4):
        A(f"v_permlane32_swap_b32 v{AC+j}, v{AC+j+4}")
    A("s_nop 1")
    for j in range(4):
        A(f"v_add_f32 v{AC+j}, v{AC+j}, v{AC+j+4}")
    A("s_nop 1")
    for j in range(2):
        A(f"v_permlane16_swap_b32 v{AC+j}, v{AC+j+2}")
    A("s_nop 1")
    for j in range(2):
        A(f"v_add_f32 v{AC+j}, v{AC+j}, v{AC+j+2}")
    for sh in (8, 4, 2, 1):
        A("s_nop 1")
        for j in range(2):
            A(f"v_add_f32_dpp v{AC+j}, v{AC+j}, v{AC+j} row_ror:{sh} row_mask:0xf bank_mask:0xf")
    A(f"ds_write_b64 v25, {vr(AC,2)}")
    A("s_setprio 0")
    A("s_waitcnt lgkmcnt(0)")
    A("ds_add_u32 v173, v175")
    wo_part(256)
    lds_wait(0, 256)
    A("s_setprio 2")
    A("ds_read2_b32 v[12:13], v8 offset0:0 offset1:8")
    A("ds_read2_b32 v[14:15], v8 offset0:16 offset1:24")
    A("s_waitcnt lgkmcnt(0)")
    A("v_add_f32 v12, v12, v13")
    A("v_add_f32 v14, v14, v15")
    bf16r(A, 12, 12)
    sigmoid(A, 16, 12, 17)
    A("v_mul_f32 v12, v12, v16")
    bf16r(A, 12, 12)
    bf16r(A, 14, 14)
    A("v_mul_f32 v12, v12, v14")
    bf16r(A, 12, 12)
    Y = 20
    A("s_nop 0")
    def hs(f):
        hi = 13+2*f if f < 4 else 29+2*f
        return hi - 1, hi
    for f in range(8):
        A(f"v_readlane_b32 s{hs(f)[1]}, v12, {f}")
    for f in range(8):
        lo, hi = hs(f)
        A(f"s_lshr_b32 s{lo}, s{hi}, 16")
    A("s_waitcnt vmcnt(20)")
    for f in range(8):
        lo, hi = hs(f)
        for j in range(2):
            A(f"v_dot2c_f32_bf16 v{Y+2*j}, s{lo}, v{WD_+2*f+j}")
            A(f"v_dot2c_f32_bf16 v{Y+2*j+1}, s{hi}, v{WD_+2*f+j}")
    A("s_and_b32 s47, s47, 15")
    A("s_mul_i32 s32, s47, 2560")
    A("s_mul_i32 s33, s26, 640")
    A("s_add_u32 s32, s32, s33")
    A(f"s_add_u32 s32, s32, {WS_Y}")
    A("s_setprio 0")
    A("s_nop 2")
    for j in range(4):
        A(f"buffer_atomic_add_f32 v{Y+j}, v26, s[8:11], s32 offen offset:{j*4}")
    A("s_lshl_b32 s32, s47, 7")
    A(f"s_add_u32 s32, s32, {WS_FC}")
    A("s_waitcnt vmcnt(0)")
    A("buffer_atomic_add v175, v174, s[8:11], s32 offen sc1")
    A(f"s_branch {L_w2}")
    A(f"{L_w1}:")
    A("s_waitcnt vmcnt(0)")
    getidx()
    wo_part(256)
    A("s_waitcnt vmcnt(0)")
    A(f"{L_w2}:")
    if not X.pdiag: stamp(A, 4)
    A("ds_add_u32 v173, v175 offset:8")
    oproj_saddr()
    lds_wait(8, 256)
    A(f"s_branch {L_op}")
    A(f"{L_h2}:")
    if not X.pdiag: stamp(A, 5)
    A("v_mov_b32 v171, s25")
    A("ds_write_b32 v173, v171 offset:12")
    if X.pfT:
        A("s_cmp_lg_u32 s26, 2")
        A("s_cbranch_scc1 PFRET_T")
        A("s_mov_b64 exec, 0")
        A("s_branch PF_T_0")
        A("PFRET_T:")
        A("s_mov_b64 exec, -1")
    L_ny, L_sp2, L_sg, L_ng, L_gp = A.label("ny"), A.label("sp2"), A.label("sg"), A.label("ng"), A.label("gp")
    A("s_mov_b32 s69, 0")
    wo_part(512)
    A("s_waitcnt vmcnt(20)")
    if X.gprio: A("s_setprio 2")
    gate_math()
    A("s_setprio 0")
    A("s_cmp_lg_u32 s26, 1")
    A(f"s_cbranch_scc1 {L_ng}")
    A(f"{L_gp}:")
    A("buffer_load_dword v171, v174, s[8:11], s35 offen sc1")
    A("s_waitcnt vmcnt(0)")
    A("v_readfirstlane_b32 s32, v171")
    A("s_sub_u32 s46, s46, 1")
    A(f"s_cbranch_scc1 {L_ng}")
    A("s_cmp_lt_u32 s32, 32")
    A(f"s_cbranch_scc1 {L_gp}")
    A(f"{L_ng}:")
    A("s_lshr_b32 s32, s25, 6")
    A("s_lshl_b32 s33, s26, 8")
    A("s_or_b32 s33, s33, s30")
    A("s_cmp_lg_u32 s32, s33")
    A(f"s_cbranch_scc1 {L_ny}")
    A("v_lshlrev_b32 v6, 7, v2")
    A(f"s_mov_b32 s33, {WS_FC}")
    A(f"{L_sp2}:")
    A("buffer_load_dword v171, v6, s[8:11], s33 offen sc1")
    A("s_waitcnt vmcnt(0)")
    A(f"v_cmp_ne_u32 vcc, {0 if X.noffn else 48}, v171")
    A("s_sub_u32 s46, s46, 1")
    A(f"s_cbranch_scc1 {L_sg}")
    A("s_sleep 8")
    A(f"s_cbranch_vccnz {L_sp2}")
    A(f"{L_sg}:")
    A("s_setprio 2")
    Yv = OF
    A("v_mul_u32_u24 v6, 2560, v2")
    A("v_lshl_add_u32 v6, v3, 4, v6")
    A("s_lshl_b32 s32, s54, 1")
    A(f"s_add_u32 s32, s32, {WS_Y}")
    for mt in range(5):
        A(f"buffer_load_dwordx4 {vr(Yv+4*mt,4)}, v6, s[8:11], s32 offen offset:{mt*64} sc1")
    A("s_lshl_b32 s32, s25, 2")
    A(f"s_add_u32 s32, s32, {WS_R}")
    A("v_mov_b32 v6, 0")
    A("buffer_load_dword v171, v6, s[8:11], s32 offen sc1")
    A("s_waitcnt vmcnt(0)")
    for sh in (8, 4, 2, 1):
        A("s_nop 1")
        for j in range(20):
            A(f"v_add_f32_dpp v{Yv+j}, v{Yv+j}, v{Yv+j} row_ror:{sh} row_mask:0xf bank_mask:0xf")
    bf16r(A, 171, 171)
    sigmoid(A, 171, 171, 6)
    bf16r(A, 171, 171)
    for j in range(20):
        bf16r(A, Yv+j, Yv+j)
        A(f"v_mul_f32 v{Yv+j}, v{Yv+j}, v171")
        bf16r(A, Yv+j, Yv+j)
    A("v_lshlrev_b32 v6, 4, v3")
    A(f"v_add_u32 v6, {YB}, v6")
    for mt in range(5):
        A(f"ds_write_b128 v6, {vr(Yv+4*mt,4)} offset:{mt*64}")
    A("s_setprio 0")
    A(f"{L_ny}:")
    A(f"s_mov_b32 s46, {SPIN}")
    A("s_waitcnt vmcnt(0) lgkmcnt(0)")
    if not X.pdiag: stamp(A, 6)
    A("s_barrier")
    if not X.pdiag: stamp(A, 7)
    if X.tprio: A("s_setprio 2")
    A(f"s_branch {L_h3}")

def build(path):
    A = Asm()
    fused(A)
    A("L_CODE_END:")
    L = A.lines
    hb, he = L.index(".MARK_H_BEGIN"), L.index(".MARK_H_END")
    if X.first:
        e = L.index(".MARK_ENTRY_END")
        L = L[:e] + L[hb+1:he] + L[e+1:hb] + L[he+1:]
    else:
        L = [l for l in L if not l.startswith(".MARK")]
    A.lines = L
    hdr = open("gated_mix__grouped_kv_mqa__moe_arch_mod__prompt.s.ref").read().split("; @launch")[0]
    out = hdr + "; @launch grid=(256,1,1) block=(512,1,1) lds=163840\n" + '.amdgcn_target "amdgcn-amd-amdhsa--gfx950"\n.text\n' + A.text() + '.section .rodata,"a"\n'
    out += kernel_desc(NAME, 256, 256)
    open(path, "w").write(out)

if __name__ == "__main__":
    build("t32.s")
    Cfg.on = True
    build("t32s.s")
    Cfg.rt = True
    build("t32r.s")
    X.tdiag = True
    build("t32t.s")
```

```python
import math, sys
from asmlib import *
from stamp8 import *

NAME = "gated_mix__grouped_kv_mqa__moe_arch_mod__prompt_kernel"
KA_X, KA_WQ, KA_WK, KA_WV, KA_WO, KA_BX, KA_WR, KA_WG, KA_WU, KA_WD, KA_GW, KA_OUT, KA_DBG, KA_WS = [8*i for i in range(14)]
SL = 2592
WS_KV0 = 0x0
WS_KMAX = 0x60000
WS_RKEY = 0x60200
WS_R = 0x61000
WS_G = 0x63000
WS_Y = 0x68000
WS_GC = 0x74000
WS_FC = 0x76000
WS_O = 0x100000
WS_SIZE = 0x1000000
X_BYTES = 2048*640*2
W_BYTES = 640*640*2
F_BYTES = 640*1536*2
QSCALE = (20 ** -0.5) * math.log2(math.e)
LOG2E = math.log2(math.e)
LTHR = f32bits(2.0 ** -30)
OFF_A2, OFF_V0, OFF_V1 = 1024, 1280, 1936
FB = 63*SL
FCNT = FB + 128
YB = FB + 160
XB = 102400
SPIN = 100000
WR = 81920
ER = WR + 5*10240
QX = WR + 7*10240
VR = QX
NS = 7
SIG = 2
DN = 3
PERM = sum(p << (4*i) for i, p in enumerate([0, 4, 5, 9, 3, 7, 2, 6]))
U_TILES = 8
class X:
    noffn = False; st = 0; hprio = 2; cprio = 0; nowo = False; slp = 10; pdiag = False; pfT = False; pfQ = False; tdiag = False; hsl = 0; rothg = False; gprio = True; tprio = True; pad = 0; pre = 0; ost = ''; gsl = 4; l2pf = True; first = True; nb0 = 8; itst = False; direct = True

def bf16r(A, d, s):
    A(f"v_cvt_pk_bf16_f32 v{d}, v{s}, v{s}")
    A(f"v_and_b32 v{d}, 0xffff0000, v{d}")
def sigmoid(A, d, s, t):
    A(f"v_mul_f32 v{t}, {f32bits(-LOG2E):#x}, v{s}")
    A(f"v_exp_f32 v{t}, v{t}")
    A("s_nop 0")
    A(f"v_add_f32 v{t}, 1.0, v{t}")
    A(f"v_rcp_f32 v{d}, v{t}")
    A("s_nop 0")
def row_max_u32(A, v):
    for sh in (8, 4, 2, 1):
        A("s_nop 1")
        A(f"v_max_u32_dpp v{v}, v{v}, v{v} row_ror:{sh} row_mask:0xf bank_mask:0xf")
def wave_max_u32(A, v, v2, st):
    A(f"v_max_u32 v{v}, v{v}, v{v2}")
    row_max_u32(A, v)
    A("s_nop 1")
    for i in range(4):
        A(f"v_readlane_b32 s{st+i}, v{v}, {16*i}")
    A(f"s_max_u32 s{st}, s{st}, s{st+1}")
    A(f"s_max_u32 s{st+2}, s{st+2}, s{st+3}")
    A(f"s_max_u32 s{st}, s{st}, s{st+2}")

def arrive(A, cnt_off, total, vt):
    L = A.label("arr")
    A(f"v_mov_b32 v{vt}, 1")
    A(f"v_lshlrev_b32 v{vt+1}, 24, v1")
    A(f"buffer_atomic_add v{vt}, v{vt+1}, s[76:79], 0 offen offset:{cnt_off} sc0 sc1")
    A("s_waitcnt vmcnt(0)")
    A(f"v_readfirstlane_b32 s32, v{vt}")
    A(f"v_mov_b32 v{vt}, 1")
    A(f"s_cmp_lg_u32 s32, {total-1}")
    A(f"s_cbranch_scc1 {L}")
    A(f"buffer_store_dword v{vt}, v{vt+1}, s[76:79], 0 offen offset:{128+cnt_off} sc1")
    A(f"{L}:")
def await_cnt(A, vt, slp):
    L, Ld = A.label("aw"), A.label("awd")
    A(f"v_lshlrev_b32 v{vt+1}, 24, v1")
    A(f"s_mov_b32 s33, {SPIN}")
    A(f"{L}:")
    A(f"buffer_load_dword v{vt}, v{vt+1}, s[76:79], 0 offen sc1")
    A("s_waitcnt vmcnt(0)")
    A(f"v_readfirstlane_b32 s32, v{vt}")
    A("s_sub_u32 s33, s33, 1")
    A(f"s_cbranch_scc1 {Ld}")
    A("s_cmp_ge_u32 s32, 64")
    A(f"s_cbranch_scc1 {Ld}")
    A(f"s_sleep {slp}")
    A(f"s_branch {L}")
    A(f"{Ld}:")
def await_go(A, cnt_off, vt, slp):
    L, Ld = A.label("aw"), A.label("awd")
    A(f"v_lshlrev_b32 v{vt+1}, 24, v1")
    A(f"s_mov_b32 s33, {SPIN}")
    A(f"{L}:")
    A(f"buffer_load_dword v{vt}, v{vt+1}, s[76:79], 0 offen offset:{128+cnt_off} sc1")
    A("s_waitcnt vmcnt(0)")
    A(f"v_readfirstlane_b32 s32, v{vt}")
    A("s_sub_u32 s33, s33, 1")
    A(f"s_cbranch_scc1 {Ld}")
    A("s_cmp_lg_u32 s32, 0")
    A(f"s_cbranch_scc1 {Ld}")
    A(f"s_sleep {slp}")
    A(f"s_branch {L}")
    A(f"{Ld}:")

def hst(A, i):
    if X.pdiag: stamp(A, i)
def fused(A):
    kernel_begin(A, NAME)
    L_exit, L_help, L_op = A.label("exit"), A.label("help"), A.label("oproj")
    A("s_cmp_ge_u32 s2, 256")
    A(f"s_cbranch_scc1 {L_exit}")
    stamp_rt(A, 0)
    for i in range(X.pre): A("s_sleep 64")
    A(f"s_load_dwordx4 s[36:39], s[0:1], {KA_X}")
    A(f"s_load_dwordx4 s[40:43], s[0:1], {KA_WK}")
    A(f"s_load_dwordx4 s[48:51], s[0:1], {KA_DBG}")
    A(f"s_load_dwordx2 s[44:45], s[0:1], {KA_WR}")
    A(f"s_load_dwordx4 s[4:7], s[0:1], {KA_GW}")
    A("v_lshrrev_b32 v4, 6, v0")
    A("v_and_b32 v1, 63, v0")
    A("v_readfirstlane_b32 s29, v4")
    A("v_lshlrev_b32 v5, 4, v1")
    A("s_and_b32 s30, s2, 7")
    A("s_lshl_b32 s30, s30, 2")
    A("s_lshr_b32 s28, s2, 6")
    A("s_add_u32 s30, s30, s28")
    A("s_bfe_u32 s31, s2, 0x30003")
    A("s_lshl_b32 s33, s28, 1")
    A("s_sub_u32 s3, s31, s33")
    A("s_and_b32 s3, s3, 7")
    A("s_lshl_b32 s32, s3, 2")
    A(f"s_lshr_b32 s25, {PERM:#x}, s32")
    A("s_and_b32 s25, s25, 15")
    A("s_add_u32 s25, s25, s33")
    A("s_cmp_ge_u32 s25, 10")
    A("s_cselect_b32 s32, 10, 0")
    A("s_sub_u32 s25, s25, s32")
    if X.first:
        A("s_cmp_lt_u32 s29, 4")
        A("s_cbranch_scc1 L_COMPUTE")
        A(".MARK_ENTRY_END")
        A("L_COMPUTE:")
    else:
        A("s_cmp_ge_u32 s29, 4")
        A(f"s_cbranch_scc1 {L_help}")

    def common_setup():
        A("s_mov_b32 s10, 0x1000000")
        A("s_mov_b32 s11, 0x00020000")
        A("s_bfe_u32 s24, s2, 0x40003")
        A(f"s_mul_i32 s24, s24, {4*SL}")
        A("s_lshl_b32 s73, s28, 1")
        if X.rothg:
            A("s_add_u32 s73, s73, s31")
            A("s_and_b32 s73, s73, 7")
        A("s_movk_i32 s78, 256")
        A("s_mov_b32 s79, 0x00020000")
    def common_setup2():
        A("s_mov_b32 s8, s50")
        A("s_and_b32 s9, s51, 0xffff")
        A("s_mov_b32 s76, s48")
        A("s_and_b32 s77, s49, 0xffff")
    PM, PT, PX, PTK, PO0, PO1, PPR, PY, PPW, POA, POB = range(160, 171)
    def oproj_addr():
        A("v_and_b32 v2, 15, v0")
        A("v_lshrrev_b32 v3, 4, v1")
        A("s_and_b32 s27, s29, 3")
        A("s_lshr_b32 s28, s29, 2")
        A("v_add_u32 v6, s73, v3")
        A("v_and_b32 v6, 7, v6")
        A("v_lshlrev_b32 v7, 4, v2")
        A(f"v_lshl_add_u32 v{PO0}, v6, 8, v7")
        A(f"v_xor_b32 v{PO1}, 0x400, v{PO0}")
        A("v_lshrrev_b32 v7, 2, v2")
        A("v_and_b32 v8, 3, v2")
        A("v_lshrrev_b32 v9, 1, v3")
        A("v_mul_u32_u24 v9, 20, v9")
        A("v_and_b32 v6, 1, v3")
        A("v_lshl_add_u32 v9, v6, 2, v9")
        A("v_add_u32 v9, v9, v7")
        A("v_mul_u32_u24 v9, 160, v9")
        A("v_lshl_add_u32 v9, v8, 3, v9")
        A("s_xor_b32 s32, s28, 1")
        A("s_mul_i32 s32, s32, 51200")
        A(f"v_add_u32 v{PM}, s32, v9")
        A("v_mul_u32_u24 v9, 40, v3")
        A("v_add3_u32 v9, v9, v7, 16")
        A("v_mul_u32_u24 v9, 160, v9")
        A("v_lshl_add_u32 v9, v8, 3, v9")
        A(f"v_add_u32 v{PT}, s32, v9")
        A("v_mul_u32_u24 v6, 26, v1")
        A("v_lshrrev_b32 v6, 8, v6")
        A("v_mul_u32_u24 v7, 10, v6")
        A("v_sub_u32 v7, v1, v7")
        A("s_lshl_b32 s32, s30, 6")
        A("s_lshl_b32 s33, s29, 3")
        A("s_add_u32 s52, s32, s33")
        A(f"v_add_u32 v{PTK}, s52, v6")
        A(f"v_mul_u32_u24 v8, 1280, v{PTK}")
        A("v_lshl_add_u32 v8, v7, 4, v8")
        A("s_mul_i32 s54, s31, 160")
        A("v_add_u32 v8, s54, v8")
        A("v_cmp_gt_u32 vcc, 40, v1")
        A("v_mov_b32 v9, 0x40000000")
        A(f"v_cndmask_b32 v{PX}, v9, v8, vcc")
        A("v_add_u32 v6, s33, v6")
        A("v_mul_u32_u24 v6, 336, v6")
        A("v_lshl_add_u32 v6, v7, 5, v6")
        A(f"v_add_u32 v{PPR}, {XB}, v6")
        A("v_lshlrev_b32 v7, 5, v7")
        A(f"v_add_u32 v{PY}, {YB}, v7")
        A("s_lshl_b32 s32, s27, 4")
        A("v_add_u32 v6, s32, v2")
        A("v_mul_u32_u24 v6, 336, v6")
        A("v_lshl_add_u32 v6, v3, 4, v6")
        A("s_mul_i32 s32, s28, 21504")
        A(f"s_add_u32 s32, s32, {XB}")
        A(f"v_add_u32 v{PPW}, s32, v6")
    def oproj_saddr():
        A("s_lshl_b32 s33, s30, 2")
        A("s_add_u32 s33, s33, s27")
        A("s_mul_i32 s68, s33, 20480")
        A(f"s_add_u32 s68, s68, {WS_O}")
        A("s_lshl_b32 s33, s28, 11")
        A("s_add_u32 s70, s68, s33")
        A("s_add_u32 s70, s70, 16384")
        A("s_lshl_b32 s33, s28, 13")
        A("s_add_u32 s68, s68, s33")
        for p in range(8):
            A(f"s_add_u32 s32, s73, {p}")
            A("s_and_b32 s32, s32, 7")
            A(f"s_lshl_b32 s{12+p}, s32, 10")
            A(f"s_add_u32 s{12+p}, s{12+p}, s68")
        A("s_movk_i32 s55, 5120")
        A(f"s_mov_b32 s22, {X_BYTES}")
        A("s_mov_b32 s23, 0x00020000")

    def o_addr():
        A("s_lshl_b32 s47, s31, 2")
        A("s_add_u32 s47, s47, s27")
        A("v_bfe_u32 v6, v1, 4, 1")
        A("v_mul_u32_u24 v6, 20480, v6")
        A("v_lshl_add_u32 v6, v2, 4, v6")
        A("v_lshrrev_b32 v7, 5, v1")
        A(f"v_lshl_add_u32 v{POA}, v7, 8, v6")
        A(f"v_lshl_or_b32 v{POB}, v7, 30, v6")
        A("s_mul_i32 s32, s30, 81920")
        A(f"s_add_u32 s32, s32, {WS_O}")
        A("s_lshl_b32 s74, s47, 9")
        A("s_add_u32 s74, s74, s32")
        A("s_lshr_b32 s75, s47, 1")
        A("s_lshl_b32 s75, s75, 8")
        A("s_and_b32 s33, s47, 1")
        A("s_lshl_b32 s33, s33, 3")
        A("s_add_u32 s75, s75, s33")
        A("s_add_u32 s75, s75, s32")
        A("s_add_u32 s75, s75, 16384")
        A("s_add_u32 s58, s74, 40960")
        A("s_add_u32 s59, s75, 40960")

    A("s_mov_b32 s72, 0")
    if X.l2pf:
        A("s_getpc_b64 s[32:33]")
        A("L_PC0:")
        A(f"s_sub_u32 s32, s32, L_PC0-{NAME}")
        A("s_subb_u32 s33, s33, 0")
        A("s_lshr_b32 s34, s2, 3")
        A("v_lshl_add_u32 v6, v0, 5, s34")
        A("v_lshlrev_b32 v6, 7, v6")
        A(f"v_min_u32 v6, L_CODE_END-{NAME}-4, v6")
        A("global_load_dword v180, v6, s[32:33]")
    common_setup()
    oproj_addr()
    oproj_saddr()
    VACC = 32; VE = 52; H = [64, 84]; XF = [104, 108]
    VB1, VB2, VXA0, VXA1 = 14, 15, 16, 17
    A("v_lshrrev_b32 v6, 2, v2")
    A("v_and_b32 v7, 3, v2")
    A("v_lshl_add_u32 v6, v3, 3, v6")
    A("v_and_b32 v8, 1, v3")
    A("v_lshlrev_b32 v8, 2, v8")
    A("v_add_u32 v9, v6, v8")
    A("v_mul_u32_u24 v9, 160, v9")
    A("v_lshl_add_u32 v9, v7, 3, v9")
    A(f"v_add_u32 v{VB1}, {WR}, v9")
    A("v_xor_b32 v8, 4, v8")
    A("v_add_u32 v9, v6, v8")
    A("v_mul_u32_u24 v9, 160, v9")
    A("v_lshl_add_u32 v9, v7, 3, v9")
    A(f"v_add_u32 v{VB2}, {WR}, v9")
    A("v_mul_u32_u24 v9, 40, v6")
    A(f"v_add_u32 v9, {ER}, v9")
    A("v_lshl_add_u32 v18, v7, 3, v9")
    A("v_add_u32 v19, 32, v9")
    A("v_lshrrev_b32 v6, 1, v2")
    A("v_xor_b32 v6, v6, v3")
    A("v_lshlrev_b32 v6, 4, v6")
    A("v_lshl_add_u32 v6, v2, 7, v6")
    A("s_lshl_b32 s32, s29, 11")
    A("v_add_u32 v10, s32, v6")
    A("v_xor_b32 v11, 64, v10")
    A(f"v_mov_b32 v{VXA0}, v10")
    A(f"v_mov_b32 v{VXA1}, v11")
    for i in range(VACC, VE + 8):
        A(f"v_mov_b32 v{i}, 0")
    A("s_lshr_b32 s32, s29, 1")
    A("s_mul_i32 s32, s32, 5120")
    A("s_and_b32 s33, s29, 1")
    A("s_lshl_b32 s33, s33, 7")
    A("s_add_u32 s32, s32, s33")
    A(f"s_add_u32 s32, s32, {QX}")
    A("v_lshlrev_b32 v6, 3, v2")
    A("v_lshl_add_u32 v6, v3, 8, v6")
    A("v_add_u32 v13, s32, v6")
    o_addr()
    A("s_waitcnt lgkmcnt(0)")
    common_setup2()
    A("s_mov_b32 s4, s36")
    A("s_mov_b32 s5, s37")
    A("v_lshlrev_b32 v24, 24, v1")
    A("s_lshl_b32 s32, s30, 6")
    A("s_lshl_b32 s33, s29, 4")
    A("s_add_u32 s50, s32, s33")
    if X.pfQ:
        A("s_cmp_lg_u32 s29, 3")
        A("s_cbranch_scc1 PFRET_Q")
        A("s_mov_b64 exec, 0")
        A("s_branch PF_Q_0")
        A("PFRET_Q:")
        A("s_mov_b64 exec, -1")
    stamp(A, 1)
    L_main, L_rg, L_ev, L_ej = A.label("main"), A.label("rg"), A.label("ev"), A.label("ej")
    A("s_cmp_gt_u32 s3, 2")
    A(f"s_cbranch_scc1 {L_main}")
    A("s_cmp_eq_u32 s3, 2")
    A(f"s_cbranch_scc1 {L_rg}")
    EW = 64; EX = 112
    A("s_mov_b32 s46, 0")
    def erd(s):
        A(f"ds_read_b128 {vr(EX+4*s,4)}, v{10 + (s & 1)} offset:{(s >> 1)*8192}")
        for t in range(2):
            slot = EW + 8*s + 4*t
            A(f"ds_read_b64_tr_b16 {vr(slot,2)}, v{18+t} offset:{s*1280}")
            A(f"ds_read_b64_tr_b16 {vr(slot+2,2)}, v{18+t} offset:{s*1280+160}")
    def eloop(swap):
        L = A.label("el")
        A(f"{L}:")
        for s in range(4):
            if s == 2:
                A("s_add_u32 s46, s46, 1")
                A("v_add_u32 v10, 16384, v10")
                A("v_add_u32 v11, 16384, v11")
                A("v_add_u32 v18, 5120, v18")
                A("v_add_u32 v19, 5120, v19")
                A("s_cmp_lt_u32 s46, 5")
                A("s_barrier")
            erd((s + 2) % 4)
            A("s_waitcnt lgkmcnt(10)")
            for t in range(2):
                w, x = vr(EW+8*s+4*t,4), vr(EX+4*s,4)
                A(f"v_mfma_f32_16x16x32_bf16 {vr(VE+4*t,4)}, {x if swap else w}, {w if swap else x}, {vr(VE+4*t,4)}")
        A(f"s_cbranch_scc1 {L}")
    A("s_barrier")
    erd(0); erd(1)
    A("s_cmp_eq_u32 s3, 1")
    A(f"s_cbranch_scc1 {L_ev}")
    eloop(False)
    A(f"s_branch {L_ej}")
    A(f"{L_ev}:")
    eloop(True)
    A(f"{L_ej}:")
    stamp(A, 2)
    A("s_lshl_b32 s32, s30, 1")
    A("s_lshr_b32 s33, s29, 1")
    A("s_add_u32 s51, s32, s33")
    A("s_and_b32 s53, s29, 1")
    A("v_lshrrev_b32 v6, 1, v3")
    A("v_and_b32 v7, 1, v3")
    A("s_nop 1")
    for t in range(2):
        a = VE + 4*t
        A(f"v_cvt_pk_bf16_f32 v{a}, v{a}, v{a+1}")
        A(f"v_cvt_pk_bf16_f32 v{a+1}, v{a+2}, v{a+3}")
    L_sv, L_fin, L_sig = A.label("sv"), A.label("fin"), A.label("sig")
    A("s_cmp_eq_u32 s3, 1")
    A(f"s_cbranch_scc1 {L_sv}")
    A(f"s_mov_b32 s60, {64*SL}")
    A("s_add_u32 s51, s51, 62")
    A("s_and_b32 s51, s51, 63")
    A(f"s_cselect_b32 s34, 0x40000000, s60")
    A(f"s_mul_i32 s51, s51, {SL}")
    A("s_lshl_b32 s33, s53, 4")
    A("v_add_u32 v8, s33, v2")
    A("v_lshl_add_u32 v6, v6, 5, v8")
    A("v_lshlrev_b32 v6, 4, v6")
    A("v_lshl_add_u32 v6, v7, 3, v6")
    A(f"buffer_store_dwordx2 {vr(VE,2)}, v6, s[8:11], s51 offen sc1")
    A(f"buffer_store_dwordx2 {vr(VE,2)}, v6, s[8:11], s34 offen sc1")
    A("v_cmp_eq_u32 vcc, 0, v3")
    A("v_lshlrev_b32 v6, 3, v8")
    A("v_lshl_or_b32 v6, v3, 28, v6")
    A(f"buffer_store_dwordx2 {vr(VE+4,2)}, v6, s[8:11], s51 offen offset:{OFF_A2} sc1")
    A(f"v_cndmask_b32 v8, 0, v{VE+4}, vcc")
    A(f"v_cndmask_b32 v9, 0, v{VE+5}, vcc")
    A("v_mov_b32 v7, 0")
    for r in (VE, VE+1, 8, 9):
        A(f"v_dot2c_f32_bf16 v7, v{r}, v{r}")
    A("s_nop 2")
    A("v_mov_b32 v6, v7")
    A("s_nop 1")
    A("v_permlane32_swap_b32 v6, v7")
    A("s_nop 1")
    A("v_add_f32 v7, v6, v7")
    A("v_mov_b32 v6, v7")
    A("s_nop 1")
    A("v_permlane16_swap_b32 v6, v7")
    A("s_nop 1")
    A("v_add_f32 v7, v6, v7")
    A(f"s_mov_b32 s34, {WS_KMAX}")
    A(f"s_branch {L_fin}")
    A(f"{L_sv}:")
    A("s_add_u32 s51, s51, 63")
    A("s_and_b32 s51, s51, 63")
    A(f"s_mul_i32 s51, s51, {SL}")
    A("s_mul_i32 s33, s53, 656")
    A("s_add_u32 s51, s51, s33")
    A("v_mul_u32_u24 v6, 20, v6")
    A("v_add_u32 v6, v6, v2")
    A("v_lshlrev_b32 v6, 4, v6")
    A("v_lshl_add_u32 v6, v7, 3, v6")
    A(f"buffer_store_dwordx2 {vr(VE,2)}, v6, s[8:11], s51 offen offset:{OFF_V0} sc1")
    A("v_cmp_eq_u32 vcc, 4, v2")
    A("v_mov_b32 v8, 0x3f803f80")
    A(f"v_cndmask_b32 v{VE+4}, v{VE+4}, v8, vcc")
    A(f"v_cndmask_b32 v{VE+5}, v{VE+5}, v8, vcc")
    A("v_lshrrev_b32 v8, 1, v3")
    A("v_add_u32 v8, 4, v8")
    A("v_cmp_gt_u32 vcc, v8, v2")
    A("v_mov_b32 v8, 0x40000000")
    A("v_cndmask_b32 v6, v8, v6, vcc")
    A(f"buffer_store_dwordx2 {vr(VE+4,2)}, v6, s[8:11], s51 offen offset:{OFF_V0+256} sc1")
    A(f"s_branch {L_main}")
    A(f"{L_rg}:")
    A("v_and_b32 v6, 1, v2")
    A("v_mul_u32_u24 v6, 1280, v6")
    A("v_lshl_add_u32 v18, v3, 4, v6")
    A(f"v_add_u32 v18, {VR}, v18")
    A(f"s_branch {L_main}")
    def fin_key():
        row_max_u32(A, 7)
        A("s_lshr_b32 s33, s50, 2")
        A("s_add_u32 s33, s33, s34")
        A("v_lshlrev_b32 v6, 24, v1")
        A("buffer_store_dword v7, v6, s[8:11], s33 offen sc1")
    A(f"{L_fin}:")
    fin_key()
    A(f"{L_main}:")
    stamp(A, 3)
    def wrd1(hh, mt):
        A(f"ds_read_b64_tr_b16 {vr(H[hh]+4*mt,2)}, v{VB1} offset:{hh*5120 + mt*32}")
        A(f"ds_read_b64_tr_b16 {vr(H[hh]+4*mt+2,2)}, v{VB2} offset:{hh*5120 + mt*32}")
    def half(hh):
        A(f"ds_read_b128 {vr(XF[hh^1],4)}, v{VXA1 if hh == 0 else VXA0}")
        for mt in range(5):
            wrd1(hh ^ 1, mt)
            A("s_waitcnt lgkmcnt(11)")
            A(f"v_mfma_f32_16x16x32_bf16 {vr(VACC+4*mt,4)}, {vr(H[hh]+4*mt,4)}, {vr(XF[hh],4)}, {vr(VACC+4*mt,4)}")
    A("s_mov_b32 s46, 0")
    A(f"s_mov_b32 s34, {-(NS-1)*10240}")
    A("s_lshl_b32 s32, s25, 7")
    A("v_add_u32 v6, s32, v18")
    A("s_waitcnt lgkmcnt(0)")
    A("s_barrier")
    A(f"ds_read_b128 {vr(112,4)}, v6")
    A(f"ds_read_b128 {vr(116,4)}, v6 offset:64")
    A(f"ds_read_b128 {vr(XF[0],4)}, v{VXA0}")
    for mt in range(5):
        wrd1(0, mt)
    L_aw, L_awr = A.label("aw"), A.label("awr")
    def qloop(rg):
        L_c = A.label("c")
        A(f"{L_c}:")
        A("s_add_u32 s46, s46, 1")
        A(f"s_cmp_eq_u32 s46, {NS}")
        A("s_cselect_b32 s32, s34, 10240")
        half(0)
        A(f"v_add_u32 v{VB1}, s32, v{VB1}")
        A(f"v_add_u32 v{VB2}, s32, v{VB2}")
        A(f"v_add_u32 v{VXA0}, 8192, v{VXA0}")
        A(f"v_add_u32 v{VXA1}, 8192, v{VXA1}")
        if rg:
            A("s_add_u32 s25, s25, 1")
            A("s_cmp_eq_u32 s25, 10")
            A("s_cselect_b32 s25, 0, s25")
            A("s_lshl_b32 s32, s25, 7")
            A("v_add_u32 v6, s32, v18")
            A("s_waitcnt lgkmcnt(10)")
            for s_ in range(2):
                A(f"v_mfma_f32_16x16x32_bf16 {vr(VE,4)}, {vr(112+4*s_,4)}, {vr(XF[s_],4)}, {vr(VE,4)}")
            A(f"ds_read_b128 {vr(112,4)}, v6")
            A(f"ds_read_b128 {vr(116,4)}, v6 offset:64")
        if not rg:
            A(f"s_cmp_eq_u32 s46, {SIG}")
            A(f"s_cbranch_scc1 {L_aw}")
            A(f"{L_awr}:")
        A("s_cmp_lt_u32 s46, 10")
        A("s_barrier")
        half(1)
        A(f"s_cbranch_scc1 {L_c}")
    L_rgl, L_rgr = A.label("rgl"), A.label("rgr")
    A("s_cmp_eq_u32 s3, 2")
    A(f"s_cbranch_scc1 {L_rgl}")
    qloop(False)
    A(f"{L_rgr}:")
    stamp(A, 4)
    if X.pfQ: A.pf_start("Q")
    QB1 = [8, 16]; QS = [12, 14]
    VIDX = 4
    VKA, VA2, VVA = 20, 21, 22
    S = [32, 64]
    O = [96, 112]
    KA1 = [128, 136]; KA2 = [132, 140]
    V0 = [144, 152]; V1 = [148, 156]
    A(f"s_mov_b32 s33, {f32bits(QSCALE):#x}")
    A("v_and_b32 v2, 31, v0")
    A("v_lshrrev_b32 v3, 5, v1")
    A("v_cmp_eq_u32 s[44:45], 1, v3")
    A("v_lshlrev_b32 v6, 3, v2")
    A("s_waitcnt lgkmcnt(0)")
    A(f"v_mov_b32 v24, {OFF_V0 + 640 - OFF_A2}")
    A("s_barrier")
    for mt in range(5):
        a = VACC + 4*mt
        for i in range(4):
            A(f"v_mul_f32 v{a+i}, s33, v{a+i}")
        A(f"v_cvt_pk_bf16_f32 v{a}, v{a}, v{a+1}")
        A(f"v_cvt_pk_bf16_f32 v{a+1}, v{a+2}, v{a+3}")
        A(f"ds_write_b64 v13, {vr(a,2)} offset:{mt*1024}")
    A(f"v_cndmask_b32 v{VA2}, v6, v24, s[44:45]")
    A("s_mul_i32 s32, s29, 1280")
    A(f"s_add_u32 s32, s32, {QX}")
    A("v_add_u32 v7, s32, v6")
    A("v_lshl_add_u32 v6, v3, 9, v7")
    A("v_mul_u32_u24 v23, 20, v3")
    A("v_add_u32 v23, v23, v2")
    A("v_cmp_gt_u32 vcc, 20, v2")
    A("v_lshlrev_b32 v26, 3, v1")
    A("v_cndmask_b32 v23, 40, v23, vcc")
    A("v_lshlrev_b32 v23, 4, v23")
    A(f"s_mov_b32 s36, {WS_KMAX}")
    A(f"s_sub_u32 s37, s24, {2*SL}")
    A(f"s_cselect_b32 s37, {62*SL}, s37")
    A(f"s_add_u32 s38, s37, {SL}")
    A("s_waitcnt lgkmcnt(0)")
    A("s_barrier")
    stamp(A, 5)
    A("buffer_load_dwordx2 v[24:25], v26, s[8:11], s36 offen sc1")
    A(f"buffer_load_dwordx4 {vr(KA1[0],4)}, v5, s[8:11], s37 offen sc1")
    A(f"buffer_load_dwordx2 {vr(KA2[0],2)}, v{VA2}, s[8:11], s37 offen offset:{OFF_A2} sc1")
    A(f"buffer_load_dwordx4 {vr(KA1[1],4)}, v5, s[8:11], s38 offen sc1")
    A(f"buffer_load_dwordx2 {vr(KA2[1],2)}, v{VA2}, s[8:11], s38 offen offset:{OFF_A2} sc1")
    A(f"buffer_load_dwordx4 {vr(V0[0],4)}, v23, s[8:11], s38 offen offset:{OFF_V0} sc1")
    A(f"buffer_load_dwordx4 {vr(V1[0],4)}, v23, s[8:11], s38 offen offset:{OFF_V1} sc1")
    A(f"ds_read2_b64 {vr(QB1[0],4)}, v6 offset0:0 offset1:32")
    A(f"ds_read_b64 {vr(QS[0],2)}, v7 offset:1024")
    A("v_add_u32 v6, 5120, v6")
    A(f"ds_read2_b64 {vr(QB1[1],4)}, v6 offset0:0 offset1:32")
    A(f"ds_read_b64 {vr(QS[1],2)}, v7 offset:{1024+5120}")
    A(f"v_mov_b32 v{VKA}, v5")
    A("v_cmp_lt_u32 vcc, 20, v2")
    A("v_mov_b32 v6, 0x40000")
    A(f"v_cndmask_b32 v{VVA}, v23, v6, vcc")
    A(f"v_mov_b32 v{VIDX}, 0xdddd")
    for r in range(O[0], O[0] + 32):
        A(f"v_mov_b32 v{r}, 0")
    for r in range(S[1] + 24, S[1] + 32):
        A(f"v_mov_b32 v{r}, 0")
    for r in range(V1[1], V1[1] + 4):
        A(f"v_mov_b32 v{r}, 0")
    A("v_mov_b32 v26, 0")
    A("v_mov_b32 v28, 0")
    A(f"v_mov_b32 v30, {FCNT}")
    A("s_lshl_b32 s32, s29, 3")
    A("s_lshl_b32 s32, 1, s32")
    A("v_mov_b32 v31, 0")
    A("v_writelane_b32 v31, s32, 0")
    A("s_waitcnt lgkmcnt(0)")
    for b in range(2):
        for r in range(2):
            A(f"v_cndmask_b32 v{QS[b]+r}, v{QS[b]+r}, 0, s[44:45]")
    for r in range(4):
        A(f"v_dot2c_f32_bf16 v26, v{QB1[0]+r}, v{QB1[0]+r}")
        A(f"v_dot2c_f32_bf16 v28, v{QB1[1]+r}, v{QB1[1]+r}")
    for r in range(2):
        A(f"v_dot2c_f32_bf16 v26, v{QS[0]+r}, v{QS[0]+r}")
        A(f"v_dot2c_f32_bf16 v28, v{QS[1]+r}, v{QS[1]+r}")
    A("s_nop 2")
    A("v_mov_b32 v27, v26")
    A("v_mov_b32 v29, v28")
    A("s_nop 1")
    A("v_permlane32_swap_b32 v26, v27")
    A("v_permlane32_swap_b32 v28, v29")
    A("s_nop 1")
    A("v_add_f32 v26, v26, v27")
    A("v_add_f32 v28, v28, v29")
    A("s_waitcnt vmcnt(6)")
    wave_max_u32(A, 24, 25, 34)
    A("v_mul_f32 v26, s34, v26")
    A("v_mul_f32 v28, s34, v28")
    A("v_sqrt_f32 v26, v26")
    A("v_sqrt_f32 v28, v28")
    A("s_nop 0")
    A(f"v_mul_f32 v26, {f32bits(-(1.0 + 2.0**-6)):#x}, v26")
    A(f"v_mul_f32 v28, {f32bits(-(1.0 + 2.0**-6)):#x}, v28")
    A("v_lshrrev_b32 v26, 16, v26")
    A("v_lshrrev_b32 v28, 16, v28")
    A(f"v_cndmask_b32 v{QS[0]}, v{QS[0]}, v26, s[44:45]")
    A(f"v_cndmask_b32 v{QS[1]}, v{QS[1]}, v28, s[44:45]")
    def qs2(buf, par, b):
        A(f"v_mfma_f32_32x32x8_bf16 {vr(S[buf]+16*b,16)}, {vr(KA2[par],2)}, {vr(QS[b],2)}, 0")
    def qk1(buf, par, b):
        A(f"v_mfma_f32_32x32x16_bf16 {vr(S[buf]+16*b,16)}, {vr(KA1[par],4)}, {vr(QB1[b],4)}, {vr(S[buf]+16*b,16)}")
    def pv(buf, b, half, vpar):
        vv = V0[vpar] if half == 0 else V1[vpar]
        A(f"v_smfmac_f32_32x32x32_bf16 {vr(O[b],16)}, {vr(vv,4)}, {vr(S[buf]+16*b+8*half,8)}, v{VIDX}")
    A("s_waitcnt vmcnt(4)")
    qs2(0, 0, 0); qk1(0, 0, 0); qs2(0, 0, 1); qk1(0, 0, 1)
    A("s_mov_b32 s46, 0")
    A("s_waitcnt vmcnt(0)")
    A("s_barrier")
    if X.cprio: A(f"s_setprio {X.cprio}")
    stamp(A, 6)
    if X.pfQ: A.pf_stop("PFRET_Q")
    A("s_nop 7")
    L_loop, L_sp, L_kr = A.label("loop"), A.label("sp"), A.label("kr")
    A(f"{L_loop}:")
    if X.itst:
        A("s_memtime s[60:61]")
        A("s_lshl_b32 s64, s2, 2")
        A("s_add_u32 s64, s64, s29")
        A("s_lshl_b32 s64, s64, 7")
        A("s_lshl_b32 s65, s46, 3")
        A("s_add_u32 s64, s64, s65")
        A(f"s_add_u32 s64, s64, {WS_ST + 0x200000}")
        A("s_waitcnt lgkmcnt(0)")
        A("v_mov_b32 v200, s60")
        A("v_mov_b32 v201, s61")
        A("v_lshlrev_b32 v204, 24, v1")
        A("buffer_store_dwordx2 v[200:201], v204, s[8:11], s64 offen")
    sched = {2: 'pv1p', 6: 's2a', 10: 'q1a', 14: 'pv0a', 18: 'pv1a', 22: 's2b', 26: 'q1b', 30: 'pv0b'}
    for t in range(U_TILES):
        par = t & 1
        off = t * SL
        for e in range(32):
            op = sched.get(e)
            if op == 'pv1p':
                pv(par ^ 1, 1, 1, par ^ 1)
                A("s_waitcnt lgkmcnt(0)")
                A(f"ds_read_b128 {vr(V0[par^1],4)}, v{VVA} offset:{off+OFF_V0}")
                A(f"ds_read_b128 {vr(V1[par^1],4)}, v{VVA} offset:{off+OFF_V1}")
            if op == 's2a': qs2(par ^ 1, par ^ 1, 0)
            if op == 's2b': qs2(par ^ 1, par ^ 1, 1)
            if op == 'pv0a':
                pv(par, 0, 0, par)
                A(f"ds_read_b128 {vr(KA1[par],4)}, v{VKA} offset:{off}")
                A(f"ds_read_b64 {vr(KA2[par],2)}, v{VA2} offset:{off+OFF_A2}")
            if op == 'q1a': qk1(par ^ 1, par ^ 1, 0)
            if op == 'pv1a': pv(par, 0, 1, par)
            if op == 'q1b': qk1(par ^ 1, par ^ 1, 1)
            if op in ('q1a', 'q1b') and X.pad: A(f"s_nop {X.pad - 1}")
            if op == 'pv0b':
                pv(par, 1, 0, par)
                if t == U_TILES - 1:
                    A("s_add_u32 s46, s46, 1")
                    A("s_bitcmp1_b32 0x12e, s46")
                    A(f"v_add_u32 v{VKA}, {U_TILES*SL}, v{VKA}")
                    A(f"v_add_u32 v{VA2}, {U_TILES*SL}, v{VA2}")
                    A(f"v_add_u32 v{VVA}, {U_TILES*SL}, v{VVA}")
            A(f"v_exp_f32 v{S[par]+e}, v{S[par]+e}")
    A(f"s_cbranch_scc0 {L_loop}")
    A("s_cmp_gt_u32 s46, 1")
    A(f"s_cbranch_scc1 {L_sp}")
    A("s_barrier")
    A(f"s_branch {L_loop}")
    A(f"{L_kr}:")
    A("ds_read_b32 v24, v30 offset:16")
    A("s_waitcnt lgkmcnt(0)")
    A("v_readfirstlane_b32 s32, v24")
    A("s_cmp_lt_u32 s32, 256")
    A(f"s_cbranch_scc1 {L_kr}")
    A(f"s_branch {L_loop}")
    A(f"{L_sp}:")
    A("s_cmp_eq_u32 s46, 2")
    A(f"s_cbranch_scc1 {L_kr}")
    A("s_waitcnt lgkmcnt(0)")
    A("ds_add_u32 v30, v31 offset:4")
    A("s_cmp_lt_u32 s46, 8")
    A(f"s_cbranch_scc1 {L_loop}")
    if not X.pdiag: stamp(A, 7)
    if X.pfT: A.pf_start("T")
    pv(1, 1, 1, 1)
    A(f"v_mov_b32 v26, {LTHR:#x}")
    A("s_nop 1")
    L_fb, L_norm = A.label("fb"), A.label("norm")
    A(f"v_rcp_f32 v28, v{O[0]+8}")
    A("s_nop 0")
    A("v_mov_b32 v29, v28")
    A("s_nop 1")
    A("v_permlane32_swap_b32 v28, v29")
    A("s_nop 3")
    A(f"v_min_f32 v27, v{O[0]+8}, v{O[1]+8}")
    A(f"v_cmp_nge_f32 vcc, v27, v26")
    A(f"v_cmp_u_f32 s[36:37], v{O[0]+8}, v{O[1]+8}")
    A("s_or_b64 vcc, vcc, s[36:37]")
    A("s_and_b64 vcc, vcc, s[44:45]")
    A(f"s_cbranch_vccnz {L_fb}")
    A(f"{L_norm}:")
    A(f"v_rcp_f32 v26, v{O[1]+8}")
    for r in range(12):
        A(f"v_mul_f32 v{O[0]+r}, v{O[0]+r}, v29")
    A("v_mov_b32 v27, v26")
    for r in range(6):
        A(f"v_cvt_pk_bf16_f32 v{S[0]+r}, v{O[0]+2*r}, v{O[0]+2*r+1}")
    A("v_permlane32_swap_b32 v26, v27")
    A(f"buffer_store_dwordx4 {vr(S[0],4)}, v{POA}, s[8:11], s74 offen sc1")
    A(f"buffer_store_dwordx2 {vr(S[0]+4,2)}, v{POB}, s[8:11], s75 offen sc1")
    for r in range(12):
        A(f"v_mul_f32 v{O[1]+r}, v{O[1]+r}, v27")
    for r in range(6):
        A(f"v_cvt_pk_bf16_f32 v{S[0]+8+r}, v{O[1]+2*r}, v{O[1]+2*r+1}")
    A(f"buffer_store_dwordx4 {vr(S[0]+8,4)}, v{POA}, s[8:11], s58 offen sc1")
    A(f"buffer_store_dwordx2 {vr(S[0]+12,2)}, v{POB}, s[8:11], s59 offen sc1")
    ACC = 8; OF = 56
    WFS = list(range(96, 160, 4)) + list(range(176, 256, 4))
    NPRE = 7
    XV = 28; G = 48
    TT = list(range(36, 48)) + list(range(52, 56))
    ORD = [8, 9, 0, 1, 2, 3, 4, 5, 6, 7]
    def wslot(s, mt):
        return WFS[5*(s % NPRE) + mt]
    def wrd(p, mt):
        slot = wslot(p, mt)
        s = ORD[p]
        if s < 8:
            b, off, o2 = PM, s * 6400 + mt * 32, 1280
        else:
            b, off, o2 = PT, (s - 8) * 25600 + mt * 32, 3200
        A(f"ds_read_b64_tr_b16 {vr(slot,2)}, v{b} offset:{off}")
        A(f"ds_read_b64_tr_b16 {vr(slot+2,2)}, v{b} offset:{off+o2}")
    def gx_loads(xv):
        A("s_mov_b32 s20, s4")
        A("s_and_b32 s21, s5, 0xffff")
        A(f"v_lshlrev_b32 v6, 2, v{PTK}")
        A(f"s_mov_b32 s32, {WS_G}")
        A(f"buffer_load_dword v{G}, v6, s[8:11], s32 offen sc1")
        A(f"buffer_load_dword v{G+1}, v6, s[8:11], s32 offen offset:16 sc1")
        A(f"buffer_load_dwordx4 {vr(xv,4)}, v{PX}, s[20:23], 0 offen")
        A(f"buffer_load_dwordx4 {vr(xv+4,4)}, v{PX}, s[20:23], s55 offen")
        A(f"s_mov_b32 s46, {SPIN}")
        A("s_mov_b32 s71, -1")
        A("s_mov_b32 s47, 0")
    def gate_math():
        for j in range(2):
            bf16r(A, G+j, G+j)
            sigmoid(A, G+j, G+j, G+2)
            bf16r(A, G+j, G+j)
        for j in range(2):
            A(f"v_sub_f32 v{G+2+j}, 1.0, v{G+j}")
            bf16r(A, G+2+j, G+2+j)
        for i in range(8):
            A(f"v_lshlrev_b32 v{TT[2*i]}, 16, v{XV+i}")
            A(f"v_and_b32 v{TT[2*i+1]}, 0xffff0000, v{XV+i}")
        A("s_mov_b32 s20, s6")
        A("s_and_b32 s21, s7, 0xffff")
    RL = [A.label("rl") for _ in range(10)]
    RC = [A.label("rc") for _ in range(10)]
    RT = [A.label("rt") for _ in range(10)]
    L_disp, L_h2, L_h3, L_ng2 = A.label("disp"), A.label("h2"), A.label("h3"), A.label("ng2")
    A("s_barrier")
    A(f"{L_op}:")
    for s in range(NPRE):
        for mt in range(5):
            wrd(s, mt)
    gx_loads(XV)
    A("s_cmp_lg_u32 s72, 0")
    A(f"s_cbranch_scc1 {L_h2}")
    A("s_waitcnt vmcnt(4)")
    A("s_barrier")
    L_rl, L_mm, L_rt, L_sel, L_nosel = A.label("rl"), A.label("mm"), A.label("rt"), A.label("sel"), A.label("nosel")
    A("s_waitcnt vmcnt(0)")
    gate_math()
    A(f"{L_h3}:")
    A(f"v_mov_b32 v6, {FCNT}")
    A("ds_read_b32 v6, v6 offset:12")
    A("s_waitcnt lgkmcnt(0)")
    A("v_readfirstlane_b32 s56, v6")
    A("s_lshr_b32 s33, s52, 3")
    A("s_lshr_b32 s32, s56, 3")
    A("s_cmp_eq_u32 s32, s33")
    A(f"s_cbranch_scc1 {L_sel}")
    A(f"{L_nosel}:")
    for i in range(0, 16, 2):
        A(f"v_pk_mul_f32 {vr(TT[i],2)}, {vr(TT[i],2)}, {vr(G+2,2)} " + ("op_sel:[0,0] op_sel_hi:[1,0]" if i < 8 else "op_sel:[0,1] op_sel_hi:[1,1]"))
    A("s_cmp_eq_u32 s72, 0")
    A(f"s_cbranch_scc1 {L_rl}")
    A("s_barrier")
    A(f"{L_rl}:")
    if not X.pdiag: stamp(A, 8)
    def oload(p):
        s = ORD[p]
        if s < 8:
            A(f"buffer_load_dwordx4 {vr(OF+4*p,4)}, v5, s[8:11], s{12+s} offen sc1")
        else:
            A(f"buffer_load_dwordx4 {vr(OF+4*p,4)}, v{PO0+s-8}, s[8:11], s70 offen sc1")
    for p in range(10):
        oload(p)
    A(f"{L_mm}:")
    if X.tdiag: stamp(A, 1)
    L_et = A.label("et")
    def tailchk():
        A(f"v_max3_u32 v6, v{OF}, v{OF+1}, v{OF+2}")
        A(f"v_max3_u32 v6, v{OF+3}, v{OF+4}, v6")
        A(f"v_max3_u32 v6, v{OF+5}, v{OF+6}, v6")
        A(f"v_max_u32 v6, v{OF+7}, v6")
        A("v_cmp_eq_u32 vcc, s71, v6")
    A("s_waitcnt vmcnt(8)")
    tailchk()
    A(f"s_cbranch_vccnz {L_et}")
    for s in range(10):
        A(f"s_waitcnt vmcnt({min(8, 9-s)})" + (" lgkmcnt(0)" if s in (0, NPRE) else ""))
        if X.tdiag and s in (0, 4, 9): stamp(A, {0: 2, 4: 3, 9: 4}[s])
        o = OF + 4*s
        for mt in range(5):
            A(f"v_mfma_f32_16x16x32_bf16 {vr(ACC+4*mt,4)}, {vr(wslot(s,mt),4)}, {vr(OF+4*s,4)}, {vr(ACC+4*mt,4) if s else 0}")
            if mt < 2 and s >= 2: A(f"v_max3_u32 v6, v{o+2*mt}, v{o+2*mt+1}, v6")
            if s + NPRE < 10 and mt > 0: wrd(s + NPRE, mt - 1)
        if s + NPRE < 10: wrd(s + NPRE, 4)
    A("v_cmp_eq_u32 vcc, s71, v6")
    A(f"s_cbranch_vccnz {L_rt}")
    A("s_nop 1")
    for mt in range(5):
        A(f"ds_write_b128 v{PPW}, {vr(ACC+4*mt,4)} offset:{mt*64}")
        if mt == 0: A("s_nop 3")
    A("s_waitcnt lgkmcnt(0)")
    if not X.pdiag: stamp(A, 9)
    A("s_barrier")
    if X.tdiag:
        stamp(A, 5)
        A("s_waitcnt lgkmcnt(0)")
        A(f"s_mov_b32 s{SB+12}, s46")
        A(f"s_mov_b32 s{SB+13}, 0")
    P = 96
    for j in range(2):
        for k in range(2):
            for h in range(2):
                A(f"ds_read_b128 {vr(P+16*j+8*k+4*h,4)}, v{PPR} offset:{j*1344 + k*21504 + h*16}")
    for j in range(2):
        A(f"s_waitcnt lgkmcnt({4*(1-j)})")
        for i in range(0, 8, 2):
            A(f"v_pk_add_f32 {vr(P+16*j+i,2)}, {vr(P+16*j+i,2)}, {vr(P+16*j+8+i,2)}")
        for i in range(0, 8, 2):
            A(f"v_pk_fma_f32 {vr(TT[8*j+i],2)}, {vr(P+16*j+i,2)}, {vr(G,2)}, {vr(TT[8*j+i],2)} " + ("op_sel:[0,0,0] op_sel_hi:[1,0,1]" if j == 0 else "op_sel:[0,1,0] op_sel_hi:[1,1,1]"))
        for i in range(4):
            A(f"v_cvt_pk_bf16_f32 v{XV+4*j+i}, v{TT[8*j+2*i]}, v{TT[8*j+2*i+1]}")
        A(f"buffer_store_dwordx4 {vr(XV+4*j,4)}, v{PX}, s[20:23], {'0' if j == 0 else 's55'} offen {X.ost}")
    if X.pfT: A.pf_stop("PFRET_T")
    stamp_rt(A, 10)
    stamp_flush(A, 11, 8, 29)
    A(f"{L_exit}:")
    A("s_endpgm")
    A(f"{L_et}:")
    A("s_sub_u32 s46, s46, 1")
    A("s_cselect_b32 s71, 0x12345, s71")
    A("s_cselect_b32 s46, 0, s46")
    A("s_waitcnt vmcnt(0)")
    oload(0); oload(1)
    A("s_waitcnt vmcnt(0)")
    tailchk()
    A(f"s_cbranch_vccnz {L_et}")
    A(f"s_branch {L_rl}")
    A(f"{L_rt}:")
    A("s_mov_b32 s47, 1")
    A("s_sub_u32 s46, s46, 1")
    A("s_cselect_b32 s71, 0x12345, s71")
    A("s_cselect_b32 s46, 0, s46")
    for s_ in range(10 - NPRE):
        for mt in range(5):
            wrd(s_, mt)
    A(f"s_branch {L_rl}")
    A(f"{L_sel}:")
    A(f"ds_read_b128 {vr(XV,4)}, v{PY}")
    A(f"ds_read_b128 {vr(XV+4,4)}, v{PY} offset:16")
    A("s_waitcnt lgkmcnt(0)")
    for j in range(2):
        A(f"v_add_u32 v6, {4*j}, v{PTK}")
        A("v_cmp_eq_u32 vcc, s56, v6")
        for i in range(8):
            A(f"v_add_f32 v6, v{TT[8*j+i]}, v{XV+i}")
            bf16r(A, 6, 6)
            A(f"v_cndmask_b32 v{TT[8*j+i]}, v{TT[8*j+i]}, v6, vcc")
    A(f"s_branch {L_nosel}")
    A(f"{L_aw}:")
    A("s_waitcnt vmcnt(0)")
    A(f"s_branch {L_awr}")
    A(f"{L_rgl}:")
    qloop(True)
    A("v_add_u32 v8, s50, v2")
    A("v_lshlrev_b32 v6, 2, v8")
    A("v_lshl_or_b32 v6, v3, 28, v6")
    A("v_sub_u32 v8, 2047, v8")
    A(f"s_mov_b32 s33, {WS_R}")
    A(f"s_mov_b32 s34, {WS_G}")
    A(f"buffer_store_dword v{VE}, v6, s[8:11], s33 offen sc1")
    A(f"buffer_store_dword v{VE+1}, v6, s[8:11], s34 offen sc1")
    A(f"v_ashrrev_i32 v7, 31, v{VE}")
    A("v_or_b32 v7, 0x80000000, v7")
    A(f"v_xor_b32 v7, v7, v{VE}")
    A("v_and_b32 v7, 0xfffff800, v7")
    A("v_or_b32 v7, v7, v8")
    A(f"s_mov_b32 s34, {WS_RKEY}")
    fin_key()
    A("s_mul_i32 s32, s50, 20")
    A(f"s_add_u32 s32, s32, {WS_Y}")
    A("v_cmp_gt_u32 vcc, 20, v1")
    A("v_mov_b32 v7, 0x40000000")
    A("v_cndmask_b32 v6, v7, v5, vcc")
    A(f"buffer_store_dwordx4 {vr(VE+4,4)}, v6, s[8:11], s32 offen sc1")
    A("s_lshl_b32 s32, s30, 7")
    A(f"s_add_u32 s33, s32, {WS_GC}")
    A(f"buffer_store_dword v{VE+4}, v24, s[8:11], s33 offen sc1")
    A(f"s_add_u32 s33, s32, {WS_FC}")
    A(f"buffer_store_dword v{VE+4}, v24, s[8:11], s33 offen sc1")
    A(f"s_branch {L_rgr}")
    A(f"{L_fb}:")
    A("v_lshlrev_b32 v21, 3, v2")
    for b in range(2):
        A(f"v_cndmask_b32 v{QS[b]}, v{QS[b]}, 0, s[44:45]")
    A("v_mov_b32 v30, 0xff800000")
    A("v_mov_b32 v31, 0xff800000")
    L_p1, L_p2 = A.label("p1"), A.label("p2")
    def fb_s():
        A(f"buffer_load_dwordx4 {vr(KA1[0],4)}, v5, s[8:11], s32 offen sc1")
        A(f"buffer_load_dwordx2 {vr(KA2[0],2)}, v21, s[8:11], s32 offen offset:{OFF_A2} sc1")
    def fb_qk():
        A("s_waitcnt vmcnt(0)")
        qs2(0, 0, 0); qk1(0, 0, 0); qs2(0, 0, 1); qk1(0, 0, 1)
        A("s_nop 15")
    A("s_mov_b32 s32, 0")
    A(f"{L_p1}:")
    fb_s(); fb_qk()
    for r in range(0, 16, 2):
        A(f"v_max3_f32 v30, v{S[0]+r}, v{S[0]+r+1}, v30")
        A(f"v_max3_f32 v31, v{S[0]+16+r}, v{S[0]+16+r+1}, v31")
    A(f"s_add_u32 s32, s32, {SL}")
    A(f"s_cmp_lt_u32 s32, {64*SL}")
    A(f"s_cbranch_scc1 {L_p1}")
    A("v_mov_b32 v28, v30")
    A("v_mov_b32 v29, v31")
    A("s_nop 1")
    A("v_permlane32_swap_b32 v30, v28")
    A("v_permlane32_swap_b32 v31, v29")
    A("s_nop 1")
    A("v_max_f32 v30, v30, v28")
    A("v_max_f32 v31, v31, v29")
    for r in range(32):
        A(f"v_mov_b32 v{O[0]+r}, 0")
    A("s_mov_b32 s32, 0")
    A(f"{L_p2}:")
    fb_s()
    A(f"s_add_u32 s32, s32, {SL}")
    A(f"s_cmp_lt_u32 s32, {64*SL}")
    A("s_cselect_b32 s33, s32, 0")
    A(f"buffer_load_dwordx4 {vr(V0[0],4)}, v23, s[8:11], s33 offen offset:{OFF_V0} sc1")
    A(f"buffer_load_dwordx4 {vr(V1[0],4)}, v23, s[8:11], s33 offen offset:{OFF_V1} sc1")
    fb_qk()
    for r in range(32):
        A(f"v_sub_f32 v{S[0]+r}, v{S[0]+r}, v{30 + r // 16}")
    for r in range(32):
        A(f"v_exp_f32 v{S[0]+r}, v{S[0]+r}")
    A("s_nop 2")
    pv(0, 0, 0, 0); pv(0, 1, 0, 0); pv(0, 0, 1, 0); pv(0, 1, 1, 0)
    A(f"s_cmp_lt_u32 s32, {64*SL}")
    A(f"s_cbranch_scc1 {L_p2}")
    A("s_nop 15")
    A(f"v_rcp_f32 v28, v{O[0]+8}")
    A("s_nop 0")
    A("v_mov_b32 v29, v28")
    A("s_nop 1")
    A("v_permlane32_swap_b32 v28, v29")
    A("s_nop 1")
    A(f"s_branch {L_norm}")

    def early_setup():
        common_setup()
        oproj_addr()
        o_addr()
        for i in range(4):
            A(f"v_mov_b32 v{176+i}, -1")
        A(f"v_mov_b32 v173, {FCNT}")
        A("v_mov_b32 v6, 0")
        A("v_mov_b32 v7, 0")
        A("v_lshlrev_b32 v10, 3, v1")
        A("v_mul_u32_u24 v11, 3072, v1")
        A("v_cmp_gt_u32 vcc, 40, v1")
        A("v_mov_b32 v4, 0x40000000")
        A("v_cndmask_b32 v4, v4, v10, vcc")
        A("v_mov_b32 v175, 1")
        A("v_lshlrev_b32 v9, 1, v1")
        for j in range(12):
            A(f"v_mov_b32 v{12+j}, 0")
        A("v_and_b32 v8, 7, v1")
        A("v_lshlrev_b32 v8, 2, v8")
        A(f"v_add_u32 v8, {FB}, v8")
        A("s_lshl_b32 s32, s26, 5")
        A(f"s_add_u32 s32, s32, {FB}")
        A("v_lshl_add_u32 v25, v3, 3, s32")
        A("v_lshlrev_b32 v26, 1, v4")

    A(".MARK_H_BEGIN")
    A(f"{L_help}:")
    A("s_mov_b32 s72, 1")
    A("s_sub_u32 s26, s29, 4")
    A("v_lshrrev_b32 v6, 3, v1")
    A("v_and_b32 v7, 7, v1")
    A("v_lshrrev_b32 v8, 1, v6")
    A("v_xor_b32 v7, v7, v8")
    A("v_mul_u32_u24 v6, 1280, v6")
    A("v_lshl_add_u32 v181, v7, 4, v6")
    A("v_xor_b32 v182, 64, v181")
    A("v_add_u32 v182, 9216, v182")
    A("v_mul_u32_u24 v2, 26, v1")
    A("v_lshrrev_b32 v2, 8, v2")
    A("v_mul_u32_u24 v3, 10, v2")
    A("v_sub_u32 v3, v1, v3")
    A("v_mul_u32_u24 v2, 1280, v2")
    A("v_lshl_add_u32 v172, v3, 4, v2")
    A("v_add_u32 v183, 17920, v172")
    A("s_mul_i32 s63, s30, 81920")
    A("s_mul_i32 s32, s26, 20480")
    A("s_add_u32 s63, s63, s32")
    A("s_lshl_b32 s64, s26, 11")
    A("s_lshr_b32 s32, s26, 1")
    A("s_xor_b32 s32, s32, s26")
    A("s_mul_i32 s61, s32, 5120")
    A("s_mul_i32 s33, s31, 160")
    A("s_add_u32 s61, s61, s33")
    A("s_mul_i32 s62, s26, 640")
    A(f"s_add_u32 s62, s62, {WR}")
    A("s_mov_b32 s66, -1")
    A("s_movk_i32 s67, 0xff")
    A(f"s_mov_b32 s14, {X_BYTES}")
    A("s_mov_b32 s15, 0x00020000")
    A(f"s_mov_b32 s18, {W_BYTES}")
    A("s_mov_b32 s19, 0x00020000")
    A("s_mov_b32 s23, 0x00020000")
    A("s_lshl_b32 s35, s26, 10")
    A("s_mov_b32 s65, s25")
    A("s_lshl_b32 s32, s26, 3")
    A("s_or_b32 s32, s32, s3")
    A("s_cmp_lt_u32 s32, 2")
    A(f"s_cselect_b32 s69, {SIG + DN + 1}, 99")
    A("s_waitcnt lgkmcnt(0)")
    hst(A, 1)
    A("s_mov_b32 s12, s36")
    A("s_and_b32 s13, s37, 0xffff")
    A("s_mov_b32 s16, s38")
    A("s_and_b32 s17, s39, 0xffff")
    def xpiece():
        A("s_lshl_b32 s32, s65, 7")
        A("s_mov_b32 m0, s64")
        A("s_add_u32 s32, s32, s63")
        A("s_add_u32 s64, s64, 8192")
        A("buffer_load_dwordx4 v181, s[12:15], s32 offen lds")
        A("buffer_load_dwordx4 v182, s[12:15], s32 offen offset:1024 lds")
        A("s_add_u32 s65, s65, 1")
        A("s_cmp_eq_u32 s65, 10")
        A("s_cselect_b32 s65, 0, s65")
    def wchunk():
        A("s_mul_i32 s33, s25, 81920")
        A("s_mov_b32 m0, s62")
        A("s_add_u32 s33, s33, s61")
        A("s_mov_b64 exec, s[66:67]")
        A("buffer_load_dwordx4 v172, s[16:19], s33 offen lds")
        A("buffer_load_dwordx4 v183, s[16:19], s33 offen offset:2560 lds")
        A("s_add_u32 m0, s62, 5120")
        A("s_add_u32 s33, s33, 40960")
        A("buffer_load_dwordx4 v172, s[16:19], s33 offen lds")
        A("buffer_load_dwordx4 v183, s[16:19], s33 offen offset:2560 lds")
        A("s_mov_b64 exec, -1")
        A("s_add_u32 s62, s62, 10240")
        A(f"s_cmp_ge_u32 s62, {WR + NS*10240}")
        A(f"s_cselect_b32 s32, {NS*10240}, 0")
        A("s_sub_u32 s62, s62, s32")
        A("s_add_u32 s25, s25, 1")
        A("s_cmp_eq_u32 s25, 10")
        A("s_cselect_b32 s25, 0, s25")
    L_prod, L_p1d, L_nv2 = A.label("prod"), A.label("p1d"), A.label("nv2")
    A("s_cmp_lt_u32 s3, 2")
    A(f"s_cbranch_scc1 {L_prod}")
    A("s_cmp_lg_u32 s3, 2")
    A(f"s_cbranch_scc1 {L_nv2}")
    A("s_bitcmp1_b32 s26, 0")
    A("s_cselect_b32 s20, s4, s44")
    A("s_cselect_b32 s21, s5, s45")
    A("s_and_b32 s21, s21, 0xffff")
    A("s_movk_i32 s22, 1280")
    A("s_lshr_b32 s32, s26, 1")
    A("s_mul_i32 s32, s32, 640")
    A("s_and_b32 s33, s26, 1")
    A("s_mul_i32 s33, s33, 1280")
    A("s_add_u32 s33, s33, s32")
    A(f"s_add_u32 m0, s33, {VR}")
    A("s_mov_b64 exec, s[66:67]")
    A(f"buffer_load_dwordx4 v5, s[20:23], s32 offen lds")
    A("s_mov_b64 exec, -1")
    A(f"{L_nv2}:")
    L_l, L_x = A.label("l"), A.label("x")
    A(f"{L_x}:")
    xpiece()
    A("s_cmp_lg_u32 s65, s25")
    A(f"s_cbranch_scc1 {L_x}")
    early_setup()
    A("s_mov_b32 s46, 0")
    A("s_mov_b32 s34, 1")
    A(f"{L_l}:")
    wchunk()
    A("s_add_u32 s46, s46, 1")
    A(f"s_cmp_le_u32 s46, {DN}")
    A(f"s_cbranch_scc1 {L_l}")
    def chk():
        if X.direct: return
        L = A.label("chk")
        A("s_cmp_lg_u32 s34, 63")
        A(f"s_cbranch_scc1 {L}")
        A("s_mov_b32 s34, 1")
        A("s_atomic_add s34, s[48:49], 0x80")
        A(f"{L}:")
    L_ns, L_lw = A.label("ns"), A.label("lw")
    A(f"{L_lw}:")
    A(f"s_waitcnt vmcnt({4*DN})")
    chk()
    A("s_barrier")
    A("s_cmp_lg_u32 s46, s69")
    A(f"s_cbranch_scc1 {L_ns}")
    A("s_atomic_add s34, s[48:49], 0x0" + ("" if X.direct else " glc"))
    hst(A, 6)
    A(f"{L_ns}:")
    A("s_cmp_lt_u32 s46, 10")
    A(f"s_cbranch_scc1 {L_l}")
    for d in range(DN - 1, -1, -1):
        A(f"s_waitcnt vmcnt({4*d})" + (" lgkmcnt(0)" if d == 0 else ""))
        chk()
        A("s_barrier")
    A(f"s_branch {L_p1d}")
    A(f"{L_prod}:")
    A("s_cmp_eq_u32 s3, 0")
    A("s_cselect_b32 s20, s40, s42")
    A("s_cselect_b32 s21, s41, s43")
    A("s_and_b32 s21, s21, 0xffff")
    A("s_movk_i32 s22, 25600")
    A("s_mul_i32 s35, s26, 640")
    A(f"s_add_u32 s68, s35, {ER}")
    A("s_mov_b32 s46, 0")
    L_a, L_w = A.label("a"), A.label("w")
    A(f"{L_a}:")
    A("s_mul_i32 s34, s65, 2560")
    A("s_mov_b32 m0, s68")
    A("s_add_u32 s34, s34, s35")
    A("s_mov_b64 exec, s[66:67]")
    A("buffer_load_dwordx4 v5, s[20:23], s34 offen lds")
    A("buffer_load_dwordx4 v5, s[20:23], s34 offen offset:2560 lds")
    A("s_mov_b64 exec, -1")
    A("s_add_u32 s68, s68, 5120")
    xpiece(); xpiece()
    A("s_add_u32 s46, s46, 1")
    A("s_cmp_le_u32 s46, 2")
    A(f"s_cbranch_scc1 {L_a}")
    A("s_waitcnt vmcnt(12)")
    A("s_barrier")
    A("s_cmp_lt_u32 s46, 5")
    A(f"s_cbranch_scc1 {L_a}")
    A("s_mov_b32 s46, 0")
    wchunk()
    A("s_waitcnt vmcnt(10)")
    A("s_barrier")
    wchunk()
    A("s_waitcnt vmcnt(8)")
    A("s_barrier")
    hst(A, 2)
    wchunk()
    A("s_barrier")
    hst(A, 3)
    wchunk()
    early_setup()
    A("s_mov_b32 s46, 4")
    A("s_mov_b32 s34, 1")
    A(f"s_branch {L_lw}")
    A(f"{L_p1d}:")
    A("s_branch L_HELP2")
    A(".MARK_H_END")
    A("L_HELP2:")
    A(f"s_load_dwordx2 s[38:39], s[0:1], {KA_WO}")
    A(f"s_load_dwordx4 s[40:43], s[0:1], {KA_WG}")
    A(f"s_load_dwordx2 s[44:45], s[0:1], {KA_WD}")
    common_setup2()
    A("v_lshlrev_b32 v174, 24, v1")
    if not X.direct: A("buffer_load_dword v29, v174, s[76:79], 0 offen offset:128 sc1")
    A("s_mov_b32 s4, s36")
    A("s_mov_b32 s5, s37")
    A("s_lshl_b32 s32, s26, 10")
    A("s_mov_b32 m0, s32")
    A("s_add_u32 s53, s32, s24")
    A("s_barrier")
    A("s_barrier")
    hst(A, 8)
    A("s_mul_i32 s64, s26, 5120")
    A("s_add_u32 s64, s64, s54")
    A("s_mul_i32 s32, s73, 51200")
    A("s_add_u32 s64, s64, s32")
    A(f"s_mov_b32 s69, {320*1280}")
    A("s_mul_i32 s65, s26, 640")
    A("s_waitcnt lgkmcnt(0)")
    srd(A, 60, 38, W_BYTES)
    L_g1, L_g2 = A.label("g1"), A.label("g2")
    if X.direct:
        A("s_cmp_lg_u32 s26, 0")
        A(f"s_cbranch_scc1 {L_g1}")
        await_cnt(A, 28, X.gsl)
    else:
        A("s_waitcnt vmcnt(0)")
        A("v_readfirstlane_b32 s32, v29")
        A("s_or_b32 s32, s32, s26")
        A("s_cmp_lg_u32 s32, 0")
        A(f"s_cbranch_scc1 {L_g1}")
        await_go(A, 0, 28, X.gsl)
    A(f"{L_g1}:")
    hst(A, 9)
    A("s_barrier")
    if not X.pdiag: stamp(A, 1)
    def dma(n):
        L = A.label("dma")
        A(f"s_add_u32 s34, m0, {n*4096}")
        A(f"{L}:")
        A("buffer_load_dwordx4 v5, s[8:11], s53 offen sc1 lds")
        A("s_add_u32 m0, m0, 4096")
        A("s_add_u32 s53, s53, 4096")
        A(f"s_cmp_ge_u32 s53, {64*SL}")
        A(f"s_cselect_b32 s32, {64*SL}, 0")
        A("s_sub_u32 s53, s53, s32")
        A("s_cmp_lt_u32 m0, s34")
        A(f"s_cbranch_scc1 {L}")
    def need(tiles):
        return min(40, -(-(-(-tiles*SL // 1024)) // 4))
    n0, n1 = need(U_TILES), need(U_TILES * 2)
    nb = X.nb0
    dma(nb)
    A(f"s_waitcnt vmcnt({nb - n0})")
    A("s_barrier")
    L_b2, L_b3, L_b4 = A.label("b2"), A.label("b3"), A.label("b4")
    A("s_lshl_b32 s32, s26, 3")
    A("s_or_b32 s32, s32, s3")
    A("s_mov_b32 s35, 1")
    A("s_cmp_lg_u32 s32, 2")
    A(f"s_cbranch_scc1 {L_b3}")
    A("s_atomic_add s35, s[48:49], 0x4 glc")
    A(f"{L_b3}:")
    A("ds_write_b64 v173, v[6:7]")
    A("ds_write_b64 v173, v[6:7] offset:8")
    A("ds_write_b32 v173, v6 offset:16")
    dma(40 - nb - 1)
    A("s_cmp_eq_u32 s26, 3")
    A("s_cselect_b32 s32, 0x3fffffff, -1")
    A("s_cselect_b32 s33, 0, -1")
    A("s_mov_b64 exec, s[32:33]")
    A("buffer_load_dwordx4 v5, s[8:11], s53 offen sc1 lds")
    A("s_mov_b64 exec, -1")
    A(f"s_waitcnt vmcnt({40 - n1}) lgkmcnt(0)")
    A("s_cmp_lg_u32 s35, 31")
    A(f"s_cbranch_scc1 {L_b4}")
    A("s_atomic_add s35, s[48:49], 0x84")
    A(f"{L_b4}:")
    A("s_barrier")
    A(f"buffer_store_dwordx4 v[176:179], v{POA}, s[8:11], s74 offen sc1")
    A(f"buffer_store_dwordx2 v[176:177], v{POB}, s[8:11], s75 offen sc1")
    A(f"buffer_store_dwordx4 v[176:179], v{POA}, s[8:11], s58 offen sc1")
    A(f"buffer_store_dwordx2 v[176:177], v{POB}, s[8:11], s59 offen sc1")
    if not X.pdiag: stamp(A, 2)
    def lds_wait(off, thr, slp=2):
        Lp = A.label("lw")
        A(f"{Lp}:")
        A(f"ds_read_b32 v171, v173 offset:{off}")
        A("s_waitcnt lgkmcnt(0)")
        A("v_readfirstlane_b32 s32, v171")
        A(f"s_sleep {slp}")
        A(f"s_cmp_lt_u32 s32, {thr}")
        A(f"s_cbranch_scc1 {Lp}")
    def wo_part(thr):
        Lw = A.label("wl")
        Lp = A.label("pw")
        A(f"{Lp}:")
        A("ds_read_b32 v171, v173 offset:4")
        A("s_waitcnt lgkmcnt(0)")
        A("v_readfirstlane_b32 s32, v171")
        A(f"s_sleep {X.slp}")
        if thr == 256:
            A("s_lshl_b32 s33, s32, 1")
            A("s_or_b32 s32, s32, s33")
        A("s_andn2_b32 s32, 0x02020202, s32")
        A(f"s_cbranch_scc1 {Lp}")
        if X.nowo: return
        A(f"s_add_u32 s34, s65, 51200")
        A("s_mov_b64 exec, s[66:67]")
        A(f"{Lw}:")
        A("s_mov_b32 m0, s65")
        A("s_add_u32 s32, s64, s69")
        A("buffer_load_dwordx4 v172, s[60:63], s32 offen lds")
        A("s_add_u32 s65, s65, 2560")
        A("s_add_u32 s64, s64, 20480")
        A("s_cmp_ge_u32 s64, 409600")
        A("s_cselect_b32 s32, 409600, 0")
        A("s_sub_u32 s64, s64, s32")
        A("s_cmp_lt_u32 s65, s34")
        A(f"s_cbranch_scc1 {Lw}")
        A("s_mov_b64 exec, -1")
    A("buffer_load_dword v28, v174, s[76:79], 0 offen offset:132 sc1")
    A("s_waitcnt vmcnt(0)")
    A("ds_add_u32 v173, v175 offset:16")
    A("v_readfirstlane_b32 s32, v28")
    A("s_cmp_lg_u32 s32, 0")
    A(f"s_cbranch_scc1 {L_b2}")
    await_go(A, 4, 28, 8)
    A(f"{L_b2}:")
    A(f"s_mov_b32 s32, {WS_RKEY}")
    A("buffer_load_dwordx2 v[6:7], v10, s[8:11], s32 offen sc1")
    A("s_lshl_b32 s35, s30, 7")
    A(f"s_add_u32 s35, s35, {WS_GC}")
    A("buffer_atomic_add v175, v174, s[8:11], s35 offen sc1")
    def getidx():
        A("s_setprio 2")
        wave_max_u32(A, 6, 7, 56)
        A("s_setprio 0")
        A("s_and_b32 s56, s56, 2047")
        A("s_sub_u32 s25, 2047, s56")
    L_w1, L_w2 = A.label("w1"), A.label("w2")
    A("s_mul_i32 s47, s30, 6")
    A("s_add_u32 s47, s47, s3")
    A("s_sub_u32 s47, s47, 2")
    A(f"s_cmp_lt_u32 s3, {99 if X.noffn else 2}")
    A(f"s_cbranch_scc1 {L_w1}")
    A("s_cmp_ge_u32 s26, 2")
    A("s_cselect_b32 s16, s42, s40")
    A("s_cselect_b32 s17, s43, s41")
    A("s_and_b32 s17, s17, 0xffff")
    A(f"s_mov_b32 s18, {F_BYTES}")
    srd(A, 20, 44, F_BYTES)
    A("s_and_b32 s46, s26, 1")
    W_, WD_, XL, AC = 32, 56, 72, 12
    A(f"s_mul_i32 s32, s46, {320*3072}")
    A("s_lshl_b32 s33, s47, 4")
    A("s_add_u32 s32, s32, s33")
    for i in range(5):
        A(f"buffer_load_dwordx4 {vr(W_+4*i,4)}, v11, s[16:19], s32 offen")
        if i < 4: A(f"s_add_u32 s32, s32, {64*3072}")
    A("s_waitcnt vmcnt(5)")
    getidx()
    A("s_mul_i32 s32, s25, 1280")
    A("s_mul_i32 s33, s46, 640")
    A("s_add_u32 s32, s32, s33")
    for i in range(5):
        A(f"buffer_load_ushort v{XL+i}, v9, s[12:15], s32 offen offset:{i*128}")
    A("s_mul_i32 s32, s47, 10240")
    A("s_mul_i32 s33, s26, 320")
    A("s_add_u32 s32, s32, s33")
    for f in range(8):
        if f % 3 == 0 and f: A(f"s_add_u32 s32, s32, {3*1280}")
        A(f"buffer_load_dwordx2 {vr(WD_+2*f,2)}, v4, s[20:23], s32 offen offset:{(f%3)*1280}")
    A("s_waitcnt vmcnt(8)")
    if not X.pdiag: stamp(A, 3)
    A("s_setprio 2")
    for i in range(5):
        A(f"v_lshlrev_b32 v{XL+5}, 16, v{XL+i}")
        for dw in range(4):
            A(f"v_dot2c_f32_bf16 v{AC+2*dw}, v{W_+4*i+dw}, v{XL+i}")
            A(f"v_dot2c_f32_bf16 v{AC+2*dw+1}, v{W_+4*i+dw}, v{XL+5}")
    A("s_nop 3")
    for j in range(4):
        A(f"v_permlane32_swap_b32 v{AC+j}, v{AC+j+4}")
    A("s_nop 1")
    for j in range(4):
        A(f"v_add_f32 v{AC+j}, v{AC+j}, v{AC+j+4}")
    A("s_nop 1")
    for j in range(2):
        A(f"v_permlane16_swap_b32 v{AC+j}, v{AC+j+2}")
    A("s_nop 1")
    for j in range(2):
        A(f"v_add_f32 v{AC+j}, v{AC+j}, v{AC+j+2}")
    for sh in (8, 4, 2, 1):
        A("s_nop 1")
        for j in range(2):
            A(f"v_add_f32_dpp v{AC+j}, v{AC+j}, v{AC+j} row_ror:{sh} row_mask:0xf bank_mask:0xf")
    A(f"ds_write_b64 v25, {vr(AC,2)}")
    A("s_setprio 0")
    A("s_waitcnt lgkmcnt(0)")
    A("ds_add_u32 v173, v175")
    wo_part(256)
    lds_wait(0, 256)
    A("s_setprio 2")
    A("ds_read2_b32 v[12:13], v8 offset0:0 offset1:8")
    A("ds_read2_b32 v[14:15], v8 offset0:16 offset1:24")
    A("s_waitcnt lgkmcnt(0)")
    A("v_add_f32 v12, v12, v13")
    A("v_add_f32 v14, v14, v15")
    bf16r(A, 12, 12)
    sigmoid(A, 16, 12, 17)
    A("v_mul_f32 v12, v12, v16")
    bf16r(A, 12, 12)
    bf16r(A, 14, 14)
    A("v_mul_f32 v12, v12, v14")
    bf16r(A, 12, 12)
    Y = 20
    A("s_nop 0")
    def hs(f):
        hi = 13+2*f if f < 4 else 29+2*f
        return hi - 1, hi
    for f in range(8):
        A(f"v_readlane_b32 s{hs(f)[1]}, v12, {f}")
    for f in range(8):
        lo, hi = hs(f)
        A(f"s_lshr_b32 s{lo}, s{hi}, 16")
    A("s_waitcnt vmcnt(20)")
    for f in range(8):
        lo, hi = hs(f)
        for j in range(2):
            A(f"v_dot2c_f32_bf16 v{Y+2*j}, s{lo}, v{WD_+2*f+j}")
            A(f"v_dot2c_f32_bf16 v{Y+2*j+1}, s{hi}, v{WD_+2*f+j}")
    A("s_and_b32 s47, s47, 15")
    A("s_mul_i32 s32, s47, 2560")
    A("s_mul_i32 s33, s26, 640")
    A("s_add_u32 s32, s32, s33")
    A(f"s_add_u32 s32, s32, {WS_Y}")
    A("s_setprio 0")
    A("s_nop 2")
    for j in range(4):
        A(f"buffer_atomic_add_f32 v{Y+j}, v26, s[8:11], s32 offen offset:{j*4}")
    A("s_lshl_b32 s32, s47, 7")
    A(f"s_add_u32 s32, s32, {WS_FC}")
    A("s_waitcnt vmcnt(0)")
    A("buffer_atomic_add v175, v174, s[8:11], s32 offen sc1")
    A(f"s_branch {L_w2}")
    A(f"{L_w1}:")
    A("s_waitcnt vmcnt(0)")
    getidx()
    wo_part(256)
    A("s_waitcnt vmcnt(0)")
    A(f"{L_w2}:")
    if not X.pdiag: stamp(A, 4)
    A("ds_add_u32 v173, v175 offset:8")
    oproj_saddr()
    lds_wait(8, 256)
    A(f"s_branch {L_op}")
    A(f"{L_h2}:")
    if not X.pdiag: stamp(A, 5)
    A("v_mov_b32 v171, s25")
    A("ds_write_b32 v173, v171 offset:12")
    if X.pfT:
        A("s_cmp_lg_u32 s26, 2")
        A("s_cbranch_scc1 PFRET_T")
        A("s_mov_b64 exec, 0")
        A("s_branch PF_T_0")
        A("PFRET_T:")
        A("s_mov_b64 exec, -1")
    L_ny, L_sp2, L_sg, L_ng, L_gp = A.label("ny"), A.label("sp2"), A.label("sg"), A.label("ng"), A.label("gp")
    A("s_mov_b32 s69, 0")
    wo_part(512)
    A("s_waitcnt vmcnt(20)")
    if X.gprio: A("s_setprio 2")
    gate_math()
    A("s_setprio 0")
    A("s_cmp_lg_u32 s26, 1")
    A(f"s_cbranch_scc1 {L_ng}")
    A(f"{L_gp}:")
    A("buffer_load_dword v171, v174, s[8:11], s35 offen sc1")
    A("s_waitcnt vmcnt(0)")
    A("v_readfirstlane_b32 s32, v171")
    A("s_sub_u32 s46, s46, 1")
    A(f"s_cbranch_scc1 {L_ng}")
    A("s_cmp_lt_u32 s32, 32")
    A(f"s_cbranch_scc1 {L_gp}")
    A(f"{L_ng}:")
    A("s_lshr_b32 s32, s25, 6")
    A("s_lshl_b32 s33, s26, 8")
    A("s_or_b32 s33, s33, s30")
    A("s_cmp_lg_u32 s32, s33")
    A(f"s_cbranch_scc1 {L_ny}")
    A("v_lshlrev_b32 v6, 7, v2")
    A(f"s_mov_b32 s33, {WS_FC}")
    A(f"{L_sp2}:")
    A("buffer_load_dword v171, v6, s[8:11], s33 offen sc1")
    A("s_waitcnt vmcnt(0)")
    A(f"v_cmp_ne_u32 vcc, {0 if X.noffn else 48}, v171")
    A("s_sub_u32 s46, s46, 1")
    A(f"s_cbranch_scc1 {L_sg}")
    A("s_sleep 8")
    A(f"s_cbranch_vccnz {L_sp2}")
    A(f"{L_sg}:")
    A("s_setprio 2")
    Yv = OF
    A("v_mul_u32_u24 v6, 2560, v2")
    A("v_lshl_add_u32 v6, v3, 4, v6")
    A("s_lshl_b32 s32, s54, 1")
    A(f"s_add_u32 s32, s32, {WS_Y}")
    for mt in range(5):
        A(f"buffer_load_dwordx4 {vr(Yv+4*mt,4)}, v6, s[8:11], s32 offen offset:{mt*64} sc1")
    A("s_lshl_b32 s32, s25, 2")
    A(f"s_add_u32 s32, s32, {WS_R}")
    A("v_mov_b32 v6, 0")
    A("buffer_load_dword v171, v6, s[8:11], s32 offen sc1")
    A("s_waitcnt vmcnt(0)")
    for sh in (8, 4, 2, 1):
        A("s_nop 1")
        for j in range(20):
            A(f"v_add_f32_dpp v{Yv+j}, v{Yv+j}, v{Yv+j} row_ror:{sh} row_mask:0xf bank_mask:0xf")
    bf16r(A, 171, 171)
    sigmoid(A, 171, 171, 6)
    bf16r(A, 171, 171)
    for j in range(20):
        bf16r(A, Yv+j, Yv+j)
        A(f"v_mul_f32 v{Yv+j}, v{Yv+j}, v171")
        bf16r(A, Yv+j, Yv+j)
    A("v_lshlrev_b32 v6, 4, v3")
    A(f"v_add_u32 v6, {YB}, v6")
    for mt in range(5):
        A(f"ds_write_b128 v6, {vr(Yv+4*mt,4)} offset:{mt*64}")
    A("s_setprio 0")
    A(f"{L_ny}:")
    A(f"s_mov_b32 s46, {SPIN}")
    A("s_waitcnt vmcnt(0) lgkmcnt(0)")
    if not X.pdiag: stamp(A, 6)
    A("s_barrier")
    if not X.pdiag: stamp(A, 7)
    if X.tprio: A("s_setprio 2")
    A(f"s_branch {L_h3}")

def build(path):
    A = Asm()
    fused(A)
    A("L_CODE_END:")
    L = A.lines
    hb, he = L.index(".MARK_H_BEGIN"), L.index(".MARK_H_END")
    if X.first:
        e = L.index(".MARK_ENTRY_END")
        L = L[:e] + L[hb+1:he] + L[e+1:hb] + L[he+1:]
    else:
        L = [l for l in L if not l.startswith(".MARK")]
    A.lines = L
    hdr = open("gated_mix__grouped_kv_mqa__moe_arch_mod__prompt.s.ref").read().split("; @launch")[0]
    out = hdr + "; @launch grid=(256,1,1) block=(512,1,1) lds=163840\n" + '.amdgcn_target "amdgcn-amd-amdhsa--gfx950"\n.text\n' + A.text() + '.section .rodata,"a"\n'
    out += kernel_desc(NAME, 256, 256)
    open(path, "w").write(out)

if __name__ == "__main__":
    build("t34.s")
    Cfg.on = True
    build("t34s.s")
    Cfg.rt = True
    build("t34r.s")
    X.tdiag = True
    build("t34t.s")
```

```python
import math, sys
from asmlib import *
from stamp8 import *

NAME = "gated_mix__grouped_kv_mqa__moe_arch_mod__prompt_kernel"
KA_X, KA_WQ, KA_WK, KA_WV, KA_WO, KA_BX, KA_WR, KA_WG, KA_WU, KA_WD, KA_GW, KA_OUT, KA_DBG, KA_WS = [8*i for i in range(14)]
SL = 2592
WS_KV0 = 0x0
WS_KMAX = 0x60000
WS_RKEY = 0x60200
WS_R = 0x61000
WS_G = 0x63000
WS_Y = 0x68000
WS_GC = 0x74000
WS_FC = 0x76000
WS_O = 0x100000
WS_SIZE = 0x1000000
X_BYTES = 2048*640*2
W_BYTES = 640*640*2
F_BYTES = 640*1536*2
QSCALE = (20 ** -0.5) * math.log2(math.e)
LOG2E = math.log2(math.e)
LTHR = f32bits(2.0 ** -30)
OFF_A2, OFF_V0, OFF_V1 = 1024, 1280, 1936
FB = 63*SL
FCNT = FB + 128
YB = FB + 160
XB = 102400
SPIN = 100000
WR = 81920
ER = WR + 5*10240
QX = WR + 7*10240
VR = QX
NS = 7
SIG = 1
DN = 3
PERM = sum(p << (4*i) for i, p in enumerate([0, 4, 5, 9, 3, 7, 2, 6]))
U_TILES = 8
class X:
    noffn = False; st = 0; hprio = 2; cprio = 0; nowo = False; slp = 10; pdiag = False; pfT = False; pfQ = False; tdiag = False; hsl = 0; rothg = False; gprio = True; tprio = True; pad = 0; pre = 0; ost = ''; gsl = 1; l2pf = True; first = True; nb0 = 8; itst = False; direct = False

def bf16r(A, d, s):
    A(f"v_cvt_pk_bf16_f32 v{d}, v{s}, v{s}")
    A(f"v_and_b32 v{d}, 0xffff0000, v{d}")
def sigmoid(A, d, s, t):
    A(f"v_mul_f32 v{t}, {f32bits(-LOG2E):#x}, v{s}")
    A(f"v_exp_f32 v{t}, v{t}")
    A("s_nop 0")
    A(f"v_add_f32 v{t}, 1.0, v{t}")
    A(f"v_rcp_f32 v{d}, v{t}")
    A("s_nop 0")
def row_max_u32(A, v):
    for sh in (8, 4, 2, 1):
        A("s_nop 1")
        A(f"v_max_u32_dpp v{v}, v{v}, v{v} row_ror:{sh} row_mask:0xf bank_mask:0xf")
def wave_max_u32(A, v, v2, st):
    A(f"v_max_u32 v{v}, v{v}, v{v2}")
    row_max_u32(A, v)
    A("s_nop 1")
    for i in range(4):
        A(f"v_readlane_b32 s{st+i}, v{v}, {16*i}")
    A(f"s_max_u32 s{st}, s{st}, s{st+1}")
    A(f"s_max_u32 s{st+2}, s{st+2}, s{st+3}")
    A(f"s_max_u32 s{st}, s{st}, s{st+2}")

def arrive(A, cnt_off, total, vt):
    L = A.label("arr")
    A(f"v_mov_b32 v{vt}, 1")
    A(f"v_lshlrev_b32 v{vt+1}, 24, v1")
    A(f"buffer_atomic_add v{vt}, v{vt+1}, s[76:79], 0 offen offset:{cnt_off} sc0 sc1")
    A("s_waitcnt vmcnt(0)")
    A(f"v_readfirstlane_b32 s32, v{vt}")
    A(f"v_mov_b32 v{vt}, 1")
    A(f"s_cmp_lg_u32 s32, {total-1}")
    A(f"s_cbranch_scc1 {L}")
    A(f"buffer_store_dword v{vt}, v{vt+1}, s[76:79], 0 offen offset:{128+cnt_off} sc1")
    A(f"{L}:")
def await_cnt(A, vt, slp):
    L, Ld = A.label("aw"), A.label("awd")
    A(f"v_lshlrev_b32 v{vt+1}, 24, v1")
    A(f"s_mov_b32 s33, {SPIN}")
    A(f"{L}:")
    A(f"buffer_load_dword v{vt}, v{vt+1}, s[76:79], 0 offen sc1")
    A("s_waitcnt vmcnt(0)")
    A(f"v_readfirstlane_b32 s32, v{vt}")
    A("s_sub_u32 s33, s33, 1")
    A(f"s_cbranch_scc1 {Ld}")
    A("s_cmp_ge_u32 s32, 64")
    A(f"s_cbranch_scc1 {Ld}")
    A(f"s_sleep {slp}")
    A(f"s_branch {L}")
    A(f"{Ld}:")
def await_go(A, cnt_off, vt, slp):
    L, Ld = A.label("aw"), A.label("awd")
    A(f"v_lshlrev_b32 v{vt+1}, 24, v1")
    A(f"s_mov_b32 s33, {SPIN}")
    A(f"{L}:")
    A(f"buffer_load_dword v{vt}, v{vt+1}, s[76:79], 0 offen offset:{128+cnt_off} sc1")
    A("s_waitcnt vmcnt(0)")
    A(f"v_readfirstlane_b32 s32, v{vt}")
    A("s_sub_u32 s33, s33, 1")
    A(f"s_cbranch_scc1 {Ld}")
    A("s_cmp_lg_u32 s32, 0")
    A(f"s_cbranch_scc1 {Ld}")
    A(f"s_sleep {slp}")
    A(f"s_branch {L}")
    A(f"{Ld}:")

def hst(A, i):
    if X.pdiag: stamp(A, i)
def fused(A):
    kernel_begin(A, NAME)
    L_exit, L_help, L_op = A.label("exit"), A.label("help"), A.label("oproj")
    A("s_cmp_ge_u32 s2, 256")
    A(f"s_cbranch_scc1 {L_exit}")
    stamp_rt(A, 0)
    for i in range(X.pre): A("s_sleep 64")
    A(f"s_load_dwordx4 s[36:39], s[0:1], {KA_X}")
    A(f"s_load_dwordx4 s[40:43], s[0:1], {KA_WK}")
    A(f"s_load_dwordx4 s[48:51], s[0:1], {KA_DBG}")
    A(f"s_load_dwordx2 s[44:45], s[0:1], {KA_WR}")
    A(f"s_load_dwordx4 s[4:7], s[0:1], {KA_GW}")
    A("v_lshrrev_b32 v4, 6, v0")
    A("v_and_b32 v1, 63, v0")
    A("v_readfirstlane_b32 s29, v4")
    A("v_lshlrev_b32 v5, 4, v1")
    A("s_and_b32 s30, s2, 7")
    A("s_lshl_b32 s30, s30, 2")
    A("s_lshr_b32 s28, s2, 6")
    A("s_add_u32 s30, s30, s28")
    A("s_bfe_u32 s31, s2, 0x30003")
    A("s_lshl_b32 s33, s28, 1")
    A("s_sub_u32 s3, s31, s33")
    A("s_and_b32 s3, s3, 7")
    A("s_lshl_b32 s32, s3, 2")
    A(f"s_lshr_b32 s25, {PERM:#x}, s32")
    A("s_and_b32 s25, s25, 15")
    A("s_add_u32 s25, s25, s33")
    A("s_cmp_ge_u32 s25, 10")
    A("s_cselect_b32 s32, 10, 0")
    A("s_sub_u32 s25, s25, s32")
    if X.first:
        A("s_cmp_lt_u32 s29, 4")
        A("s_cbranch_scc1 L_COMPUTE")
        A(".MARK_ENTRY_END")
        A("L_COMPUTE:")
    else:
        A("s_cmp_ge_u32 s29, 4")
        A(f"s_cbranch_scc1 {L_help}")

    def common_setup():
        A("s_mov_b32 s10, 0x1000000")
        A("s_mov_b32 s11, 0x00020000")
        A("s_bfe_u32 s24, s2, 0x40003")
        A(f"s_mul_i32 s24, s24, {4*SL}")
        A("s_lshl_b32 s73, s28, 1")
        if X.rothg:
            A("s_add_u32 s73, s73, s31")
            A("s_and_b32 s73, s73, 7")
        A("s_movk_i32 s78, 256")
        A("s_mov_b32 s79, 0x00020000")
    def common_setup2():
        A("s_mov_b32 s8, s50")
        A("s_and_b32 s9, s51, 0xffff")
        A("s_mov_b32 s76, s48")
        A("s_and_b32 s77, s49, 0xffff")
    PM, PT, PX, PTK, PO0, PO1, PPR, PY, PPW, POA, POB = range(160, 171)
    def oproj_addr():
        A("v_and_b32 v2, 15, v0")
        A("v_lshrrev_b32 v3, 4, v1")
        A("s_and_b32 s27, s29, 3")
        A("s_lshr_b32 s28, s29, 2")
        A("v_add_u32 v6, s73, v3")
        A("v_and_b32 v6, 7, v6")
        A("v_lshlrev_b32 v7, 4, v2")
        A(f"v_lshl_add_u32 v{PO0}, v6, 8, v7")
        A(f"v_xor_b32 v{PO1}, 0x400, v{PO0}")
        A("v_lshrrev_b32 v7, 2, v2")
        A("v_and_b32 v8, 3, v2")
        A("v_lshrrev_b32 v9, 1, v3")
        A("v_mul_u32_u24 v9, 20, v9")
        A("v_and_b32 v6, 1, v3")
        A("v_lshl_add_u32 v9, v6, 2, v9")
        A("v_add_u32 v9, v9, v7")
        A("v_mul_u32_u24 v9, 160, v9")
        A("v_lshl_add_u32 v9, v8, 3, v9")
        A("s_xor_b32 s32, s28, 1")
        A("s_mul_i32 s32, s32, 51200")
        A(f"v_add_u32 v{PM}, s32, v9")
        A("v_mul_u32_u24 v9, 40, v3")
        A("v_add3_u32 v9, v9, v7, 16")
        A("v_mul_u32_u24 v9, 160, v9")
        A("v_lshl_add_u32 v9, v8, 3, v9")
        A(f"v_add_u32 v{PT}, s32, v9")
        A("v_mul_u32_u24 v6, 26, v1")
        A("v_lshrrev_b32 v6, 8, v6")
        A("v_mul_u32_u24 v7, 10, v6")
        A("v_sub_u32 v7, v1, v7")
        A("s_lshl_b32 s32, s30, 6")
        A("s_lshl_b32 s33, s29, 3")
        A("s_add_u32 s52, s32, s33")
        A(f"v_add_u32 v{PTK}, s52, v6")
        A(f"v_mul_u32_u24 v8, 1280, v{PTK}")
        A("v_lshl_add_u32 v8, v7, 4, v8")
        A("s_mul_i32 s54, s31, 160")
        A("v_add_u32 v8, s54, v8")
        A("v_cmp_gt_u32 vcc, 40, v1")
        A("v_mov_b32 v9, 0x40000000")
        A(f"v_cndmask_b32 v{PX}, v9, v8, vcc")
        A("v_add_u32 v6, s33, v6")
        A("v_mul_u32_u24 v6, 336, v6")
        A("v_lshl_add_u32 v6, v7, 5, v6")
        A(f"v_add_u32 v{PPR}, {XB}, v6")
        A("v_lshlrev_b32 v7, 5, v7")
        A(f"v_add_u32 v{PY}, {YB}, v7")
        A("s_lshl_b32 s32, s27, 4")
        A("v_add_u32 v6, s32, v2")
        A("v_mul_u32_u24 v6, 336, v6")
        A("v_lshl_add_u32 v6, v3, 4, v6")
        A("s_mul_i32 s32, s28, 21504")
        A(f"s_add_u32 s32, s32, {XB}")
        A(f"v_add_u32 v{PPW}, s32, v6")
    def oproj_saddr():
        A("s_lshl_b32 s33, s30, 2")
        A("s_add_u32 s33, s33, s27")
        A("s_mul_i32 s68, s33, 20480")
        A(f"s_add_u32 s68, s68, {WS_O}")
        A("s_lshl_b32 s33, s28, 11")
        A("s_add_u32 s70, s68, s33")
        A("s_add_u32 s70, s70, 16384")
        A("s_lshl_b32 s33, s28, 13")
        A("s_add_u32 s68, s68, s33")
        for p in range(8):
            A(f"s_add_u32 s32, s73, {p}")
            A("s_and_b32 s32, s32, 7")
            A(f"s_lshl_b32 s{12+p}, s32, 10")
            A(f"s_add_u32 s{12+p}, s{12+p}, s68")
        A("s_movk_i32 s55, 5120")
        A(f"s_mov_b32 s22, {X_BYTES}")
        A("s_mov_b32 s23, 0x00020000")

    def o_addr():
        A("s_lshl_b32 s47, s31, 2")
        A("s_add_u32 s47, s47, s27")
        A("v_bfe_u32 v6, v1, 4, 1")
        A("v_mul_u32_u24 v6, 20480, v6")
        A("v_lshl_add_u32 v6, v2, 4, v6")
        A("v_lshrrev_b32 v7, 5, v1")
        A(f"v_lshl_add_u32 v{POA}, v7, 8, v6")
        A(f"v_lshl_or_b32 v{POB}, v7, 30, v6")
        A("s_mul_i32 s32, s30, 81920")
        A(f"s_add_u32 s32, s32, {WS_O}")
        A("s_lshl_b32 s74, s47, 9")
        A("s_add_u32 s74, s74, s32")
        A("s_lshr_b32 s75, s47, 1")
        A("s_lshl_b32 s75, s75, 8")
        A("s_and_b32 s33, s47, 1")
        A("s_lshl_b32 s33, s33, 3")
        A("s_add_u32 s75, s75, s33")
        A("s_add_u32 s75, s75, s32")
        A("s_add_u32 s75, s75, 16384")
        A("s_add_u32 s58, s74, 40960")
        A("s_add_u32 s59, s75, 40960")

    A("s_mov_b32 s72, 0")
    if X.l2pf:
        A("s_getpc_b64 s[32:33]")
        A("L_PC0:")
        A(f"s_sub_u32 s32, s32, L_PC0-{NAME}")
        A("s_subb_u32 s33, s33, 0")
        A("s_lshr_b32 s34, s2, 3")
        A("v_lshl_add_u32 v6, v0, 5, s34")
        A("v_lshlrev_b32 v6, 7, v6")
        A(f"v_min_u32 v6, L_CODE_END-{NAME}-4, v6")
        A("global_load_dword v180, v6, s[32:33]")
    common_setup()
    oproj_addr()
    oproj_saddr()
    VACC = 32; VE = 52; H = [64, 84]; XF = [104, 108]
    VB1, VB2, VXA0, VXA1 = 14, 15, 16, 17
    A("v_lshrrev_b32 v6, 2, v2")
    A("v_and_b32 v7, 3, v2")
    A("v_lshl_add_u32 v6, v3, 3, v6")
    A("v_and_b32 v8, 1, v3")
    A("v_lshlrev_b32 v8, 2, v8")
    A("v_add_u32 v9, v6, v8")
    A("v_mul_u32_u24 v9, 160, v9")
    A("v_lshl_add_u32 v9, v7, 3, v9")
    A(f"v_add_u32 v{VB1}, {WR}, v9")
    A("v_xor_b32 v8, 4, v8")
    A("v_add_u32 v9, v6, v8")
    A("v_mul_u32_u24 v9, 160, v9")
    A("v_lshl_add_u32 v9, v7, 3, v9")
    A(f"v_add_u32 v{VB2}, {WR}, v9")
    A("v_mul_u32_u24 v9, 40, v6")
    A(f"v_add_u32 v9, {ER}, v9")
    A("v_lshl_add_u32 v18, v7, 3, v9")
    A("v_add_u32 v19, 32, v9")
    A("v_lshrrev_b32 v6, 1, v2")
    A("v_xor_b32 v6, v6, v3")
    A("v_lshlrev_b32 v6, 4, v6")
    A("v_lshl_add_u32 v6, v2, 7, v6")
    A("s_lshl_b32 s32, s29, 11")
    A("v_add_u32 v10, s32, v6")
    A("v_xor_b32 v11, 64, v10")
    A(f"v_mov_b32 v{VXA0}, v10")
    A(f"v_mov_b32 v{VXA1}, v11")
    for i in range(VACC, VE + 8):
        A(f"v_mov_b32 v{i}, 0")
    A("s_lshr_b32 s32, s29, 1")
    A("s_mul_i32 s32, s32, 5120")
    A("s_and_b32 s33, s29, 1")
    A("s_lshl_b32 s33, s33, 7")
    A("s_add_u32 s32, s32, s33")
    A(f"s_add_u32 s32, s32, {QX}")
    A("v_lshlrev_b32 v6, 3, v2")
    A("v_lshl_add_u32 v6, v3, 8, v6")
    A("v_add_u32 v13, s32, v6")
    o_addr()
    A("s_waitcnt lgkmcnt(0)")
    common_setup2()
    A("s_mov_b32 s4, s36")
    A("s_mov_b32 s5, s37")
    A("v_lshlrev_b32 v24, 24, v1")
    A("s_lshl_b32 s32, s30, 6")
    A("s_lshl_b32 s33, s29, 4")
    A("s_add_u32 s50, s32, s33")
    if X.pfQ:
        A("s_cmp_lg_u32 s29, 3")
        A("s_cbranch_scc1 PFRET_Q")
        A("s_mov_b64 exec, 0")
        A("s_branch PF_Q_0")
        A("PFRET_Q:")
        A("s_mov_b64 exec, -1")
    stamp(A, 1)
    L_main, L_rg, L_ev, L_ej = A.label("main"), A.label("rg"), A.label("ev"), A.label("ej")
    A("s_cmp_gt_u32 s3, 2")
    A(f"s_cbranch_scc1 {L_main}")
    A("s_cmp_eq_u32 s3, 2")
    A(f"s_cbranch_scc1 {L_rg}")
    EW = 64; EX = 112
    A("s_mov_b32 s46, 0")
    def erd(s):
        A(f"ds_read_b128 {vr(EX+4*s,4)}, v{10 + (s & 1)} offset:{(s >> 1)*8192}")
        for t in range(2):
            slot = EW + 8*s + 4*t
            A(f"ds_read_b64_tr_b16 {vr(slot,2)}, v{18+t} offset:{s*1280}")
            A(f"ds_read_b64_tr_b16 {vr(slot+2,2)}, v{18+t} offset:{s*1280+160}")
    def eloop(swap):
        L = A.label("el")
        A(f"{L}:")
        for s in range(4):
            if s == 2:
                A("s_add_u32 s46, s46, 1")
                A("v_add_u32 v10, 16384, v10")
                A("v_add_u32 v11, 16384, v11")
                A("v_add_u32 v18, 5120, v18")
                A("v_add_u32 v19, 5120, v19")
                A("s_cmp_lt_u32 s46, 5")
                A("s_barrier")
            erd((s + 2) % 4)
            A("s_waitcnt lgkmcnt(10)")
            for t in range(2):
                w, x = vr(EW+8*s+4*t,4), vr(EX+4*s,4)
                A(f"v_mfma_f32_16x16x32_bf16 {vr(VE+4*t,4)}, {x if swap else w}, {w if swap else x}, {vr(VE+4*t,4)}")
        A(f"s_cbranch_scc1 {L}")
    A("s_barrier")
    erd(0); erd(1)
    A("s_cmp_eq_u32 s3, 1")
    A(f"s_cbranch_scc1 {L_ev}")
    eloop(False)
    A(f"s_branch {L_ej}")
    A(f"{L_ev}:")
    eloop(True)
    A(f"{L_ej}:")
    stamp(A, 2)
    A("s_lshl_b32 s32, s30, 1")
    A("s_lshr_b32 s33, s29, 1")
    A("s_add_u32 s51, s32, s33")
    A("s_and_b32 s53, s29, 1")
    A("v_lshrrev_b32 v6, 1, v3")
    A("v_and_b32 v7, 1, v3")
    A("s_nop 1")
    for t in range(2):
        a = VE + 4*t
        A(f"v_cvt_pk_bf16_f32 v{a}, v{a}, v{a+1}")
        A(f"v_cvt_pk_bf16_f32 v{a+1}, v{a+2}, v{a+3}")
    L_sv, L_fin, L_sig = A.label("sv"), A.label("fin"), A.label("sig")
    A("s_cmp_eq_u32 s3, 1")
    A(f"s_cbranch_scc1 {L_sv}")
    A(f"s_mov_b32 s60, {64*SL}")
    A("s_add_u32 s51, s51, 62")
    A("s_and_b32 s51, s51, 63")
    A(f"s_cselect_b32 s34, 0x40000000, s60")
    A(f"s_mul_i32 s51, s51, {SL}")
    A("s_lshl_b32 s33, s53, 4")
    A("v_add_u32 v8, s33, v2")
    A("v_lshl_add_u32 v6, v6, 5, v8")
    A("v_lshlrev_b32 v6, 4, v6")
    A("v_lshl_add_u32 v6, v7, 3, v6")
    A(f"buffer_store_dwordx2 {vr(VE,2)}, v6, s[8:11], s51 offen sc1")
    A(f"buffer_store_dwordx2 {vr(VE,2)}, v6, s[8:11], s34 offen sc1")
    A("v_cmp_eq_u32 vcc, 0, v3")
    A("v_lshlrev_b32 v6, 3, v8")
    A("v_lshl_or_b32 v6, v3, 28, v6")
    A(f"buffer_store_dwordx2 {vr(VE+4,2)}, v6, s[8:11], s51 offen offset:{OFF_A2} sc1")
    A(f"v_cndmask_b32 v8, 0, v{VE+4}, vcc")
    A(f"v_cndmask_b32 v9, 0, v{VE+5}, vcc")
    A("v_mov_b32 v7, 0")
    for r in (VE, VE+1, 8, 9):
        A(f"v_dot2c_f32_bf16 v7, v{r}, v{r}")
    A("s_nop 2")
    A("v_mov_b32 v6, v7")
    A("s_nop 1")
    A("v_permlane32_swap_b32 v6, v7")
    A("s_nop 1")
    A("v_add_f32 v7, v6, v7")
    A("v_mov_b32 v6, v7")
    A("s_nop 1")
    A("v_permlane16_swap_b32 v6, v7")
    A("s_nop 1")
    A("v_add_f32 v7, v6, v7")
    A(f"s_mov_b32 s34, {WS_KMAX}")
    A(f"s_branch {L_fin}")
    A(f"{L_sv}:")
    A("s_add_u32 s51, s51, 63")
    A("s_and_b32 s51, s51, 63")
    A(f"s_mul_i32 s51, s51, {SL}")
    A("s_mul_i32 s33, s53, 656")
    A("s_add_u32 s51, s51, s33")
    A("v_mul_u32_u24 v6, 20, v6")
    A("v_add_u32 v6, v6, v2")
    A("v_lshlrev_b32 v6, 4, v6")
    A("v_lshl_add_u32 v6, v7, 3, v6")
    A(f"buffer_store_dwordx2 {vr(VE,2)}, v6, s[8:11], s51 offen offset:{OFF_V0} sc1")
    A("v_cmp_eq_u32 vcc, 4, v2")
    A("v_mov_b32 v8, 0x3f803f80")
    A(f"v_cndmask_b32 v{VE+4}, v{VE+4}, v8, vcc")
    A(f"v_cndmask_b32 v{VE+5}, v{VE+5}, v8, vcc")
    A("v_lshrrev_b32 v8, 1, v3")
    A("v_add_u32 v8, 4, v8")
    A("v_cmp_gt_u32 vcc, v8, v2")
    A("v_mov_b32 v8, 0x40000000")
    A("v_cndmask_b32 v6, v8, v6, vcc")
    A(f"buffer_store_dwordx2 {vr(VE+4,2)}, v6, s[8:11], s51 offen offset:{OFF_V0+256} sc1")
    A(f"s_branch {L_main}")
    A(f"{L_rg}:")
    A("v_and_b32 v6, 1, v2")
    A("v_mul_u32_u24 v6, 1280, v6")
    A("v_lshl_add_u32 v18, v3, 4, v6")
    A(f"v_add_u32 v18, {VR}, v18")
    A(f"s_branch {L_main}")
    def fin_key():
        row_max_u32(A, 7)
        A("s_lshr_b32 s33, s50, 2")
        A("s_add_u32 s33, s33, s34")
        A("v_lshlrev_b32 v6, 24, v1")
        A("buffer_store_dword v7, v6, s[8:11], s33 offen sc1")
    A(f"{L_fin}:")
    fin_key()
    A(f"{L_main}:")
    stamp(A, 3)
    def wrd1(hh, mt):
        A(f"ds_read_b64_tr_b16 {vr(H[hh]+4*mt,2)}, v{VB1} offset:{hh*5120 + mt*32}")
        A(f"ds_read_b64_tr_b16 {vr(H[hh]+4*mt+2,2)}, v{VB2} offset:{hh*5120 + mt*32}")
    def half(hh):
        A(f"ds_read_b128 {vr(XF[hh^1],4)}, v{VXA1 if hh == 0 else VXA0}")
        for mt in range(5):
            wrd1(hh ^ 1, mt)
            A("s_waitcnt lgkmcnt(11)")
            A(f"v_mfma_f32_16x16x32_bf16 {vr(VACC+4*mt,4)}, {vr(H[hh]+4*mt,4)}, {vr(XF[hh],4)}, {vr(VACC+4*mt,4)}")
    A("s_mov_b32 s46, 0")
    A(f"s_mov_b32 s34, {-(NS-1)*10240}")
    A("s_lshl_b32 s32, s25, 7")
    A("v_add_u32 v6, s32, v18")
    A("s_waitcnt lgkmcnt(0)")
    A("s_barrier")
    A(f"ds_read_b128 {vr(112,4)}, v6")
    A(f"ds_read_b128 {vr(116,4)}, v6 offset:64")
    A(f"ds_read_b128 {vr(XF[0],4)}, v{VXA0}")
    for mt in range(5):
        wrd1(0, mt)
    L_aw, L_awr = A.label("aw"), A.label("awr")
    def qloop(rg):
        L_c = A.label("c")
        A(f"{L_c}:")
        A("s_add_u32 s46, s46, 1")
        A(f"s_cmp_eq_u32 s46, {NS}")
        A("s_cselect_b32 s32, s34, 10240")
        half(0)
        A(f"v_add_u32 v{VB1}, s32, v{VB1}")
        A(f"v_add_u32 v{VB2}, s32, v{VB2}")
        A(f"v_add_u32 v{VXA0}, 8192, v{VXA0}")
        A(f"v_add_u32 v{VXA1}, 8192, v{VXA1}")
        if rg:
            A("s_add_u32 s25, s25, 1")
            A("s_cmp_eq_u32 s25, 10")
            A("s_cselect_b32 s25, 0, s25")
            A("s_lshl_b32 s32, s25, 7")
            A("v_add_u32 v6, s32, v18")
            A("s_waitcnt lgkmcnt(10)")
            for s_ in range(2):
                A(f"v_mfma_f32_16x16x32_bf16 {vr(VE,4)}, {vr(112+4*s_,4)}, {vr(XF[s_],4)}, {vr(VE,4)}")
            A(f"ds_read_b128 {vr(112,4)}, v6")
            A(f"ds_read_b128 {vr(116,4)}, v6 offset:64")
        if not rg:
            A(f"s_cmp_eq_u32 s46, {SIG}")
            A(f"s_cbranch_scc1 {L_aw}")
            A(f"{L_awr}:")
        A("s_cmp_lt_u32 s46, 10")
        A("s_barrier")
        half(1)
        A(f"s_cbranch_scc1 {L_c}")
    L_rgl, L_rgr = A.label("rgl"), A.label("rgr")
    A("s_cmp_eq_u32 s3, 2")
    A(f"s_cbranch_scc1 {L_rgl}")
    qloop(False)
    A(f"{L_rgr}:")
    stamp(A, 4)
    if X.pfQ: A.pf_start("Q")
    QB1 = [8, 16]; QS = [12, 14]
    VIDX = 4
    VKA, VA2, VVA = 20, 21, 22
    S = [32, 64]
    O = [96, 112]
    KA1 = [128, 136]; KA2 = [132, 140]
    V0 = [144, 152]; V1 = [148, 156]
    A(f"s_mov_b32 s33, {f32bits(QSCALE):#x}")
    A("v_and_b32 v2, 31, v0")
    A("v_lshrrev_b32 v3, 5, v1")
    A("v_cmp_eq_u32 s[44:45], 1, v3")
    A("v_lshlrev_b32 v6, 3, v2")
    A("s_waitcnt lgkmcnt(0)")
    A(f"v_mov_b32 v24, {OFF_V0 + 640 - OFF_A2}")
    A("s_barrier")
    for mt in range(5):
        a = VACC + 4*mt
        for i in range(4):
            A(f"v_mul_f32 v{a+i}, s33, v{a+i}")
        A(f"v_cvt_pk_bf16_f32 v{a}, v{a}, v{a+1}")
        A(f"v_cvt_pk_bf16_f32 v{a+1}, v{a+2}, v{a+3}")
        A(f"ds_write_b64 v13, {vr(a,2)} offset:{mt*1024}")
    A(f"v_cndmask_b32 v{VA2}, v6, v24, s[44:45]")
    A("s_mul_i32 s32, s29, 1280")
    A(f"s_add_u32 s32, s32, {QX}")
    A("v_add_u32 v7, s32, v6")
    A("v_lshl_add_u32 v6, v3, 9, v7")
    A("v_mul_u32_u24 v23, 20, v3")
    A("v_add_u32 v23, v23, v2")
    A("v_cmp_gt_u32 vcc, 20, v2")
    A("v_lshlrev_b32 v26, 3, v1")
    A("v_cndmask_b32 v23, 40, v23, vcc")
    A("v_lshlrev_b32 v23, 4, v23")
    A(f"s_mov_b32 s36, {WS_KMAX}")
    A(f"s_sub_u32 s37, s24, {2*SL}")
    A(f"s_cselect_b32 s37, {62*SL}, s37")
    A(f"s_add_u32 s38, s37, {SL}")
    A("s_waitcnt lgkmcnt(0)")
    A("s_barrier")
    stamp(A, 5)
    A("buffer_load_dwordx2 v[24:25], v26, s[8:11], s36 offen sc1")
    A(f"buffer_load_dwordx4 {vr(KA1[0],4)}, v5, s[8:11], s37 offen sc1")
    A(f"buffer_load_dwordx2 {vr(KA2[0],2)}, v{VA2}, s[8:11], s37 offen offset:{OFF_A2} sc1")
    A(f"buffer_load_dwordx4 {vr(KA1[1],4)}, v5, s[8:11], s38 offen sc1")
    A(f"buffer_load_dwordx2 {vr(KA2[1],2)}, v{VA2}, s[8:11], s38 offen offset:{OFF_A2} sc1")
    A(f"buffer_load_dwordx4 {vr(V0[0],4)}, v23, s[8:11], s38 offen offset:{OFF_V0} sc1")
    A(f"buffer_load_dwordx4 {vr(V1[0],4)}, v23, s[8:11], s38 offen offset:{OFF_V1} sc1")
    A(f"ds_read2_b64 {vr(QB1[0],4)}, v6 offset0:0 offset1:32")
    A(f"ds_read_b64 {vr(QS[0],2)}, v7 offset:1024")
    A("v_add_u32 v6, 5120, v6")
    A(f"ds_read2_b64 {vr(QB1[1],4)}, v6 offset0:0 offset1:32")
    A(f"ds_read_b64 {vr(QS[1],2)}, v7 offset:{1024+5120}")
    A(f"v_mov_b32 v{VKA}, v5")
    A("v_cmp_lt_u32 vcc, 20, v2")
    A("v_mov_b32 v6, 0x40000")
    A(f"v_cndmask_b32 v{VVA}, v23, v6, vcc")
    A(f"v_mov_b32 v{VIDX}, 0xdddd")
    for r in range(O[0], O[0] + 32):
        A(f"v_mov_b32 v{r}, 0")
    for r in range(S[1] + 24, S[1] + 32):
        A(f"v_mov_b32 v{r}, 0")
    for r in range(V1[1], V1[1] + 4):
        A(f"v_mov_b32 v{r}, 0")
    A("v_mov_b32 v26, 0")
    A("v_mov_b32 v28, 0")
    A(f"v_mov_b32 v30, {FCNT}")
    A("s_lshl_b32 s32, s29, 3")
    A("s_lshl_b32 s32, 1, s32")
    A("v_mov_b32 v31, 0")
    A("v_writelane_b32 v31, s32, 0")
    A("s_waitcnt lgkmcnt(0)")
    for b in range(2):
        for r in range(2):
            A(f"v_cndmask_b32 v{QS[b]+r}, v{QS[b]+r}, 0, s[44:45]")
    for r in range(4):
        A(f"v_dot2c_f32_bf16 v26, v{QB1[0]+r}, v{QB1[0]+r}")
        A(f"v_dot2c_f32_bf16 v28, v{QB1[1]+r}, v{QB1[1]+r}")
    for r in range(2):
        A(f"v_dot2c_f32_bf16 v26, v{QS[0]+r}, v{QS[0]+r}")
        A(f"v_dot2c_f32_bf16 v28, v{QS[1]+r}, v{QS[1]+r}")
    A("s_nop 2")
    A("v_mov_b32 v27, v26")
    A("v_mov_b32 v29, v28")
    A("s_nop 1")
    A("v_permlane32_swap_b32 v26, v27")
    A("v_permlane32_swap_b32 v28, v29")
    A("s_nop 1")
    A("v_add_f32 v26, v26, v27")
    A("v_add_f32 v28, v28, v29")
    A("s_waitcnt vmcnt(6)")
    wave_max_u32(A, 24, 25, 34)
    A("v_mul_f32 v26, s34, v26")
    A("v_mul_f32 v28, s34, v28")
    A("v_sqrt_f32 v26, v26")
    A("v_sqrt_f32 v28, v28")
    A("s_nop 0")
    A(f"v_mul_f32 v26, {f32bits(-(1.0 + 2.0**-6)):#x}, v26")
    A(f"v_mul_f32 v28, {f32bits(-(1.0 + 2.0**-6)):#x}, v28")
    A("v_lshrrev_b32 v26, 16, v26")
    A("v_lshrrev_b32 v28, 16, v28")
    A(f"v_cndmask_b32 v{QS[0]}, v{QS[0]}, v26, s[44:45]")
    A(f"v_cndmask_b32 v{QS[1]}, v{QS[1]}, v28, s[44:45]")
    def qs2(buf, par, b):
        A(f"v_mfma_f32_32x32x8_bf16 {vr(S[buf]+16*b,16)}, {vr(KA2[par],2)}, {vr(QS[b],2)}, 0")
    def qk1(buf, par, b):
        A(f"v_mfma_f32_32x32x16_bf16 {vr(S[buf]+16*b,16)}, {vr(KA1[par],4)}, {vr(QB1[b],4)}, {vr(S[buf]+16*b,16)}")
    def pv(buf, b, half, vpar):
        vv = V0[vpar] if half == 0 else V1[vpar]
        A(f"v_smfmac_f32_32x32x32_bf16 {vr(O[b],16)}, {vr(vv,4)}, {vr(S[buf]+16*b+8*half,8)}, v{VIDX}")
    A("s_waitcnt vmcnt(4)")
    qs2(0, 0, 0); qk1(0, 0, 0); qs2(0, 0, 1); qk1(0, 0, 1)
    A("s_mov_b32 s46, 0")
    A("s_waitcnt vmcnt(0)")
    A("s_barrier")
    if X.cprio: A(f"s_setprio {X.cprio}")
    stamp(A, 6)
    if X.pfQ: A.pf_stop("PFRET_Q")
    A("s_nop 7")
    L_loop, L_sp, L_kr = A.label("loop"), A.label("sp"), A.label("kr")
    A(f"{L_loop}:")
    if X.itst:
        A("s_memtime s[60:61]")
        A("s_lshl_b32 s64, s2, 2")
        A("s_add_u32 s64, s64, s29")
        A("s_lshl_b32 s64, s64, 7")
        A("s_lshl_b32 s65, s46, 3")
        A("s_add_u32 s64, s64, s65")
        A(f"s_add_u32 s64, s64, {WS_ST + 0x200000}")
        A("s_waitcnt lgkmcnt(0)")
        A("v_mov_b32 v200, s60")
        A("v_mov_b32 v201, s61")
        A("v_lshlrev_b32 v204, 24, v1")
        A("buffer_store_dwordx2 v[200:201], v204, s[8:11], s64 offen")
    sched = {2: 'pv1p', 6: 's2a', 10: 'q1a', 14: 'pv0a', 18: 'pv1a', 22: 's2b', 26: 'q1b', 30: 'pv0b'}
    for t in range(U_TILES):
        par = t & 1
        off = t * SL
        for e in range(32):
            op = sched.get(e)
            if op == 'pv1p':
                pv(par ^ 1, 1, 1, par ^ 1)
                A("s_waitcnt lgkmcnt(0)")
                A(f"ds_read_b128 {vr(V0[par^1],4)}, v{VVA} offset:{off+OFF_V0}")
                A(f"ds_read_b128 {vr(V1[par^1],4)}, v{VVA} offset:{off+OFF_V1}")
            if op == 's2a': qs2(par ^ 1, par ^ 1, 0)
            if op == 's2b': qs2(par ^ 1, par ^ 1, 1)
            if op == 'pv0a':
                pv(par, 0, 0, par)
                A(f"ds_read_b128 {vr(KA1[par],4)}, v{VKA} offset:{off}")
                A(f"ds_read_b64 {vr(KA2[par],2)}, v{VA2} offset:{off+OFF_A2}")
            if op == 'q1a': qk1(par ^ 1, par ^ 1, 0)
            if op == 'pv1a': pv(par, 0, 1, par)
            if op == 'q1b': qk1(par ^ 1, par ^ 1, 1)
            if op in ('q1a', 'q1b') and X.pad: A(f"s_nop {X.pad - 1}")
            if op == 'pv0b':
                pv(par, 1, 0, par)
                if t == U_TILES - 1:
                    A("s_add_u32 s46, s46, 1")
                    A("s_bitcmp1_b32 0x12e, s46")
                    A(f"v_add_u32 v{VKA}, {U_TILES*SL}, v{VKA}")
                    A(f"v_add_u32 v{VA2}, {U_TILES*SL}, v{VA2}")
                    A(f"v_add_u32 v{VVA}, {U_TILES*SL}, v{VVA}")
            A(f"v_exp_f32 v{S[par]+e}, v{S[par]+e}")
    A(f"s_cbranch_scc0 {L_loop}")
    A("s_cmp_gt_u32 s46, 1")
    A(f"s_cbranch_scc1 {L_sp}")
    A("s_barrier")
    A(f"s_branch {L_loop}")
    A(f"{L_kr}:")
    A("ds_read_b32 v24, v30 offset:16")
    A("s_waitcnt lgkmcnt(0)")
    A("v_readfirstlane_b32 s32, v24")
    A("s_cmp_lt_u32 s32, 256")
    A(f"s_cbranch_scc1 {L_kr}")
    A(f"s_branch {L_loop}")
    A(f"{L_sp}:")
    A("s_cmp_eq_u32 s46, 2")
    A(f"s_cbranch_scc1 {L_kr}")
    A("s_waitcnt lgkmcnt(0)")
    A("ds_add_u32 v30, v31 offset:4")
    A("s_cmp_lt_u32 s46, 8")
    A(f"s_cbranch_scc1 {L_loop}")
    if not X.pdiag: stamp(A, 7)
    if X.pfT: A.pf_start("T")
    pv(1, 1, 1, 1)
    A(f"v_mov_b32 v26, {LTHR:#x}")
    A("s_nop 1")
    L_fb, L_norm = A.label("fb"), A.label("norm")
    A(f"v_rcp_f32 v28, v{O[0]+8}")
    A("s_nop 0")
    A("v_mov_b32 v29, v28")
    A("s_nop 1")
    A("v_permlane32_swap_b32 v28, v29")
    A("s_nop 3")
    A(f"v_min_f32 v27, v{O[0]+8}, v{O[1]+8}")
    A(f"v_cmp_nge_f32 vcc, v27, v26")
    A(f"v_cmp_u_f32 s[36:37], v{O[0]+8}, v{O[1]+8}")
    A("s_or_b64 vcc, vcc, s[36:37]")
    A("s_and_b64 vcc, vcc, s[44:45]")
    A(f"s_cbranch_vccnz {L_fb}")
    A(f"{L_norm}:")
    A(f"v_rcp_f32 v26, v{O[1]+8}")
    for r in range(12):
        A(f"v_mul_f32 v{O[0]+r}, v{O[0]+r}, v29")
    A("v_mov_b32 v27, v26")
    for r in range(6):
        A(f"v_cvt_pk_bf16_f32 v{S[0]+r}, v{O[0]+2*r}, v{O[0]+2*r+1}")
    A("v_permlane32_swap_b32 v26, v27")
    A(f"buffer_store_dwordx4 {vr(S[0],4)}, v{POA}, s[8:11], s74 offen sc1")
    A(f"buffer_store_dwordx2 {vr(S[0]+4,2)}, v{POB}, s[8:11], s75 offen sc1")
    for r in range(12):
        A(f"v_mul_f32 v{O[1]+r}, v{O[1]+r}, v27")
    for r in range(6):
        A(f"v_cvt_pk_bf16_f32 v{S[0]+8+r}, v{O[1]+2*r}, v{O[1]+2*r+1}")
    A(f"buffer_store_dwordx4 {vr(S[0]+8,4)}, v{POA}, s[8:11], s58 offen sc1")
    A(f"buffer_store_dwordx2 {vr(S[0]+12,2)}, v{POB}, s[8:11], s59 offen sc1")
    ACC = 8; OF = 56
    WFS = list(range(96, 160, 4)) + list(range(176, 256, 4))
    NPRE = 7
    XV = 28; G = 48
    TT = list(range(36, 48)) + list(range(52, 56))
    ORD = [8, 9, 0, 1, 2, 3, 4, 5, 6, 7]
    def wslot(s, mt):
        return WFS[5*(s % NPRE) + mt]
    def wrd(p, mt):
        slot = wslot(p, mt)
        s = ORD[p]
        if s < 8:
            b, off, o2 = PM, s * 6400 + mt * 32, 1280
        else:
            b, off, o2 = PT, (s - 8) * 25600 + mt * 32, 3200
        A(f"ds_read_b64_tr_b16 {vr(slot,2)}, v{b} offset:{off}")
        A(f"ds_read_b64_tr_b16 {vr(slot+2,2)}, v{b} offset:{off+o2}")
    def gx_loads(xv):
        A("s_mov_b32 s20, s4")
        A("s_and_b32 s21, s5, 0xffff")
        A(f"v_lshlrev_b32 v6, 2, v{PTK}")
        A(f"s_mov_b32 s32, {WS_G}")
        A(f"buffer_load_dword v{G}, v6, s[8:11], s32 offen sc1")
        A(f"buffer_load_dword v{G+1}, v6, s[8:11], s32 offen offset:16 sc1")
        A(f"buffer_load_dwordx4 {vr(xv,4)}, v{PX}, s[20:23], 0 offen")
        A(f"buffer_load_dwordx4 {vr(xv+4,4)}, v{PX}, s[20:23], s55 offen")
        A(f"s_mov_b32 s46, {SPIN}")
        A("s_mov_b32 s71, -1")
        A("s_mov_b32 s47, 0")
    def gate_math():
        for j in range(2):
            bf16r(A, G+j, G+j)
            sigmoid(A, G+j, G+j, G+2)
            bf16r(A, G+j, G+j)
        for j in range(2):
            A(f"v_sub_f32 v{G+2+j}, 1.0, v{G+j}")
            bf16r(A, G+2+j, G+2+j)
        for i in range(8):
            A(f"v_lshlrev_b32 v{TT[2*i]}, 16, v{XV+i}")
            A(f"v_and_b32 v{TT[2*i+1]}, 0xffff0000, v{XV+i}")
        A("s_mov_b32 s20, s6")
        A("s_and_b32 s21, s7, 0xffff")
    RL = [A.label("rl") for _ in range(10)]
    RC = [A.label("rc") for _ in range(10)]
    RT = [A.label("rt") for _ in range(10)]
    L_disp, L_h2, L_h3, L_ng2 = A.label("disp"), A.label("h2"), A.label("h3"), A.label("ng2")
    A("s_barrier")
    A(f"{L_op}:")
    for s in range(NPRE):
        for mt in range(5):
            wrd(s, mt)
    gx_loads(XV)
    A("s_cmp_lg_u32 s72, 0")
    A(f"s_cbranch_scc1 {L_h2}")
    A("s_waitcnt vmcnt(4)")
    A("s_barrier")
    L_rl, L_mm, L_rt, L_sel, L_nosel = A.label("rl"), A.label("mm"), A.label("rt"), A.label("sel"), A.label("nosel")
    A("s_waitcnt vmcnt(0)")
    gate_math()
    A(f"{L_h3}:")
    A(f"v_mov_b32 v6, {FCNT}")
    A("ds_read_b32 v6, v6 offset:12")
    A("s_waitcnt lgkmcnt(0)")
    A("v_readfirstlane_b32 s56, v6")
    A("s_lshr_b32 s33, s52, 3")
    A("s_lshr_b32 s32, s56, 3")
    A("s_cmp_eq_u32 s32, s33")
    A(f"s_cbranch_scc1 {L_sel}")
    A(f"{L_nosel}:")
    for i in range(0, 16, 2):
        A(f"v_pk_mul_f32 {vr(TT[i],2)}, {vr(TT[i],2)}, {vr(G+2,2)} " + ("op_sel:[0,0] op_sel_hi:[1,0]" if i < 8 else "op_sel:[0,1] op_sel_hi:[1,1]"))
    A("s_cmp_eq_u32 s72, 0")
    A(f"s_cbranch_scc1 {L_rl}")
    A("s_barrier")
    A(f"{L_rl}:")
    if not X.pdiag: stamp(A, 8)
    def oload(p):
        s = ORD[p]
        if s < 8:
            A(f"buffer_load_dwordx4 {vr(OF+4*p,4)}, v5, s[8:11], s{12+s} offen sc1")
        else:
            A(f"buffer_load_dwordx4 {vr(OF+4*p,4)}, v{PO0+s-8}, s[8:11], s70 offen sc1")
    for p in range(10):
        oload(p)
    A(f"{L_mm}:")
    if X.tdiag: stamp(A, 1)
    L_et = A.label("et")
    def tailchk():
        A(f"v_max3_u32 v6, v{OF}, v{OF+1}, v{OF+2}")
        A(f"v_max3_u32 v6, v{OF+3}, v{OF+4}, v6")
        A(f"v_max3_u32 v6, v{OF+5}, v{OF+6}, v6")
        A(f"v_max_u32 v6, v{OF+7}, v6")
        A("v_cmp_eq_u32 vcc, s71, v6")
    A("s_waitcnt vmcnt(8)")
    tailchk()
    A(f"s_cbranch_vccnz {L_et}")
    for s in range(10):
        A(f"s_waitcnt vmcnt({min(8, 9-s)})" + (" lgkmcnt(0)" if s in (0, NPRE) else ""))
        if X.tdiag and s in (0, 4, 9): stamp(A, {0: 2, 4: 3, 9: 4}[s])
        o = OF + 4*s
        for mt in range(5):
            A(f"v_mfma_f32_16x16x32_bf16 {vr(ACC+4*mt,4)}, {vr(wslot(s,mt),4)}, {vr(OF+4*s,4)}, {vr(ACC+4*mt,4) if s else 0}")
            if mt < 2 and s >= 2: A(f"v_max3_u32 v6, v{o+2*mt}, v{o+2*mt+1}, v6")
            if s + NPRE < 10 and mt > 0: wrd(s + NPRE, mt - 1)
        if s + NPRE < 10: wrd(s + NPRE, 4)
    A("v_cmp_eq_u32 vcc, s71, v6")
    A(f"s_cbranch_vccnz {L_rt}")
    A("s_nop 1")
    for mt in range(5):
        A(f"ds_write_b128 v{PPW}, {vr(ACC+4*mt,4)} offset:{mt*64}")
        if mt == 0: A("s_nop 3")
    A("s_waitcnt lgkmcnt(0)")
    if not X.pdiag: stamp(A, 9)
    A("s_barrier")
    if X.tdiag:
        stamp(A, 5)
        A("s_waitcnt lgkmcnt(0)")
        A(f"s_mov_b32 s{SB+12}, s46")
        A(f"s_mov_b32 s{SB+13}, 0")
    P = 96
    for j in range(2):
        for k in range(2):
            for h in range(2):
                A(f"ds_read_b128 {vr(P+16*j+8*k+4*h,4)}, v{PPR} offset:{j*1344 + k*21504 + h*16}")
    for j in range(2):
        A(f"s_waitcnt lgkmcnt({4*(1-j)})")
        for i in range(0, 8, 2):
            A(f"v_pk_add_f32 {vr(P+16*j+i,2)}, {vr(P+16*j+i,2)}, {vr(P+16*j+8+i,2)}")
        for i in range(0, 8, 2):
            A(f"v_pk_fma_f32 {vr(TT[8*j+i],2)}, {vr(P+16*j+i,2)}, {vr(G,2)}, {vr(TT[8*j+i],2)} " + ("op_sel:[0,0,0] op_sel_hi:[1,0,1]" if j == 0 else "op_sel:[0,1,0] op_sel_hi:[1,1,1]"))
        for i in range(4):
            A(f"v_cvt_pk_bf16_f32 v{XV+4*j+i}, v{TT[8*j+2*i]}, v{TT[8*j+2*i+1]}")
        A(f"buffer_store_dwordx4 {vr(XV+4*j,4)}, v{PX}, s[20:23], {'0' if j == 0 else 's55'} offen {X.ost}")
    if X.pfT: A.pf_stop("PFRET_T")
    stamp_rt(A, 10)
    stamp_flush(A, 11, 8, 29)
    A(f"{L_exit}:")
    A("s_endpgm")
    A(f"{L_et}:")
    A("s_sub_u32 s46, s46, 1")
    A("s_cselect_b32 s71, 0x12345, s71")
    A("s_cselect_b32 s46, 0, s46")
    A("s_waitcnt vmcnt(0)")
    oload(0); oload(1)
    A("s_waitcnt vmcnt(0)")
    tailchk()
    A(f"s_cbranch_vccnz {L_et}")
    A(f"s_branch {L_rl}")
    A(f"{L_rt}:")
    A("s_mov_b32 s47, 1")
    A("s_sub_u32 s46, s46, 1")
    A("s_cselect_b32 s71, 0x12345, s71")
    A("s_cselect_b32 s46, 0, s46")
    for s_ in range(10 - NPRE):
        for mt in range(5):
            wrd(s_, mt)
    A(f"s_branch {L_rl}")
    A(f"{L_sel}:")
    A(f"ds_read_b128 {vr(XV,4)}, v{PY}")
    A(f"ds_read_b128 {vr(XV+4,4)}, v{PY} offset:16")
    A("s_waitcnt lgkmcnt(0)")
    for j in range(2):
        A(f"v_add_u32 v6, {4*j}, v{PTK}")
        A("v_cmp_eq_u32 vcc, s56, v6")
        for i in range(8):
            A(f"v_add_f32 v6, v{TT[8*j+i]}, v{XV+i}")
            bf16r(A, 6, 6)
            A(f"v_cndmask_b32 v{TT[8*j+i]}, v{TT[8*j+i]}, v6, vcc")
    A(f"s_branch {L_nosel}")
    A(f"{L_aw}:")
    A("s_waitcnt vmcnt(0)")
    A(f"s_branch {L_awr}")
    A(f"{L_rgl}:")
    qloop(True)
    A("v_add_u32 v8, s50, v2")
    A("v_lshlrev_b32 v6, 2, v8")
    A("v_lshl_or_b32 v6, v3, 28, v6")
    A("v_sub_u32 v8, 2047, v8")
    A(f"s_mov_b32 s33, {WS_R}")
    A(f"s_mov_b32 s34, {WS_G}")
    A(f"buffer_store_dword v{VE}, v6, s[8:11], s33 offen sc1")
    A(f"buffer_store_dword v{VE+1}, v6, s[8:11], s34 offen sc1")
    A(f"v_ashrrev_i32 v7, 31, v{VE}")
    A("v_or_b32 v7, 0x80000000, v7")
    A(f"v_xor_b32 v7, v7, v{VE}")
    A("v_and_b32 v7, 0xfffff800, v7")
    A("v_or_b32 v7, v7, v8")
    A(f"s_mov_b32 s34, {WS_RKEY}")
    fin_key()
    A("s_mul_i32 s32, s50, 20")
    A(f"s_add_u32 s32, s32, {WS_Y}")
    A("v_cmp_gt_u32 vcc, 20, v1")
    A("v_mov_b32 v7, 0x40000000")
    A("v_cndmask_b32 v6, v7, v5, vcc")
    A(f"buffer_store_dwordx4 {vr(VE+4,4)}, v6, s[8:11], s32 offen sc1")
    A("s_lshl_b32 s32, s30, 7")
    A(f"s_add_u32 s33, s32, {WS_GC}")
    A(f"buffer_store_dword v{VE+4}, v24, s[8:11], s33 offen sc1")
    A(f"s_add_u32 s33, s32, {WS_FC}")
    A(f"buffer_store_dword v{VE+4}, v24, s[8:11], s33 offen sc1")
    A(f"s_branch {L_rgr}")
    A(f"{L_fb}:")
    A("v_lshlrev_b32 v21, 3, v2")
    for b in range(2):
        A(f"v_cndmask_b32 v{QS[b]}, v{QS[b]}, 0, s[44:45]")
    A("v_mov_b32 v30, 0xff800000")
    A("v_mov_b32 v31, 0xff800000")
    L_p1, L_p2 = A.label("p1"), A.label("p2")
    def fb_s():
        A(f"buffer_load_dwordx4 {vr(KA1[0],4)}, v5, s[8:11], s32 offen sc1")
        A(f"buffer_load_dwordx2 {vr(KA2[0],2)}, v21, s[8:11], s32 offen offset:{OFF_A2} sc1")
    def fb_qk():
        A("s_waitcnt vmcnt(0)")
        qs2(0, 0, 0); qk1(0, 0, 0); qs2(0, 0, 1); qk1(0, 0, 1)
        A("s_nop 15")
    A("s_mov_b32 s32, 0")
    A(f"{L_p1}:")
    fb_s(); fb_qk()
    for r in range(0, 16, 2):
        A(f"v_max3_f32 v30, v{S[0]+r}, v{S[0]+r+1}, v30")
        A(f"v_max3_f32 v31, v{S[0]+16+r}, v{S[0]+16+r+1}, v31")
    A(f"s_add_u32 s32, s32, {SL}")
    A(f"s_cmp_lt_u32 s32, {64*SL}")
    A(f"s_cbranch_scc1 {L_p1}")
    A("v_mov_b32 v28, v30")
    A("v_mov_b32 v29, v31")
    A("s_nop 1")
    A("v_permlane32_swap_b32 v30, v28")
    A("v_permlane32_swap_b32 v31, v29")
    A("s_nop 1")
    A("v_max_f32 v30, v30, v28")
    A("v_max_f32 v31, v31, v29")
    for r in range(32):
        A(f"v_mov_b32 v{O[0]+r}, 0")
    A("s_mov_b32 s32, 0")
    A(f"{L_p2}:")
    fb_s()
    A(f"s_add_u32 s32, s32, {SL}")
    A(f"s_cmp_lt_u32 s32, {64*SL}")
    A("s_cselect_b32 s33, s32, 0")
    A(f"buffer_load_dwordx4 {vr(V0[0],4)}, v23, s[8:11], s33 offen offset:{OFF_V0} sc1")
    A(f"buffer_load_dwordx4 {vr(V1[0],4)}, v23, s[8:11], s33 offen offset:{OFF_V1} sc1")
    fb_qk()
    for r in range(32):
        A(f"v_sub_f32 v{S[0]+r}, v{S[0]+r}, v{30 + r // 16}")
    for r in range(32):
        A(f"v_exp_f32 v{S[0]+r}, v{S[0]+r}")
    A("s_nop 2")
    pv(0, 0, 0, 0); pv(0, 1, 0, 0); pv(0, 0, 1, 0); pv(0, 1, 1, 0)
    A(f"s_cmp_lt_u32 s32, {64*SL}")
    A(f"s_cbranch_scc1 {L_p2}")
    A("s_nop 15")
    A(f"v_rcp_f32 v28, v{O[0]+8}")
    A("s_nop 0")
    A("v_mov_b32 v29, v28")
    A("s_nop 1")
    A("v_permlane32_swap_b32 v28, v29")
    A("s_nop 1")
    A(f"s_branch {L_norm}")

    def early_setup():
        common_setup()
        oproj_addr()
        o_addr()
        for i in range(4):
            A(f"v_mov_b32 v{176+i}, -1")
        A(f"v_mov_b32 v173, {FCNT}")
        A("v_mov_b32 v6, 0")
        A("v_mov_b32 v7, 0")
        A("v_lshlrev_b32 v10, 3, v1")
        A("v_mul_u32_u24 v11, 3072, v1")
        A("v_cmp_gt_u32 vcc, 40, v1")
        A("v_mov_b32 v4, 0x40000000")
        A("v_cndmask_b32 v4, v4, v10, vcc")
        A("v_mov_b32 v175, 1")
        A("v_lshlrev_b32 v9, 1, v1")
        for j in range(12):
            A(f"v_mov_b32 v{12+j}, 0")
        A("v_and_b32 v8, 7, v1")
        A("v_lshlrev_b32 v8, 2, v8")
        A(f"v_add_u32 v8, {FB}, v8")
        A("s_lshl_b32 s32, s26, 5")
        A(f"s_add_u32 s32, s32, {FB}")
        A("v_lshl_add_u32 v25, v3, 3, s32")
        A("v_lshlrev_b32 v26, 1, v4")

    A(".MARK_H_BEGIN")
    A(f"{L_help}:")
    A("s_mov_b32 s72, 1")
    A("s_sub_u32 s26, s29, 4")
    A("v_lshrrev_b32 v6, 3, v1")
    A("v_and_b32 v7, 7, v1")
    A("v_lshrrev_b32 v8, 1, v6")
    A("v_xor_b32 v7, v7, v8")
    A("v_mul_u32_u24 v6, 1280, v6")
    A("v_lshl_add_u32 v181, v7, 4, v6")
    A("v_xor_b32 v182, 64, v181")
    A("v_add_u32 v182, 9216, v182")
    A("v_mul_u32_u24 v2, 26, v1")
    A("v_lshrrev_b32 v2, 8, v2")
    A("v_mul_u32_u24 v3, 10, v2")
    A("v_sub_u32 v3, v1, v3")
    A("v_mul_u32_u24 v2, 1280, v2")
    A("v_lshl_add_u32 v172, v3, 4, v2")
    A("v_add_u32 v183, 17920, v172")
    A("s_mul_i32 s63, s30, 81920")
    A("s_mul_i32 s32, s26, 20480")
    A("s_add_u32 s63, s63, s32")
    A("s_lshl_b32 s64, s26, 11")
    A("s_lshr_b32 s32, s26, 1")
    A("s_xor_b32 s32, s32, s26")
    A("s_mul_i32 s61, s32, 5120")
    A("s_mul_i32 s33, s31, 160")
    A("s_add_u32 s61, s61, s33")
    A("s_mul_i32 s62, s26, 640")
    A(f"s_add_u32 s62, s62, {WR}")
    A("s_mov_b32 s66, -1")
    A("s_movk_i32 s67, 0xff")
    A(f"s_mov_b32 s14, {X_BYTES}")
    A("s_mov_b32 s15, 0x00020000")
    A(f"s_mov_b32 s18, {W_BYTES}")
    A("s_mov_b32 s19, 0x00020000")
    A("s_mov_b32 s23, 0x00020000")
    A("s_lshl_b32 s35, s26, 10")
    A("s_mov_b32 s65, s25")
    A("s_lshl_b32 s32, s26, 3")
    A("s_or_b32 s32, s32, s3")
    A("s_cmp_lt_u32 s32, 2")
    A(f"s_cselect_b32 s69, {SIG + DN + 1}, 99")
    A("s_waitcnt lgkmcnt(0)")
    hst(A, 1)
    A("s_mov_b32 s12, s36")
    A("s_and_b32 s13, s37, 0xffff")
    A("s_mov_b32 s16, s38")
    A("s_and_b32 s17, s39, 0xffff")
    def xpiece():
        A("s_lshl_b32 s32, s65, 7")
        A("s_mov_b32 m0, s64")
        A("s_add_u32 s32, s32, s63")
        A("s_add_u32 s64, s64, 8192")
        A("buffer_load_dwordx4 v181, s[12:15], s32 offen lds")
        A("buffer_load_dwordx4 v182, s[12:15], s32 offen offset:1024 lds")
        A("s_add_u32 s65, s65, 1")
        A("s_cmp_eq_u32 s65, 10")
        A("s_cselect_b32 s65, 0, s65")
    def wchunk():
        A("s_mul_i32 s33, s25, 81920")
        A("s_mov_b32 m0, s62")
        A("s_add_u32 s33, s33, s61")
        A("s_mov_b64 exec, s[66:67]")
        A("buffer_load_dwordx4 v172, s[16:19], s33 offen lds")
        A("buffer_load_dwordx4 v183, s[16:19], s33 offen offset:2560 lds")
        A("s_add_u32 m0, s62, 5120")
        A("s_add_u32 s33, s33, 40960")
        A("buffer_load_dwordx4 v172, s[16:19], s33 offen lds")
        A("buffer_load_dwordx4 v183, s[16:19], s33 offen offset:2560 lds")
        A("s_mov_b64 exec, -1")
        A("s_add_u32 s62, s62, 10240")
        A(f"s_cmp_ge_u32 s62, {WR + NS*10240}")
        A(f"s_cselect_b32 s32, {NS*10240}, 0")
        A("s_sub_u32 s62, s62, s32")
        A("s_add_u32 s25, s25, 1")
        A("s_cmp_eq_u32 s25, 10")
        A("s_cselect_b32 s25, 0, s25")
    L_prod, L_p1d, L_nv2 = A.label("prod"), A.label("p1d"), A.label("nv2")
    A("s_cmp_lt_u32 s3, 2")
    A(f"s_cbranch_scc1 {L_prod}")
    A("s_cmp_lg_u32 s3, 2")
    A(f"s_cbranch_scc1 {L_nv2}")
    A("s_bitcmp1_b32 s26, 0")
    A("s_cselect_b32 s20, s4, s44")
    A("s_cselect_b32 s21, s5, s45")
    A("s_and_b32 s21, s21, 0xffff")
    A("s_movk_i32 s22, 1280")
    A("s_lshr_b32 s32, s26, 1")
    A("s_mul_i32 s32, s32, 640")
    A("s_and_b32 s33, s26, 1")
    A("s_mul_i32 s33, s33, 1280")
    A("s_add_u32 s33, s33, s32")
    A(f"s_add_u32 m0, s33, {VR}")
    A("s_mov_b64 exec, s[66:67]")
    A(f"buffer_load_dwordx4 v5, s[20:23], s32 offen lds")
    A("s_mov_b64 exec, -1")
    A(f"{L_nv2}:")
    L_l, L_x = A.label("l"), A.label("x")
    A(f"{L_x}:")
    xpiece()
    A("s_cmp_lg_u32 s65, s25")
    A(f"s_cbranch_scc1 {L_x}")
    early_setup()
    A("s_mov_b32 s46, 0")
    A("s_mov_b32 s34, 1")
    A(f"{L_l}:")
    wchunk()
    A("s_add_u32 s46, s46, 1")
    A(f"s_cmp_le_u32 s46, {DN}")
    A(f"s_cbranch_scc1 {L_l}")
    chks = []
    def chk():
        L, Lr = A.label("chk"), A.label("chkr")
        chks.append((L, Lr))
        A("s_cmp_eq_u32 s34, 63")
        A(f"s_cbranch_scc1 {L}")
        A(f"{Lr}:")
    L_ns, L_lw = A.label("ns"), A.label("lw")
    A(f"{L_lw}:")
    chk()
    A(f"s_waitcnt vmcnt({4*DN})")
    chk()
    A("s_barrier")
    chk()
    L_sgn = A.label("sgn")
    A("s_cmp_eq_u32 s46, s69")
    A(f"s_cbranch_scc1 {L_sgn}")
    A(f"{L_ns}:")
    A("s_cmp_lt_u32 s46, 10")
    A(f"s_cbranch_scc1 {L_l}")
    for d in range(DN - 1, -1, -1):
        A(f"s_waitcnt vmcnt({4*d})" + (" lgkmcnt(0)" if d == 0 else ""))
        chk()
        A("s_barrier")
    A(f"s_branch {L_p1d}")
    A(f"{L_sgn}:")
    A("s_atomic_add s34, s[48:49], 0x0 glc")
    A(f"s_branch {L_ns}")
    for L, Lr in chks:
        A(f"{L}:")
        A("s_mov_b32 s34, 1")
        A("s_atomic_add s34, s[48:49], 0x80")
        A(f"s_branch {Lr}")
    A(f"{L_prod}:")
    A("s_cmp_eq_u32 s3, 0")
    A("s_cselect_b32 s20, s40, s42")
    A("s_cselect_b32 s21, s41, s43")
    A("s_and_b32 s21, s21, 0xffff")
    A("s_movk_i32 s22, 25600")
    A("s_mul_i32 s35, s26, 640")
    A(f"s_add_u32 s68, s35, {ER}")
    A("s_mov_b32 s46, 0")
    L_a, L_w = A.label("a"), A.label("w")
    A(f"{L_a}:")
    A("s_mul_i32 s34, s65, 2560")
    A("s_mov_b32 m0, s68")
    A("s_add_u32 s34, s34, s35")
    A("s_mov_b64 exec, s[66:67]")
    A("buffer_load_dwordx4 v5, s[20:23], s34 offen lds")
    A("buffer_load_dwordx4 v5, s[20:23], s34 offen offset:2560 lds")
    A("s_mov_b64 exec, -1")
    A("s_add_u32 s68, s68, 5120")
    xpiece(); xpiece()
    A("s_add_u32 s46, s46, 1")
    A("s_cmp_le_u32 s46, 2")
    A(f"s_cbranch_scc1 {L_a}")
    A("s_waitcnt vmcnt(12)")
    A("s_barrier")
    A("s_cmp_lt_u32 s46, 5")
    A(f"s_cbranch_scc1 {L_a}")
    A("s_mov_b32 s46, 0")
    wchunk()
    A("s_waitcnt vmcnt(10)")
    A("s_barrier")
    wchunk()
    A("s_waitcnt vmcnt(8)")
    A("s_barrier")
    hst(A, 2)
    wchunk()
    A("s_barrier")
    hst(A, 3)
    wchunk()
    early_setup()
    A("s_mov_b32 s46, 4")
    A("s_mov_b32 s34, 1")
    A(f"s_branch {L_lw}")
    A(f"{L_p1d}:")
    A("s_branch L_HELP2")
    A(".MARK_H_END")
    A("L_HELP2:")
    A(f"s_load_dwordx2 s[38:39], s[0:1], {KA_WO}")
    A(f"s_load_dwordx4 s[40:43], s[0:1], {KA_WG}")
    A(f"s_load_dwordx2 s[44:45], s[0:1], {KA_WD}")
    common_setup2()
    A("v_lshlrev_b32 v174, 24, v1")
    if not X.direct: A("buffer_load_dword v29, v174, s[76:79], 0 offen offset:128 sc1")
    A("s_mov_b32 s4, s36")
    A("s_mov_b32 s5, s37")
    A("s_lshl_b32 s32, s26, 10")
    A("s_mov_b32 m0, s32")
    A("s_add_u32 s53, s32, s24")
    A("s_barrier")
    A("s_barrier")
    hst(A, 8)
    A("s_mul_i32 s64, s26, 5120")
    A("s_add_u32 s64, s64, s54")
    A("s_mul_i32 s32, s73, 51200")
    A("s_add_u32 s64, s64, s32")
    A(f"s_mov_b32 s69, {320*1280}")
    A("s_mul_i32 s65, s26, 640")
    A("s_waitcnt lgkmcnt(0)")
    srd(A, 60, 38, W_BYTES)
    L_g1, L_g2 = A.label("g1"), A.label("g2")
    if X.direct:
        A("s_cmp_lg_u32 s26, 0")
        A(f"s_cbranch_scc1 {L_g1}")
        await_cnt(A, 28, X.gsl)
    else:
        A("s_waitcnt vmcnt(0)")
        A("v_readfirstlane_b32 s32, v29")
        A("s_or_b32 s32, s32, s26")
        A("s_cmp_lg_u32 s32, 0")
        A(f"s_cbranch_scc1 {L_g1}")
        await_go(A, 0, 28, X.gsl)
    A(f"{L_g1}:")
    hst(A, 9)
    A("s_barrier")
    if not X.pdiag: stamp(A, 1)
    def dma(n):
        L = A.label("dma")
        A(f"s_add_u32 s34, m0, {n*4096}")
        A(f"{L}:")
        A("buffer_load_dwordx4 v5, s[8:11], s53 offen sc1 lds")
        A("s_add_u32 m0, m0, 4096")
        A("s_add_u32 s53, s53, 4096")
        A(f"s_cmp_ge_u32 s53, {64*SL}")
        A(f"s_cselect_b32 s32, {64*SL}, 0")
        A("s_sub_u32 s53, s53, s32")
        A("s_cmp_lt_u32 m0, s34")
        A(f"s_cbranch_scc1 {L}")
    def need(tiles):
        return min(40, -(-(-(-tiles*SL // 1024)) // 4))
    n0, n1 = need(U_TILES), need(U_TILES * 2)
    nb = X.nb0
    dma(nb)
    A(f"s_waitcnt vmcnt({nb - n0})")
    A("s_barrier")
    L_b2, L_b3, L_b4 = A.label("b2"), A.label("b3"), A.label("b4")
    A("s_lshl_b32 s32, s26, 3")
    A("s_or_b32 s32, s32, s3")
    A("s_mov_b32 s35, 1")
    A("s_cmp_lg_u32 s32, 2")
    A(f"s_cbranch_scc1 {L_b3}")
    A("s_atomic_add s35, s[48:49], 0x4 glc")
    A(f"{L_b3}:")
    A("ds_write_b64 v173, v[6:7]")
    A("ds_write_b64 v173, v[6:7] offset:8")
    A("ds_write_b32 v173, v6 offset:16")
    dma(40 - nb - 1)
    A("s_cmp_eq_u32 s26, 3")
    A("s_cselect_b32 s32, 0x3fffffff, -1")
    A("s_cselect_b32 s33, 0, -1")
    A("s_mov_b64 exec, s[32:33]")
    A("buffer_load_dwordx4 v5, s[8:11], s53 offen sc1 lds")
    A("s_mov_b64 exec, -1")
    A(f"s_waitcnt vmcnt({40 - n1}) lgkmcnt(0)")
    A("s_cmp_lg_u32 s35, 31")
    A(f"s_cbranch_scc1 {L_b4}")
    A("s_atomic_add s35, s[48:49], 0x84")
    A(f"{L_b4}:")
    A("s_barrier")
    A(f"buffer_store_dwordx4 v[176:179], v{POA}, s[8:11], s74 offen sc1")
    A(f"buffer_store_dwordx2 v[176:177], v{POB}, s[8:11], s75 offen sc1")
    A(f"buffer_store_dwordx4 v[176:179], v{POA}, s[8:11], s58 offen sc1")
    A(f"buffer_store_dwordx2 v[176:177], v{POB}, s[8:11], s59 offen sc1")
    if not X.pdiag: stamp(A, 2)
    def lds_wait(off, thr, slp=2):
        Lp = A.label("lw")
        A(f"{Lp}:")
        A(f"ds_read_b32 v171, v173 offset:{off}")
        A("s_waitcnt lgkmcnt(0)")
        A("v_readfirstlane_b32 s32, v171")
        A(f"s_sleep {slp}")
        A(f"s_cmp_lt_u32 s32, {thr}")
        A(f"s_cbranch_scc1 {Lp}")
    def wo_part(thr):
        Lw = A.label("wl")
        Lp = A.label("pw")
        A(f"{Lp}:")
        A("ds_read_b32 v171, v173 offset:4")
        A("s_waitcnt lgkmcnt(0)")
        A("v_readfirstlane_b32 s32, v171")
        A(f"s_sleep {X.slp}")
        if thr == 256:
            A("s_lshl_b32 s33, s32, 1")
            A("s_or_b32 s32, s32, s33")
        A("s_andn2_b32 s32, 0x02020202, s32")
        A(f"s_cbranch_scc1 {Lp}")
        if X.nowo: return
        A(f"s_add_u32 s34, s65, 51200")
        A("s_mov_b64 exec, s[66:67]")
        A(f"{Lw}:")
        A("s_mov_b32 m0, s65")
        A("s_add_u32 s32, s64, s69")
        A("buffer_load_dwordx4 v172, s[60:63], s32 offen lds")
        A("s_add_u32 s65, s65, 2560")
        A("s_add_u32 s64, s64, 20480")
        A("s_cmp_ge_u32 s64, 409600")
        A("s_cselect_b32 s32, 409600, 0")
        A("s_sub_u32 s64, s64, s32")
        A("s_cmp_lt_u32 s65, s34")
        A(f"s_cbranch_scc1 {Lw}")
        A("s_mov_b64 exec, -1")
    A("buffer_load_dword v28, v174, s[76:79], 0 offen offset:132 sc1")
    A("s_waitcnt vmcnt(0)")
    A("ds_add_u32 v173, v175 offset:16")
    A("v_readfirstlane_b32 s32, v28")
    A("s_cmp_lg_u32 s32, 0")
    A(f"s_cbranch_scc1 {L_b2}")
    await_go(A, 4, 28, 8)
    A(f"{L_b2}:")
    A(f"s_mov_b32 s32, {WS_RKEY}")
    A("buffer_load_dwordx2 v[6:7], v10, s[8:11], s32 offen sc1")
    A("s_lshl_b32 s35, s30, 7")
    A(f"s_add_u32 s35, s35, {WS_GC}")
    A("buffer_atomic_add v175, v174, s[8:11], s35 offen sc1")
    def getidx():
        A("s_setprio 2")
        wave_max_u32(A, 6, 7, 56)
        A("s_setprio 0")
        A("s_and_b32 s56, s56, 2047")
        A("s_sub_u32 s25, 2047, s56")
    L_w1, L_w2 = A.label("w1"), A.label("w2")
    A("s_mul_i32 s47, s30, 6")
    A("s_add_u32 s47, s47, s3")
    A("s_sub_u32 s47, s47, 2")
    A(f"s_cmp_lt_u32 s3, {99 if X.noffn else 2}")
    A(f"s_cbranch_scc1 {L_w1}")
    A("s_cmp_ge_u32 s26, 2")
    A("s_cselect_b32 s16, s42, s40")
    A("s_cselect_b32 s17, s43, s41")
    A("s_and_b32 s17, s17, 0xffff")
    A(f"s_mov_b32 s18, {F_BYTES}")
    srd(A, 20, 44, F_BYTES)
    A("s_and_b32 s46, s26, 1")
    W_, WD_, XL, AC = 32, 56, 72, 12
    A(f"s_mul_i32 s32, s46, {320*3072}")
    A("s_lshl_b32 s33, s47, 4")
    A("s_add_u32 s32, s32, s33")
    for i in range(5):
        A(f"buffer_load_dwordx4 {vr(W_+4*i,4)}, v11, s[16:19], s32 offen")
        if i < 4: A(f"s_add_u32 s32, s32, {64*3072}")
    A("s_waitcnt vmcnt(5)")
    getidx()
    A("s_mul_i32 s32, s25, 1280")
    A("s_mul_i32 s33, s46, 640")
    A("s_add_u32 s32, s32, s33")
    for i in range(5):
        A(f"buffer_load_ushort v{XL+i}, v9, s[12:15], s32 offen offset:{i*128}")
    A("s_mul_i32 s32, s47, 10240")
    A("s_mul_i32 s33, s26, 320")
    A("s_add_u32 s32, s32, s33")
    for f in range(8):
        if f % 3 == 0 and f: A(f"s_add_u32 s32, s32, {3*1280}")
        A(f"buffer_load_dwordx2 {vr(WD_+2*f,2)}, v4, s[20:23], s32 offen offset:{(f%3)*1280}")
    A("s_waitcnt vmcnt(8)")
    if not X.pdiag: stamp(A, 3)
    A("s_setprio 2")
    for i in range(5):
        A(f"v_lshlrev_b32 v{XL+5}, 16, v{XL+i}")
        for dw in range(4):
            A(f"v_dot2c_f32_bf16 v{AC+2*dw}, v{W_+4*i+dw}, v{XL+i}")
            A(f"v_dot2c_f32_bf16 v{AC+2*dw+1}, v{W_+4*i+dw}, v{XL+5}")
    A("s_nop 3")
    for j in range(4):
        A(f"v_permlane32_swap_b32 v{AC+j}, v{AC+j+4}")
    A("s_nop 1")
    for j in range(4):
        A(f"v_add_f32 v{AC+j}, v{AC+j}, v{AC+j+4}")
    A("s_nop 1")
    for j in range(2):
        A(f"v_permlane16_swap_b32 v{AC+j}, v{AC+j+2}")
    A("s_nop 1")
    for j in range(2):
        A(f"v_add_f32 v{AC+j}, v{AC+j}, v{AC+j+2}")
    for sh in (8, 4, 2, 1):
        A("s_nop 1")
        for j in range(2):
            A(f"v_add_f32_dpp v{AC+j}, v{AC+j}, v{AC+j} row_ror:{sh} row_mask:0xf bank_mask:0xf")
    A(f"ds_write_b64 v25, {vr(AC,2)}")
    A("s_setprio 0")
    A("s_waitcnt lgkmcnt(0)")
    A("ds_add_u32 v173, v175")
    wo_part(256)
    lds_wait(0, 256)
    A("s_setprio 2")
    A("ds_read2_b32 v[12:13], v8 offset0:0 offset1:8")
    A("ds_read2_b32 v[14:15], v8 offset0:16 offset1:24")
    A("s_waitcnt lgkmcnt(0)")
    A("v_add_f32 v12, v12, v13")
    A("v_add_f32 v14, v14, v15")
    bf16r(A, 12, 12)
    sigmoid(A, 16, 12, 17)
    A("v_mul_f32 v12, v12, v16")
    bf16r(A, 12, 12)
    bf16r(A, 14, 14)
    A("v_mul_f32 v12, v12, v14")
    bf16r(A, 12, 12)
    Y = 20
    A("s_nop 0")
    def hs(f):
        hi = 13+2*f if f < 4 else 29+2*f
        return hi - 1, hi
    for f in range(8):
        A(f"v_readlane_b32 s{hs(f)[1]}, v12, {f}")
    for f in range(8):
        lo, hi = hs(f)
        A(f"s_lshr_b32 s{lo}, s{hi}, 16")
    A("s_waitcnt vmcnt(20)")
    for f in range(8):
        lo, hi = hs(f)
        for j in range(2):
            A(f"v_dot2c_f32_bf16 v{Y+2*j}, s{lo}, v{WD_+2*f+j}")
            A(f"v_dot2c_f32_bf16 v{Y+2*j+1}, s{hi}, v{WD_+2*f+j}")
    A("s_and_b32 s47, s47, 15")
    A("s_mul_i32 s32, s47, 2560")
    A("s_mul_i32 s33, s26, 640")
    A("s_add_u32 s32, s32, s33")
    A(f"s_add_u32 s32, s32, {WS_Y}")
    A("s_setprio 0")
    A("s_nop 2")
    for j in range(4):
        A(f"buffer_atomic_add_f32 v{Y+j}, v26, s[8:11], s32 offen offset:{j*4}")
    A("s_lshl_b32 s32, s47, 7")
    A(f"s_add_u32 s32, s32, {WS_FC}")
    A("s_waitcnt vmcnt(0)")
    A("buffer_atomic_add v175, v174, s[8:11], s32 offen sc1")
    A(f"s_branch {L_w2}")
    A(f"{L_w1}:")
    A("s_waitcnt vmcnt(0)")
    getidx()
    wo_part(256)
    A("s_waitcnt vmcnt(0)")
    A(f"{L_w2}:")
    if not X.pdiag: stamp(A, 4)
    A("ds_add_u32 v173, v175 offset:8")
    oproj_saddr()
    lds_wait(8, 256)
    A(f"s_branch {L_op}")
    A(f"{L_h2}:")
    if not X.pdiag: stamp(A, 5)
    A("v_mov_b32 v171, s25")
    A("ds_write_b32 v173, v171 offset:12")
    if X.pfT:
        A("s_cmp_lg_u32 s26, 2")
        A("s_cbranch_scc1 PFRET_T")
        A("s_mov_b64 exec, 0")
        A("s_branch PF_T_0")
        A("PFRET_T:")
        A("s_mov_b64 exec, -1")
    L_ny, L_sp2, L_sg, L_ng, L_gp = A.label("ny"), A.label("sp2"), A.label("sg"), A.label("ng"), A.label("gp")
    A("s_mov_b32 s69, 0")
    wo_part(512)
    A("s_waitcnt vmcnt(20)")
    if X.gprio: A("s_setprio 2")
    gate_math()
    A("s_setprio 0")
    A("s_cmp_lg_u32 s26, 1")
    A(f"s_cbranch_scc1 {L_ng}")
    A(f"{L_gp}:")
    A("buffer_load_dword v171, v174, s[8:11], s35 offen sc1")
    A("s_waitcnt vmcnt(0)")
    A("v_readfirstlane_b32 s32, v171")
    A("s_sub_u32 s46, s46, 1")
    A(f"s_cbranch_scc1 {L_ng}")
    A("s_cmp_lt_u32 s32, 32")
    A(f"s_cbranch_scc1 {L_gp}")
    A(f"{L_ng}:")
    A("s_lshr_b32 s32, s25, 6")
    A("s_lshl_b32 s33, s26, 8")
    A("s_or_b32 s33, s33, s30")
    A("s_cmp_lg_u32 s32, s33")
    A(f"s_cbranch_scc1 {L_ny}")
    A("v_lshlrev_b32 v6, 7, v2")
    A(f"s_mov_b32 s33, {WS_FC}")
    A(f"{L_sp2}:")
    A("buffer_load_dword v171, v6, s[8:11], s33 offen sc1")
    A("s_waitcnt vmcnt(0)")
    A(f"v_cmp_ne_u32 vcc, {0 if X.noffn else 48}, v171")
    A("s_sub_u32 s46, s46, 1")
    A(f"s_cbranch_scc1 {L_sg}")
    A("s_sleep 8")
    A(f"s_cbranch_vccnz {L_sp2}")
    A(f"{L_sg}:")
    A("s_setprio 2")
    Yv = OF
    A("v_mul_u32_u24 v6, 2560, v2")
    A("v_lshl_add_u32 v6, v3, 4, v6")
    A("s_lshl_b32 s32, s54, 1")
    A(f"s_add_u32 s32, s32, {WS_Y}")
    for mt in range(5):
        A(f"buffer_load_dwordx4 {vr(Yv+4*mt,4)}, v6, s[8:11], s32 offen offset:{mt*64} sc1")
    A("s_lshl_b32 s32, s25, 2")
    A(f"s_add_u32 s32, s32, {WS_R}")
    A("v_mov_b32 v6, 0")
    A("buffer_load_dword v171, v6, s[8:11], s32 offen sc1")
    A("s_waitcnt vmcnt(0)")
    for sh in (8, 4, 2, 1):
        A("s_nop 1")
        for j in range(20):
            A(f"v_add_f32_dpp v{Yv+j}, v{Yv+j}, v{Yv+j} row_ror:{sh} row_mask:0xf bank_mask:0xf")
    bf16r(A, 171, 171)
    sigmoid(A, 171, 171, 6)
    bf16r(A, 171, 171)
    for j in range(20):
        bf16r(A, Yv+j, Yv+j)
        A(f"v_mul_f32 v{Yv+j}, v{Yv+j}, v171")
        bf16r(A, Yv+j, Yv+j)
    A("v_lshlrev_b32 v6, 4, v3")
    A(f"v_add_u32 v6, {YB}, v6")
    for mt in range(5):
        A(f"ds_write_b128 v6, {vr(Yv+4*mt,4)} offset:{mt*64}")
    A("s_setprio 0")
    A(f"{L_ny}:")
    A(f"s_mov_b32 s46, {SPIN}")
    A("s_waitcnt vmcnt(0) lgkmcnt(0)")
    if not X.pdiag: stamp(A, 6)
    A("s_barrier")
    if not X.pdiag: stamp(A, 7)
    if X.tprio: A("s_setprio 2")
    A(f"s_branch {L_h3}")

def build(path):
    A = Asm()
    fused(A)
    A("L_CODE_END:")
    L = A.lines
    hb, he = L.index(".MARK_H_BEGIN"), L.index(".MARK_H_END")
    if X.first:
        e = L.index(".MARK_ENTRY_END")
        L = L[:e] + L[hb+1:he] + L[e+1:hb] + L[he+1:]
    else:
        L = [l for l in L if not l.startswith(".MARK")]
    out = []
    for i, l in enumerate(L):
        t = l.strip()
        if t.startswith("v_cndmask") and t.endswith("vcc"):
            p1 = out[-1].strip(); p2 = out[-2].strip()
            if p1.startswith("v_cmp") and " vcc," in p1: out.append("    s_nop 1")
            elif p2.startswith("v_cmp") and " vcc," in p2 and not p1.startswith("s_nop"): out.append("    s_nop 0")
        out.append(l)
    A.lines = out
    hdr = open("gated_mix__grouped_kv_mqa__moe_arch_mod__prompt.s.ref").read().split("; @launch")[0]
    out = hdr + "; @launch grid=(256,1,1) block=(512,1,1) lds=163840\n" + '.amdgcn_target "amdgcn-amd-amdhsa--gfx950"\n.text\n' + A.text() + '.section .rodata,"a"\n'
    out += kernel_desc(NAME, 256, 256)
    open(path, "w").write(out)

if __name__ == "__main__":
    build("t38.s")
    Cfg.on = True
    build("t38s.s")
    Cfg.rt = True
    build("t38r.s")
    X.tdiag = True
    build("t38t.s")
```

```python
import math, sys
from asmlib import *
from stamp8 import *

NAME = "gated_mix__grouped_kv_mqa__moe_arch_mod__prompt_kernel"
KA_X, KA_WQ, KA_WK, KA_WV, KA_WO, KA_BX, KA_WR, KA_WG, KA_WU, KA_WD, KA_GW, KA_OUT, KA_DBG, KA_WS = [8*i for i in range(14)]
SL = 2592
WS_KV0 = 0x0
WS_KMAX = 0x60000
WS_RKEY = 0x60200
WS_R = 0x61000
WS_G = 0x63000
WS_Y = 0x68000
WS_GC = 0x74000
WS_FC = 0x76000
WS_O = 0x100000
WS_SIZE = 0x1000000
X_BYTES = 2048*640*2
W_BYTES = 640*640*2
F_BYTES = 640*1536*2
QSCALE = (20 ** -0.5) * math.log2(math.e)
LOG2E = math.log2(math.e)
LTHR = f32bits(2.0 ** -30)
OFF_A2, OFF_V0, OFF_V1 = 1024, 1280, 1936
FB = 63*SL
FCNT = FB + 128
YB = FB + 160
XB = 102400
SPIN = 100000
WR = 81920
ER = WR + 5*10240
QX = WR + 7*10240
VR = QX
NS = 7
SIG = 1
DN = 3
PERM = sum(p << (4*i) for i, p in enumerate([0, 4, 5, 9, 3, 7, 2, 6]))
U_TILES = 8
class X:
    noffn = False; st = 0; hprio = 2; cprio = 0; nowo = False; slp = 10; pdiag = False; pfT = False; pfQ = False; tdiag = False; hsl = 0; rothg = False; gprio = True; tprio = True; pad = 0; pre = 0; ost = ''; gsl = 1; l2pf = True; first = True; nb0 = 8; itst = False; al = None; direct = False

def bf16r(A, d, s):
    A(f"v_cvt_pk_bf16_f32 v{d}, v{s}, v{s}")
    A(f"v_and_b32 v{d}, 0xffff0000, v{d}")
def sigmoid(A, d, s, t):
    A(f"v_mul_f32 v{t}, {f32bits(-LOG2E):#x}, v{s}")
    A(f"v_exp_f32 v{t}, v{t}")
    A("s_nop 0")
    A(f"v_add_f32 v{t}, 1.0, v{t}")
    A(f"v_rcp_f32 v{d}, v{t}")
    A("s_nop 0")
def row_max_u32(A, v):
    for sh in (8, 4, 2, 1):
        A("s_nop 1")
        A(f"v_max_u32_dpp v{v}, v{v}, v{v} row_ror:{sh} row_mask:0xf bank_mask:0xf")
def wave_max_u32(A, v, v2, st):
    A(f"v_max_u32 v{v}, v{v}, v{v2}")
    row_max_u32(A, v)
    A("s_nop 1")
    for i in range(4):
        A(f"v_readlane_b32 s{st+i}, v{v}, {16*i}")
    A(f"s_max_u32 s{st}, s{st}, s{st+1}")
    A(f"s_max_u32 s{st+2}, s{st+2}, s{st+3}")
    A(f"s_max_u32 s{st}, s{st}, s{st+2}")

def arrive(A, cnt_off, total, vt):
    L = A.label("arr")
    A(f"v_mov_b32 v{vt}, 1")
    A(f"v_lshlrev_b32 v{vt+1}, 24, v1")
    A(f"buffer_atomic_add v{vt}, v{vt+1}, s[76:79], 0 offen offset:{cnt_off} sc0 sc1")
    A("s_waitcnt vmcnt(0)")
    A(f"v_readfirstlane_b32 s32, v{vt}")
    A(f"v_mov_b32 v{vt}, 1")
    A(f"s_cmp_lg_u32 s32, {total-1}")
    A(f"s_cbranch_scc1 {L}")
    A(f"buffer_store_dword v{vt}, v{vt+1}, s[76:79], 0 offen offset:{128+cnt_off} sc1")
    A(f"{L}:")
def await_cnt(A, vt, slp):
    L, Ld = A.label("aw"), A.label("awd")
    A(f"v_lshlrev_b32 v{vt+1}, 24, v1")
    A(f"s_mov_b32 s33, {SPIN}")
    A(f"{L}:")
    A(f"buffer_load_dword v{vt}, v{vt+1}, s[76:79], 0 offen sc1")
    A("s_waitcnt vmcnt(0)")
    A(f"v_readfirstlane_b32 s32, v{vt}")
    A("s_sub_u32 s33, s33, 1")
    A(f"s_cbranch_scc1 {Ld}")
    A("s_cmp_ge_u32 s32, 64")
    A(f"s_cbranch_scc1 {Ld}")
    A(f"s_sleep {slp}")
    A(f"s_branch {L}")
    A(f"{Ld}:")
def await_go(A, cnt_off, vt, slp):
    L, Ld = A.label("aw"), A.label("awd")
    A(f"v_lshlrev_b32 v{vt+1}, 24, v1")
    A(f"s_mov_b32 s33, {SPIN}")
    A(f"{L}:")
    A(f"buffer_load_dword v{vt}, v{vt+1}, s[76:79], 0 offen offset:{128+cnt_off} sc1")
    A("s_waitcnt vmcnt(0)")
    A(f"v_readfirstlane_b32 s32, v{vt}")
    A("s_sub_u32 s33, s33, 1")
    A(f"s_cbranch_scc1 {Ld}")
    A("s_cmp_lg_u32 s32, 0")
    A(f"s_cbranch_scc1 {Ld}")
    A(f"s_sleep {slp}")
    A(f"s_branch {L}")
    A(f"{Ld}:")

def hst(A, i):
    if X.pdiag: stamp(A, i)
def fused(A):
    kernel_begin(A, NAME)
    L_exit, L_help, L_op = A.label("exit"), A.label("help"), A.label("oproj")
    A("s_cmp_ge_u32 s2, 256")
    A(f"s_cbranch_scc1 {L_exit}")
    stamp_rt(A, 0)
    for i in range(X.pre): A("s_sleep 64")
    A(f"s_load_dwordx4 s[36:39], s[0:1], {KA_X}")
    A(f"s_load_dwordx4 s[40:43], s[0:1], {KA_WK}")
    A(f"s_load_dwordx4 s[48:51], s[0:1], {KA_DBG}")
    A(f"s_load_dwordx2 s[44:45], s[0:1], {KA_WR}")
    A(f"s_load_dwordx4 s[4:7], s[0:1], {KA_GW}")
    A("v_lshrrev_b32 v4, 6, v0")
    A("v_and_b32 v1, 63, v0")
    A("v_readfirstlane_b32 s29, v4")
    A("v_lshlrev_b32 v5, 4, v1")
    A("s_and_b32 s30, s2, 7")
    A("s_lshl_b32 s30, s30, 2")
    A("s_lshr_b32 s28, s2, 6")
    A("s_add_u32 s30, s30, s28")
    A("s_bfe_u32 s31, s2, 0x30003")
    A("s_lshl_b32 s33, s28, 1")
    A("s_sub_u32 s3, s31, s33")
    A("s_and_b32 s3, s3, 7")
    A("s_lshl_b32 s32, s3, 2")
    A(f"s_lshr_b32 s25, {PERM:#x}, s32")
    A("s_and_b32 s25, s25, 15")
    A("s_add_u32 s25, s25, s33")
    A("s_cmp_ge_u32 s25, 10")
    A("s_cselect_b32 s32, 10, 0")
    A("s_sub_u32 s25, s25, s32")
    if X.first:
        A("s_cmp_lt_u32 s29, 4")
        A("s_cbranch_scc1 L_COMPUTE")
        A(".MARK_ENTRY_END")
        A("L_COMPUTE:")
    else:
        A("s_cmp_ge_u32 s29, 4")
        A(f"s_cbranch_scc1 {L_help}")

    def common_setup():
        A("s_mov_b32 s10, 0x1000000")
        A("s_mov_b32 s11, 0x00020000")
        A("s_bfe_u32 s24, s2, 0x40003")
        A(f"s_mul_i32 s24, s24, {4*SL}")
        A("s_lshl_b32 s73, s28, 1")
        if X.rothg:
            A("s_add_u32 s73, s73, s31")
            A("s_and_b32 s73, s73, 7")
        A("s_movk_i32 s78, 256")
        A("s_mov_b32 s79, 0x00020000")
    def common_setup2():
        A("s_mov_b32 s8, s50")
        A("s_and_b32 s9, s51, 0xffff")
        A("s_mov_b32 s76, s48")
        A("s_and_b32 s77, s49, 0xffff")
    PM, PT, PX, PTK, PO0, PO1, PPR, PY, PPW, POA, POB = range(160, 171)
    def oproj_addr():
        A("v_and_b32 v2, 15, v0")
        A("v_lshrrev_b32 v3, 4, v1")
        A("s_and_b32 s27, s29, 3")
        A("s_lshr_b32 s28, s29, 2")
        A("v_add_u32 v6, s73, v3")
        A("v_and_b32 v6, 7, v6")
        A("v_lshlrev_b32 v7, 3, v2")
        A(f"v_lshl_add_u32 v{PO0}, v6, 8, v7")
        A(f"v_xor_b32 v{PO1}, 0x400, v{PO0}")
        A("v_lshrrev_b32 v7, 2, v2")
        A("v_and_b32 v8, 3, v2")
        A("v_lshrrev_b32 v9, 1, v3")
        A("v_mul_u32_u24 v9, 20, v9")
        A("v_and_b32 v6, 1, v3")
        A("v_lshl_add_u32 v9, v6, 2, v9")
        A("v_add_u32 v9, v9, v7")
        A("v_mul_u32_u24 v9, 160, v9")
        A("v_lshl_add_u32 v9, v8, 3, v9")
        A("s_xor_b32 s32, s28, 1")
        A("s_mul_i32 s32, s32, 51200")
        A(f"v_add_u32 v{PM}, s32, v9")
        A("v_mul_u32_u24 v9, 40, v3")
        A("v_add3_u32 v9, v9, v7, 16")
        A("v_mul_u32_u24 v9, 160, v9")
        A("v_lshl_add_u32 v9, v8, 3, v9")
        A(f"v_add_u32 v{PT}, s32, v9")
        A("v_mul_u32_u24 v6, 26, v1")
        A("v_lshrrev_b32 v6, 8, v6")
        A("v_mul_u32_u24 v7, 10, v6")
        A("v_sub_u32 v7, v1, v7")
        A("s_lshl_b32 s32, s30, 6")
        A("s_lshl_b32 s33, s29, 3")
        A("s_add_u32 s52, s32, s33")
        A(f"v_add_u32 v{PTK}, s52, v6")
        A(f"v_mul_u32_u24 v8, 1280, v{PTK}")
        A("v_lshl_add_u32 v8, v7, 4, v8")
        A("s_mul_i32 s54, s31, 160")
        A("v_add_u32 v8, s54, v8")
        A("v_cmp_gt_u32 vcc, 40, v1")
        A("v_mov_b32 v9, 0x40000000")
        A(f"v_cndmask_b32 v{PX}, v9, v8, vcc")
        A("v_add_u32 v6, s33, v6")
        A("v_mul_u32_u24 v6, 336, v6")
        A("v_lshl_add_u32 v6, v7, 5, v6")
        A(f"v_add_u32 v{PPR}, {XB}, v6")
        A("v_lshlrev_b32 v7, 5, v7")
        A(f"v_add_u32 v{PY}, {YB}, v7")
        A("s_lshl_b32 s32, s27, 4")
        A("v_add_u32 v6, s32, v2")
        A("v_mul_u32_u24 v6, 336, v6")
        A("v_lshl_add_u32 v6, v3, 4, v6")
        A("s_mul_i32 s32, s28, 21504")
        A(f"s_add_u32 s32, s32, {XB}")
        A(f"v_add_u32 v{PPW}, s32, v6")
    def oproj_saddr():
        A("s_lshl_b32 s33, s30, 2")
        A("s_add_u32 s33, s33, s27")
        A("s_mul_i32 s68, s33, 20480")
        A(f"s_add_u32 s68, s68, {WS_O}")
        A("s_lshl_b32 s33, s28, 11")
        A("s_add_u32 s70, s68, s33")
        A("s_add_u32 s70, s70, 16384")
        A("s_lshl_b32 s33, s28, 13")
        A("s_add_u32 s68, s68, s33")
        for p in range(8):
            A(f"s_add_u32 s32, s73, {p}")
            A("s_and_b32 s32, s32, 7")
            A(f"s_lshl_b32 s{12+p}, s32, 10")
            A(f"s_add_u32 s{12+p}, s{12+p}, s68")
        A("s_movk_i32 s55, 5120")
        A(f"s_mov_b32 s22, {X_BYTES}")
        A("s_mov_b32 s23, 0x00020000")

    def o_addr():
        A("s_lshl_b32 s47, s31, 2")
        A("s_add_u32 s47, s47, s27")
        A("v_bfe_u32 v6, v1, 4, 1")
        A("v_mul_u32_u24 v6, 20480, v6")
        A("v_lshrrev_b32 v7, 5, v1")
        A(f"v_lshl_add_u32 v{POB}, v2, 3, v6")
        A(f"v_lshl_or_b32 v{POB}, v7, 30, v{POB}")
        A("v_lshl_add_u32 v6, v2, 4, v6")
        A(f"v_lshl_add_u32 v{POA}, v7, 8, v6")
        A("s_mul_i32 s32, s30, 81920")
        A(f"s_add_u32 s32, s32, {WS_O}")
        A("s_lshl_b32 s74, s47, 9")
        A("s_add_u32 s74, s74, s32")
        A("s_lshl_b32 s75, s47, 7")
        A("s_add_u32 s75, s75, s32")
        A("s_add_u32 s75, s75, 16384")
        A("s_add_u32 s58, s74, 40960")
        A("s_add_u32 s59, s75, 40960")

    A("s_mov_b32 s72, 0")
    if X.l2pf:
        A("s_getpc_b64 s[32:33]")
        A("L_PC0:")
        A(f"s_sub_u32 s32, s32, L_PC0-{NAME}")
        A("s_subb_u32 s33, s33, 0")
        A("s_lshr_b32 s34, s2, 3")
        A("v_lshl_add_u32 v6, v0, 5, s34")
        A("v_lshlrev_b32 v6, 7, v6")
        A(f"v_min_u32 v6, L_CODE_END-{NAME}-4, v6")
        A("global_load_dword v180, v6, s[32:33]")
    common_setup()
    oproj_addr()
    oproj_saddr()
    VACC = 32; VE = 52; H = [64, 84]; XF = [104, 108]
    VB1, VB2, VXA0, VXA1 = 14, 15, 16, 17
    A("v_lshrrev_b32 v6, 2, v2")
    A("v_and_b32 v7, 3, v2")
    A("v_lshl_add_u32 v6, v3, 3, v6")
    A("v_and_b32 v8, 1, v3")
    A("v_lshlrev_b32 v8, 2, v8")
    A("v_add_u32 v9, v6, v8")
    A("v_mul_u32_u24 v9, 160, v9")
    A("v_lshl_add_u32 v9, v7, 3, v9")
    A(f"v_add_u32 v{VB1}, {WR}, v9")
    A("v_xor_b32 v8, 4, v8")
    A("v_add_u32 v9, v6, v8")
    A("v_mul_u32_u24 v9, 160, v9")
    A("v_lshl_add_u32 v9, v7, 3, v9")
    A(f"v_add_u32 v{VB2}, {WR}, v9")
    A("v_mul_u32_u24 v9, 40, v6")
    A(f"v_add_u32 v9, {ER}, v9")
    A("v_lshl_add_u32 v18, v7, 3, v9")
    A("v_add_u32 v19, 32, v9")
    A("v_lshrrev_b32 v6, 1, v2")
    A("v_xor_b32 v6, v6, v3")
    A("v_lshlrev_b32 v6, 4, v6")
    A("v_lshl_add_u32 v6, v2, 7, v6")
    A("s_lshl_b32 s32, s29, 11")
    A("v_add_u32 v10, s32, v6")
    A("v_xor_b32 v11, 64, v10")
    A(f"v_mov_b32 v{VXA0}, v10")
    A(f"v_mov_b32 v{VXA1}, v11")
    for i in range(VACC, VE + 8):
        A(f"v_mov_b32 v{i}, 0")
    A("s_lshr_b32 s32, s29, 1")
    A("s_mul_i32 s32, s32, 5120")
    A("s_and_b32 s33, s29, 1")
    A("s_lshl_b32 s33, s33, 7")
    A("s_add_u32 s32, s32, s33")
    A(f"s_add_u32 s32, s32, {QX}")
    A("v_lshlrev_b32 v6, 3, v2")
    A("v_lshl_add_u32 v6, v3, 8, v6")
    A("v_add_u32 v13, s32, v6")
    o_addr()
    A("s_waitcnt lgkmcnt(0)")
    common_setup2()
    A("s_mov_b32 s4, s36")
    A("s_mov_b32 s5, s37")
    A("v_lshlrev_b32 v24, 24, v1")
    A("s_lshl_b32 s32, s30, 6")
    A("s_lshl_b32 s33, s29, 4")
    A("s_add_u32 s50, s32, s33")
    if X.pfQ:
        A("s_cmp_lg_u32 s29, 3")
        A("s_cbranch_scc1 PFRET_Q")
        A("s_mov_b64 exec, 0")
        A("s_branch PF_Q_0")
        A("PFRET_Q:")
        A("s_mov_b64 exec, -1")
    stamp(A, 1)
    L_main, L_rg, L_ev, L_ej = A.label("main"), A.label("rg"), A.label("ev"), A.label("ej")
    A("s_cmp_gt_u32 s3, 2")
    A(f"s_cbranch_scc1 {L_main}")
    A("s_cmp_eq_u32 s3, 2")
    A(f"s_cbranch_scc1 {L_rg}")
    EW = 64; EX = 112
    A("s_mov_b32 s46, 0")
    def erd(s):
        A(f"ds_read_b128 {vr(EX+4*s,4)}, v{10 + (s & 1)} offset:{(s >> 1)*8192}")
        for t in range(2):
            slot = EW + 8*s + 4*t
            A(f"ds_read_b64_tr_b16 {vr(slot,2)}, v{18+t} offset:{s*1280}")
            A(f"ds_read_b64_tr_b16 {vr(slot+2,2)}, v{18+t} offset:{s*1280+160}")
    def eloop(swap):
        L = A.label("el")
        A(f"{L}:")
        for s in range(4):
            if s == 2:
                A("s_add_u32 s46, s46, 1")
                A("v_add_u32 v10, 16384, v10")
                A("v_add_u32 v11, 16384, v11")
                A("v_add_u32 v18, 5120, v18")
                A("v_add_u32 v19, 5120, v19")
                A("s_cmp_lt_u32 s46, 5")
                A("s_barrier")
            erd((s + 2) % 4)
            A("s_waitcnt lgkmcnt(10)")
            for t in range(2):
                w, x = vr(EW+8*s+4*t,4), vr(EX+4*s,4)
                A(f"v_mfma_f32_16x16x32_bf16 {vr(VE+4*t,4)}, {x if swap else w}, {w if swap else x}, {vr(VE+4*t,4)}")
        A(f"s_cbranch_scc1 {L}")
    A("s_barrier")
    erd(0); erd(1)
    A("s_cmp_eq_u32 s3, 1")
    A(f"s_cbranch_scc1 {L_ev}")
    eloop(False)
    A(f"s_branch {L_ej}")
    A(f"{L_ev}:")
    eloop(True)
    A(f"{L_ej}:")
    stamp(A, 2)
    A("s_lshl_b32 s32, s30, 1")
    A("s_lshr_b32 s33, s29, 1")
    A("s_add_u32 s51, s32, s33")
    A("s_and_b32 s53, s29, 1")
    A("v_lshrrev_b32 v6, 1, v3")
    A("v_and_b32 v7, 1, v3")
    A("s_nop 1")
    for t in range(2):
        a = VE + 4*t
        A(f"v_cvt_pk_bf16_f32 v{a}, v{a}, v{a+1}")
        A(f"v_cvt_pk_bf16_f32 v{a+1}, v{a+2}, v{a+3}")
    L_sv, L_fin, L_sig = A.label("sv"), A.label("fin"), A.label("sig")
    A("s_cmp_eq_u32 s3, 1")
    A(f"s_cbranch_scc1 {L_sv}")
    A(f"s_mov_b32 s60, {64*SL}")
    A("s_add_u32 s51, s51, 62")
    A("s_and_b32 s51, s51, 63")
    A(f"s_cselect_b32 s34, 0x40000000, s60")
    A(f"s_mul_i32 s51, s51, {SL}")
    A("s_lshl_b32 s33, s53, 4")
    A("v_add_u32 v8, s33, v2")
    A("v_lshl_add_u32 v6, v6, 5, v8")
    A("v_lshlrev_b32 v6, 4, v6")
    A("v_lshl_add_u32 v6, v7, 3, v6")
    A(f"buffer_store_dwordx2 {vr(VE,2)}, v6, s[8:11], s51 offen sc1")
    A(f"buffer_store_dwordx2 {vr(VE,2)}, v6, s[8:11], s34 offen sc1")
    A("v_cmp_eq_u32 vcc, 0, v3")
    A("v_lshlrev_b32 v6, 3, v8")
    A("v_lshl_or_b32 v6, v3, 28, v6")
    A(f"buffer_store_dwordx2 {vr(VE+4,2)}, v6, s[8:11], s51 offen offset:{OFF_A2} sc1")
    A(f"v_cndmask_b32 v8, 0, v{VE+4}, vcc")
    A(f"v_cndmask_b32 v9, 0, v{VE+5}, vcc")
    A("v_mov_b32 v7, 0")
    for r in (VE, VE+1, 8, 9):
        A(f"v_dot2c_f32_bf16 v7, v{r}, v{r}")
    A("s_nop 2")
    A("v_mov_b32 v6, v7")
    A("s_nop 1")
    A("v_permlane32_swap_b32 v6, v7")
    A("s_nop 1")
    A("v_add_f32 v7, v6, v7")
    A("v_mov_b32 v6, v7")
    A("s_nop 1")
    A("v_permlane16_swap_b32 v6, v7")
    A("s_nop 1")
    A("v_add_f32 v7, v6, v7")
    A(f"s_mov_b32 s34, {WS_KMAX}")
    A(f"s_branch {L_fin}")
    A(f"{L_sv}:")
    A("s_add_u32 s51, s51, 63")
    A("s_and_b32 s51, s51, 63")
    A(f"s_mul_i32 s51, s51, {SL}")
    A("s_mul_i32 s33, s53, 656")
    A("s_add_u32 s51, s51, s33")
    A("v_mul_u32_u24 v6, 20, v6")
    A("v_add_u32 v6, v6, v2")
    A("v_lshlrev_b32 v6, 4, v6")
    A("v_lshl_add_u32 v6, v7, 3, v6")
    A(f"buffer_store_dwordx2 {vr(VE,2)}, v6, s[8:11], s51 offen offset:{OFF_V0} sc1")
    A("v_cmp_eq_u32 vcc, 4, v2")
    A("v_mov_b32 v8, 0x3f803f80")
    A(f"v_cndmask_b32 v{VE+4}, v{VE+4}, v8, vcc")
    A(f"v_cndmask_b32 v{VE+5}, v{VE+5}, v8, vcc")
    A("v_lshrrev_b32 v8, 1, v3")
    A("v_add_u32 v8, 4, v8")
    A("v_cmp_gt_u32 vcc, v8, v2")
    A("v_mov_b32 v8, 0x40000000")
    A("v_cndmask_b32 v6, v8, v6, vcc")
    A(f"buffer_store_dwordx2 {vr(VE+4,2)}, v6, s[8:11], s51 offen offset:{OFF_V0+256} sc1")
    A(f"s_branch {L_main}")
    A(f"{L_rg}:")
    A("v_and_b32 v6, 1, v2")
    A("v_mul_u32_u24 v6, 1280, v6")
    A("v_lshl_add_u32 v18, v3, 4, v6")
    A(f"v_add_u32 v18, {VR}, v18")
    A(f"s_branch {L_main}")
    def fin_key():
        row_max_u32(A, 7)
        A("s_lshr_b32 s33, s50, 2")
        A("s_add_u32 s33, s33, s34")
        A("v_lshlrev_b32 v6, 24, v1")
        A("buffer_store_dword v7, v6, s[8:11], s33 offen sc1")
    A(f"{L_fin}:")
    fin_key()
    A(f"{L_main}:")
    stamp(A, 3)
    def wrd1(hh, mt):
        A(f"ds_read_b64_tr_b16 {vr(H[hh]+4*mt,2)}, v{VB1} offset:{hh*5120 + mt*32}")
        A(f"ds_read_b64_tr_b16 {vr(H[hh]+4*mt+2,2)}, v{VB2} offset:{hh*5120 + mt*32}")
    def half(hh):
        A(f"ds_read_b128 {vr(XF[hh^1],4)}, v{VXA1 if hh == 0 else VXA0}")
        for mt in range(5):
            wrd1(hh ^ 1, mt)
            A("s_waitcnt lgkmcnt(11)")
            A(f"v_mfma_f32_16x16x32_bf16 {vr(VACC+4*mt,4)}, {vr(H[hh]+4*mt,4)}, {vr(XF[hh],4)}, {vr(VACC+4*mt,4)}")
    A("s_mov_b32 s46, 0")
    A(f"s_mov_b32 s34, {-(NS-1)*10240}")
    A("s_lshl_b32 s32, s25, 7")
    A("v_add_u32 v6, s32, v18")
    A("s_waitcnt lgkmcnt(0)")
    A("s_barrier")
    A(f"ds_read_b128 {vr(112,4)}, v6")
    A(f"ds_read_b128 {vr(116,4)}, v6 offset:64")
    A(f"ds_read_b128 {vr(XF[0],4)}, v{VXA0}")
    for mt in range(5):
        wrd1(0, mt)
    L_aw, L_awr = A.label("aw"), A.label("awr")
    def qloop(rg):
        L_c = A.label("c")
        A(f"{L_c}:")
        A("s_add_u32 s46, s46, 1")
        A(f"s_cmp_eq_u32 s46, {NS}")
        A("s_cselect_b32 s32, s34, 10240")
        half(0)
        A(f"v_add_u32 v{VB1}, s32, v{VB1}")
        A(f"v_add_u32 v{VB2}, s32, v{VB2}")
        A(f"v_add_u32 v{VXA0}, 8192, v{VXA0}")
        A(f"v_add_u32 v{VXA1}, 8192, v{VXA1}")
        if rg:
            A("s_add_u32 s25, s25, 1")
            A("s_cmp_eq_u32 s25, 10")
            A("s_cselect_b32 s25, 0, s25")
            A("s_lshl_b32 s32, s25, 7")
            A("v_add_u32 v6, s32, v18")
            A("s_waitcnt lgkmcnt(10)")
            for s_ in range(2):
                A(f"v_mfma_f32_16x16x32_bf16 {vr(VE,4)}, {vr(112+4*s_,4)}, {vr(XF[s_],4)}, {vr(VE,4)}")
            A(f"ds_read_b128 {vr(112,4)}, v6")
            A(f"ds_read_b128 {vr(116,4)}, v6 offset:64")
        if not rg:
            A(f"s_cmp_eq_u32 s46, {SIG}")
            A(f"s_cbranch_scc1 {L_aw}")
            A(f"{L_awr}:")
        A("s_cmp_lt_u32 s46, 10")
        A("s_barrier")
        half(1)
        A(f"s_cbranch_scc1 {L_c}")
    L_rgl, L_rgr = A.label("rgl"), A.label("rgr")
    A("s_cmp_eq_u32 s3, 2")
    A(f"s_cbranch_scc1 {L_rgl}")
    qloop(False)
    A(f"{L_rgr}:")
    stamp(A, 4)
    if X.pfQ: A.pf_start("Q")
    QB1 = [8, 16]; QS = [12, 14]
    VIDX = 4
    VKA, VA2, VVA = 20, 21, 22
    S = [32, 64]
    O = [96, 112]
    KA1 = [128, 136]; KA2 = [132, 140]
    V0 = [144, 152]; V1 = [148, 156]
    A(f"s_mov_b32 s33, {f32bits(QSCALE):#x}")
    A("v_and_b32 v2, 31, v0")
    A("v_lshrrev_b32 v3, 5, v1")
    A("v_cmp_eq_u32 s[44:45], 1, v3")
    A("v_lshlrev_b32 v6, 3, v2")
    A("s_waitcnt lgkmcnt(0)")
    A(f"v_mov_b32 v24, {OFF_V0 + 640 - OFF_A2}")
    A("s_barrier")
    for mt in range(5):
        a = VACC + 4*mt
        for i in range(4):
            A(f"v_mul_f32 v{a+i}, s33, v{a+i}")
        A(f"v_cvt_pk_bf16_f32 v{a}, v{a}, v{a+1}")
        A(f"v_cvt_pk_bf16_f32 v{a+1}, v{a+2}, v{a+3}")
        A(f"ds_write_b64 v13, {vr(a,2)} offset:{mt*1024}")
    A(f"v_cndmask_b32 v{VA2}, v6, v24, s[44:45]")
    A("s_mul_i32 s32, s29, 1280")
    A(f"s_add_u32 s32, s32, {QX}")
    A("v_add_u32 v7, s32, v6")
    A("v_lshl_add_u32 v6, v3, 9, v7")
    A("v_mul_u32_u24 v23, 20, v3")
    A("v_add_u32 v23, v23, v2")
    A("v_cmp_gt_u32 vcc, 20, v2")
    A("v_lshlrev_b32 v26, 3, v1")
    A("v_cndmask_b32 v23, 40, v23, vcc")
    A("v_lshlrev_b32 v23, 4, v23")
    A(f"s_mov_b32 s36, {WS_KMAX}")
    A(f"s_sub_u32 s37, s24, {2*SL}")
    A(f"s_cselect_b32 s37, {62*SL}, s37")
    A(f"s_add_u32 s38, s37, {SL}")
    A("s_waitcnt lgkmcnt(0)")
    A("s_barrier")
    stamp(A, 5)
    A("buffer_load_dwordx2 v[24:25], v26, s[8:11], s36 offen sc1")
    A(f"buffer_load_dwordx4 {vr(KA1[0],4)}, v5, s[8:11], s37 offen sc1")
    A(f"buffer_load_dwordx2 {vr(KA2[0],2)}, v{VA2}, s[8:11], s37 offen offset:{OFF_A2} sc1")
    A(f"buffer_load_dwordx4 {vr(KA1[1],4)}, v5, s[8:11], s38 offen sc1")
    A(f"buffer_load_dwordx2 {vr(KA2[1],2)}, v{VA2}, s[8:11], s38 offen offset:{OFF_A2} sc1")
    A(f"buffer_load_dwordx4 {vr(V0[0],4)}, v23, s[8:11], s38 offen offset:{OFF_V0} sc1")
    A(f"buffer_load_dwordx4 {vr(V1[0],4)}, v23, s[8:11], s38 offen offset:{OFF_V1} sc1")
    A(f"ds_read2_b64 {vr(QB1[0],4)}, v6 offset0:0 offset1:32")
    A(f"ds_read_b64 {vr(QS[0],2)}, v7 offset:1024")
    A("v_add_u32 v6, 5120, v6")
    A(f"ds_read2_b64 {vr(QB1[1],4)}, v6 offset0:0 offset1:32")
    A(f"ds_read_b64 {vr(QS[1],2)}, v7 offset:{1024+5120}")
    A(f"v_mov_b32 v{VKA}, v5")
    A("v_cmp_lt_u32 vcc, 20, v2")
    A("v_mov_b32 v6, 0x40000")
    A(f"v_cndmask_b32 v{VVA}, v23, v6, vcc")
    A(f"v_mov_b32 v{VIDX}, 0xdddd")
    for r in range(O[0], O[0] + 32):
        A(f"v_mov_b32 v{r}, 0")
    for r in range(S[1] + 24, S[1] + 32):
        A(f"v_mov_b32 v{r}, 0")
    for r in range(V1[1], V1[1] + 4):
        A(f"v_mov_b32 v{r}, 0")
    A("v_mov_b32 v26, 0")
    A("v_mov_b32 v28, 0")
    A(f"v_mov_b32 v30, {FCNT}")
    A("s_lshl_b32 s32, s29, 3")
    A("s_lshl_b32 s32, 1, s32")
    A("v_mov_b32 v31, 0")
    A("v_writelane_b32 v31, s32, 0")
    A("s_waitcnt lgkmcnt(0)")
    for b in range(2):
        for r in range(2):
            A(f"v_cndmask_b32 v{QS[b]+r}, v{QS[b]+r}, 0, s[44:45]")
    for r in range(4):
        A(f"v_dot2c_f32_bf16 v26, v{QB1[0]+r}, v{QB1[0]+r}")
        A(f"v_dot2c_f32_bf16 v28, v{QB1[1]+r}, v{QB1[1]+r}")
    for r in range(2):
        A(f"v_dot2c_f32_bf16 v26, v{QS[0]+r}, v{QS[0]+r}")
        A(f"v_dot2c_f32_bf16 v28, v{QS[1]+r}, v{QS[1]+r}")
    A("s_nop 2")
    A("v_mov_b32 v27, v26")
    A("v_mov_b32 v29, v28")
    A("s_nop 1")
    A("v_permlane32_swap_b32 v26, v27")
    A("v_permlane32_swap_b32 v28, v29")
    A("s_nop 1")
    A("v_add_f32 v26, v26, v27")
    A("v_add_f32 v28, v28, v29")
    A("s_waitcnt vmcnt(6)")
    wave_max_u32(A, 24, 25, 34)
    A("v_mul_f32 v26, s34, v26")
    A("v_mul_f32 v28, s34, v28")
    A("v_sqrt_f32 v26, v26")
    A("v_sqrt_f32 v28, v28")
    A("s_nop 0")
    A(f"v_mul_f32 v26, {f32bits(-(1.0 + 2.0**-6)):#x}, v26")
    A(f"v_mul_f32 v28, {f32bits(-(1.0 + 2.0**-6)):#x}, v28")
    A("v_lshrrev_b32 v26, 16, v26")
    A("v_lshrrev_b32 v28, 16, v28")
    A(f"v_cndmask_b32 v{QS[0]}, v{QS[0]}, v26, s[44:45]")
    A(f"v_cndmask_b32 v{QS[1]}, v{QS[1]}, v28, s[44:45]")
    def qs2(buf, par, b):
        A(f"v_mfma_f32_32x32x8_bf16 {vr(S[buf]+16*b,16)}, {vr(KA2[par],2)}, {vr(QS[b],2)}, 0")
    def qk1(buf, par, b):
        A(f"v_mfma_f32_32x32x16_bf16 {vr(S[buf]+16*b,16)}, {vr(KA1[par],4)}, {vr(QB1[b],4)}, {vr(S[buf]+16*b,16)}")
    def pv(buf, b, half, vpar):
        vv = V0[vpar] if half == 0 else V1[vpar]
        A(f"v_smfmac_f32_32x32x32_bf16 {vr(O[b],16)}, {vr(vv,4)}, {vr(S[buf]+16*b+8*half,8)}, v{VIDX}")
    A("s_waitcnt vmcnt(4)")
    qs2(0, 0, 0); qk1(0, 0, 0); qs2(0, 0, 1); qk1(0, 0, 1)
    A("s_mov_b32 s46, 0")
    A("s_waitcnt vmcnt(0)")
    A("s_nop 7")
    stamp(A, 6)
    L_loop, L_sp, L_kr = A.label("loop"), A.label("sp"), A.label("kr")
    A(f"{L_sp}:")
    A("s_barrier")
    if X.al is not None:
        A(".p2align 6")
        for i in range(X.al // 4): A("s_nop 0")
    A(f"{L_loop}:")
    if X.itst:
        A("s_memtime s[60:61]")
        A("s_lshl_b32 s64, s2, 2")
        A("s_add_u32 s64, s64, s29")
        A("s_lshl_b32 s64, s64, 7")
        A("s_lshl_b32 s65, s46, 3")
        A("s_add_u32 s64, s64, s65")
        A(f"s_add_u32 s64, s64, {WS_ST + 0x200000}")
        A("s_waitcnt lgkmcnt(0)")
        A("v_mov_b32 v200, s60")
        A("v_mov_b32 v201, s61")
        A("v_lshlrev_b32 v204, 24, v1")
        A("buffer_store_dwordx2 v[200:201], v204, s[8:11], s64 offen")
    sched = {2: 'pv1p', 6: 's2a', 10: 'q1a', 14: 'pv0a', 18: 'pv1a', 22: 's2b', 26: 'q1b', 30: 'pv0b'}
    for t in range(U_TILES):
        par = t & 1
        off = t * SL
        for e in range(32):
            op = sched.get(e)
            if op == 'pv1p':
                pv(par ^ 1, 1, 1, par ^ 1)
                A("s_waitcnt lgkmcnt(0)")
                A(f"ds_read_b128 {vr(V0[par^1],4)}, v{VVA} offset:{off+OFF_V0}")
                A(f"ds_read_b128 {vr(V1[par^1],4)}, v{VVA} offset:{off+OFF_V1}")
            if op == 's2a': qs2(par ^ 1, par ^ 1, 0)
            if op == 's2b': qs2(par ^ 1, par ^ 1, 1)
            if op == 'pv0a':
                pv(par, 0, 0, par)
                A(f"ds_read_b128 {vr(KA1[par],4)}, v{VKA} offset:{off}")
                A(f"ds_read_b64 {vr(KA2[par],2)}, v{VA2} offset:{off+OFF_A2}")
                if t == U_TILES - 1: A("ds_read_b32 v24, v30 offset:16")
            if op == 'q1a': qk1(par ^ 1, par ^ 1, 0)
            if op == 'pv1a': pv(par, 0, 1, par)
            if op == 'q1b': qk1(par ^ 1, par ^ 1, 1)
            if op in ('q1a', 'q1b') and X.pad: A(f"s_nop {X.pad - 1}")
            if op == 'pv0b':
                pv(par, 1, 0, par)
                if t == U_TILES - 1:
                    A("s_add_u32 s46, s46, 1")
                    A("s_bitcmp1_b32 0x12e, s46")
                    A(f"v_add_u32 v{VKA}, {U_TILES*SL}, v{VKA}")
                    A(f"v_add_u32 v{VA2}, {U_TILES*SL}, v{VA2}")
                    A(f"v_add_u32 v{VVA}, {U_TILES*SL}, v{VVA}")
            A(f"v_exp_f32 v{S[par]+e}, v{S[par]+e}")
    A(f"s_cbranch_scc0 {L_loop}")
    A("s_cmp_eq_u32 s46, 1")
    A(f"s_cbranch_scc1 {L_sp}")
    A("s_waitcnt lgkmcnt(0)")
    A("v_readfirstlane_b32 s32, v24")
    A("ds_add_u32 v30, v31 offset:4")
    A("s_cmp_lt_u32 s32, 256")
    A(f"s_cbranch_scc1 {L_kr}")
    A("s_cmp_lt_u32 s46, 8")
    A(f"s_cbranch_scc1 {L_loop}")
    if not X.pdiag: stamp(A, 7)
    if X.pfT: A.pf_start("T")
    pv(1, 1, 1, 1)
    A(f"v_mov_b32 v26, {LTHR:#x}")
    A("s_nop 1")
    L_fb, L_norm = A.label("fb"), A.label("norm")
    A(f"v_rcp_f32 v28, v{O[0]+8}")
    A("s_nop 0")
    A("v_mov_b32 v29, v28")
    A("s_nop 1")
    A("v_permlane32_swap_b32 v28, v29")
    A("s_nop 3")
    A(f"v_min_f32 v27, v{O[0]+8}, v{O[1]+8}")
    A(f"v_cmp_nge_f32 vcc, v27, v26")
    A(f"v_cmp_u_f32 s[36:37], v{O[0]+8}, v{O[1]+8}")
    A("s_or_b64 vcc, vcc, s[36:37]")
    A("s_and_b64 vcc, vcc, s[44:45]")
    A(f"s_cbranch_vccnz {L_fb}")
    A(f"{L_norm}:")
    A(f"v_rcp_f32 v26, v{O[1]+8}")
    for r in range(12):
        A(f"v_mul_f32 v{O[0]+r}, v{O[0]+r}, v29")
    A("v_mov_b32 v27, v26")
    for r in range(6):
        A(f"v_cvt_pk_bf16_f32 v{S[0]+r}, v{O[0]+2*r}, v{O[0]+2*r+1}")
    A("v_permlane32_swap_b32 v26, v27")
    A(f"buffer_store_dwordx4 {vr(S[0],4)}, v{POA}, s[8:11], s74 offen sc1")
    A(f"buffer_store_dwordx2 {vr(S[0]+4,2)}, v{POB}, s[8:11], s75 offen sc1")
    for r in range(12):
        A(f"v_mul_f32 v{O[1]+r}, v{O[1]+r}, v27")
    for r in range(6):
        A(f"v_cvt_pk_bf16_f32 v{S[0]+8+r}, v{O[1]+2*r}, v{O[1]+2*r+1}")
    A(f"buffer_store_dwordx4 {vr(S[0]+8,4)}, v{POA}, s[8:11], s58 offen sc1")
    A(f"buffer_store_dwordx2 {vr(S[0]+12,2)}, v{POB}, s[8:11], s59 offen sc1")
    ACC = 8; OF = 56
    WFS = list(range(96, 160, 4)) + list(range(176, 256, 4))
    NPRE = 7
    XV = 28; G = 48
    TT = list(range(36, 48)) + list(range(52, 56))
    ORD = [8, 9, 0, 1, 2, 3, 4, 5, 6, 7]
    def wslot(s, mt):
        return WFS[5*(s % NPRE) + mt]
    def wrd(p, mt):
        slot = wslot(p, mt)
        s = ORD[p]
        if s < 8:
            b, off, o2 = PM, s * 6400 + mt * 32, 1280
        else:
            b, off, o2 = PT, (s - 8) * 25600 + mt * 32, 3200
        A(f"ds_read_b64_tr_b16 {vr(slot,2)}, v{b} offset:{off}")
        A(f"ds_read_b64_tr_b16 {vr(slot+2,2)}, v{b} offset:{off+o2}")
    def gx_loads(xv):
        A("s_mov_b32 s20, s4")
        A("s_and_b32 s21, s5, 0xffff")
        A(f"v_lshlrev_b32 v6, 2, v{PTK}")
        A(f"s_mov_b32 s32, {WS_G}")
        A(f"buffer_load_dword v{G}, v6, s[8:11], s32 offen sc1")
        A(f"buffer_load_dword v{G+1}, v6, s[8:11], s32 offen offset:16 sc1")
        A(f"buffer_load_dwordx4 {vr(xv,4)}, v{PX}, s[20:23], 0 offen")
        A(f"buffer_load_dwordx4 {vr(xv+4,4)}, v{PX}, s[20:23], s55 offen")
        A(f"s_mov_b32 s46, {SPIN}")
        A("s_mov_b32 s71, -1")
        A("s_mov_b32 s47, 0")
    def gate_math():
        for j in range(2):
            bf16r(A, G+j, G+j)
            sigmoid(A, G+j, G+j, G+2)
            bf16r(A, G+j, G+j)
        for j in range(2):
            A(f"v_sub_f32 v{G+2+j}, 1.0, v{G+j}")
            bf16r(A, G+2+j, G+2+j)
        for i in range(8):
            A(f"v_lshlrev_b32 v{TT[2*i]}, 16, v{XV+i}")
            A(f"v_and_b32 v{TT[2*i+1]}, 0xffff0000, v{XV+i}")
        A("s_mov_b32 s20, s6")
        A("s_and_b32 s21, s7, 0xffff")
    RL = [A.label("rl") for _ in range(10)]
    RC = [A.label("rc") for _ in range(10)]
    RT = [A.label("rt") for _ in range(10)]
    L_disp, L_h2, L_h3, L_ng2 = A.label("disp"), A.label("h2"), A.label("h3"), A.label("ng2")
    A("s_barrier")
    A(f"{L_op}:")
    for s in range(NPRE):
        for mt in range(5):
            wrd(s, mt)
    gx_loads(XV)
    A("s_cmp_lg_u32 s72, 0")
    A(f"s_cbranch_scc1 {L_h2}")
    A("s_waitcnt vmcnt(4)")
    A("s_barrier")
    L_rl, L_mm, L_rt, L_sel, L_nosel = A.label("rl"), A.label("mm"), A.label("rt"), A.label("sel"), A.label("nosel")
    A("s_waitcnt vmcnt(0)")
    gate_math()
    A(f"{L_h3}:")
    A(f"v_mov_b32 v6, {FCNT}")
    A("ds_read_b32 v6, v6 offset:12")
    A("s_waitcnt lgkmcnt(0)")
    A("v_readfirstlane_b32 s56, v6")
    A("s_lshr_b32 s33, s52, 3")
    A("s_lshr_b32 s32, s56, 3")
    A("s_cmp_eq_u32 s32, s33")
    A(f"s_cbranch_scc1 {L_sel}")
    A(f"{L_nosel}:")
    for i in range(0, 16, 2):
        A(f"v_pk_mul_f32 {vr(TT[i],2)}, {vr(TT[i],2)}, {vr(G+2,2)} " + ("op_sel:[0,0] op_sel_hi:[1,0]" if i < 8 else "op_sel:[0,1] op_sel_hi:[1,1]"))
    A("s_cmp_eq_u32 s72, 0")
    A(f"s_cbranch_scc1 {L_rl}")
    A("s_barrier")
    A(f"{L_rl}:")
    if not X.pdiag: stamp(A, 8)
    def oload(p):
        s = ORD[p]
        if s < 8:
            A(f"buffer_load_dwordx4 {vr(OF+4*p,4)}, v5, s[8:11], s{12+s} offen sc1")
        else:
            A(f"buffer_load_dwordx2 {vr(OF+4*p,2)}, v{PO0+s-8}, s[8:11], s70 offen sc1")
            A(f"buffer_load_dwordx2 {vr(OF+4*p+2,2)}, v{PO0+s-8}, s[8:11], s70 offen offset:128 sc1")
    for p in range(10):
        oload(p)
    A(f"{L_mm}:")
    if X.tdiag: stamp(A, 1)
    L_et = A.label("et")
    def tailchk():
        A(f"v_max3_u32 v6, v{OF}, v{OF+1}, v{OF+2}")
        A(f"v_max3_u32 v6, v{OF+3}, v{OF+4}, v6")
        A(f"v_max3_u32 v6, v{OF+5}, v{OF+6}, v6")
        A(f"v_max_u32 v6, v{OF+7}, v6")
        A("v_cmp_eq_u32 vcc, s71, v6")
    A("s_waitcnt vmcnt(8)")
    tailchk()
    A(f"s_cbranch_vccnz {L_et}")
    L_mm2 = A.label("mm2")
    A(f"{L_mm2}:")
    for s in range(10):
        A(f"s_waitcnt vmcnt({min(8, 9-s)})" + (" lgkmcnt(0)" if s in (0, NPRE) else ""))
        if X.tdiag and s in (0, 4, 9): stamp(A, {0: 2, 4: 3, 9: 4}[s])
        o = OF + 4*s
        for mt in range(5):
            A(f"v_mfma_f32_16x16x32_bf16 {vr(ACC+4*mt,4)}, {vr(wslot(s,mt),4)}, {vr(OF+4*s,4)}, {vr(ACC+4*mt,4) if s else 0}")
            if mt < 2 and s >= 2: A(f"v_max3_u32 v6, v{o+2*mt}, v{o+2*mt+1}, v6")
            if s + NPRE < 10 and mt > 0: wrd(s + NPRE, mt - 1)
        if s + NPRE < 10: wrd(s + NPRE, 4)
    A("v_cmp_eq_u32 vcc, s71, v6")
    A(f"s_cbranch_vccnz {L_rt}")
    A("s_nop 1")
    for mt in range(5):
        A(f"ds_write_b128 v{PPW}, {vr(ACC+4*mt,4)} offset:{mt*64}")
        if mt == 0: A("s_nop 3")
    A("s_waitcnt lgkmcnt(0)")
    if not X.pdiag: stamp(A, 9)
    A("s_barrier")
    if X.tdiag:
        stamp(A, 5)
        A("s_waitcnt lgkmcnt(0)")
        A(f"s_mov_b32 s{SB+12}, s46")
        A(f"s_mov_b32 s{SB+13}, 0")
    P = 96
    for j in range(2):
        for k in range(2):
            for h in range(2):
                A(f"ds_read_b128 {vr(P+16*j+8*k+4*h,4)}, v{PPR} offset:{j*1344 + k*21504 + h*16}")
    for j in range(2):
        A(f"s_waitcnt lgkmcnt({4*(1-j)})")
        for i in range(0, 8, 2):
            A(f"v_pk_add_f32 {vr(P+16*j+i,2)}, {vr(P+16*j+i,2)}, {vr(P+16*j+8+i,2)}")
        for i in range(0, 8, 2):
            A(f"v_pk_fma_f32 {vr(TT[8*j+i],2)}, {vr(P+16*j+i,2)}, {vr(G,2)}, {vr(TT[8*j+i],2)} " + ("op_sel:[0,0,0] op_sel_hi:[1,0,1]" if j == 0 else "op_sel:[0,1,0] op_sel_hi:[1,1,1]"))
        for i in range(4):
            A(f"v_cvt_pk_bf16_f32 v{XV+4*j+i}, v{TT[8*j+2*i]}, v{TT[8*j+2*i+1]}")
        A(f"buffer_store_dwordx4 {vr(XV+4*j,4)}, v{PX}, s[20:23], {'0' if j == 0 else 's55'} offen {X.ost}")
    if X.pfT: A.pf_stop("PFRET_T")
    stamp_rt(A, 10)
    stamp_flush(A, 11, 8, 29)
    A(f"{L_exit}:")
    A("s_endpgm")
    A(f"{L_et}:")
    A("s_sub_u32 s46, s46, 1")
    A("s_cselect_b32 s71, 0x12345, s71")
    A("s_cselect_b32 s46, 0, s46")
    oload(0); oload(1)
    A("s_waitcnt vmcnt(0)")
    tailchk()
    A(f"s_cbranch_vccnz {L_et}")
    for p in range(2, 10):
        Ls = A.label("sk")
        o = OF + 4*p
        A(f"v_max3_u32 v7, v{o}, v{o+1}, v{o+2}")
        A(f"v_max_u32 v7, v7, v{o+3}")
        A("v_cmp_eq_u32 vcc, s71, v7")
        A(f"s_cbranch_vccz {Ls}")
        oload(p)
        A(f"{Ls}:")
    A("s_waitcnt vmcnt(0)")
    A(f"s_branch {L_mm2}")
    A(f"{L_rt}:")
    A("s_mov_b32 s47, 1")
    A("s_sub_u32 s46, s46, 1")
    A("s_cselect_b32 s71, 0x12345, s71")
    A("s_cselect_b32 s46, 0, s46")
    for s_ in range(10 - NPRE):
        for mt in range(5):
            wrd(s_, mt)
    A(f"s_branch {L_rl}")
    A(f"{L_sel}:")
    A(f"ds_read_b128 {vr(XV,4)}, v{PY}")
    A(f"ds_read_b128 {vr(XV+4,4)}, v{PY} offset:16")
    A("s_waitcnt lgkmcnt(0)")
    for j in range(2):
        A(f"v_add_u32 v6, {4*j}, v{PTK}")
        A("v_cmp_eq_u32 vcc, s56, v6")
        for i in range(8):
            A(f"v_add_f32 v6, v{TT[8*j+i]}, v{XV+i}")
            bf16r(A, 6, 6)
            A(f"v_cndmask_b32 v{TT[8*j+i]}, v{TT[8*j+i]}, v6, vcc")
    A(f"s_branch {L_nosel}")
    A(f"{L_kr}:")
    A("ds_read_b32 v24, v30 offset:16")
    A("s_waitcnt lgkmcnt(0)")
    A("v_readfirstlane_b32 s32, v24")
    A("s_cmp_lt_u32 s32, 256")
    A(f"s_cbranch_scc1 {L_kr}")
    A(f"s_branch {L_loop}")
    A(f"{L_aw}:")
    A("s_waitcnt vmcnt(0)")
    A(f"s_branch {L_awr}")
    A(f"{L_rgl}:")
    qloop(True)
    A("v_add_u32 v8, s50, v2")
    A("v_lshlrev_b32 v6, 2, v8")
    A("v_lshl_or_b32 v6, v3, 28, v6")
    A("v_sub_u32 v8, 2047, v8")
    A(f"s_mov_b32 s33, {WS_R}")
    A(f"s_mov_b32 s34, {WS_G}")
    A(f"buffer_store_dword v{VE}, v6, s[8:11], s33 offen sc1")
    A(f"buffer_store_dword v{VE+1}, v6, s[8:11], s34 offen sc1")
    A(f"v_ashrrev_i32 v7, 31, v{VE}")
    A("v_or_b32 v7, 0x80000000, v7")
    A(f"v_xor_b32 v7, v7, v{VE}")
    A("v_and_b32 v7, 0xfffff800, v7")
    A("v_or_b32 v7, v7, v8")
    A(f"s_mov_b32 s34, {WS_RKEY}")
    fin_key()
    A("s_mul_i32 s32, s50, 20")
    A(f"s_add_u32 s32, s32, {WS_Y}")
    A("v_cmp_gt_u32 vcc, 20, v1")
    A("v_mov_b32 v7, 0x40000000")
    A("v_cndmask_b32 v6, v7, v5, vcc")
    A(f"buffer_store_dwordx4 {vr(VE+4,4)}, v6, s[8:11], s32 offen sc1")
    A("s_lshl_b32 s32, s30, 7")
    A(f"s_add_u32 s33, s32, {WS_GC}")
    A(f"buffer_store_dword v{VE+4}, v24, s[8:11], s33 offen sc1")
    A(f"s_add_u32 s33, s32, {WS_FC}")
    A(f"buffer_store_dword v{VE+4}, v24, s[8:11], s33 offen sc1")
    A(f"s_branch {L_rgr}")
    A(f"{L_fb}:")
    A("v_lshlrev_b32 v21, 3, v2")
    for b in range(2):
        A(f"v_cndmask_b32 v{QS[b]}, v{QS[b]}, 0, s[44:45]")
    A("v_mov_b32 v30, 0xff800000")
    A("v_mov_b32 v31, 0xff800000")
    L_p1, L_p2 = A.label("p1"), A.label("p2")
    def fb_s():
        A(f"buffer_load_dwordx4 {vr(KA1[0],4)}, v5, s[8:11], s32 offen sc1")
        A(f"buffer_load_dwordx2 {vr(KA2[0],2)}, v21, s[8:11], s32 offen offset:{OFF_A2} sc1")
    def fb_qk():
        A("s_waitcnt vmcnt(0)")
        qs2(0, 0, 0); qk1(0, 0, 0); qs2(0, 0, 1); qk1(0, 0, 1)
        A("s_nop 15")
    A("s_mov_b32 s32, 0")
    A(f"{L_p1}:")
    fb_s(); fb_qk()
    for r in range(0, 16, 2):
        A(f"v_max3_f32 v30, v{S[0]+r}, v{S[0]+r+1}, v30")
        A(f"v_max3_f32 v31, v{S[0]+16+r}, v{S[0]+16+r+1}, v31")
    A(f"s_add_u32 s32, s32, {SL}")
    A(f"s_cmp_lt_u32 s32, {64*SL}")
    A(f"s_cbranch_scc1 {L_p1}")
    A("v_mov_b32 v28, v30")
    A("v_mov_b32 v29, v31")
    A("s_nop 1")
    A("v_permlane32_swap_b32 v30, v28")
    A("v_permlane32_swap_b32 v31, v29")
    A("s_nop 1")
    A("v_max_f32 v30, v30, v28")
    A("v_max_f32 v31, v31, v29")
    for r in range(32):
        A(f"v_mov_b32 v{O[0]+r}, 0")
    A("s_mov_b32 s32, 0")
    A(f"{L_p2}:")
    fb_s()
    A(f"s_add_u32 s32, s32, {SL}")
    A(f"s_cmp_lt_u32 s32, {64*SL}")
    A("s_cselect_b32 s33, s32, 0")
    A(f"buffer_load_dwordx4 {vr(V0[0],4)}, v23, s[8:11], s33 offen offset:{OFF_V0} sc1")
    A(f"buffer_load_dwordx4 {vr(V1[0],4)}, v23, s[8:11], s33 offen offset:{OFF_V1} sc1")
    fb_qk()
    for r in range(32):
        A(f"v_sub_f32 v{S[0]+r}, v{S[0]+r}, v{30 + r // 16}")
    for r in range(32):
        A(f"v_exp_f32 v{S[0]+r}, v{S[0]+r}")
    A("s_nop 2")
    pv(0, 0, 0, 0); pv(0, 1, 0, 0); pv(0, 0, 1, 0); pv(0, 1, 1, 0)
    A(f"s_cmp_lt_u32 s32, {64*SL}")
    A(f"s_cbranch_scc1 {L_p2}")
    A("s_nop 15")
    A(f"v_rcp_f32 v28, v{O[0]+8}")
    A("s_nop 0")
    A("v_mov_b32 v29, v28")
    A("s_nop 1")
    A("v_permlane32_swap_b32 v28, v29")
    A("s_nop 1")
    A(f"s_branch {L_norm}")

    def early_setup():
        common_setup()
        oproj_addr()
        o_addr()
        for i in range(4):
            A(f"v_mov_b32 v{176+i}, -1")
        A(f"v_mov_b32 v173, {FCNT}")
        A("v_mov_b32 v6, 0")
        A("v_mov_b32 v7, 0")
        A("v_lshlrev_b32 v10, 3, v1")
        A("v_mul_u32_u24 v11, 3072, v1")
        A("v_cmp_gt_u32 vcc, 40, v1")
        A("v_mov_b32 v4, 0x40000000")
        A("v_cndmask_b32 v4, v4, v10, vcc")
        A("v_mov_b32 v175, 1")
        A("v_lshlrev_b32 v9, 1, v1")
        for j in range(12):
            A(f"v_mov_b32 v{12+j}, 0")
        A("v_and_b32 v8, 7, v1")
        A("v_lshlrev_b32 v8, 2, v8")
        A(f"v_add_u32 v8, {FB}, v8")
        A("s_lshl_b32 s32, s26, 5")
        A(f"s_add_u32 s32, s32, {FB}")
        A("v_lshl_add_u32 v25, v3, 3, s32")
        A("v_lshlrev_b32 v26, 1, v4")

    A(".MARK_H_BEGIN")
    A(f"{L_help}:")
    A("s_mov_b32 s72, 1")
    A("s_sub_u32 s26, s29, 4")
    A("v_lshrrev_b32 v6, 3, v1")
    A("v_and_b32 v7, 7, v1")
    A("v_lshrrev_b32 v8, 1, v6")
    A("v_xor_b32 v7, v7, v8")
    A("v_mul_u32_u24 v6, 1280, v6")
    A("v_lshl_add_u32 v181, v7, 4, v6")
    A("v_xor_b32 v182, 64, v181")
    A("v_add_u32 v182, 9216, v182")
    A("v_mul_u32_u24 v2, 26, v1")
    A("v_lshrrev_b32 v2, 8, v2")
    A("v_mul_u32_u24 v3, 10, v2")
    A("v_sub_u32 v3, v1, v3")
    A("v_mul_u32_u24 v2, 1280, v2")
    A("v_lshl_add_u32 v172, v3, 4, v2")
    A("v_add_u32 v183, 17920, v172")
    A("s_mul_i32 s63, s30, 81920")
    A("s_mul_i32 s32, s26, 20480")
    A("s_add_u32 s63, s63, s32")
    A("s_lshl_b32 s64, s26, 11")
    A("s_lshr_b32 s32, s26, 1")
    A("s_xor_b32 s32, s32, s26")
    A("s_mul_i32 s61, s32, 5120")
    A("s_mul_i32 s33, s31, 160")
    A("s_add_u32 s61, s61, s33")
    A("s_mul_i32 s62, s26, 640")
    A(f"s_add_u32 s62, s62, {WR}")
    A("s_mov_b32 s66, -1")
    A("s_movk_i32 s67, 0xff")
    A(f"s_mov_b32 s14, {X_BYTES}")
    A("s_mov_b32 s15, 0x00020000")
    A(f"s_mov_b32 s18, {W_BYTES}")
    A("s_mov_b32 s19, 0x00020000")
    A("s_mov_b32 s23, 0x00020000")
    A("s_lshl_b32 s35, s26, 10")
    A("s_mov_b32 s65, s25")
    A("s_lshl_b32 s32, s26, 3")
    A("s_or_b32 s32, s32, s3")
    A("s_cmp_lt_u32 s32, 2")
    A(f"s_cselect_b32 s69, {SIG + DN + 1}, 99")
    A("s_waitcnt lgkmcnt(0)")
    hst(A, 1)
    A("s_mov_b32 s12, s36")
    A("s_and_b32 s13, s37, 0xffff")
    A("s_mov_b32 s16, s38")
    A("s_and_b32 s17, s39, 0xffff")
    def xpiece():
        A("s_lshl_b32 s32, s65, 7")
        A("s_mov_b32 m0, s64")
        A("s_add_u32 s32, s32, s63")
        A("s_add_u32 s64, s64, 8192")
        A("buffer_load_dwordx4 v181, s[12:15], s32 offen lds")
        A("buffer_load_dwordx4 v182, s[12:15], s32 offen offset:1024 lds")
        A("s_add_u32 s65, s65, 1")
        A("s_cmp_eq_u32 s65, 10")
        A("s_cselect_b32 s65, 0, s65")
    def wchunk():
        A("s_mul_i32 s33, s25, 81920")
        A("s_mov_b32 m0, s62")
        A("s_add_u32 s33, s33, s61")
        A("s_mov_b64 exec, s[66:67]")
        A("buffer_load_dwordx4 v172, s[16:19], s33 offen lds")
        A("buffer_load_dwordx4 v183, s[16:19], s33 offen offset:2560 lds")
        A("s_add_u32 m0, s62, 5120")
        A("s_add_u32 s33, s33, 40960")
        A("buffer_load_dwordx4 v172, s[16:19], s33 offen lds")
        A("buffer_load_dwordx4 v183, s[16:19], s33 offen offset:2560 lds")
        A("s_mov_b64 exec, -1")
        A("s_add_u32 s62, s62, 10240")
        A(f"s_cmp_ge_u32 s62, {WR + NS*10240}")
        A(f"s_cselect_b32 s32, {NS*10240}, 0")
        A("s_sub_u32 s62, s62, s32")
        A("s_add_u32 s25, s25, 1")
        A("s_cmp_eq_u32 s25, 10")
        A("s_cselect_b32 s25, 0, s25")
    L_prod, L_p1d, L_nv2 = A.label("prod"), A.label("p1d"), A.label("nv2")
    A("s_cmp_lt_u32 s3, 2")
    A(f"s_cbranch_scc1 {L_prod}")
    A("s_cmp_lg_u32 s3, 2")
    A(f"s_cbranch_scc1 {L_nv2}")
    A("s_bitcmp1_b32 s26, 0")
    A("s_cselect_b32 s20, s4, s44")
    A("s_cselect_b32 s21, s5, s45")
    A("s_and_b32 s21, s21, 0xffff")
    A("s_movk_i32 s22, 1280")
    A("s_lshr_b32 s32, s26, 1")
    A("s_mul_i32 s32, s32, 640")
    A("s_and_b32 s33, s26, 1")
    A("s_mul_i32 s33, s33, 1280")
    A("s_add_u32 s33, s33, s32")
    A(f"s_add_u32 m0, s33, {VR}")
    A("s_mov_b64 exec, s[66:67]")
    A(f"buffer_load_dwordx4 v5, s[20:23], s32 offen lds")
    A("s_mov_b64 exec, -1")
    A(f"{L_nv2}:")
    L_l, L_x = A.label("l"), A.label("x")
    A(f"{L_x}:")
    xpiece()
    A("s_cmp_lg_u32 s65, s25")
    A(f"s_cbranch_scc1 {L_x}")
    early_setup()
    A("s_mov_b32 s46, 0")
    A("s_mov_b32 s34, 1")
    A(f"{L_l}:")
    wchunk()
    A("s_add_u32 s46, s46, 1")
    A(f"s_cmp_le_u32 s46, {DN}")
    A(f"s_cbranch_scc1 {L_l}")
    chks = []
    def chk():
        L, Lr = A.label("chk"), A.label("chkr")
        chks.append((L, Lr))
        A("s_cmp_eq_u32 s34, 63")
        A(f"s_cbranch_scc1 {L}")
        A(f"{Lr}:")
    L_ns, L_lw = A.label("ns"), A.label("lw")
    A(f"{L_lw}:")
    chk()
    A(f"s_waitcnt vmcnt({4*DN})")
    chk()
    A("s_barrier")
    chk()
    L_sgn = A.label("sgn")
    A("s_cmp_eq_u32 s46, s69")
    A(f"s_cbranch_scc1 {L_sgn}")
    A(f"{L_ns}:")
    A("s_cmp_lt_u32 s46, 10")
    A(f"s_cbranch_scc1 {L_l}")
    for d in range(DN - 1, -1, -1):
        A(f"s_waitcnt vmcnt({4*d})" + (" lgkmcnt(0)" if d == 0 else ""))
        chk()
        A("s_barrier")
    A(f"s_branch {L_p1d}")
    A(f"{L_sgn}:")
    A("s_atomic_add s34, s[48:49], 0x0 glc")
    A(f"s_branch {L_ns}")
    for L, Lr in chks:
        A(f"{L}:")
        A("s_mov_b32 s34, 1")
        A("s_atomic_add s34, s[48:49], 0x80")
        A(f"s_branch {Lr}")
    A(f"{L_prod}:")
    A("s_cmp_eq_u32 s3, 0")
    A("s_cselect_b32 s20, s40, s42")
    A("s_cselect_b32 s21, s41, s43")
    A("s_and_b32 s21, s21, 0xffff")
    A("s_movk_i32 s22, 25600")
    A("s_mul_i32 s35, s26, 640")
    A(f"s_add_u32 s68, s35, {ER}")
    A("s_mov_b32 s46, 0")
    L_a, L_w = A.label("a"), A.label("w")
    A(f"{L_a}:")
    A("s_mul_i32 s34, s65, 2560")
    A("s_mov_b32 m0, s68")
    A("s_add_u32 s34, s34, s35")
    A("s_mov_b64 exec, s[66:67]")
    A("buffer_load_dwordx4 v5, s[20:23], s34 offen lds")
    A("buffer_load_dwordx4 v5, s[20:23], s34 offen offset:2560 lds")
    A("s_mov_b64 exec, -1")
    A("s_add_u32 s68, s68, 5120")
    xpiece(); xpiece()
    A("s_add_u32 s46, s46, 1")
    A("s_cmp_le_u32 s46, 2")
    A(f"s_cbranch_scc1 {L_a}")
    A("s_waitcnt vmcnt(12)")
    A("s_barrier")
    A("s_cmp_lt_u32 s46, 5")
    A(f"s_cbranch_scc1 {L_a}")
    A("s_mov_b32 s46, 0")
    wchunk()
    A("s_waitcnt vmcnt(10)")
    A("s_barrier")
    wchunk()
    A("s_waitcnt vmcnt(8)")
    A("s_barrier")
    hst(A, 2)
    wchunk()
    A("s_barrier")
    hst(A, 3)
    wchunk()
    early_setup()
    A("s_mov_b32 s46, 4")
    A("s_mov_b32 s34, 1")
    A(f"s_branch {L_lw}")
    A(f"{L_p1d}:")
    A("s_branch L_HELP2")
    A(".MARK_H_END")
    A("L_HELP2:")
    A(f"s_load_dwordx2 s[38:39], s[0:1], {KA_WO}")
    A(f"s_load_dwordx4 s[40:43], s[0:1], {KA_WG}")
    A(f"s_load_dwordx2 s[44:45], s[0:1], {KA_WD}")
    common_setup2()
    A("v_lshlrev_b32 v174, 24, v1")
    if not X.direct: A("buffer_load_dword v29, v174, s[76:79], 0 offen offset:128 sc1")
    A("s_mov_b32 s4, s36")
    A("s_mov_b32 s5, s37")
    A("s_lshl_b32 s32, s26, 10")
    A("s_mov_b32 m0, s32")
    A("s_add_u32 s53, s32, s24")
    A("s_barrier")
    A("s_barrier")
    hst(A, 8)
    A("s_mul_i32 s64, s26, 5120")
    A("s_add_u32 s64, s64, s54")
    A("s_mul_i32 s32, s73, 51200")
    A("s_add_u32 s64, s64, s32")
    A(f"s_mov_b32 s69, {320*1280}")
    A("s_mul_i32 s65, s26, 640")
    A("s_waitcnt lgkmcnt(0)")
    srd(A, 60, 38, W_BYTES)
    L_g1, L_g2 = A.label("g1"), A.label("g2")
    if X.direct:
        A("s_cmp_lg_u32 s26, 0")
        A(f"s_cbranch_scc1 {L_g1}")
        await_cnt(A, 28, X.gsl)
    else:
        A("s_waitcnt vmcnt(0)")
        A("v_readfirstlane_b32 s32, v29")
        A("s_or_b32 s32, s32, s26")
        A("s_cmp_lg_u32 s32, 0")
        A(f"s_cbranch_scc1 {L_g1}")
        await_go(A, 0, 28, X.gsl)
    A(f"{L_g1}:")
    hst(A, 9)
    A("s_barrier")
    if not X.pdiag: stamp(A, 1)
    def dma(n):
        L = A.label("dma")
        A(f"s_add_u32 s34, m0, {n*4096}")
        A(f"{L}:")
        A("buffer_load_dwordx4 v5, s[8:11], s53 offen sc1 lds")
        A("s_add_u32 m0, m0, 4096")
        A("s_add_u32 s53, s53, 4096")
        A(f"s_cmp_ge_u32 s53, {64*SL}")
        A(f"s_cselect_b32 s32, {64*SL}, 0")
        A("s_sub_u32 s53, s53, s32")
        A("s_cmp_lt_u32 m0, s34")
        A(f"s_cbranch_scc1 {L}")
    def need(tiles):
        return min(40, -(-(-(-tiles*SL // 1024)) // 4))
    n0, n1 = need(U_TILES), need(U_TILES * 2)
    nb = X.nb0
    dma(nb)
    A(f"s_waitcnt vmcnt({nb - n0})")
    A("s_barrier")
    L_b2, L_b3, L_b4 = A.label("b2"), A.label("b3"), A.label("b4")
    A("s_lshl_b32 s32, s26, 3")
    A("s_or_b32 s32, s32, s3")
    A("s_mov_b32 s35, 1")
    A("s_cmp_lg_u32 s32, 2")
    A(f"s_cbranch_scc1 {L_b3}")
    A("s_atomic_add s35, s[48:49], 0x4 glc")
    A(f"{L_b3}:")
    A("ds_write_b64 v173, v[6:7]")
    A("ds_write_b64 v173, v[6:7] offset:8")
    A("ds_write_b32 v173, v6 offset:16")
    dma(40 - nb - 1)
    A("s_cmp_eq_u32 s26, 3")
    A("s_cselect_b32 s32, 0x3fffffff, -1")
    A("s_cselect_b32 s33, 0, -1")
    A("s_mov_b64 exec, s[32:33]")
    A("buffer_load_dwordx4 v5, s[8:11], s53 offen sc1 lds")
    A("s_mov_b64 exec, -1")
    A(f"s_waitcnt vmcnt({40 - n1}) lgkmcnt(0)")
    A("s_cmp_lg_u32 s35, 31")
    A(f"s_cbranch_scc1 {L_b4}")
    A("s_atomic_add s35, s[48:49], 0x84")
    A(f"{L_b4}:")
    A("s_barrier")
    A(f"buffer_store_dwordx4 v[176:179], v{POA}, s[8:11], s74 offen sc1")
    A(f"buffer_store_dwordx2 v[176:177], v{POB}, s[8:11], s75 offen sc1")
    A(f"buffer_store_dwordx4 v[176:179], v{POA}, s[8:11], s58 offen sc1")
    A(f"buffer_store_dwordx2 v[176:177], v{POB}, s[8:11], s59 offen sc1")
    if not X.pdiag: stamp(A, 2)
    def lds_wait(off, thr, slp=2):
        Lp = A.label("lw")
        A(f"{Lp}:")
        A(f"ds_read_b32 v171, v173 offset:{off}")
        A("s_waitcnt lgkmcnt(0)")
        A("v_readfirstlane_b32 s32, v171")
        A(f"s_sleep {slp}")
        A(f"s_cmp_lt_u32 s32, {thr}")
        A(f"s_cbranch_scc1 {Lp}")
    def wo_part(thr):
        Lw = A.label("wl")
        Lp = A.label("pw")
        A(f"{Lp}:")
        A("ds_read_b32 v171, v173 offset:4")
        A("s_waitcnt lgkmcnt(0)")
        A("v_readfirstlane_b32 s32, v171")
        A(f"s_sleep {X.slp}")
        A(f"s_add_u32 s32, s32, {0x7e7e7e7e if thr == 256 else 0x7d7d7d7d:#x}")
        A("s_andn2_b32 s32, 0x80808080, s32")
        A(f"s_cbranch_scc1 {Lp}")
        if X.nowo: return
        A(f"s_add_u32 s34, s65, 51200")
        A("s_mov_b64 exec, s[66:67]")
        A(f"{Lw}:")
        A("s_mov_b32 m0, s65")
        A("s_add_u32 s32, s64, s69")
        A("buffer_load_dwordx4 v172, s[60:63], s32 offen lds")
        A("s_add_u32 s65, s65, 2560")
        A("s_add_u32 s64, s64, 20480")
        A("s_cmp_ge_u32 s64, 409600")
        A("s_cselect_b32 s32, 409600, 0")
        A("s_sub_u32 s64, s64, s32")
        A("s_cmp_lt_u32 s65, s34")
        A(f"s_cbranch_scc1 {Lw}")
        A("s_mov_b64 exec, -1")
    A("buffer_load_dword v28, v174, s[76:79], 0 offen offset:132 sc1")
    A("s_waitcnt vmcnt(0)")
    A("ds_add_u32 v173, v175 offset:16")
    A("v_readfirstlane_b32 s32, v28")
    A("s_cmp_lg_u32 s32, 0")
    A(f"s_cbranch_scc1 {L_b2}")
    await_go(A, 4, 28, 8)
    A(f"{L_b2}:")
    A(f"s_mov_b32 s32, {WS_RKEY}")
    A("buffer_load_dwordx2 v[6:7], v10, s[8:11], s32 offen sc1")
    A("s_lshl_b32 s35, s30, 7")
    A(f"s_add_u32 s35, s35, {WS_GC}")
    A("buffer_atomic_add v175, v174, s[8:11], s35 offen sc1")
    def getidx():
        A("s_setprio 2")
        wave_max_u32(A, 6, 7, 56)
        A("s_setprio 0")
        A("s_and_b32 s56, s56, 2047")
        A("s_sub_u32 s25, 2047, s56")
    L_w1, L_w2 = A.label("w1"), A.label("w2")
    A("s_mul_i32 s47, s30, 6")
    A("s_add_u32 s47, s47, s3")
    A("s_sub_u32 s47, s47, 2")
    A(f"s_cmp_lt_u32 s3, {99 if X.noffn else 2}")
    A(f"s_cbranch_scc1 {L_w1}")
    A("s_cmp_ge_u32 s26, 2")
    A("s_cselect_b32 s16, s42, s40")
    A("s_cselect_b32 s17, s43, s41")
    A("s_and_b32 s17, s17, 0xffff")
    A(f"s_mov_b32 s18, {F_BYTES}")
    srd(A, 20, 44, F_BYTES)
    A("s_and_b32 s46, s26, 1")
    W_, WD_, XL, AC = 32, 56, 72, 12
    A(f"s_mul_i32 s32, s46, {320*3072}")
    A("s_lshl_b32 s33, s47, 4")
    A("s_add_u32 s32, s32, s33")
    for i in range(5):
        A(f"buffer_load_dwordx4 {vr(W_+4*i,4)}, v11, s[16:19], s32 offen")
        if i < 4: A(f"s_add_u32 s32, s32, {64*3072}")
    A("s_waitcnt vmcnt(5)")
    getidx()
    A("s_mul_i32 s32, s25, 1280")
    A("s_mul_i32 s33, s46, 640")
    A("s_add_u32 s32, s32, s33")
    for i in range(5):
        A(f"buffer_load_ushort v{XL+i}, v9, s[12:15], s32 offen offset:{i*128}")
    A("s_mul_i32 s32, s47, 10240")
    A("s_mul_i32 s33, s26, 320")
    A("s_add_u32 s32, s32, s33")
    for f in range(8):
        if f % 3 == 0 and f: A(f"s_add_u32 s32, s32, {3*1280}")
        A(f"buffer_load_dwordx2 {vr(WD_+2*f,2)}, v4, s[20:23], s32 offen offset:{(f%3)*1280}")
    A("s_waitcnt vmcnt(8)")
    if not X.pdiag: stamp(A, 3)
    A("s_setprio 2")
    for i in range(5):
        A(f"v_lshlrev_b32 v{XL+5}, 16, v{XL+i}")
        for dw in range(4):
            A(f"v_dot2c_f32_bf16 v{AC+2*dw}, v{W_+4*i+dw}, v{XL+i}")
            A(f"v_dot2c_f32_bf16 v{AC+2*dw+1}, v{W_+4*i+dw}, v{XL+5}")
    A("s_nop 3")
    for j in range(4):
        A(f"v_permlane32_swap_b32 v{AC+j}, v{AC+j+4}")
    A("s_nop 1")
    for j in range(4):
        A(f"v_add_f32 v{AC+j}, v{AC+j}, v{AC+j+4}")
    A("s_nop 1")
    for j in range(2):
        A(f"v_permlane16_swap_b32 v{AC+j}, v{AC+j+2}")
    A("s_nop 1")
    for j in range(2):
        A(f"v_add_f32 v{AC+j}, v{AC+j}, v{AC+j+2}")
    for sh in (8, 4, 2, 1):
        A("s_nop 1")
        for j in range(2):
            A(f"v_add_f32_dpp v{AC+j}, v{AC+j}, v{AC+j} row_ror:{sh} row_mask:0xf bank_mask:0xf")
    A(f"ds_write_b64 v25, {vr(AC,2)}")
    A("s_setprio 0")
    A("s_waitcnt lgkmcnt(0)")
    A("ds_add_u32 v173, v175")
    wo_part(256)
    lds_wait(0, 256)
    A("s_setprio 2")
    A("ds_read2_b32 v[12:13], v8 offset0:0 offset1:8")
    A("ds_read2_b32 v[14:15], v8 offset0:16 offset1:24")
    A("s_waitcnt lgkmcnt(0)")
    A("v_add_f32 v12, v12, v13")
    A("v_add_f32 v14, v14, v15")
    bf16r(A, 12, 12)
    sigmoid(A, 16, 12, 17)
    A("v_mul_f32 v12, v12, v16")
    bf16r(A, 12, 12)
    bf16r(A, 14, 14)
    A("v_mul_f32 v12, v12, v14")
    bf16r(A, 12, 12)
    Y = 20
    A("s_nop 0")
    def hs(f):
        hi = 13+2*f if f < 4 else 29+2*f
        return hi - 1, hi
    for f in range(8):
        A(f"v_readlane_b32 s{hs(f)[1]}, v12, {f}")
    for f in range(8):
        lo, hi = hs(f)
        A(f"s_lshr_b32 s{lo}, s{hi}, 16")
    A("s_waitcnt vmcnt(20)")
    for f in range(8):
        lo, hi = hs(f)
        for j in range(2):
            A(f"v_dot2c_f32_bf16 v{Y+2*j}, s{lo}, v{WD_+2*f+j}")
            A(f"v_dot2c_f32_bf16 v{Y+2*j+1}, s{hi}, v{WD_+2*f+j}")
    A("s_and_b32 s47, s47, 15")
    A("s_mul_i32 s32, s47, 2560")
    A("s_mul_i32 s33, s26, 640")
    A("s_add_u32 s32, s32, s33")
    A(f"s_add_u32 s32, s32, {WS_Y}")
    A("s_setprio 0")
    A("s_nop 2")
    for j in range(4):
        A(f"buffer_atomic_add_f32 v{Y+j}, v26, s[8:11], s32 offen offset:{j*4}")
    A("s_lshl_b32 s32, s47, 7")
    A(f"s_add_u32 s32, s32, {WS_FC}")
    A("s_waitcnt vmcnt(0)")
    A("buffer_atomic_add v175, v174, s[8:11], s32 offen sc1")
    A(f"s_branch {L_w2}")
    A(f"{L_w1}:")
    A("s_waitcnt vmcnt(0)")
    getidx()
    wo_part(256)
    A("s_waitcnt vmcnt(0)")
    A(f"{L_w2}:")
    if not X.pdiag: stamp(A, 4)
    A("ds_add_u32 v173, v175 offset:8")
    oproj_saddr()
    lds_wait(8, 256)
    A(f"s_branch {L_op}")
    A(f"{L_h2}:")
    if not X.pdiag: stamp(A, 5)
    A("v_mov_b32 v171, s25")
    A("ds_write_b32 v173, v171 offset:12")
    if X.pfT:
        A("s_cmp_lg_u32 s26, 2")
        A("s_cbranch_scc1 PFRET_T")
        A("s_mov_b64 exec, 0")
        A("s_branch PF_T_0")
        A("PFRET_T:")
        A("s_mov_b64 exec, -1")
    L_ny, L_sp2, L_sg, L_ng, L_gp = A.label("ny"), A.label("sp2"), A.label("sg"), A.label("ng"), A.label("gp")
    A("s_mov_b32 s69, 0")
    wo_part(512)
    A("s_waitcnt vmcnt(20)")
    if X.gprio: A("s_setprio 2")
    gate_math()
    A("s_setprio 0")
    A("s_cmp_lg_u32 s26, 1")
    A(f"s_cbranch_scc1 {L_ng}")
    A(f"{L_gp}:")
    A("buffer_load_dword v171, v174, s[8:11], s35 offen sc1")
    A("s_waitcnt vmcnt(0)")
    A("v_readfirstlane_b32 s32, v171")
    A("s_sub_u32 s46, s46, 1")
    A(f"s_cbranch_scc1 {L_ng}")
    A("s_cmp_lt_u32 s32, 32")
    A(f"s_cbranch_scc1 {L_gp}")
    A(f"{L_ng}:")
    A("s_lshr_b32 s32, s25, 6")
    A("s_lshl_b32 s33, s26, 8")
    A("s_or_b32 s33, s33, s30")
    A("s_cmp_lg_u32 s32, s33")
    A(f"s_cbranch_scc1 {L_ny}")
    A("v_lshlrev_b32 v6, 7, v2")
    A(f"s_mov_b32 s33, {WS_FC}")
    A(f"{L_sp2}:")
    A("buffer_load_dword v171, v6, s[8:11], s33 offen sc1")
    A("s_waitcnt vmcnt(0)")
    A(f"v_cmp_ne_u32 vcc, {0 if X.noffn else 48}, v171")
    A("s_sub_u32 s46, s46, 1")
    A(f"s_cbranch_scc1 {L_sg}")
    A("s_sleep 8")
    A(f"s_cbranch_vccnz {L_sp2}")
    A(f"{L_sg}:")
    A("s_setprio 2")
    Yv = OF
    A("v_mul_u32_u24 v6, 2560, v2")
    A("v_lshl_add_u32 v6, v3, 4, v6")
    A("s_lshl_b32 s32, s54, 1")
    A(f"s_add_u32 s32, s32, {WS_Y}")
    for mt in range(5):
        A(f"buffer_load_dwordx4 {vr(Yv+4*mt,4)}, v6, s[8:11], s32 offen offset:{mt*64} sc1")
    A("s_lshl_b32 s32, s25, 2")
    A(f"s_add_u32 s32, s32, {WS_R}")
    A("v_mov_b32 v6, 0")
    A("buffer_load_dword v171, v6, s[8:11], s32 offen sc1")
    A("s_waitcnt vmcnt(0)")
    for sh in (8, 4, 2, 1):
        A("s_nop 1")
        for j in range(20):
            A(f"v_add_f32_dpp v{Yv+j}, v{Yv+j}, v{Yv+j} row_ror:{sh} row_mask:0xf bank_mask:0xf")
    bf16r(A, 171, 171)
    sigmoid(A, 171, 171, 6)
    bf16r(A, 171, 171)
    for j in range(20):
        bf16r(A, Yv+j, Yv+j)
        A(f"v_mul_f32 v{Yv+j}, v{Yv+j}, v171")
        bf16r(A, Yv+j, Yv+j)
    A("v_lshlrev_b32 v6, 4, v3")
    A(f"v_add_u32 v6, {YB}, v6")
    for mt in range(5):
        A(f"ds_write_b128 v6, {vr(Yv+4*mt,4)} offset:{mt*64}")
    A("s_setprio 0")
    A(f"{L_ny}:")
    A(f"s_mov_b32 s46, {SPIN}")
    A("s_waitcnt vmcnt(0) lgkmcnt(0)")
    if not X.pdiag: stamp(A, 6)
    A("s_barrier")
    if not X.pdiag: stamp(A, 7)
    if X.tprio: A("s_setprio 2")
    A(f"s_branch {L_h3}")

def build(path):
    A = Asm()
    fused(A)
    A("L_CODE_END:")
    L = A.lines
    hb, he = L.index(".MARK_H_BEGIN"), L.index(".MARK_H_END")
    if X.first:
        e = L.index(".MARK_ENTRY_END")
        L = L[:e] + L[hb+1:he] + L[e+1:hb] + L[he+1:]
    else:
        L = [l for l in L if not l.startswith(".MARK")]
    out = []
    for i, l in enumerate(L):
        t = l.strip()
        if t.startswith("v_cndmask") and t.endswith("vcc"):
            p1 = out[-1].strip(); p2 = out[-2].strip()
            if p1.startswith("v_cmp") and " vcc," in p1: out.append("    s_nop 1")
            elif p2.startswith("v_cmp") and " vcc," in p2 and not p1.startswith("s_nop"): out.append("    s_nop 0")
        out.append(l)
    A.lines = out
    hdr = open("gated_mix__grouped_kv_mqa__moe_arch_mod__prompt.s.ref").read().split("; @launch")[0]
    out = hdr + "; @launch grid=(256,1,1) block=(512,1,1) lds=163840\n" + '.amdgcn_target "amdgcn-amd-amdhsa--gfx950"\n.text\n' + A.text() + '.section .rodata,"a"\n'
    out += kernel_desc(NAME, 256, 256)
    open(path, "w").write(out)

if __name__ == "__main__":
    build("t44.s")
    Cfg.on = True
    build("t44s.s")
    Cfg.rt = True
    build("t44r.s")
    X.tdiag = True
    build("t44t.s")
```

```python
import math, sys
from asmlib import *
from stamp8 import *

NAME = "gated_mix__grouped_kv_mqa__moe_arch_mod__prompt_kernel"
KA_X, KA_WQ, KA_WK, KA_WV, KA_WO, KA_BX, KA_WR, KA_WG, KA_WU, KA_WD, KA_GW, KA_OUT, KA_DBG, KA_WS = [8*i for i in range(14)]
SL = 2592
WS_KV0 = 0x0
WS_KMAX = 0x60000
WS_RKEY = 0x60200
WS_R = 0x61000
WS_G = 0x63000
WS_Y = 0x68000
WS_GC = 0x74000
WS_FC = 0x76000
WS_O = 0x100000
WS_SIZE = 0x1000000
X_BYTES = 2048*640*2
W_BYTES = 640*640*2
F_BYTES = 640*1536*2
QSCALE = (20 ** -0.5) * math.log2(math.e)
LOG2E = math.log2(math.e)
LTHR = f32bits(2.0 ** -30)
OFF_A2, OFF_V0, OFF_V1 = 1024, 1280, 1936
FB = 63*SL
FCNT = FB + 128
YB = FB + 160
XB = 102400
SPIN = 100000
WR = 81920
ER = WR + 5*10240
QX = WR + 7*10240
VR = QX
NS = 7
SIG = 1
DN = 3
PERM = sum(p << (4*i) for i, p in enumerate([0, 4, 5, 9, 3, 7, 2, 6]))
U_TILES = 8
class X:
    noffn = False; st = 0; hprio = 2; cprio = 0; nowo = False; slp = 20; pdiag = False; pfT = False; pfQ = False; tdiag = False; hsl = 0; rothg = False; gprio = True; tprio = True; pad = 0; pre = 0; ost = ''; gsl = 1; l2pf = True; first = True; nb0 = 8; itst = False; al = None; direct = False

def bf16r(A, d, s):
    A(f"v_cvt_pk_bf16_f32 v{d}, v{s}, v{s}")
    A(f"v_and_b32 v{d}, 0xffff0000, v{d}")
def sigmoid(A, d, s, t):
    A(f"v_mul_f32 v{t}, {f32bits(-LOG2E):#x}, v{s}")
    A(f"v_exp_f32 v{t}, v{t}")
    A("s_nop 0")
    A(f"v_add_f32 v{t}, 1.0, v{t}")
    A(f"v_rcp_f32 v{d}, v{t}")
    A("s_nop 0")
def row_max_u32(A, v):
    for sh in (8, 4, 2, 1):
        A("s_nop 1")
        A(f"v_max_u32_dpp v{v}, v{v}, v{v} row_ror:{sh} row_mask:0xf bank_mask:0xf")
def wave_max_u32(A, v, v2, st):
    A(f"v_max_u32 v{v}, v{v}, v{v2}")
    row_max_u32(A, v)
    A("s_nop 1")
    for i in range(4):
        A(f"v_readlane_b32 s{st+i}, v{v}, {16*i}")
    A(f"s_max_u32 s{st}, s{st}, s{st+1}")
    A(f"s_max_u32 s{st+2}, s{st+2}, s{st+3}")
    A(f"s_max_u32 s{st}, s{st}, s{st+2}")

def arrive(A, cnt_off, total, vt):
    L = A.label("arr")
    A(f"v_mov_b32 v{vt}, 1")
    A(f"v_lshlrev_b32 v{vt+1}, 24, v1")
    A(f"buffer_atomic_add v{vt}, v{vt+1}, s[76:79], 0 offen offset:{cnt_off} sc0 sc1")
    A("s_waitcnt vmcnt(0)")
    A(f"v_readfirstlane_b32 s32, v{vt}")
    A(f"v_mov_b32 v{vt}, 1")
    A(f"s_cmp_lg_u32 s32, {total-1}")
    A(f"s_cbranch_scc1 {L}")
    A(f"buffer_store_dword v{vt}, v{vt+1}, s[76:79], 0 offen offset:{128+cnt_off} sc1")
    A(f"{L}:")
def await_cnt(A, vt, slp):
    L, Ld = A.label("aw"), A.label("awd")
    A(f"v_lshlrev_b32 v{vt+1}, 24, v1")
    A(f"s_mov_b32 s33, {SPIN}")
    A(f"{L}:")
    A(f"buffer_load_dword v{vt}, v{vt+1}, s[76:79], 0 offen sc1")
    A("s_waitcnt vmcnt(0)")
    A(f"v_readfirstlane_b32 s32, v{vt}")
    A("s_sub_u32 s33, s33, 1")
    A(f"s_cbranch_scc1 {Ld}")
    A("s_cmp_ge_u32 s32, 64")
    A(f"s_cbranch_scc1 {Ld}")
    A(f"s_sleep {slp}")
    A(f"s_branch {L}")
    A(f"{Ld}:")
def await_go(A, cnt_off, vt, slp):
    L, Ld = A.label("aw"), A.label("awd")
    A(f"v_lshlrev_b32 v{vt+1}, 24, v1")
    A(f"s_mov_b32 s33, {SPIN}")
    A(f"{L}:")
    A(f"buffer_load_dword v{vt}, v{vt+1}, s[76:79], 0 offen offset:{128+cnt_off} sc1")
    A("s_waitcnt vmcnt(0)")
    A(f"v_readfirstlane_b32 s32, v{vt}")
    A("s_sub_u32 s33, s33, 1")
    A(f"s_cbranch_scc1 {Ld}")
    A("s_cmp_lg_u32 s32, 0")
    A(f"s_cbranch_scc1 {Ld}")
    A(f"s_sleep {slp}")
    A(f"s_branch {L}")
    A(f"{Ld}:")

def hst(A, i):
    if X.pdiag: stamp(A, i)
def fused(A):
    kernel_begin(A, NAME)
    L_exit, L_help, L_op = A.label("exit"), A.label("help"), A.label("oproj")
    A("s_cmp_ge_u32 s2, 256")
    A(f"s_cbranch_scc1 {L_exit}")
    stamp_rt(A, 0)
    for i in range(X.pre): A("s_sleep 64")
    A(f"s_load_dwordx4 s[36:39], s[0:1], {KA_X}")
    A(f"s_load_dwordx4 s[40:43], s[0:1], {KA_WK}")
    A(f"s_load_dwordx4 s[48:51], s[0:1], {KA_DBG}")
    A(f"s_load_dwordx2 s[44:45], s[0:1], {KA_WR}")
    A(f"s_load_dwordx4 s[4:7], s[0:1], {KA_GW}")
    A("v_lshrrev_b32 v4, 6, v0")
    A("v_and_b32 v1, 63, v0")
    A("v_readfirstlane_b32 s29, v4")
    A("v_lshlrev_b32 v5, 4, v1")
    A("s_and_b32 s30, s2, 7")
    A("s_lshl_b32 s30, s30, 2")
    A("s_lshr_b32 s28, s2, 6")
    A("s_add_u32 s30, s30, s28")
    A("s_bfe_u32 s31, s2, 0x30003")
    A("s_lshl_b32 s33, s28, 1")
    A("s_sub_u32 s3, s31, s33")
    A("s_and_b32 s3, s3, 7")
    A("s_lshl_b32 s32, s3, 2")
    A(f"s_lshr_b32 s25, {PERM:#x}, s32")
    A("s_and_b32 s25, s25, 15")
    A("s_add_u32 s25, s25, s33")
    A("s_cmp_ge_u32 s25, 10")
    A("s_cselect_b32 s32, 10, 0")
    A("s_sub_u32 s25, s25, s32")
    if X.first:
        A("s_cmp_lt_u32 s29, 4")
        A("s_cbranch_scc1 L_COMPUTE")
        A(".MARK_ENTRY_END")
        A("L_COMPUTE:")
    else:
        A("s_cmp_ge_u32 s29, 4")
        A(f"s_cbranch_scc1 {L_help}")

    def common_setup():
        A("s_mov_b32 s10, 0x1000000")
        A("s_mov_b32 s11, 0x00020000")
        A("s_bfe_u32 s24, s2, 0x40003")
        A(f"s_mul_i32 s24, s24, {4*SL}")
        A("s_lshl_b32 s73, s28, 1")
        if X.rothg:
            A("s_add_u32 s73, s73, s31")
            A("s_and_b32 s73, s73, 7")
        A("s_movk_i32 s78, 256")
        A("s_mov_b32 s79, 0x00020000")
    def common_setup2():
        A("s_mov_b32 s8, s50")
        A("s_and_b32 s9, s51, 0xffff")
        A("s_mov_b32 s76, s48")
        A("s_and_b32 s77, s49, 0xffff")
    PM, PT, PX, PTK, PO0, PO1, PPR, PY, PPW, POA, POB = range(160, 171)
    def oproj_addr():
        A("v_and_b32 v2, 15, v0")
        A("v_lshrrev_b32 v3, 4, v1")
        A("s_and_b32 s27, s29, 3")
        A("s_lshr_b32 s28, s29, 2")
        A("v_add_u32 v6, s73, v3")
        A("v_and_b32 v6, 7, v6")
        A("v_lshlrev_b32 v7, 3, v2")
        A(f"v_lshl_add_u32 v{PO0}, v6, 8, v7")
        A(f"v_xor_b32 v{PO1}, 0x400, v{PO0}")
        A("v_lshrrev_b32 v7, 2, v2")
        A("v_and_b32 v8, 3, v2")
        A("v_lshrrev_b32 v9, 1, v3")
        A("v_mul_u32_u24 v9, 20, v9")
        A("v_and_b32 v6, 1, v3")
        A("v_lshl_add_u32 v9, v6, 2, v9")
        A("v_add_u32 v9, v9, v7")
        A("v_mul_u32_u24 v9, 160, v9")
        A("v_lshl_add_u32 v9, v8, 3, v9")
        A("s_xor_b32 s32, s28, 1")
        A("s_mul_i32 s32, s32, 51200")
        A(f"v_add_u32 v{PM}, s32, v9")
        A("v_mul_u32_u24 v9, 40, v3")
        A("v_add3_u32 v9, v9, v7, 16")
        A("v_mul_u32_u24 v9, 160, v9")
        A("v_lshl_add_u32 v9, v8, 3, v9")
        A(f"v_add_u32 v{PT}, s32, v9")
        A("v_mul_u32_u24 v6, 26, v1")
        A("v_lshrrev_b32 v6, 8, v6")
        A("v_mul_u32_u24 v7, 10, v6")
        A("v_sub_u32 v7, v1, v7")
        A("s_lshl_b32 s32, s30, 6")
        A("s_lshl_b32 s33, s29, 3")
        A("s_add_u32 s52, s32, s33")
        A(f"v_add_u32 v{PTK}, s52, v6")
        A(f"v_mul_u32_u24 v8, 1280, v{PTK}")
        A("v_lshl_add_u32 v8, v7, 4, v8")
        A("s_mul_i32 s54, s31, 160")
        A("v_add_u32 v8, s54, v8")
        A("v_cmp_gt_u32 vcc, 40, v1")
        A("v_mov_b32 v9, 0x40000000")
        A(f"v_cndmask_b32 v{PX}, v9, v8, vcc")
        A("v_add_u32 v6, s33, v6")
        A("v_mul_u32_u24 v6, 336, v6")
        A("v_lshl_add_u32 v6, v7, 5, v6")
        A(f"v_add_u32 v{PPR}, {XB}, v6")
        A("v_lshlrev_b32 v7, 5, v7")
        A(f"v_add_u32 v{PY}, {YB}, v7")
        A("s_lshl_b32 s32, s27, 4")
        A("v_add_u32 v6, s32, v2")
        A("v_mul_u32_u24 v6, 336, v6")
        A("v_lshl_add_u32 v6, v3, 4, v6")
        A("s_mul_i32 s32, s28, 21504")
        A(f"s_add_u32 s32, s32, {XB}")
        A(f"v_add_u32 v{PPW}, s32, v6")
    def oproj_saddr():
        A("s_lshl_b32 s33, s30, 2")
        A("s_add_u32 s33, s33, s27")
        A("s_mul_i32 s68, s33, 20480")
        A(f"s_add_u32 s68, s68, {WS_O}")
        A("s_lshl_b32 s33, s28, 11")
        A("s_add_u32 s70, s68, s33")
        A("s_add_u32 s70, s70, 16384")
        A("s_lshl_b32 s33, s28, 13")
        A("s_add_u32 s68, s68, s33")
        for p in range(8):
            A(f"s_add_u32 s32, s73, {p}")
            A("s_and_b32 s32, s32, 7")
            A(f"s_lshl_b32 s{12+p}, s32, 10")
            A(f"s_add_u32 s{12+p}, s{12+p}, s68")
        A("s_movk_i32 s55, 5120")
        A(f"s_mov_b32 s22, {X_BYTES}")
        A("s_mov_b32 s23, 0x00020000")

    def o_addr():
        A("s_lshl_b32 s47, s31, 2")
        A("s_add_u32 s47, s47, s27")
        A("v_bfe_u32 v6, v1, 4, 1")
        A("v_mul_u32_u24 v6, 20480, v6")
        A("v_lshrrev_b32 v7, 5, v1")
        A(f"v_lshl_add_u32 v{POB}, v2, 3, v6")
        A(f"v_lshl_or_b32 v{POB}, v7, 30, v{POB}")
        A("v_lshl_add_u32 v6, v2, 4, v6")
        A(f"v_lshl_add_u32 v{POA}, v7, 8, v6")
        A("s_mul_i32 s32, s30, 81920")
        A(f"s_add_u32 s32, s32, {WS_O}")
        A("s_lshl_b32 s74, s47, 9")
        A("s_add_u32 s74, s74, s32")
        A("s_lshl_b32 s75, s47, 7")
        A("s_add_u32 s75, s75, s32")
        A("s_add_u32 s75, s75, 16384")
        A("s_add_u32 s58, s74, 40960")
        A("s_add_u32 s59, s75, 40960")

    A("s_mov_b32 s72, 0")
    if X.l2pf:
        A("s_getpc_b64 s[32:33]")
        A("L_PC0:")
        A(f"s_sub_u32 s32, s32, L_PC0-{NAME}")
        A("s_subb_u32 s33, s33, 0")
        A("s_lshr_b32 s34, s2, 3")
        A("v_lshl_add_u32 v6, v0, 5, s34")
        A("v_lshlrev_b32 v6, 7, v6")
        A(f"v_min_u32 v6, L_CODE_END-{NAME}-4, v6")
        A("global_load_dword v180, v6, s[32:33]")
    common_setup()
    oproj_addr()
    oproj_saddr()
    VACC = 32; VE = 52; H = [64, 84]; XF = [104, 108]
    VB1, VB2, VXA0, VXA1 = 14, 15, 16, 17
    A("v_lshrrev_b32 v6, 2, v2")
    A("v_and_b32 v7, 3, v2")
    A("v_lshl_add_u32 v6, v3, 3, v6")
    A("v_and_b32 v8, 1, v3")
    A("v_lshlrev_b32 v8, 2, v8")
    A("v_add_u32 v9, v6, v8")
    A("v_mul_u32_u24 v9, 160, v9")
    A("v_lshl_add_u32 v9, v7, 3, v9")
    A(f"v_add_u32 v{VB1}, {WR}, v9")
    A("v_xor_b32 v8, 4, v8")
    A("v_add_u32 v9, v6, v8")
    A("v_mul_u32_u24 v9, 160, v9")
    A("v_lshl_add_u32 v9, v7, 3, v9")
    A(f"v_add_u32 v{VB2}, {WR}, v9")
    A("v_mul_u32_u24 v9, 40, v6")
    A(f"v_add_u32 v9, {ER}, v9")
    A("v_lshl_add_u32 v18, v7, 3, v9")
    A("v_add_u32 v19, 32, v9")
    A("v_lshrrev_b32 v6, 1, v2")
    A("v_xor_b32 v6, v6, v3")
    A("v_lshlrev_b32 v6, 4, v6")
    A("v_lshl_add_u32 v6, v2, 7, v6")
    A("s_lshl_b32 s32, s29, 11")
    A("v_add_u32 v10, s32, v6")
    A("v_xor_b32 v11, 64, v10")
    A(f"v_mov_b32 v{VXA0}, v10")
    A(f"v_mov_b32 v{VXA1}, v11")
    for i in range(VACC, VE + 8):
        A(f"v_mov_b32 v{i}, 0")
    A("s_lshr_b32 s32, s29, 1")
    A("s_mul_i32 s32, s32, 5120")
    A("s_and_b32 s33, s29, 1")
    A("s_lshl_b32 s33, s33, 7")
    A("s_add_u32 s32, s32, s33")
    A(f"s_add_u32 s32, s32, {QX}")
    A("v_lshlrev_b32 v6, 3, v2")
    A("v_lshl_add_u32 v6, v3, 8, v6")
    A("v_add_u32 v13, s32, v6")
    o_addr()
    A("s_waitcnt lgkmcnt(0)")
    common_setup2()
    A("s_mov_b32 s4, s36")
    A("s_mov_b32 s5, s37")
    A("v_lshlrev_b32 v24, 24, v1")
    A("s_lshl_b32 s32, s30, 6")
    A("s_lshl_b32 s33, s29, 4")
    A("s_add_u32 s50, s32, s33")
    if X.pfQ:
        A("s_cmp_lg_u32 s29, 3")
        A("s_cbranch_scc1 PFRET_Q")
        A("s_mov_b64 exec, 0")
        A("s_branch PF_Q_0")
        A("PFRET_Q:")
        A("s_mov_b64 exec, -1")
    stamp(A, 1)
    L_main, L_rg, L_ev, L_ej = A.label("main"), A.label("rg"), A.label("ev"), A.label("ej")
    A("s_cmp_gt_u32 s3, 2")
    A(f"s_cbranch_scc1 {L_main}")
    A("s_cmp_eq_u32 s3, 2")
    A(f"s_cbranch_scc1 {L_rg}")
    EW = 64; EX = 112
    A("s_mov_b32 s46, 0")
    def erd(s):
        A(f"ds_read_b128 {vr(EX+4*s,4)}, v{10 + (s & 1)} offset:{(s >> 1)*8192}")
        for t in range(2):
            slot = EW + 8*s + 4*t
            A(f"ds_read_b64_tr_b16 {vr(slot,2)}, v{18+t} offset:{s*1280}")
            A(f"ds_read_b64_tr_b16 {vr(slot+2,2)}, v{18+t} offset:{s*1280+160}")
    def eloop(swap):
        L = A.label("el")
        A(f"{L}:")
        for s in range(4):
            if s == 2:
                A("s_add_u32 s46, s46, 1")
                A("v_add_u32 v10, 16384, v10")
                A("v_add_u32 v11, 16384, v11")
                A("v_add_u32 v18, 5120, v18")
                A("v_add_u32 v19, 5120, v19")
                A("s_cmp_lt_u32 s46, 5")
                A("s_barrier")
            erd((s + 2) % 4)
            A("s_waitcnt lgkmcnt(10)")
            for t in range(2):
                w, x = vr(EW+8*s+4*t,4), vr(EX+4*s,4)
                A(f"v_mfma_f32_16x16x32_bf16 {vr(VE+4*t,4)}, {x if swap else w}, {w if swap else x}, {vr(VE+4*t,4)}")
        A(f"s_cbranch_scc1 {L}")
    A("s_barrier")
    erd(0); erd(1)
    A("s_cmp_eq_u32 s3, 1")
    A(f"s_cbranch_scc1 {L_ev}")
    eloop(False)
    A(f"s_branch {L_ej}")
    A(f"{L_ev}:")
    eloop(True)
    A(f"{L_ej}:")
    stamp(A, 2)
    A("s_lshl_b32 s32, s30, 1")
    A("s_lshr_b32 s33, s29, 1")
    A("s_add_u32 s51, s32, s33")
    A("s_and_b32 s53, s29, 1")
    A("v_lshrrev_b32 v6, 1, v3")
    A("v_and_b32 v7, 1, v3")
    A("s_nop 1")
    for t in range(2):
        a = VE + 4*t
        A(f"v_cvt_pk_bf16_f32 v{a}, v{a}, v{a+1}")
        A(f"v_cvt_pk_bf16_f32 v{a+1}, v{a+2}, v{a+3}")
    L_sv, L_fin, L_sig = A.label("sv"), A.label("fin"), A.label("sig")
    A("s_cmp_eq_u32 s3, 1")
    A(f"s_cbranch_scc1 {L_sv}")
    A(f"s_mov_b32 s60, {64*SL}")
    A("s_add_u32 s51, s51, 62")
    A("s_and_b32 s51, s51, 63")
    A(f"s_cselect_b32 s34, 0x40000000, s60")
    A(f"s_mul_i32 s51, s51, {SL}")
    A("s_lshl_b32 s33, s53, 4")
    A("v_add_u32 v8, s33, v2")
    A("v_lshl_add_u32 v6, v6, 5, v8")
    A("v_lshlrev_b32 v6, 4, v6")
    A("v_lshl_add_u32 v6, v7, 3, v6")
    A(f"buffer_store_dwordx2 {vr(VE,2)}, v6, s[8:11], s51 offen sc1")
    A(f"buffer_store_dwordx2 {vr(VE,2)}, v6, s[8:11], s34 offen sc1")
    A("v_cmp_eq_u32 vcc, 0, v3")
    A("v_lshlrev_b32 v6, 3, v8")
    A("v_lshl_or_b32 v6, v3, 28, v6")
    A(f"buffer_store_dwordx2 {vr(VE+4,2)}, v6, s[8:11], s51 offen offset:{OFF_A2} sc1")
    A(f"v_cndmask_b32 v8, 0, v{VE+4}, vcc")
    A(f"v_cndmask_b32 v9, 0, v{VE+5}, vcc")
    A("v_mov_b32 v7, 0")
    for r in (VE, VE+1, 8, 9):
        A(f"v_dot2c_f32_bf16 v7, v{r}, v{r}")
    A("s_nop 2")
    A("v_mov_b32 v6, v7")
    A("s_nop 1")
    A("v_permlane32_swap_b32 v6, v7")
    A("s_nop 1")
    A("v_add_f32 v7, v6, v7")
    A("v_mov_b32 v6, v7")
    A("s_nop 1")
    A("v_permlane16_swap_b32 v6, v7")
    A("s_nop 1")
    A("v_add_f32 v7, v6, v7")
    A(f"s_mov_b32 s34, {WS_KMAX}")
    A(f"s_branch {L_fin}")
    A(f"{L_sv}:")
    A("s_add_u32 s51, s51, 63")
    A("s_and_b32 s51, s51, 63")
    A(f"s_mul_i32 s51, s51, {SL}")
    A("s_mul_i32 s33, s53, 656")
    A("s_add_u32 s51, s51, s33")
    A("v_mul_u32_u24 v6, 20, v6")
    A("v_add_u32 v6, v6, v2")
    A("v_lshlrev_b32 v6, 4, v6")
    A("v_lshl_add_u32 v6, v7, 3, v6")
    A(f"buffer_store_dwordx2 {vr(VE,2)}, v6, s[8:11], s51 offen offset:{OFF_V0} sc1")
    A("v_cmp_eq_u32 vcc, 4, v2")
    A("v_mov_b32 v8, 0x3f803f80")
    A(f"v_cndmask_b32 v{VE+4}, v{VE+4}, v8, vcc")
    A(f"v_cndmask_b32 v{VE+5}, v{VE+5}, v8, vcc")
    A("v_lshrrev_b32 v8, 1, v3")
    A("v_add_u32 v8, 4, v8")
    A("v_cmp_gt_u32 vcc, v8, v2")
    A("v_mov_b32 v8, 0x40000000")
    A("v_cndmask_b32 v6, v8, v6, vcc")
    A(f"buffer_store_dwordx2 {vr(VE+4,2)}, v6, s[8:11], s51 offen offset:{OFF_V0+256} sc1")
    A(f"s_branch {L_main}")
    A(f"{L_rg}:")
    A("v_and_b32 v6, 1, v2")
    A("v_mul_u32_u24 v6, 1280, v6")
    A("v_lshl_add_u32 v18, v3, 4, v6")
    A(f"v_add_u32 v18, {VR}, v18")
    A(f"s_branch {L_main}")
    def fin_key():
        row_max_u32(A, 7)
        A("s_lshr_b32 s33, s50, 2")
        A("s_add_u32 s33, s33, s34")
        A("v_lshlrev_b32 v6, 24, v1")
        A("buffer_store_dword v7, v6, s[8:11], s33 offen sc1")
    A(f"{L_fin}:")
    fin_key()
    A(f"{L_main}:")
    stamp(A, 3)
    def wrd1(hh, mt):
        A(f"ds_read_b64_tr_b16 {vr(H[hh]+4*mt,2)}, v{VB1} offset:{hh*5120 + mt*32}")
        A(f"ds_read_b64_tr_b16 {vr(H[hh]+4*mt+2,2)}, v{VB2} offset:{hh*5120 + mt*32}")
    def half(hh):
        A(f"ds_read_b128 {vr(XF[hh^1],4)}, v{VXA1 if hh == 0 else VXA0}")
        for mt in range(5):
            wrd1(hh ^ 1, mt)
            A("s_waitcnt lgkmcnt(11)")
            A(f"v_mfma_f32_16x16x32_bf16 {vr(VACC+4*mt,4)}, {vr(H[hh]+4*mt,4)}, {vr(XF[hh],4)}, {vr(VACC+4*mt,4)}")
    A("s_mov_b32 s46, 0")
    A(f"s_mov_b32 s34, {-(NS-1)*10240}")
    A("s_lshl_b32 s32, s25, 7")
    A("v_add_u32 v6, s32, v18")
    A("s_waitcnt lgkmcnt(0)")
    A("s_barrier")
    A(f"ds_read_b128 {vr(112,4)}, v6")
    A(f"ds_read_b128 {vr(116,4)}, v6 offset:64")
    A(f"ds_read_b128 {vr(XF[0],4)}, v{VXA0}")
    for mt in range(5):
        wrd1(0, mt)
    L_aw, L_awr = A.label("aw"), A.label("awr")
    def qloop(rg):
        L_c = A.label("c")
        A(f"{L_c}:")
        A("s_add_u32 s46, s46, 1")
        A(f"s_cmp_eq_u32 s46, {NS}")
        A("s_cselect_b32 s32, s34, 10240")
        half(0)
        A(f"v_add_u32 v{VB1}, s32, v{VB1}")
        A(f"v_add_u32 v{VB2}, s32, v{VB2}")
        A(f"v_add_u32 v{VXA0}, 8192, v{VXA0}")
        A(f"v_add_u32 v{VXA1}, 8192, v{VXA1}")
        if rg:
            A("s_add_u32 s25, s25, 1")
            A("s_cmp_eq_u32 s25, 10")
            A("s_cselect_b32 s25, 0, s25")
            A("s_lshl_b32 s32, s25, 7")
            A("v_add_u32 v6, s32, v18")
            A("s_waitcnt lgkmcnt(10)")
            for s_ in range(2):
                A(f"v_mfma_f32_16x16x32_bf16 {vr(VE,4)}, {vr(112+4*s_,4)}, {vr(XF[s_],4)}, {vr(VE,4)}")
            A(f"ds_read_b128 {vr(112,4)}, v6")
            A(f"ds_read_b128 {vr(116,4)}, v6 offset:64")
        if not rg:
            A(f"s_cmp_eq_u32 s46, {SIG}")
            A(f"s_cbranch_scc1 {L_aw}")
            A(f"{L_awr}:")
        A("s_cmp_lt_u32 s46, 10")
        A("s_barrier")
        half(1)
        A(f"s_cbranch_scc1 {L_c}")
    L_rgl, L_rgr = A.label("rgl"), A.label("rgr")
    A("s_cmp_eq_u32 s3, 2")
    A(f"s_cbranch_scc1 {L_rgl}")
    qloop(False)
    A(f"{L_rgr}:")
    stamp(A, 4)
    if X.pfQ: A.pf_start("Q")
    QB1 = [8, 16]; QS = [12, 14]
    VIDX = 4
    VKA, VA2, VVA = 20, 21, 22
    S = [32, 64]
    O = [96, 112]
    KA1 = [128, 136]; KA2 = [132, 140]
    V0 = [144, 152]; V1 = [148, 156]
    A(f"s_mov_b32 s33, {f32bits(QSCALE):#x}")
    A("v_and_b32 v2, 31, v0")
    A("v_lshrrev_b32 v3, 5, v1")
    A("v_cmp_eq_u32 s[44:45], 1, v3")
    A("v_lshlrev_b32 v6, 3, v2")
    A("s_waitcnt lgkmcnt(0)")
    A(f"v_mov_b32 v24, {OFF_V0 + 640 - OFF_A2}")
    A("s_barrier")
    for mt in range(5):
        a = VACC + 4*mt
        for i in range(4):
            A(f"v_mul_f32 v{a+i}, s33, v{a+i}")
        A(f"v_cvt_pk_bf16_f32 v{a}, v{a}, v{a+1}")
        A(f"v_cvt_pk_bf16_f32 v{a+1}, v{a+2}, v{a+3}")
        A(f"ds_write_b64 v13, {vr(a,2)} offset:{mt*1024}")
    A(f"v_cndmask_b32 v{VA2}, v6, v24, s[44:45]")
    A("s_mul_i32 s32, s29, 1280")
    A(f"s_add_u32 s32, s32, {QX}")
    A("v_add_u32 v7, s32, v6")
    A("v_lshl_add_u32 v6, v3, 9, v7")
    A("v_mul_u32_u24 v23, 20, v3")
    A("v_add_u32 v23, v23, v2")
    A("v_cmp_gt_u32 vcc, 20, v2")
    A("v_lshlrev_b32 v26, 3, v1")
    A("v_cndmask_b32 v23, 40, v23, vcc")
    A("v_lshlrev_b32 v23, 4, v23")
    A(f"s_mov_b32 s36, {WS_KMAX}")
    A(f"s_sub_u32 s37, s24, {2*SL}")
    A(f"s_cselect_b32 s37, {62*SL}, s37")
    A(f"s_add_u32 s38, s37, {SL}")
    A("s_waitcnt lgkmcnt(0)")
    A("s_barrier")
    stamp(A, 5)
    A("buffer_load_dwordx2 v[24:25], v26, s[8:11], s36 offen sc1")
    A(f"buffer_load_dwordx4 {vr(KA1[0],4)}, v5, s[8:11], s37 offen sc1")
    A(f"buffer_load_dwordx2 {vr(KA2[0],2)}, v{VA2}, s[8:11], s37 offen offset:{OFF_A2} sc1")
    A(f"buffer_load_dwordx4 {vr(KA1[1],4)}, v5, s[8:11], s38 offen sc1")
    A(f"buffer_load_dwordx2 {vr(KA2[1],2)}, v{VA2}, s[8:11], s38 offen offset:{OFF_A2} sc1")
    A(f"buffer_load_dwordx4 {vr(V0[0],4)}, v23, s[8:11], s38 offen offset:{OFF_V0} sc1")
    A(f"buffer_load_dwordx4 {vr(V1[0],4)}, v23, s[8:11], s38 offen offset:{OFF_V1} sc1")
    A(f"ds_read2_b64 {vr(QB1[0],4)}, v6 offset0:0 offset1:32")
    A(f"ds_read_b64 {vr(QS[0],2)}, v7 offset:1024")
    A("v_add_u32 v6, 5120, v6")
    A(f"ds_read2_b64 {vr(QB1[1],4)}, v6 offset0:0 offset1:32")
    A(f"ds_read_b64 {vr(QS[1],2)}, v7 offset:{1024+5120}")
    A(f"v_mov_b32 v{VKA}, v5")
    A("v_cmp_lt_u32 vcc, 20, v2")
    A("v_mov_b32 v6, 0x40000")
    A(f"v_cndmask_b32 v{VVA}, v23, v6, vcc")
    A(f"v_mov_b32 v{VIDX}, 0xdddd")
    for r in range(O[0], O[0] + 32):
        A(f"v_mov_b32 v{r}, 0")
    for r in range(S[1] + 24, S[1] + 32):
        A(f"v_mov_b32 v{r}, 0")
    for r in range(V1[1], V1[1] + 4):
        A(f"v_mov_b32 v{r}, 0")
    A("v_mov_b32 v26, 0")
    A("v_mov_b32 v28, 0")
    A(f"v_mov_b32 v30, {FCNT}")
    A("s_lshl_b32 s32, s29, 3")
    A("s_lshl_b32 s32, 1, s32")
    A("v_mov_b32 v31, 0")
    A("v_writelane_b32 v31, s32, 0")
    A("s_waitcnt lgkmcnt(0)")
    for b in range(2):
        for r in range(2):
            A(f"v_cndmask_b32 v{QS[b]+r}, v{QS[b]+r}, 0, s[44:45]")
    for r in range(4):
        A(f"v_dot2c_f32_bf16 v26, v{QB1[0]+r}, v{QB1[0]+r}")
        A(f"v_dot2c_f32_bf16 v28, v{QB1[1]+r}, v{QB1[1]+r}")
    for r in range(2):
        A(f"v_dot2c_f32_bf16 v26, v{QS[0]+r}, v{QS[0]+r}")
        A(f"v_dot2c_f32_bf16 v28, v{QS[1]+r}, v{QS[1]+r}")
    A("s_nop 2")
    A("v_mov_b32 v27, v26")
    A("v_mov_b32 v29, v28")
    A("s_nop 1")
    A("v_permlane32_swap_b32 v26, v27")
    A("v_permlane32_swap_b32 v28, v29")
    A("s_nop 1")
    A("v_add_f32 v26, v26, v27")
    A("v_add_f32 v28, v28, v29")
    A("s_waitcnt vmcnt(6)")
    wave_max_u32(A, 24, 25, 34)
    A("v_mul_f32 v26, s34, v26")
    A("v_mul_f32 v28, s34, v28")
    A("v_sqrt_f32 v26, v26")
    A("v_sqrt_f32 v28, v28")
    A("s_nop 0")
    A(f"v_mul_f32 v26, {f32bits(-(1.0 + 2.0**-6)):#x}, v26")
    A(f"v_mul_f32 v28, {f32bits(-(1.0 + 2.0**-6)):#x}, v28")
    A("v_lshrrev_b32 v26, 16, v26")
    A("v_lshrrev_b32 v28, 16, v28")
    A(f"v_cndmask_b32 v{QS[0]}, v{QS[0]}, v26, s[44:45]")
    A(f"v_cndmask_b32 v{QS[1]}, v{QS[1]}, v28, s[44:45]")
    def qs2(buf, par, b):
        A(f"v_mfma_f32_32x32x8_bf16 {vr(S[buf]+16*b,16)}, {vr(KA2[par],2)}, {vr(QS[b],2)}, 0")
    def qk1(buf, par, b):
        A(f"v_mfma_f32_32x32x16_bf16 {vr(S[buf]+16*b,16)}, {vr(KA1[par],4)}, {vr(QB1[b],4)}, {vr(S[buf]+16*b,16)}")
    def pv(buf, b, half, vpar):
        vv = V0[vpar] if half == 0 else V1[vpar]
        A(f"v_smfmac_f32_32x32x32_bf16 {vr(O[b],16)}, {vr(vv,4)}, {vr(S[buf]+16*b+8*half,8)}, v{VIDX}")
    A("s_waitcnt vmcnt(4)")
    qs2(0, 0, 0); qk1(0, 0, 0); qs2(0, 0, 1); qk1(0, 0, 1)
    A("s_mov_b32 s46, 0")
    A("s_waitcnt vmcnt(0)")
    A("s_nop 7")
    stamp(A, 6)
    L_loop, L_sp, L_kr = A.label("loop"), A.label("sp"), A.label("kr")
    A(f"{L_sp}:")
    A("s_barrier")
    if X.al is not None:
        A(".p2align 6")
        for i in range(X.al // 4): A("s_nop 0")
    A(f"{L_loop}:")
    if X.itst:
        A("s_memtime s[60:61]")
        A("s_lshl_b32 s64, s2, 2")
        A("s_add_u32 s64, s64, s29")
        A("s_lshl_b32 s64, s64, 7")
        A("s_lshl_b32 s65, s46, 3")
        A("s_add_u32 s64, s64, s65")
        A(f"s_add_u32 s64, s64, {WS_ST + 0x200000}")
        A("s_waitcnt lgkmcnt(0)")
        A("v_mov_b32 v200, s60")
        A("v_mov_b32 v201, s61")
        A("v_lshlrev_b32 v204, 24, v1")
        A("buffer_store_dwordx2 v[200:201], v204, s[8:11], s64 offen")
    sched = {2: 'pv1p', 6: 's2a', 10: 'q1a', 14: 'pv0a', 18: 'pv1a', 22: 's2b', 26: 'q1b', 30: 'pv0b'}
    for t in range(U_TILES):
        par = t & 1
        off = t * SL
        for e in range(32):
            op = sched.get(e)
            if op == 'pv1p':
                pv(par ^ 1, 1, 1, par ^ 1)
                A("s_waitcnt lgkmcnt(0)")
                A(f"ds_read_b128 {vr(V0[par^1],4)}, v{VVA} offset:{off+OFF_V0}")
                A(f"ds_read_b128 {vr(V1[par^1],4)}, v{VVA} offset:{off+OFF_V1}")
            if op == 's2a': qs2(par ^ 1, par ^ 1, 0)
            if op == 's2b': qs2(par ^ 1, par ^ 1, 1)
            if op == 'pv0a':
                pv(par, 0, 0, par)
                A(f"ds_read_b128 {vr(KA1[par],4)}, v{VKA} offset:{off}")
                A(f"ds_read_b64 {vr(KA2[par],2)}, v{VA2} offset:{off+OFF_A2}")
                if t == U_TILES - 1: A("ds_read_b32 v24, v30 offset:16")
            if op == 'q1a': qk1(par ^ 1, par ^ 1, 0)
            if op == 'pv1a': pv(par, 0, 1, par)
            if op == 'q1b': qk1(par ^ 1, par ^ 1, 1)
            if op in ('q1a', 'q1b') and X.pad: A(f"s_nop {X.pad - 1}")
            if op == 'pv0b':
                pv(par, 1, 0, par)
                if t == U_TILES - 1:
                    A("s_add_u32 s46, s46, 1")
                    A("s_bitcmp1_b32 0x12e, s46")
                    A(f"v_add_u32 v{VKA}, {U_TILES*SL}, v{VKA}")
                    A(f"v_add_u32 v{VA2}, {U_TILES*SL}, v{VA2}")
                    A(f"v_add_u32 v{VVA}, {U_TILES*SL}, v{VVA}")
            A(f"v_exp_f32 v{S[par]+e}, v{S[par]+e}")
    A(f"s_cbranch_scc0 {L_loop}")
    A("s_cmp_eq_u32 s46, 1")
    A(f"s_cbranch_scc1 {L_sp}")
    A("s_waitcnt lgkmcnt(0)")
    A("v_readfirstlane_b32 s32, v24")
    A("s_mov_b64 exec, 1")
    A("ds_add_u32 v30, v31 offset:4")
    A("s_mov_b64 exec, -1")
    A("s_cmp_lt_u32 s32, 4")
    A(f"s_cbranch_scc1 {L_kr}")
    A("s_cmp_lt_u32 s46, 8")
    A(f"s_cbranch_scc1 {L_loop}")
    if not X.pdiag: stamp(A, 7)
    if X.pfT: A.pf_start("T")
    pv(1, 1, 1, 1)
    A(f"v_mov_b32 v26, {LTHR:#x}")
    A("s_nop 1")
    L_fb, L_norm = A.label("fb"), A.label("norm")
    A(f"v_rcp_f32 v28, v{O[0]+8}")
    A("s_nop 0")
    A("v_mov_b32 v29, v28")
    A("s_nop 1")
    A("v_permlane32_swap_b32 v28, v29")
    A("s_nop 3")
    A(f"v_min_f32 v27, v{O[0]+8}, v{O[1]+8}")
    A(f"v_cmp_nge_f32 vcc, v27, v26")
    A(f"v_cmp_u_f32 s[36:37], v{O[0]+8}, v{O[1]+8}")
    A("s_or_b64 vcc, vcc, s[36:37]")
    A("s_and_b64 vcc, vcc, s[44:45]")
    A(f"s_cbranch_vccnz {L_fb}")
    A(f"{L_norm}:")
    A(f"v_rcp_f32 v26, v{O[1]+8}")
    for r in range(12):
        A(f"v_mul_f32 v{O[0]+r}, v{O[0]+r}, v29")
    A("v_mov_b32 v27, v26")
    for r in range(6):
        A(f"v_cvt_pk_bf16_f32 v{S[0]+r}, v{O[0]+2*r}, v{O[0]+2*r+1}")
    A("v_permlane32_swap_b32 v26, v27")
    A(f"buffer_store_dwordx4 {vr(S[0],4)}, v{POA}, s[8:11], s74 offen sc1")
    A(f"buffer_store_dwordx2 {vr(S[0]+4,2)}, v{POB}, s[8:11], s75 offen sc1")
    for r in range(12):
        A(f"v_mul_f32 v{O[1]+r}, v{O[1]+r}, v27")
    for r in range(6):
        A(f"v_cvt_pk_bf16_f32 v{S[0]+8+r}, v{O[1]+2*r}, v{O[1]+2*r+1}")
    A(f"buffer_store_dwordx4 {vr(S[0]+8,4)}, v{POA}, s[8:11], s58 offen sc1")
    A(f"buffer_store_dwordx2 {vr(S[0]+12,2)}, v{POB}, s[8:11], s59 offen sc1")
    ACC = 8; OF = 56
    WFS = list(range(96, 160, 4)) + list(range(176, 256, 4))
    NPRE = 7
    XV = 28; G = 48
    TT = list(range(36, 48)) + list(range(52, 56))
    ORD = [8, 9, 0, 1, 2, 3, 4, 5, 6, 7]
    def wslot(s, mt):
        return WFS[5*(s % NPRE) + mt]
    def wrd(p, mt):
        slot = wslot(p, mt)
        s = ORD[p]
        if s < 8:
            b, off, o2 = PM, s * 6400 + mt * 32, 1280
        else:
            b, off, o2 = PT, (s - 8) * 25600 + mt * 32, 3200
        A(f"ds_read_b64_tr_b16 {vr(slot,2)}, v{b} offset:{off}")
        A(f"ds_read_b64_tr_b16 {vr(slot+2,2)}, v{b} offset:{off+o2}")
    def gx_loads(xv):
        A("s_mov_b32 s20, s4")
        A("s_and_b32 s21, s5, 0xffff")
        A(f"v_lshlrev_b32 v6, 2, v{PTK}")
        A(f"s_mov_b32 s32, {WS_G}")
        A(f"buffer_load_dword v{G}, v6, s[8:11], s32 offen sc1")
        A(f"buffer_load_dword v{G+1}, v6, s[8:11], s32 offen offset:16 sc1")
        A(f"buffer_load_dwordx4 {vr(xv,4)}, v{PX}, s[20:23], 0 offen")
        A(f"buffer_load_dwordx4 {vr(xv+4,4)}, v{PX}, s[20:23], s55 offen")
        A(f"s_mov_b32 s46, {SPIN}")
        A("s_mov_b32 s71, -1")
        A("s_mov_b32 s47, 0")
    def gate_math():
        for j in range(2):
            bf16r(A, G+j, G+j)
            sigmoid(A, G+j, G+j, G+2)
            bf16r(A, G+j, G+j)
        for j in range(2):
            A(f"v_sub_f32 v{G+2+j}, 1.0, v{G+j}")
            bf16r(A, G+2+j, G+2+j)
        for i in range(8):
            A(f"v_lshlrev_b32 v{TT[2*i]}, 16, v{XV+i}")
            A(f"v_and_b32 v{TT[2*i+1]}, 0xffff0000, v{XV+i}")
        A("s_mov_b32 s20, s6")
        A("s_and_b32 s21, s7, 0xffff")
    RL = [A.label("rl") for _ in range(10)]
    RC = [A.label("rc") for _ in range(10)]
    RT = [A.label("rt") for _ in range(10)]
    L_disp, L_h2, L_h3, L_ng2 = A.label("disp"), A.label("h2"), A.label("h3"), A.label("ng2")
    A("s_barrier")
    A(f"{L_op}:")
    for s in range(NPRE):
        for mt in range(5):
            wrd(s, mt)
    gx_loads(XV)
    A("s_cmp_lg_u32 s72, 0")
    A(f"s_cbranch_scc1 {L_h2}")
    A("s_waitcnt vmcnt(4)")
    A("s_barrier")
    L_rl, L_mm, L_rt, L_sel, L_nosel = A.label("rl"), A.label("mm"), A.label("rt"), A.label("sel"), A.label("nosel")
    A("s_waitcnt vmcnt(0)")
    gate_math()
    A(f"{L_h3}:")
    A(f"v_mov_b32 v6, {FCNT}")
    A("ds_read_b32 v6, v6 offset:12")
    A("s_waitcnt lgkmcnt(0)")
    A("v_readfirstlane_b32 s56, v6")
    A("s_lshr_b32 s33, s52, 3")
    A("s_lshr_b32 s32, s56, 3")
    A("s_cmp_eq_u32 s32, s33")
    A(f"s_cbranch_scc1 {L_sel}")
    A(f"{L_nosel}:")
    for i in range(0, 16, 2):
        A(f"v_pk_mul_f32 {vr(TT[i],2)}, {vr(TT[i],2)}, {vr(G+2,2)} " + ("op_sel:[0,0] op_sel_hi:[1,0]" if i < 8 else "op_sel:[0,1] op_sel_hi:[1,1]"))
    A("s_cmp_eq_u32 s72, 0")
    A(f"s_cbranch_scc1 {L_rl}")
    A("s_barrier")
    A(f"{L_rl}:")
    if not X.pdiag: stamp(A, 8)
    def oload(p):
        s = ORD[p]
        if s < 8:
            A(f"buffer_load_dwordx4 {vr(OF+4*p,4)}, v5, s[8:11], s{12+s} offen sc1")
        else:
            A(f"buffer_load_dwordx2 {vr(OF+4*p,2)}, v{PO0+s-8}, s[8:11], s70 offen sc1")
            A(f"buffer_load_dwordx2 {vr(OF+4*p+2,2)}, v{PO0+s-8}, s[8:11], s70 offen offset:128 sc1")
    for p in range(10):
        oload(p)
    A(f"{L_mm}:")
    if X.tdiag: stamp(A, 1)
    L_et = A.label("et")
    def tailchk():
        A(f"v_max3_u32 v6, v{OF}, v{OF+1}, v{OF+2}")
        A(f"v_max3_u32 v6, v{OF+3}, v{OF+4}, v6")
        A(f"v_max3_u32 v6, v{OF+5}, v{OF+6}, v6")
        A(f"v_max_u32 v6, v{OF+7}, v6")
        A("v_cmp_eq_u32 vcc, s71, v6")
    A("s_waitcnt vmcnt(8)")
    tailchk()
    A(f"s_cbranch_vccnz {L_et}")
    L_mm2 = A.label("mm2")
    A(f"{L_mm2}:")
    for s in range(10):
        A(f"s_waitcnt vmcnt({min(8, 9-s)})" + (" lgkmcnt(0)" if s in (0, NPRE) else ""))
        if X.tdiag and s in (0, 4, 9): stamp(A, {0: 2, 4: 3, 9: 4}[s])
        o = OF + 4*s
        for mt in range(5):
            A(f"v_mfma_f32_16x16x32_bf16 {vr(ACC+4*mt,4)}, {vr(wslot(s,mt),4)}, {vr(OF+4*s,4)}, {vr(ACC+4*mt,4) if s else 0}")
            if mt < 2 and s >= 2: A(f"v_max3_u32 v6, v{o+2*mt}, v{o+2*mt+1}, v6")
            if s + NPRE < 10 and mt > 0: wrd(s + NPRE, mt - 1)
        if s + NPRE < 10: wrd(s + NPRE, 4)
    A("v_cmp_eq_u32 vcc, s71, v6")
    A(f"s_cbranch_vccnz {L_rt}")
    A("s_nop 1")
    for mt in range(5):
        A(f"ds_write_b128 v{PPW}, {vr(ACC+4*mt,4)} offset:{mt*64}")
        if mt == 0: A("s_nop 3")
    A("s_waitcnt lgkmcnt(0)")
    if not X.pdiag: stamp(A, 9)
    A("s_barrier")
    if X.tdiag:
        stamp(A, 5)
        A("s_waitcnt lgkmcnt(0)")
        A(f"s_mov_b32 s{SB+12}, s46")
        A(f"s_mov_b32 s{SB+13}, 0")
    P = 96
    for j in range(2):
        for k in range(2):
            for h in range(2):
                A(f"ds_read_b128 {vr(P+16*j+8*k+4*h,4)}, v{PPR} offset:{j*1344 + k*21504 + h*16}")
    for j in range(2):
        A(f"s_waitcnt lgkmcnt({4*(1-j)})")
        for i in range(0, 8, 2):
            A(f"v_pk_add_f32 {vr(P+16*j+i,2)}, {vr(P+16*j+i,2)}, {vr(P+16*j+8+i,2)}")
        for i in range(0, 8, 2):
            A(f"v_pk_fma_f32 {vr(TT[8*j+i],2)}, {vr(P+16*j+i,2)}, {vr(G,2)}, {vr(TT[8*j+i],2)} " + ("op_sel:[0,0,0] op_sel_hi:[1,0,1]" if j == 0 else "op_sel:[0,1,0] op_sel_hi:[1,1,1]"))
        for i in range(4):
            A(f"v_cvt_pk_bf16_f32 v{XV+4*j+i}, v{TT[8*j+2*i]}, v{TT[8*j+2*i+1]}")
        A(f"buffer_store_dwordx4 {vr(XV+4*j,4)}, v{PX}, s[20:23], {'0' if j == 0 else 's55'} offen {X.ost}")
    if X.pfT: A.pf_stop("PFRET_T")
    stamp_rt(A, 10)
    stamp_flush(A, 11, 8, 29)
    A(f"{L_exit}:")
    A("s_endpgm")
    A(f"{L_et}:")
    A("s_sub_u32 s46, s46, 1")
    A("s_cselect_b32 s71, 0x12345, s71")
    A("s_cselect_b32 s46, 0, s46")
    oload(0); oload(1)
    A("s_waitcnt vmcnt(0)")
    tailchk()
    A(f"s_cbranch_vccnz {L_et}")
    for p in range(2, 10):
        Ls = A.label("sk")
        o = OF + 4*p
        A(f"v_max3_u32 v7, v{o}, v{o+1}, v{o+2}")
        A(f"v_max_u32 v7, v7, v{o+3}")
        A("v_cmp_eq_u32 vcc, s71, v7")
        A(f"s_cbranch_vccz {Ls}")
        oload(p)
        A(f"{Ls}:")
    A("s_waitcnt vmcnt(0)")
    A(f"s_branch {L_mm2}")
    A(f"{L_rt}:")
    A("s_mov_b32 s47, 1")
    A("s_sub_u32 s46, s46, 1")
    A("s_cselect_b32 s71, 0x12345, s71")
    A("s_cselect_b32 s46, 0, s46")
    for s_ in range(10 - NPRE):
        for mt in range(5):
            wrd(s_, mt)
    A(f"s_branch {L_rl}")
    A(f"{L_sel}:")
    A(f"ds_read_b128 {vr(XV,4)}, v{PY}")
    A(f"ds_read_b128 {vr(XV+4,4)}, v{PY} offset:16")
    A("s_waitcnt lgkmcnt(0)")
    for j in range(2):
        A(f"v_add_u32 v6, {4*j}, v{PTK}")
        A("v_cmp_eq_u32 vcc, s56, v6")
        for i in range(8):
            A(f"v_add_f32 v6, v{TT[8*j+i]}, v{XV+i}")
            bf16r(A, 6, 6)
            A(f"v_cndmask_b32 v{TT[8*j+i]}, v{TT[8*j+i]}, v6, vcc")
    A(f"s_branch {L_nosel}")
    A(f"{L_kr}:")
    A("ds_read_b32 v24, v30 offset:16")
    A("s_waitcnt lgkmcnt(0)")
    A("v_readfirstlane_b32 s32, v24")
    A("s_cmp_lt_u32 s32, 4")
    A(f"s_cbranch_scc1 {L_kr}")
    A(f"s_branch {L_loop}")
    A(f"{L_aw}:")
    A("s_waitcnt vmcnt(0)")
    A(f"s_branch {L_awr}")
    A(f"{L_rgl}:")
    qloop(True)
    A("v_add_u32 v8, s50, v2")
    A("v_lshlrev_b32 v6, 2, v8")
    A("v_lshl_or_b32 v6, v3, 28, v6")
    A("v_sub_u32 v8, 2047, v8")
    A(f"s_mov_b32 s33, {WS_R}")
    A(f"s_mov_b32 s34, {WS_G}")
    A(f"buffer_store_dword v{VE}, v6, s[8:11], s33 offen sc1")
    A(f"buffer_store_dword v{VE+1}, v6, s[8:11], s34 offen sc1")
    A(f"v_ashrrev_i32 v7, 31, v{VE}")
    A("v_or_b32 v7, 0x80000000, v7")
    A(f"v_xor_b32 v7, v7, v{VE}")
    A("v_and_b32 v7, 0xfffff800, v7")
    A("v_or_b32 v7, v7, v8")
    A(f"s_mov_b32 s34, {WS_RKEY}")
    fin_key()
    A("s_mul_i32 s32, s50, 20")
    A(f"s_add_u32 s32, s32, {WS_Y}")
    A("v_cmp_gt_u32 vcc, 20, v1")
    A("v_mov_b32 v7, 0x40000000")
    A("v_cndmask_b32 v6, v7, v5, vcc")
    A(f"buffer_store_dwordx4 {vr(VE+4,4)}, v6, s[8:11], s32 offen sc1")
    A("s_lshl_b32 s32, s30, 7")
    A(f"s_add_u32 s33, s32, {WS_GC}")
    A(f"buffer_store_dword v{VE+4}, v24, s[8:11], s33 offen sc1")
    A(f"s_add_u32 s33, s32, {WS_FC}")
    A(f"buffer_store_dword v{VE+4}, v24, s[8:11], s33 offen sc1")
    A(f"s_branch {L_rgr}")
    A(f"{L_fb}:")
    A("v_lshlrev_b32 v21, 3, v2")
    for b in range(2):
        A(f"v_cndmask_b32 v{QS[b]}, v{QS[b]}, 0, s[44:45]")
    A("v_mov_b32 v30, 0xff800000")
    A("v_mov_b32 v31, 0xff800000")
    L_p1, L_p2 = A.label("p1"), A.label("p2")
    def fb_s():
        A(f"buffer_load_dwordx4 {vr(KA1[0],4)}, v5, s[8:11], s32 offen sc1")
        A(f"buffer_load_dwordx2 {vr(KA2[0],2)}, v21, s[8:11], s32 offen offset:{OFF_A2} sc1")
    def fb_qk():
        A("s_waitcnt vmcnt(0)")
        qs2(0, 0, 0); qk1(0, 0, 0); qs2(0, 0, 1); qk1(0, 0, 1)
        A("s_nop 15")
    A("s_mov_b32 s32, 0")
    A(f"{L_p1}:")
    fb_s(); fb_qk()
    for r in range(0, 16, 2):
        A(f"v_max3_f32 v30, v{S[0]+r}, v{S[0]+r+1}, v30")
        A(f"v_max3_f32 v31, v{S[0]+16+r}, v{S[0]+16+r+1}, v31")
    A(f"s_add_u32 s32, s32, {SL}")
    A(f"s_cmp_lt_u32 s32, {64*SL}")
    A(f"s_cbranch_scc1 {L_p1}")
    A("v_mov_b32 v28, v30")
    A("v_mov_b32 v29, v31")
    A("s_nop 1")
    A("v_permlane32_swap_b32 v30, v28")
    A("v_permlane32_swap_b32 v31, v29")
    A("s_nop 1")
    A("v_max_f32 v30, v30, v28")
    A("v_max_f32 v31, v31, v29")
    for r in range(32):
        A(f"v_mov_b32 v{O[0]+r}, 0")
    A("s_mov_b32 s32, 0")
    A(f"{L_p2}:")
    fb_s()
    A(f"s_add_u32 s32, s32, {SL}")
    A(f"s_cmp_lt_u32 s32, {64*SL}")
    A("s_cselect_b32 s33, s32, 0")
    A(f"buffer_load_dwordx4 {vr(V0[0],4)}, v23, s[8:11], s33 offen offset:{OFF_V0} sc1")
    A(f"buffer_load_dwordx4 {vr(V1[0],4)}, v23, s[8:11], s33 offen offset:{OFF_V1} sc1")
    fb_qk()
    for r in range(32):
        A(f"v_sub_f32 v{S[0]+r}, v{S[0]+r}, v{30 + r // 16}")
    for r in range(32):
        A(f"v_exp_f32 v{S[0]+r}, v{S[0]+r}")
    A("s_nop 2")
    pv(0, 0, 0, 0); pv(0, 1, 0, 0); pv(0, 0, 1, 0); pv(0, 1, 1, 0)
    A(f"s_cmp_lt_u32 s32, {64*SL}")
    A(f"s_cbranch_scc1 {L_p2}")
    A("s_nop 15")
    A(f"v_rcp_f32 v28, v{O[0]+8}")
    A("s_nop 0")
    A("v_mov_b32 v29, v28")
    A("s_nop 1")
    A("v_permlane32_swap_b32 v28, v29")
    A("s_nop 1")
    A(f"s_branch {L_norm}")

    def early_setup():
        common_setup()
        oproj_addr()
        o_addr()
        for i in range(4):
            A(f"v_mov_b32 v{176+i}, -1")
        A(f"v_mov_b32 v173, {FCNT}")
        A("v_mov_b32 v6, 0")
        A("v_mov_b32 v7, 0")
        A("v_lshlrev_b32 v10, 3, v1")
        A("v_mul_u32_u24 v11, 3072, v1")
        A("v_cmp_gt_u32 vcc, 40, v1")
        A("v_mov_b32 v4, 0x40000000")
        A("v_cndmask_b32 v4, v4, v10, vcc")
        A("v_mov_b32 v175, 1")
        A("v_lshlrev_b32 v9, 1, v1")
        for j in range(12):
            A(f"v_mov_b32 v{12+j}, 0")
        A("v_and_b32 v8, 7, v1")
        A("v_lshlrev_b32 v8, 2, v8")
        A(f"v_add_u32 v8, {FB}, v8")
        A("s_lshl_b32 s32, s26, 5")
        A(f"s_add_u32 s32, s32, {FB}")
        A("v_lshl_add_u32 v25, v3, 3, s32")
        A("v_lshlrev_b32 v26, 1, v4")

    A(".MARK_H_BEGIN")
    A(f"{L_help}:")
    A("s_mov_b32 s72, 1")
    A("s_sub_u32 s26, s29, 4")
    A("v_lshrrev_b32 v6, 3, v1")
    A("v_and_b32 v7, 7, v1")
    A("v_lshrrev_b32 v8, 1, v6")
    A("v_xor_b32 v7, v7, v8")
    A("v_mul_u32_u24 v6, 1280, v6")
    A("v_lshl_add_u32 v181, v7, 4, v6")
    A("v_xor_b32 v182, 64, v181")
    A("v_add_u32 v182, 9216, v182")
    A("v_mul_u32_u24 v2, 26, v1")
    A("v_lshrrev_b32 v2, 8, v2")
    A("v_mul_u32_u24 v3, 10, v2")
    A("v_sub_u32 v3, v1, v3")
    A("v_mul_u32_u24 v2, 1280, v2")
    A("v_lshl_add_u32 v172, v3, 4, v2")
    A("v_add_u32 v183, 17920, v172")
    A("s_mul_i32 s63, s30, 81920")
    A("s_mul_i32 s32, s26, 20480")
    A("s_add_u32 s63, s63, s32")
    A("s_lshl_b32 s64, s26, 11")
    A("s_lshr_b32 s32, s26, 1")
    A("s_xor_b32 s32, s32, s26")
    A("s_mul_i32 s61, s32, 5120")
    A("s_mul_i32 s33, s31, 160")
    A("s_add_u32 s61, s61, s33")
    A("s_mul_i32 s62, s26, 640")
    A(f"s_add_u32 s62, s62, {WR}")
    A("s_mov_b32 s66, -1")
    A("s_movk_i32 s67, 0xff")
    A(f"s_mov_b32 s14, {X_BYTES}")
    A("s_mov_b32 s15, 0x00020000")
    A(f"s_mov_b32 s18, {W_BYTES}")
    A("s_mov_b32 s19, 0x00020000")
    A("s_mov_b32 s23, 0x00020000")
    A("s_lshl_b32 s35, s26, 10")
    A("s_mov_b32 s65, s25")
    A("s_lshl_b32 s32, s26, 3")
    A("s_or_b32 s32, s32, s3")
    A("s_cmp_lt_u32 s32, 2")
    A(f"s_cselect_b32 s69, {SIG + DN + 1}, 99")
    A("s_waitcnt lgkmcnt(0)")
    hst(A, 1)
    A("s_mov_b32 s12, s36")
    A("s_and_b32 s13, s37, 0xffff")
    A("s_mov_b32 s16, s38")
    A("s_and_b32 s17, s39, 0xffff")
    def xpiece():
        A("s_lshl_b32 s32, s65, 7")
        A("s_mov_b32 m0, s64")
        A("s_add_u32 s32, s32, s63")
        A("s_add_u32 s64, s64, 8192")
        A("buffer_load_dwordx4 v181, s[12:15], s32 offen lds")
        A("buffer_load_dwordx4 v182, s[12:15], s32 offen offset:1024 lds")
        A("s_add_u32 s65, s65, 1")
        A("s_cmp_eq_u32 s65, 10")
        A("s_cselect_b32 s65, 0, s65")
    def wchunk():
        A("s_mul_i32 s33, s25, 81920")
        A("s_mov_b32 m0, s62")
        A("s_add_u32 s33, s33, s61")
        A("s_mov_b64 exec, s[66:67]")
        A("buffer_load_dwordx4 v172, s[16:19], s33 offen lds")
        A("buffer_load_dwordx4 v183, s[16:19], s33 offen offset:2560 lds")
        A("s_add_u32 m0, s62, 5120")
        A("s_add_u32 s33, s33, 40960")
        A("buffer_load_dwordx4 v172, s[16:19], s33 offen lds")
        A("buffer_load_dwordx4 v183, s[16:19], s33 offen offset:2560 lds")
        A("s_mov_b64 exec, -1")
        A("s_add_u32 s62, s62, 10240")
        A(f"s_cmp_ge_u32 s62, {WR + NS*10240}")
        A(f"s_cselect_b32 s32, {NS*10240}, 0")
        A("s_sub_u32 s62, s62, s32")
        A("s_add_u32 s25, s25, 1")
        A("s_cmp_eq_u32 s25, 10")
        A("s_cselect_b32 s25, 0, s25")
    L_prod, L_p1d, L_nv2 = A.label("prod"), A.label("p1d"), A.label("nv2")
    A("s_cmp_lt_u32 s3, 2")
    A(f"s_cbranch_scc1 {L_prod}")
    A("s_cmp_lg_u32 s3, 2")
    A(f"s_cbranch_scc1 {L_nv2}")
    A("s_bitcmp1_b32 s26, 0")
    A("s_cselect_b32 s20, s4, s44")
    A("s_cselect_b32 s21, s5, s45")
    A("s_and_b32 s21, s21, 0xffff")
    A("s_movk_i32 s22, 1280")
    A("s_lshr_b32 s32, s26, 1")
    A("s_mul_i32 s32, s32, 640")
    A("s_and_b32 s33, s26, 1")
    A("s_mul_i32 s33, s33, 1280")
    A("s_add_u32 s33, s33, s32")
    A(f"s_add_u32 m0, s33, {VR}")
    A("s_mov_b64 exec, s[66:67]")
    A(f"buffer_load_dwordx4 v5, s[20:23], s32 offen lds")
    A("s_mov_b64 exec, -1")
    A(f"{L_nv2}:")
    L_l, L_x = A.label("l"), A.label("x")
    A(f"{L_x}:")
    xpiece()
    A("s_cmp_lg_u32 s65, s25")
    A(f"s_cbranch_scc1 {L_x}")
    early_setup()
    A("s_mov_b32 s46, 0")
    A("s_mov_b32 s34, 1")
    A(f"{L_l}:")
    wchunk()
    A("s_add_u32 s46, s46, 1")
    A(f"s_cmp_le_u32 s46, {DN}")
    A(f"s_cbranch_scc1 {L_l}")
    chks = []
    def chk():
        L, Lr = A.label("chk"), A.label("chkr")
        chks.append((L, Lr))
        A("s_cmp_eq_u32 s34, 63")
        A(f"s_cbranch_scc1 {L}")
        A(f"{Lr}:")
    L_ns, L_lw = A.label("ns"), A.label("lw")
    A(f"{L_lw}:")
    chk()
    A(f"s_waitcnt vmcnt({4*DN})")
    chk()
    A("s_barrier")
    chk()
    L_sgn = A.label("sgn")
    A("s_cmp_eq_u32 s46, s69")
    A(f"s_cbranch_scc1 {L_sgn}")
    A(f"{L_ns}:")
    A("s_cmp_lt_u32 s46, 10")
    A(f"s_cbranch_scc1 {L_l}")
    for d in range(DN - 1, -1, -1):
        A(f"s_waitcnt vmcnt({4*d})" + (" lgkmcnt(0)" if d == 0 else ""))
        chk()
        A("s_barrier")
    A(f"s_branch {L_p1d}")
    A(f"{L_sgn}:")
    A("s_atomic_add s34, s[48:49], 0x0 glc")
    A(f"s_branch {L_ns}")
    for L, Lr in chks:
        A(f"{L}:")
        A("s_mov_b32 s34, 1")
        A("s_atomic_add s34, s[48:49], 0x80")
        A(f"s_branch {Lr}")
    A(f"{L_prod}:")
    A("s_cmp_eq_u32 s3, 0")
    A("s_cselect_b32 s20, s40, s42")
    A("s_cselect_b32 s21, s41, s43")
    A("s_and_b32 s21, s21, 0xffff")
    A("s_movk_i32 s22, 25600")
    A("s_mul_i32 s35, s26, 640")
    A(f"s_add_u32 s68, s35, {ER}")
    A("s_mov_b32 s46, 0")
    L_a, L_w = A.label("a"), A.label("w")
    A(f"{L_a}:")
    A("s_mul_i32 s34, s65, 2560")
    A("s_mov_b32 m0, s68")
    A("s_add_u32 s34, s34, s35")
    A("s_mov_b64 exec, s[66:67]")
    A("buffer_load_dwordx4 v5, s[20:23], s34 offen lds")
    A("buffer_load_dwordx4 v5, s[20:23], s34 offen offset:2560 lds")
    A("s_mov_b64 exec, -1")
    A("s_add_u32 s68, s68, 5120")
    xpiece(); xpiece()
    A("s_add_u32 s46, s46, 1")
    A("s_cmp_le_u32 s46, 2")
    A(f"s_cbranch_scc1 {L_a}")
    A("s_waitcnt vmcnt(12)")
    A("s_barrier")
    A("s_cmp_lt_u32 s46, 5")
    A(f"s_cbranch_scc1 {L_a}")
    A("s_mov_b32 s46, 0")
    wchunk()
    A("s_waitcnt vmcnt(10)")
    A("s_barrier")
    wchunk()
    A("s_waitcnt vmcnt(8)")
    A("s_barrier")
    hst(A, 2)
    wchunk()
    A("s_barrier")
    hst(A, 3)
    wchunk()
    early_setup()
    A("s_mov_b32 s46, 4")
    A("s_mov_b32 s34, 1")
    A(f"s_branch {L_lw}")
    A(f"{L_p1d}:")
    A("s_branch L_HELP2")
    A(".MARK_H_END")
    A("L_HELP2:")
    A(f"s_load_dwordx2 s[38:39], s[0:1], {KA_WO}")
    A(f"s_load_dwordx4 s[40:43], s[0:1], {KA_WG}")
    A(f"s_load_dwordx2 s[44:45], s[0:1], {KA_WD}")
    common_setup2()
    A("v_lshlrev_b32 v174, 24, v1")
    if not X.direct: A("buffer_load_dword v29, v174, s[76:79], 0 offen offset:128 sc1")
    A("s_mov_b32 s4, s36")
    A("s_mov_b32 s5, s37")
    A("s_lshl_b32 s32, s26, 10")
    A("s_mov_b32 m0, s32")
    A("s_add_u32 s53, s32, s24")
    A("s_barrier")
    A("s_barrier")
    hst(A, 8)
    A("s_mul_i32 s64, s26, 5120")
    A("s_add_u32 s64, s64, s54")
    A("s_mul_i32 s32, s73, 51200")
    A("s_add_u32 s64, s64, s32")
    A(f"s_mov_b32 s69, {320*1280}")
    A("s_mul_i32 s65, s26, 640")
    A("s_waitcnt lgkmcnt(0)")
    srd(A, 60, 38, W_BYTES)
    L_g1, L_g2 = A.label("g1"), A.label("g2")
    if X.direct:
        A("s_cmp_lg_u32 s26, 0")
        A(f"s_cbranch_scc1 {L_g1}")
        await_cnt(A, 28, X.gsl)
    else:
        A("s_waitcnt vmcnt(0)")
        A("v_readfirstlane_b32 s32, v29")
        A("s_or_b32 s32, s32, s26")
        A("s_cmp_lg_u32 s32, 0")
        A(f"s_cbranch_scc1 {L_g1}")
        await_go(A, 0, 28, X.gsl)
    A(f"{L_g1}:")
    hst(A, 9)
    A("s_barrier")
    if not X.pdiag: stamp(A, 1)
    def dma(n):
        L = A.label("dma")
        A(f"s_add_u32 s34, m0, {n*4096}")
        A(f"{L}:")
        A("buffer_load_dwordx4 v5, s[8:11], s53 offen sc1 lds")
        A("s_add_u32 m0, m0, 4096")
        A("s_add_u32 s53, s53, 4096")
        A(f"s_cmp_ge_u32 s53, {64*SL}")
        A(f"s_cselect_b32 s32, {64*SL}, 0")
        A("s_sub_u32 s53, s53, s32")
        A("s_cmp_lt_u32 m0, s34")
        A(f"s_cbranch_scc1 {L}")
    def need(tiles):
        return min(40, -(-(-(-tiles*SL // 1024)) // 4))
    n0, n1 = need(U_TILES), need(U_TILES * 2)
    nb = X.nb0
    dma(nb)
    A(f"s_waitcnt vmcnt({nb - n0})")
    A("s_barrier")
    L_b2, L_b3, L_b4 = A.label("b2"), A.label("b3"), A.label("b4")
    A("s_lshl_b32 s32, s26, 3")
    A("s_or_b32 s32, s32, s3")
    A("s_mov_b32 s35, 1")
    A("s_cmp_lg_u32 s32, 2")
    A(f"s_cbranch_scc1 {L_b3}")
    A("s_atomic_add s35, s[48:49], 0x4 glc")
    A(f"{L_b3}:")
    A("s_mov_b64 exec, 1")
    A("ds_write_b64 v173, v[6:7]")
    A("ds_write_b64 v173, v[6:7] offset:8")
    A("ds_write_b32 v173, v6 offset:16")
    A("s_mov_b64 exec, -1")
    dma(40 - nb - 1)
    A("s_cmp_eq_u32 s26, 3")
    A("s_cselect_b32 s32, 0x3fffffff, -1")
    A("s_cselect_b32 s33, 0, -1")
    A("s_mov_b64 exec, s[32:33]")
    A("buffer_load_dwordx4 v5, s[8:11], s53 offen sc1 lds")
    A("s_mov_b64 exec, -1")
    A(f"s_waitcnt vmcnt({40 - n1}) lgkmcnt(0)")
    A("s_cmp_lg_u32 s35, 31")
    A(f"s_cbranch_scc1 {L_b4}")
    A("s_atomic_add s35, s[48:49], 0x84")
    A(f"{L_b4}:")
    A("s_barrier")
    A(f"buffer_store_dwordx4 v[176:179], v{POA}, s[8:11], s74 offen sc1")
    A(f"buffer_store_dwordx2 v[176:177], v{POB}, s[8:11], s75 offen sc1")
    A(f"buffer_store_dwordx4 v[176:179], v{POA}, s[8:11], s58 offen sc1")
    A(f"buffer_store_dwordx2 v[176:177], v{POB}, s[8:11], s59 offen sc1")
    if not X.pdiag: stamp(A, 2)
    def lds_wait(off, thr, slp=2):
        Lp = A.label("lw")
        A(f"{Lp}:")
        A(f"ds_read_b32 v171, v173 offset:{off}")
        A("s_waitcnt lgkmcnt(0)")
        A("v_readfirstlane_b32 s32, v171")
        A(f"s_sleep {slp}")
        A(f"s_cmp_lt_u32 s32, {thr}")
        A(f"s_cbranch_scc1 {Lp}")
    def wo_part(thr):
        Lw = A.label("wl")
        Lp = A.label("pw")
        A(f"{Lp}:")
        A("ds_read_b32 v171, v173 offset:4")
        A("s_waitcnt lgkmcnt(0)")
        A("v_readfirstlane_b32 s32, v171")
        A(f"s_sleep {X.slp}")
        A(f"s_add_u32 s32, s32, {0x7e7e7e7e if thr == 256 else 0x7d7d7d7d:#x}")
        A("s_andn2_b32 s32, 0x80808080, s32")
        A(f"s_cbranch_scc1 {Lp}")
        if X.nowo: return
        A(f"s_add_u32 s34, s65, 51200")
        A("s_mov_b64 exec, s[66:67]")
        A(f"{Lw}:")
        A("s_mov_b32 m0, s65")
        A("s_add_u32 s32, s64, s69")
        A("buffer_load_dwordx4 v172, s[60:63], s32 offen lds")
        A("s_add_u32 s65, s65, 2560")
        A("s_add_u32 s64, s64, 20480")
        A("s_cmp_ge_u32 s64, 409600")
        A("s_cselect_b32 s32, 409600, 0")
        A("s_sub_u32 s64, s64, s32")
        A("s_cmp_lt_u32 s65, s34")
        A(f"s_cbranch_scc1 {Lw}")
        A("s_mov_b64 exec, -1")
    A("buffer_load_dword v28, v174, s[76:79], 0 offen offset:132 sc1")
    A("s_waitcnt vmcnt(0)")
    A("s_mov_b64 exec, 1")
    A("ds_add_u32 v173, v175 offset:16")
    A("s_mov_b64 exec, -1")
    A("v_readfirstlane_b32 s32, v28")
    A("s_cmp_lg_u32 s32, 0")
    A(f"s_cbranch_scc1 {L_b2}")
    await_go(A, 4, 28, 8)
    A(f"{L_b2}:")
    A(f"s_mov_b32 s32, {WS_RKEY}")
    A("buffer_load_dwordx2 v[6:7], v10, s[8:11], s32 offen sc1")
    A("s_lshl_b32 s35, s30, 7")
    A(f"s_add_u32 s35, s35, {WS_GC}")
    A("buffer_atomic_add v175, v174, s[8:11], s35 offen sc1")
    def getidx():
        A("s_setprio 2")
        wave_max_u32(A, 6, 7, 56)
        A("s_setprio 0")
        A("s_and_b32 s56, s56, 2047")
        A("s_sub_u32 s25, 2047, s56")
    L_w1, L_w2 = A.label("w1"), A.label("w2")
    A("s_mul_i32 s47, s30, 6")
    A("s_add_u32 s47, s47, s3")
    A("s_sub_u32 s47, s47, 2")
    A(f"s_cmp_lt_u32 s3, {99 if X.noffn else 2}")
    A(f"s_cbranch_scc1 {L_w1}")
    A("s_cmp_ge_u32 s26, 2")
    A("s_cselect_b32 s16, s42, s40")
    A("s_cselect_b32 s17, s43, s41")
    A("s_and_b32 s17, s17, 0xffff")
    A(f"s_mov_b32 s18, {F_BYTES}")
    srd(A, 20, 44, F_BYTES)
    A("s_and_b32 s46, s26, 1")
    W_, WD_, XL, AC = 32, 56, 72, 12
    A(f"s_mul_i32 s32, s46, {320*3072}")
    A("s_lshl_b32 s33, s47, 4")
    A("s_add_u32 s32, s32, s33")
    for i in range(5):
        A(f"buffer_load_dwordx4 {vr(W_+4*i,4)}, v11, s[16:19], s32 offen")
        if i < 4: A(f"s_add_u32 s32, s32, {64*3072}")
    A("s_waitcnt vmcnt(5)")
    getidx()
    A("s_mul_i32 s32, s25, 1280")
    A("s_mul_i32 s33, s46, 640")
    A("s_add_u32 s32, s32, s33")
    for i in range(5):
        A(f"buffer_load_ushort v{XL+i}, v9, s[12:15], s32 offen offset:{i*128}")
    A("s_mul_i32 s32, s47, 10240")
    A("s_mul_i32 s33, s26, 320")
    A("s_add_u32 s32, s32, s33")
    for f in range(8):
        if f % 3 == 0 and f: A(f"s_add_u32 s32, s32, {3*1280}")
        A(f"buffer_load_dwordx2 {vr(WD_+2*f,2)}, v4, s[20:23], s32 offen offset:{(f%3)*1280}")
    A("s_waitcnt vmcnt(8)")
    if not X.pdiag: stamp(A, 3)
    A("s_setprio 2")
    for i in range(5):
        A(f"v_lshlrev_b32 v{XL+5}, 16, v{XL+i}")
        for dw in range(4):
            A(f"v_dot2c_f32_bf16 v{AC+2*dw}, v{W_+4*i+dw}, v{XL+i}")
            A(f"v_dot2c_f32_bf16 v{AC+2*dw+1}, v{W_+4*i+dw}, v{XL+5}")
    A("s_nop 3")
    for j in range(4):
        A(f"v_permlane32_swap_b32 v{AC+j}, v{AC+j+4}")
    A("s_nop 1")
    for j in range(4):
        A(f"v_add_f32 v{AC+j}, v{AC+j}, v{AC+j+4}")
    A("s_nop 1")
    for j in range(2):
        A(f"v_permlane16_swap_b32 v{AC+j}, v{AC+j+2}")
    A("s_nop 1")
    for j in range(2):
        A(f"v_add_f32 v{AC+j}, v{AC+j}, v{AC+j+2}")
    for sh in (8, 4, 2, 1):
        A("s_nop 1")
        for j in range(2):
            A(f"v_add_f32_dpp v{AC+j}, v{AC+j}, v{AC+j} row_ror:{sh} row_mask:0xf bank_mask:0xf")
    A("s_mov_b32 s32, 0x00010001")
    A("s_mov_b32 s33, 0x00010001")
    A("s_mov_b64 exec, s[32:33]")
    A(f"ds_write_b64 v25, {vr(AC,2)}")
    A("s_mov_b64 exec, -1")
    A("s_setprio 0")
    A("s_waitcnt lgkmcnt(0)")
    A("s_mov_b64 exec, 1")
    A("ds_add_u32 v173, v175")
    A("s_mov_b64 exec, -1")
    wo_part(256)
    lds_wait(0, 4)
    A("s_setprio 2")
    A("ds_read2_b32 v[12:13], v8 offset0:0 offset1:8")
    A("ds_read2_b32 v[14:15], v8 offset0:16 offset1:24")
    A("s_waitcnt lgkmcnt(0)")
    A("v_add_f32 v12, v12, v13")
    A("v_add_f32 v14, v14, v15")
    bf16r(A, 12, 12)
    sigmoid(A, 16, 12, 17)
    A("v_mul_f32 v12, v12, v16")
    bf16r(A, 12, 12)
    bf16r(A, 14, 14)
    A("v_mul_f32 v12, v12, v14")
    bf16r(A, 12, 12)
    Y = 20
    A("s_nop 0")
    def hs(f):
        hi = 13+2*f if f < 4 else 29+2*f
        return hi - 1, hi
    for f in range(8):
        A(f"v_readlane_b32 s{hs(f)[1]}, v12, {f}")
    for f in range(8):
        lo, hi = hs(f)
        A(f"s_lshr_b32 s{lo}, s{hi}, 16")
    A("s_waitcnt vmcnt(20)")
    for f in range(8):
        lo, hi = hs(f)
        for j in range(2):
            A(f"v_dot2c_f32_bf16 v{Y+2*j}, s{lo}, v{WD_+2*f+j}")
            A(f"v_dot2c_f32_bf16 v{Y+2*j+1}, s{hi}, v{WD_+2*f+j}")
    A("s_and_b32 s47, s47, 15")
    A("s_mul_i32 s32, s47, 2560")
    A("s_mul_i32 s33, s26, 640")
    A("s_add_u32 s32, s32, s33")
    A(f"s_add_u32 s32, s32, {WS_Y}")
    A("s_setprio 0")
    A("s_nop 2")
    for j in range(4):
        A(f"buffer_atomic_add_f32 v{Y+j}, v26, s[8:11], s32 offen offset:{j*4}")
    A("s_lshl_b32 s32, s47, 7")
    A(f"s_add_u32 s32, s32, {WS_FC}")
    A("s_waitcnt vmcnt(0)")
    A("buffer_atomic_add v175, v174, s[8:11], s32 offen sc1")
    A(f"s_branch {L_w2}")
    A(f"{L_w1}:")
    A("s_waitcnt vmcnt(0)")
    getidx()
    wo_part(256)
    A("s_waitcnt vmcnt(0)")
    A(f"{L_w2}:")
    if not X.pdiag: stamp(A, 4)
    A("s_mov_b64 exec, 1")
    A("ds_add_u32 v173, v175 offset:8")
    A("s_mov_b64 exec, -1")
    oproj_saddr()
    lds_wait(8, 4)
    A(f"s_branch {L_op}")
    A(f"{L_h2}:")
    if not X.pdiag: stamp(A, 5)
    A("v_mov_b32 v171, s25")
    A("s_mov_b64 exec, 1")
    A("ds_write_b32 v173, v171 offset:12")
    A("s_mov_b64 exec, -1")
    if X.pfT:
        A("s_cmp_lg_u32 s26, 2")
        A("s_cbranch_scc1 PFRET_T")
        A("s_mov_b64 exec, 0")
        A("s_branch PF_T_0")
        A("PFRET_T:")
        A("s_mov_b64 exec, -1")
    L_ny, L_sp2, L_sg, L_ng, L_gp = A.label("ny"), A.label("sp2"), A.label("sg"), A.label("ng"), A.label("gp")
    A("s_mov_b32 s69, 0")
    wo_part(512)
    A("s_waitcnt vmcnt(20)")
    if X.gprio: A("s_setprio 2")
    gate_math()
    A("s_setprio 0")
    A("s_cmp_lg_u32 s26, 1")
    A(f"s_cbranch_scc1 {L_ng}")
    A(f"{L_gp}:")
    A("buffer_load_dword v171, v174, s[8:11], s35 offen sc1")
    A("s_waitcnt vmcnt(0)")
    A("v_readfirstlane_b32 s32, v171")
    A("s_sub_u32 s46, s46, 1")
    A(f"s_cbranch_scc1 {L_ng}")
    A("s_cmp_lt_u32 s32, 32")
    A(f"s_cbranch_scc1 {L_gp}")
    A(f"{L_ng}:")
    A("s_lshr_b32 s32, s25, 6")
    A("s_lshl_b32 s33, s26, 8")
    A("s_or_b32 s33, s33, s30")
    A("s_cmp_lg_u32 s32, s33")
    A(f"s_cbranch_scc1 {L_ny}")
    A("v_lshlrev_b32 v6, 7, v2")
    A(f"s_mov_b32 s33, {WS_FC}")
    A(f"{L_sp2}:")
    A("buffer_load_dword v171, v6, s[8:11], s33 offen sc1")
    A("s_waitcnt vmcnt(0)")
    A(f"v_cmp_ne_u32 vcc, {0 if X.noffn else 48}, v171")
    A("s_sub_u32 s46, s46, 1")
    A(f"s_cbranch_scc1 {L_sg}")
    A("s_sleep 8")
    A(f"s_cbranch_vccnz {L_sp2}")
    A(f"{L_sg}:")
    A("s_setprio 2")
    Yv = OF
    A("v_mul_u32_u24 v6, 2560, v2")
    A("v_lshl_add_u32 v6, v3, 4, v6")
    A("s_lshl_b32 s32, s54, 1")
    A(f"s_add_u32 s32, s32, {WS_Y}")
    for mt in range(5):
        A(f"buffer_load_dwordx4 {vr(Yv+4*mt,4)}, v6, s[8:11], s32 offen offset:{mt*64} sc1")
    A("s_lshl_b32 s32, s25, 2")
    A(f"s_add_u32 s32, s32, {WS_R}")
    A("v_mov_b32 v6, 0")
    A("buffer_load_dword v171, v6, s[8:11], s32 offen sc1")
    A("s_waitcnt vmcnt(0)")
    for sh in (8, 4, 2, 1):
        A("s_nop 1")
        for j in range(20):
            A(f"v_add_f32_dpp v{Yv+j}, v{Yv+j}, v{Yv+j} row_ror:{sh} row_mask:0xf bank_mask:0xf")
    bf16r(A, 171, 171)
    sigmoid(A, 171, 171, 6)
    bf16r(A, 171, 171)
    for j in range(20):
        bf16r(A, Yv+j, Yv+j)
        A(f"v_mul_f32 v{Yv+j}, v{Yv+j}, v171")
        bf16r(A, Yv+j, Yv+j)
    A("v_lshlrev_b32 v6, 4, v3")
    A(f"v_add_u32 v6, {YB}, v6")
    A("s_mov_b32 s32, 0x00010001")
    A("s_mov_b32 s33, 0x00010001")
    A("s_mov_b64 exec, s[32:33]")
    for mt in range(5):
        A(f"ds_write_b128 v6, {vr(Yv+4*mt,4)} offset:{mt*64}")
    A("s_mov_b64 exec, -1")
    A("s_setprio 0")
    A(f"{L_ny}:")
    A(f"s_mov_b32 s46, {SPIN}")
    A("s_waitcnt vmcnt(0) lgkmcnt(0)")
    if not X.pdiag: stamp(A, 6)
    A("s_barrier")
    if not X.pdiag: stamp(A, 7)
    if X.tprio: A("s_setprio 2")
    A(f"s_branch {L_h3}")

def build(path):
    A = Asm()
    fused(A)
    A("L_CODE_END:")
    L = A.lines
    hb, he = L.index(".MARK_H_BEGIN"), L.index(".MARK_H_END")
    if X.first:
        e = L.index(".MARK_ENTRY_END")
        L = L[:e] + L[hb+1:he] + L[e+1:hb] + L[he+1:]
    else:
        L = [l for l in L if not l.startswith(".MARK")]
    out = []
    for i, l in enumerate(L):
        t = l.strip()
        if t.startswith("v_cndmask") and t.endswith("vcc"):
            p1 = out[-1].strip(); p2 = out[-2].strip()
            if p1.startswith("v_cmp") and " vcc," in p1: out.append("    s_nop 1")
            elif p2.startswith("v_cmp") and " vcc," in p2 and not p1.startswith("s_nop"): out.append("    s_nop 0")
        out.append(l)
    A.lines = out
    hdr = open("gated_mix__grouped_kv_mqa__moe_arch_mod__prompt.s.ref").read().split("; @launch")[0]
    out = hdr + "; @launch grid=(256,1,1) block=(512,1,1) lds=163840\n" + '.amdgcn_target "amdgcn-amd-amdhsa--gfx950"\n.text\n' + A.text() + '.section .rodata,"a"\n'
    out += kernel_desc(NAME, 256, 256)
    open(path, "w").write(out)

if __name__ == "__main__":
    build("t48.s")
    Cfg.on = True
    build("t48s.s")
    Cfg.rt = True
    build("t48r.s")
    X.tdiag = True
    build("t48t.s")
```

```python
import math, sys
from asmlib import *
from stamp8 import *

NAME = "gated_mix__grouped_kv_mqa__moe_arch_mod__prompt_kernel"
KA_X, KA_WQ, KA_WK, KA_WV, KA_WO, KA_BX, KA_WR, KA_WG, KA_WU, KA_WD, KA_GW, KA_OUT, KA_DBG, KA_WS = [8*i for i in range(14)]
SL = 2592
WS_KV0 = 0x0
WS_KMAX = 0x60000
WS_RKEY = 0x60200
WS_R = 0x61000
WS_G = 0x63000
WS_Y = 0x68000
WS_GC = 0x74000
WS_FC = 0x76000
WS_O = 0x100000
WS_SIZE = 0x1000000
X_BYTES = 2048*640*2
W_BYTES = 640*640*2
F_BYTES = 640*1536*2
QSCALE = (20 ** -0.5) * math.log2(math.e)
LOG2E = math.log2(math.e)
LTHR = f32bits(2.0 ** -30)
OFF_A2, OFF_V0, OFF_V1 = 1024, 1280, 1936
FB = 63*SL
FCNT = FB + 128
YB = FB + 160
XB = 102400
SPIN = 100000
WR = 81920
ER = WR + 5*10240
QX = WR + 7*10240
VR = QX
NS = 7
SIG = 1
DN = 3
PERM = sum(p << (4*i) for i, p in enumerate([0, 4, 5, 9, 3, 7, 2, 6]))
U_TILES = 8
class X:
    noffn = False; st = 0; hprio = 2; cprio = 0; nowo = False; slp = 20; pdiag = False; pfT = False; pfQ = False; tdiag = False; hsl = 0; rothg = False; gprio = True; tprio = True; pad = 0; pre = 0; ost = ''; gsl = 1; l2pf = True; first = True; nb0 = 8; itst = False; al = None; direct = False

def bf16r(A, d, s):
    A(f"v_cvt_pk_bf16_f32 v{d}, v{s}, v{s}")
    A(f"v_and_b32 v{d}, 0xffff0000, v{d}")
def sigmoid(A, d, s, t):
    A(f"v_mul_f32 v{t}, {f32bits(-LOG2E):#x}, v{s}")
    A(f"v_exp_f32 v{t}, v{t}")
    A("s_nop 0")
    A(f"v_add_f32 v{t}, 1.0, v{t}")
    A(f"v_rcp_f32 v{d}, v{t}")
    A("s_nop 0")
def row_max_u32(A, v):
    for sh in (8, 4, 2, 1):
        A("s_nop 1")
        A(f"v_max_u32_dpp v{v}, v{v}, v{v} row_ror:{sh} row_mask:0xf bank_mask:0xf")
def wave_max_u32(A, v, v2, st):
    A(f"v_max_u32 v{v}, v{v}, v{v2}")
    row_max_u32(A, v)
    A("s_nop 1")
    for i in range(4):
        A(f"v_readlane_b32 s{st+i}, v{v}, {16*i}")
    A(f"s_max_u32 s{st}, s{st}, s{st+1}")
    A(f"s_max_u32 s{st+2}, s{st+2}, s{st+3}")
    A(f"s_max_u32 s{st}, s{st}, s{st+2}")

def arrive(A, cnt_off, total, vt):
    L = A.label("arr")
    A(f"v_mov_b32 v{vt}, 1")
    A(f"v_lshlrev_b32 v{vt+1}, 24, v1")
    A(f"buffer_atomic_add v{vt}, v{vt+1}, s[76:79], 0 offen offset:{cnt_off} sc0 sc1")
    A("s_waitcnt vmcnt(0)")
    A(f"v_readfirstlane_b32 s32, v{vt}")
    A(f"v_mov_b32 v{vt}, 1")
    A(f"s_cmp_lg_u32 s32, {total-1}")
    A(f"s_cbranch_scc1 {L}")
    A(f"buffer_store_dword v{vt}, v{vt+1}, s[76:79], 0 offen offset:{128+cnt_off} sc1")
    A(f"{L}:")
def await_cnt(A, vt, slp):
    L, Ld = A.label("aw"), A.label("awd")
    A(f"v_lshlrev_b32 v{vt+1}, 24, v1")
    A(f"s_mov_b32 s33, {SPIN}")
    A(f"{L}:")
    A(f"buffer_load_dword v{vt}, v{vt+1}, s[76:79], 0 offen sc1")
    A("s_waitcnt vmcnt(0)")
    A(f"v_readfirstlane_b32 s32, v{vt}")
    A("s_sub_u32 s33, s33, 1")
    A(f"s_cbranch_scc1 {Ld}")
    A("s_cmp_ge_u32 s32, 64")
    A(f"s_cbranch_scc1 {Ld}")
    A(f"s_sleep {slp}")
    A(f"s_branch {L}")
    A(f"{Ld}:")
def await_go(A, cnt_off, vt, slp):
    L, Ld = A.label("aw"), A.label("awd")
    A(f"v_lshlrev_b32 v{vt+1}, 24, v1")
    A(f"s_mov_b32 s33, {SPIN}")
    A(f"{L}:")
    A(f"buffer_load_dword v{vt}, v{vt+1}, s[76:79], 0 offen offset:{128+cnt_off} sc1")
    A("s_waitcnt vmcnt(0)")
    A(f"v_readfirstlane_b32 s32, v{vt}")
    A("s_sub_u32 s33, s33, 1")
    A(f"s_cbranch_scc1 {Ld}")
    A("s_cmp_lg_u32 s32, 0")
    A(f"s_cbranch_scc1 {Ld}")
    A(f"s_sleep {slp}")
    A(f"s_branch {L}")
    A(f"{Ld}:")

def hst(A, i):
    if X.pdiag: stamp(A, i)
def fused(A):
    kernel_begin(A, NAME)
    L_exit, L_help, L_op = A.label("exit"), A.label("help"), A.label("oproj")
    A("s_cmp_ge_u32 s2, 256")
    A(f"s_cbranch_scc1 {L_exit}")
    stamp_rt(A, 0)
    for i in range(X.pre): A("s_sleep 64")
    A(f"s_load_dwordx4 s[36:39], s[0:1], {KA_X}")
    A(f"s_load_dwordx4 s[40:43], s[0:1], {KA_WK}")
    A(f"s_load_dwordx4 s[48:51], s[0:1], {KA_DBG}")
    A(f"s_load_dwordx2 s[44:45], s[0:1], {KA_WR}")
    A(f"s_load_dwordx4 s[4:7], s[0:1], {KA_GW}")
    A("v_lshrrev_b32 v4, 6, v0")
    A("v_and_b32 v1, 63, v0")
    A("v_readfirstlane_b32 s29, v4")
    A("v_lshlrev_b32 v5, 4, v1")
    A("s_and_b32 s30, s2, 7")
    A("s_lshl_b32 s30, s30, 2")
    A("s_lshr_b32 s28, s2, 6")
    A("s_add_u32 s30, s30, s28")
    A("s_bfe_u32 s31, s2, 0x30003")
    A("s_lshl_b32 s33, s28, 1")
    A("s_sub_u32 s3, s31, s33")
    A("s_and_b32 s3, s3, 7")
    A("s_lshl_b32 s32, s3, 2")
    A(f"s_lshr_b32 s25, {PERM:#x}, s32")
    A("s_and_b32 s25, s25, 15")
    A("s_add_u32 s25, s25, s33")
    A("s_cmp_ge_u32 s25, 10")
    A("s_cselect_b32 s32, 10, 0")
    A("s_sub_u32 s25, s25, s32")
    if X.first:
        A("s_cmp_lt_u32 s29, 4")
        A("s_cbranch_scc1 L_COMPUTE")
        A(".MARK_ENTRY_END")
        A("L_COMPUTE:")
    else:
        A("s_cmp_ge_u32 s29, 4")
        A(f"s_cbranch_scc1 {L_help}")

    def common_setup():
        A("s_mov_b32 s10, 0x1000000")
        A("s_mov_b32 s11, 0x00020000")
        A("s_bfe_u32 s24, s2, 0x40003")
        A(f"s_mul_i32 s24, s24, {4*SL}")
        A("s_lshl_b32 s73, s28, 1")
        if X.rothg:
            A("s_add_u32 s73, s73, s31")
            A("s_and_b32 s73, s73, 7")
        A("s_movk_i32 s78, 256")
        A("s_mov_b32 s79, 0x00020000")
    def common_setup2():
        A("s_mov_b32 s8, s50")
        A("s_and_b32 s9, s51, 0xffff")
        A("s_mov_b32 s76, s48")
        A("s_and_b32 s77, s49, 0xffff")
    PM, PT, PX, PTK, PO0, PO1, PPR, PY, PPW, POA, POB = range(160, 171)
    def oproj_addr():
        A("v_and_b32 v2, 15, v0")
        A("v_lshrrev_b32 v3, 4, v1")
        A("s_and_b32 s27, s29, 3")
        A("s_lshr_b32 s28, s29, 2")
        A("v_add_u32 v6, s73, v3")
        A("v_and_b32 v6, 7, v6")
        A("v_lshlrev_b32 v7, 3, v2")
        A(f"v_lshl_add_u32 v{PO0}, v6, 8, v7")
        A(f"v_xor_b32 v{PO1}, 0x400, v{PO0}")
        A("v_lshrrev_b32 v7, 2, v2")
        A("v_and_b32 v8, 3, v2")
        A("v_lshrrev_b32 v9, 1, v3")
        A("v_mul_u32_u24 v9, 20, v9")
        A("v_and_b32 v6, 1, v3")
        A("v_lshl_add_u32 v9, v6, 2, v9")
        A("v_add_u32 v9, v9, v7")
        A("v_mul_u32_u24 v9, 160, v9")
        A("v_lshl_add_u32 v9, v8, 3, v9")
        A("s_xor_b32 s32, s28, 1")
        A("s_mul_i32 s32, s32, 51200")
        A(f"v_add_u32 v{PM}, s32, v9")
        A("v_mul_u32_u24 v9, 40, v3")
        A("v_add3_u32 v9, v9, v7, 16")
        A("v_mul_u32_u24 v9, 160, v9")
        A("v_lshl_add_u32 v9, v8, 3, v9")
        A(f"v_add_u32 v{PT}, s32, v9")
        A("v_mul_u32_u24 v6, 26, v1")
        A("v_lshrrev_b32 v6, 8, v6")
        A("v_mul_u32_u24 v7, 10, v6")
        A("v_sub_u32 v7, v1, v7")
        A("s_lshl_b32 s32, s30, 6")
        A("s_lshl_b32 s33, s29, 3")
        A("s_add_u32 s52, s32, s33")
        A(f"v_add_u32 v{PTK}, s52, v6")
        A(f"v_mul_u32_u24 v8, 1280, v{PTK}")
        A("v_lshl_add_u32 v8, v7, 4, v8")
        A("s_mul_i32 s54, s31, 160")
        A("v_add_u32 v8, s54, v8")
        A("v_cmp_gt_u32 vcc, 40, v1")
        A("v_mov_b32 v9, 0x40000000")
        A(f"v_cndmask_b32 v{PX}, v9, v8, vcc")
        A("v_add_u32 v6, s33, v6")
        A("v_mul_u32_u24 v6, 336, v6")
        A("v_lshl_add_u32 v6, v7, 5, v6")
        A(f"v_add_u32 v{PPR}, {XB}, v6")
        A("v_lshlrev_b32 v7, 5, v7")
        A(f"v_add_u32 v{PY}, {YB}, v7")
        A("s_lshl_b32 s32, s27, 4")
        A("v_add_u32 v6, s32, v2")
        A("v_mul_u32_u24 v6, 336, v6")
        A("v_lshl_add_u32 v6, v3, 4, v6")
        A("s_mul_i32 s32, s28, 21504")
        A(f"s_add_u32 s32, s32, {XB}")
        A(f"v_add_u32 v{PPW}, s32, v6")
    def oproj_saddr():
        A("s_lshl_b32 s33, s30, 2")
        A("s_add_u32 s33, s33, s27")
        A("s_mul_i32 s68, s33, 20480")
        A(f"s_add_u32 s68, s68, {WS_O}")
        A("s_lshl_b32 s33, s28, 11")
        A("s_add_u32 s70, s68, s33")
        A("s_add_u32 s70, s70, 16384")
        A("s_lshl_b32 s33, s28, 13")
        A("s_add_u32 s68, s68, s33")
        for p in range(8):
            A(f"s_add_u32 s32, s73, {p}")
            A("s_and_b32 s32, s32, 7")
            A(f"s_lshl_b32 s{12+p}, s32, 10")
            A(f"s_add_u32 s{12+p}, s{12+p}, s68")
        A("s_movk_i32 s55, 5120")
        A(f"s_mov_b32 s22, {X_BYTES}")
        A("s_mov_b32 s23, 0x00020000")

    def o_addr():
        A("s_lshl_b32 s47, s31, 2")
        A("s_add_u32 s47, s47, s27")
        A("v_bfe_u32 v6, v1, 4, 1")
        A("v_mul_u32_u24 v6, 20480, v6")
        A("v_lshrrev_b32 v7, 5, v1")
        A(f"v_lshl_add_u32 v{POB}, v2, 3, v6")
        A(f"v_lshl_or_b32 v{POB}, v7, 30, v{POB}")
        A("v_lshl_add_u32 v6, v2, 4, v6")
        A(f"v_lshl_add_u32 v{POA}, v7, 8, v6")
        A("s_mul_i32 s32, s30, 81920")
        A(f"s_add_u32 s32, s32, {WS_O}")
        A("s_lshl_b32 s74, s47, 9")
        A("s_add_u32 s74, s74, s32")
        A("s_lshl_b32 s75, s47, 7")
        A("s_add_u32 s75, s75, s32")
        A("s_add_u32 s75, s75, 16384")
        A("s_add_u32 s58, s74, 40960")
        A("s_add_u32 s59, s75, 40960")

    A("s_mov_b32 s72, 0")
    if X.l2pf:
        A("s_getpc_b64 s[32:33]")
        A("L_PC0:")
        A(f"s_sub_u32 s32, s32, L_PC0-{NAME}")
        A("s_subb_u32 s33, s33, 0")
        A("s_lshr_b32 s34, s2, 3")
        A("v_lshl_add_u32 v6, v0, 5, s34")
        A("v_lshlrev_b32 v6, 7, v6")
        A(f"v_min_u32 v6, L_CODE_END-{NAME}-4, v6")
        A("global_load_dword v180, v6, s[32:33]")
    common_setup()
    oproj_addr()
    oproj_saddr()
    VACC = 32; VE = 52; H = [64, 84]; XF = [104, 108]
    VB1, VB2, VXA0, VXA1 = 14, 15, 16, 17
    A("v_lshrrev_b32 v6, 2, v2")
    A("v_and_b32 v7, 3, v2")
    A("v_lshl_add_u32 v6, v3, 3, v6")
    A("v_and_b32 v8, 1, v3")
    A("v_lshlrev_b32 v8, 2, v8")
    A("v_add_u32 v9, v6, v8")
    A("v_mul_u32_u24 v9, 160, v9")
    A("v_lshl_add_u32 v9, v7, 3, v9")
    A(f"v_add_u32 v{VB1}, {WR}, v9")
    A("v_xor_b32 v8, 4, v8")
    A("v_add_u32 v9, v6, v8")
    A("v_mul_u32_u24 v9, 160, v9")
    A("v_lshl_add_u32 v9, v7, 3, v9")
    A(f"v_add_u32 v{VB2}, {WR}, v9")
    A("v_mul_u32_u24 v9, 40, v6")
    A(f"v_add_u32 v9, {ER}, v9")
    A("v_lshl_add_u32 v18, v7, 3, v9")
    A("v_add_u32 v19, 32, v9")
    A("v_lshrrev_b32 v6, 1, v2")
    A("v_xor_b32 v6, v6, v3")
    A("v_lshlrev_b32 v6, 4, v6")
    A("v_lshl_add_u32 v6, v2, 7, v6")
    A("s_lshl_b32 s32, s29, 11")
    A("v_add_u32 v10, s32, v6")
    A("v_xor_b32 v11, 64, v10")
    A(f"v_mov_b32 v{VXA0}, v10")
    A(f"v_mov_b32 v{VXA1}, v11")
    for i in range(VACC, VE + 8):
        A(f"v_mov_b32 v{i}, 0")
    A("s_lshr_b32 s32, s29, 1")
    A("s_mul_i32 s32, s32, 5120")
    A("s_and_b32 s33, s29, 1")
    A("s_lshl_b32 s33, s33, 7")
    A("s_add_u32 s32, s32, s33")
    A(f"s_add_u32 s32, s32, {QX}")
    A("v_lshlrev_b32 v6, 3, v2")
    A("v_lshl_add_u32 v6, v3, 8, v6")
    A("v_add_u32 v13, s32, v6")
    o_addr()
    A("s_waitcnt lgkmcnt(0)")
    common_setup2()
    A("s_mov_b32 s4, s36")
    A("s_mov_b32 s5, s37")
    A("v_lshlrev_b32 v24, 24, v1")
    A("s_lshl_b32 s32, s30, 6")
    A("s_lshl_b32 s33, s29, 4")
    A("s_add_u32 s50, s32, s33")
    if X.pfQ:
        A("s_cmp_lg_u32 s29, 3")
        A("s_cbranch_scc1 PFRET_Q")
        A("s_mov_b64 exec, 0")
        A("s_branch PF_Q_0")
        A("PFRET_Q:")
        A("s_mov_b64 exec, -1")
    stamp(A, 1)
    L_main, L_rg, L_ev, L_ej = A.label("main"), A.label("rg"), A.label("ev"), A.label("ej")
    A("s_cmp_gt_u32 s3, 2")
    A(f"s_cbranch_scc1 {L_main}")
    A("s_cmp_eq_u32 s3, 2")
    A(f"s_cbranch_scc1 {L_rg}")
    EW = 64; EX = 112
    A("s_mov_b32 s46, 0")
    def erd(s):
        A(f"ds_read_b128 {vr(EX+4*s,4)}, v{10 + (s & 1)} offset:{(s >> 1)*8192}")
        for t in range(2):
            slot = EW + 8*s + 4*t
            A(f"ds_read_b64_tr_b16 {vr(slot,2)}, v{18+t} offset:{s*1280}")
            A(f"ds_read_b64_tr_b16 {vr(slot+2,2)}, v{18+t} offset:{s*1280+160}")
    def eloop(swap):
        L = A.label("el")
        A(f"{L}:")
        for s in range(4):
            if s == 2:
                A("s_add_u32 s46, s46, 1")
                A("v_add_u32 v10, 16384, v10")
                A("v_add_u32 v11, 16384, v11")
                A("v_add_u32 v18, 5120, v18")
                A("v_add_u32 v19, 5120, v19")
                A("s_cmp_lt_u32 s46, 5")
                A("s_barrier")
            erd((s + 2) % 4)
            A("s_waitcnt lgkmcnt(10)")
            for t in range(2):
                w, x = vr(EW+8*s+4*t,4), vr(EX+4*s,4)
                A(f"v_mfma_f32_16x16x32_bf16 {vr(VE+4*t,4)}, {x if swap else w}, {w if swap else x}, {vr(VE+4*t,4)}")
        A(f"s_cbranch_scc1 {L}")
    A("s_barrier")
    erd(0); erd(1)
    A("s_cmp_eq_u32 s3, 1")
    A(f"s_cbranch_scc1 {L_ev}")
    eloop(False)
    A(f"s_branch {L_ej}")
    A(f"{L_ev}:")
    eloop(True)
    A(f"{L_ej}:")
    stamp(A, 2)
    A("s_lshl_b32 s32, s30, 1")
    A("s_lshr_b32 s33, s29, 1")
    A("s_add_u32 s51, s32, s33")
    A("s_and_b32 s53, s29, 1")
    A("v_lshrrev_b32 v6, 1, v3")
    A("v_and_b32 v7, 1, v3")
    A("s_nop 1")
    for t in range(2):
        a = VE + 4*t
        A(f"v_cvt_pk_bf16_f32 v{a}, v{a}, v{a+1}")
        A(f"v_cvt_pk_bf16_f32 v{a+1}, v{a+2}, v{a+3}")
    L_sv, L_fin, L_sig = A.label("sv"), A.label("fin"), A.label("sig")
    A("s_cmp_eq_u32 s3, 1")
    A(f"s_cbranch_scc1 {L_sv}")
    A(f"s_mov_b32 s60, {64*SL}")
    A("s_add_u32 s51, s51, 62")
    A("s_and_b32 s51, s51, 63")
    A(f"s_cselect_b32 s34, 0x40000000, s60")
    A(f"s_mul_i32 s51, s51, {SL}")
    A("s_lshl_b32 s33, s53, 4")
    A("v_add_u32 v8, s33, v2")
    A("v_lshl_add_u32 v6, v6, 5, v8")
    A("v_lshlrev_b32 v6, 4, v6")
    A("v_lshl_add_u32 v6, v7, 3, v6")
    A(f"buffer_store_dwordx2 {vr(VE,2)}, v6, s[8:11], s51 offen sc1")
    A(f"buffer_store_dwordx2 {vr(VE,2)}, v6, s[8:11], s34 offen sc1")
    A("v_cmp_eq_u32 vcc, 0, v3")
    A("v_lshlrev_b32 v6, 3, v8")
    A("v_lshl_or_b32 v6, v3, 28, v6")
    A(f"buffer_store_dwordx2 {vr(VE+4,2)}, v6, s[8:11], s51 offen offset:{OFF_A2} sc1")
    A(f"v_cndmask_b32 v8, 0, v{VE+4}, vcc")
    A(f"v_cndmask_b32 v9, 0, v{VE+5}, vcc")
    A("v_mov_b32 v7, 0")
    for r in (VE, VE+1, 8, 9):
        A(f"v_dot2c_f32_bf16 v7, v{r}, v{r}")
    A("s_nop 2")
    A("v_mov_b32 v6, v7")
    A("s_nop 1")
    A("v_permlane32_swap_b32 v6, v7")
    A("s_nop 1")
    A("v_add_f32 v7, v6, v7")
    A("v_mov_b32 v6, v7")
    A("s_nop 1")
    A("v_permlane16_swap_b32 v6, v7")
    A("s_nop 1")
    A("v_add_f32 v7, v6, v7")
    A(f"s_mov_b32 s34, {WS_KMAX}")
    A(f"s_branch {L_fin}")
    A(f"{L_sv}:")
    A("s_add_u32 s51, s51, 63")
    A("s_and_b32 s51, s51, 63")
    A(f"s_mul_i32 s51, s51, {SL}")
    A("s_mul_i32 s33, s53, 656")
    A("s_add_u32 s51, s51, s33")
    A("v_mul_u32_u24 v6, 20, v6")
    A("v_add_u32 v6, v6, v2")
    A("v_lshlrev_b32 v6, 4, v6")
    A("v_lshl_add_u32 v6, v7, 3, v6")
    A(f"buffer_store_dwordx2 {vr(VE,2)}, v6, s[8:11], s51 offen offset:{OFF_V0} sc1")
    A("v_cmp_eq_u32 vcc, 4, v2")
    A("v_mov_b32 v8, 0x3f803f80")
    A(f"v_cndmask_b32 v{VE+4}, v{VE+4}, v8, vcc")
    A(f"v_cndmask_b32 v{VE+5}, v{VE+5}, v8, vcc")
    A("v_lshrrev_b32 v8, 1, v3")
    A("v_add_u32 v8, 4, v8")
    A("v_cmp_gt_u32 vcc, v8, v2")
    A("v_mov_b32 v8, 0x40000000")
    A("v_cndmask_b32 v6, v8, v6, vcc")
    A(f"buffer_store_dwordx2 {vr(VE+4,2)}, v6, s[8:11], s51 offen offset:{OFF_V0+256} sc1")
    A(f"s_branch {L_main}")
    A(f"{L_rg}:")
    A("v_and_b32 v6, 1, v2")
    A("v_mul_u32_u24 v6, 1280, v6")
    A("v_lshl_add_u32 v18, v3, 4, v6")
    A(f"v_add_u32 v18, {VR}, v18")
    A(f"s_branch {L_main}")
    def fin_key():
        row_max_u32(A, 7)
        A("s_lshr_b32 s33, s50, 2")
        A("s_add_u32 s33, s33, s34")
        A("v_lshlrev_b32 v6, 24, v1")
        A("buffer_store_dword v7, v6, s[8:11], s33 offen sc1")
    A(f"{L_fin}:")
    fin_key()
    A(f"{L_main}:")
    stamp(A, 3)
    def wrd1(hh, mt):
        A(f"ds_read_b64_tr_b16 {vr(H[hh]+4*mt,2)}, v{VB1} offset:{hh*5120 + mt*32}")
        A(f"ds_read_b64_tr_b16 {vr(H[hh]+4*mt+2,2)}, v{VB2} offset:{hh*5120 + mt*32}")
    def half(hh):
        A(f"ds_read_b128 {vr(XF[hh^1],4)}, v{VXA1 if hh == 0 else VXA0}")
        for mt in range(5):
            wrd1(hh ^ 1, mt)
            A("s_waitcnt lgkmcnt(11)")
            A(f"v_mfma_f32_16x16x32_bf16 {vr(VACC+4*mt,4)}, {vr(H[hh]+4*mt,4)}, {vr(XF[hh],4)}, {vr(VACC+4*mt,4)}")
    A("s_mov_b32 s46, 0")
    A(f"s_mov_b32 s34, {-(NS-1)*10240}")
    A("s_lshl_b32 s32, s25, 7")
    A("v_add_u32 v6, s32, v18")
    A("s_waitcnt lgkmcnt(0)")
    A("s_barrier")
    A(f"ds_read_b128 {vr(112,4)}, v6")
    A(f"ds_read_b128 {vr(116,4)}, v6 offset:64")
    A(f"ds_read_b128 {vr(XF[0],4)}, v{VXA0}")
    for mt in range(5):
        wrd1(0, mt)
    L_aw, L_awr = A.label("aw"), A.label("awr")
    def qloop(rg):
        L_c = A.label("c")
        A(f"{L_c}:")
        A("s_add_u32 s46, s46, 1")
        A(f"s_cmp_eq_u32 s46, {NS}")
        A("s_cselect_b32 s32, s34, 10240")
        half(0)
        A(f"v_add_u32 v{VB1}, s32, v{VB1}")
        A(f"v_add_u32 v{VB2}, s32, v{VB2}")
        A(f"v_add_u32 v{VXA0}, 8192, v{VXA0}")
        A(f"v_add_u32 v{VXA1}, 8192, v{VXA1}")
        if rg:
            A("s_add_u32 s25, s25, 1")
            A("s_cmp_eq_u32 s25, 10")
            A("s_cselect_b32 s25, 0, s25")
            A("s_lshl_b32 s32, s25, 7")
            A("v_add_u32 v6, s32, v18")
            A("s_waitcnt lgkmcnt(10)")
            for s_ in range(2):
                A(f"v_mfma_f32_16x16x32_bf16 {vr(VE,4)}, {vr(112+4*s_,4)}, {vr(XF[s_],4)}, {vr(VE,4)}")
            A(f"ds_read_b128 {vr(112,4)}, v6")
            A(f"ds_read_b128 {vr(116,4)}, v6 offset:64")
        if not rg:
            A(f"s_cmp_eq_u32 s46, {SIG}")
            A(f"s_cbranch_scc1 {L_aw}")
            A(f"{L_awr}:")
        A("s_cmp_lt_u32 s46, 10")
        A("s_barrier")
        half(1)
        A(f"s_cbranch_scc1 {L_c}")
    L_rgl, L_rgr = A.label("rgl"), A.label("rgr")
    A("s_cmp_eq_u32 s3, 2")
    A(f"s_cbranch_scc1 {L_rgl}")
    qloop(False)
    A(f"{L_rgr}:")
    stamp(A, 4)
    if X.pfQ: A.pf_start("Q")
    QB1 = [8, 16]; QS = [12, 14]
    VIDX = 4
    VKA, VA2, VVA = 20, 21, 22
    S = [32, 64]
    O = [96, 112]
    KA1 = [128, 136]; KA2 = [132, 140]
    V0 = [144, 152]; V1 = [148, 156]
    A(f"s_mov_b32 s33, {f32bits(QSCALE):#x}")
    A("v_and_b32 v2, 31, v0")
    A("v_lshrrev_b32 v3, 5, v1")
    A("v_cmp_eq_u32 s[44:45], 1, v3")
    A("v_lshlrev_b32 v6, 3, v2")
    A("s_waitcnt lgkmcnt(0)")
    A(f"v_mov_b32 v24, {OFF_V0 + 640 - OFF_A2}")
    A("s_barrier")
    for mt in range(5):
        a = VACC + 4*mt
        for i in range(4):
            A(f"v_mul_f32 v{a+i}, s33, v{a+i}")
        A(f"v_cvt_pk_bf16_f32 v{a}, v{a}, v{a+1}")
        A(f"v_cvt_pk_bf16_f32 v{a+1}, v{a+2}, v{a+3}")
        A(f"ds_write_b64 v13, {vr(a,2)} offset:{mt*1024}")
    A(f"v_cndmask_b32 v{VA2}, v6, v24, s[44:45]")
    A("s_mul_i32 s32, s29, 1280")
    A(f"s_add_u32 s32, s32, {QX}")
    A("v_add_u32 v7, s32, v6")
    A("v_lshl_add_u32 v6, v3, 9, v7")
    A("v_mul_u32_u24 v23, 20, v3")
    A("v_add_u32 v23, v23, v2")
    A("v_cmp_gt_u32 vcc, 20, v2")
    A("v_lshlrev_b32 v26, 3, v1")
    A("v_cndmask_b32 v23, 40, v23, vcc")
    A("v_lshlrev_b32 v23, 4, v23")
    A(f"s_mov_b32 s36, {WS_KMAX}")
    A(f"s_sub_u32 s37, s24, {2*SL}")
    A(f"s_cselect_b32 s37, {62*SL}, s37")
    A(f"s_add_u32 s38, s37, {SL}")
    A("s_waitcnt lgkmcnt(0)")
    A("s_barrier")
    stamp(A, 5)
    A("buffer_load_dwordx2 v[24:25], v26, s[8:11], s36 offen sc1")
    A(f"buffer_load_dwordx4 {vr(KA1[0],4)}, v5, s[8:11], s37 offen sc1")
    A(f"buffer_load_dwordx2 {vr(KA2[0],2)}, v{VA2}, s[8:11], s37 offen offset:{OFF_A2} sc1")
    A(f"buffer_load_dwordx4 {vr(KA1[1],4)}, v5, s[8:11], s38 offen sc1")
    A(f"buffer_load_dwordx2 {vr(KA2[1],2)}, v{VA2}, s[8:11], s38 offen offset:{OFF_A2} sc1")
    A(f"buffer_load_dwordx4 {vr(V0[0],4)}, v23, s[8:11], s38 offen offset:{OFF_V0} sc1")
    A(f"buffer_load_dwordx4 {vr(V1[0],4)}, v23, s[8:11], s38 offen offset:{OFF_V1} sc1")
    A(f"ds_read2_b64 {vr(QB1[0],4)}, v6 offset0:0 offset1:32")
    A(f"ds_read_b64 {vr(QS[0],2)}, v7 offset:1024")
    A("v_add_u32 v6, 5120, v6")
    A(f"ds_read2_b64 {vr(QB1[1],4)}, v6 offset0:0 offset1:32")
    A(f"ds_read_b64 {vr(QS[1],2)}, v7 offset:{1024+5120}")
    A(f"v_mov_b32 v{VKA}, v5")
    A("v_cmp_lt_u32 vcc, 20, v2")
    A("v_mov_b32 v6, 0x40000")
    A(f"v_cndmask_b32 v{VVA}, v23, v6, vcc")
    A(f"v_mov_b32 v{VIDX}, 0xdddd")
    for r in range(O[0], O[0] + 32):
        A(f"v_mov_b32 v{r}, 0")
    for r in range(S[1] + 24, S[1] + 32):
        A(f"v_mov_b32 v{r}, 0")
    for r in range(V1[1], V1[1] + 4):
        A(f"v_mov_b32 v{r}, 0")
    A("v_mov_b32 v26, 0")
    A("v_mov_b32 v28, 0")
    A(f"v_mov_b32 v30, {FCNT}")
    A("s_lshl_b32 s32, s29, 3")
    A("s_lshl_b32 s32, 1, s32")
    A("v_mov_b32 v31, 0")
    A("v_writelane_b32 v31, s32, 0")
    A("s_waitcnt lgkmcnt(0)")
    for b in range(2):
        for r in range(2):
            A(f"v_cndmask_b32 v{QS[b]+r}, v{QS[b]+r}, 0, s[44:45]")
    for r in range(4):
        A(f"v_dot2c_f32_bf16 v26, v{QB1[0]+r}, v{QB1[0]+r}")
        A(f"v_dot2c_f32_bf16 v28, v{QB1[1]+r}, v{QB1[1]+r}")
    for r in range(2):
        A(f"v_dot2c_f32_bf16 v26, v{QS[0]+r}, v{QS[0]+r}")
        A(f"v_dot2c_f32_bf16 v28, v{QS[1]+r}, v{QS[1]+r}")
    A("s_nop 2")
    A("v_mov_b32 v27, v26")
    A("v_mov_b32 v29, v28")
    A("s_nop 1")
    A("v_permlane32_swap_b32 v26, v27")
    A("v_permlane32_swap_b32 v28, v29")
    A("s_nop 1")
    A("v_add_f32 v26, v26, v27")
    A("v_add_f32 v28, v28, v29")
    A("s_waitcnt vmcnt(6)")
    wave_max_u32(A, 24, 25, 34)
    A("v_mul_f32 v26, s34, v26")
    A("v_mul_f32 v28, s34, v28")
    A("v_sqrt_f32 v26, v26")
    A("v_sqrt_f32 v28, v28")
    A("s_nop 0")
    A(f"v_mul_f32 v26, {f32bits(-(1.0 + 2.0**-6)):#x}, v26")
    A(f"v_mul_f32 v28, {f32bits(-(1.0 + 2.0**-6)):#x}, v28")
    A("v_lshrrev_b32 v26, 16, v26")
    A("v_lshrrev_b32 v28, 16, v28")
    A(f"v_cndmask_b32 v{QS[0]}, v{QS[0]}, v26, s[44:45]")
    A(f"v_cndmask_b32 v{QS[1]}, v{QS[1]}, v28, s[44:45]")
    def qs2(buf, par, b):
        A(f"v_mfma_f32_32x32x8_bf16 {vr(S[buf]+16*b,16)}, {vr(KA2[par],2)}, {vr(QS[b],2)}, 0")
    def qk1(buf, par, b):
        A(f"v_mfma_f32_32x32x16_bf16 {vr(S[buf]+16*b,16)}, {vr(KA1[par],4)}, {vr(QB1[b],4)}, {vr(S[buf]+16*b,16)}")
    def pv(buf, b, half, vpar):
        vv = V0[vpar] if half == 0 else V1[vpar]
        A(f"v_smfmac_f32_32x32x32_bf16 {vr(O[b],16)}, {vr(vv,4)}, {vr(S[buf]+16*b+8*half,8)}, v{VIDX}")
    A("s_waitcnt vmcnt(4)")
    qs2(0, 0, 0); qk1(0, 0, 0); qs2(0, 0, 1); qk1(0, 0, 1)
    A("s_mov_b32 s46, 0")
    A("s_waitcnt vmcnt(0)")
    A("s_nop 7")
    stamp(A, 6)
    L_loop, L_sp, L_kr = A.label("loop"), A.label("sp"), A.label("kr")
    A(f"{L_sp}:")
    A("s_barrier")
    if X.al is not None:
        A(".p2align 6")
        for i in range(X.al // 4): A("s_nop 0")
    A(f"{L_loop}:")
    if X.itst:
        A("s_waitcnt lgkmcnt(0)")
        for k in range(1, 8): A(f"s_mov_b32 s{SB+2*k}, s{SB+2*k+2}")
        A(f"s_memtime s[{SB+16}:{SB+17}]")
    sched = {2: 'pv1p', 6: 's2a', 10: 'q1a', 14: 'pv0a', 18: 'pv1a', 22: 's2b', 26: 'q1b', 30: 'pv0b'}
    for t in range(U_TILES):
        par = t & 1
        off = t * SL
        for e in range(32):
            op = sched.get(e)
            if op == 'pv1p':
                pv(par ^ 1, 1, 1, par ^ 1)
                A("s_waitcnt lgkmcnt(0)")
                A(f"ds_read_b128 {vr(V0[par^1],4)}, v{VVA} offset:{off+OFF_V0}")
                A(f"ds_read_b128 {vr(V1[par^1],4)}, v{VVA} offset:{off+OFF_V1}")
            if op == 's2a': qs2(par ^ 1, par ^ 1, 0)
            if op == 's2b': qs2(par ^ 1, par ^ 1, 1)
            if op == 'pv0a':
                pv(par, 0, 0, par)
                A(f"ds_read_b128 {vr(KA1[par],4)}, v{VKA} offset:{off}")
                A(f"ds_read_b64 {vr(KA2[par],2)}, v{VA2} offset:{off+OFF_A2}")
                if t == U_TILES - 1: A("ds_read_b32 v24, v30 offset:16")
            if op == 'q1a': qk1(par ^ 1, par ^ 1, 0)
            if op == 'pv1a': pv(par, 0, 1, par)
            if op == 'q1b': qk1(par ^ 1, par ^ 1, 1)
            if op in ('q1a', 'q1b') and X.pad: A(f"s_nop {X.pad - 1}")
            if op == 'pv0b':
                pv(par, 1, 0, par)
                if t == U_TILES - 1:
                    A("s_add_u32 s46, s46, 1")
                    A("s_bitcmp1_b32 0x12e, s46")
                    A(f"v_add_u32 v{VKA}, {U_TILES*SL}, v{VKA}")
                    A(f"v_add_u32 v{VA2}, {U_TILES*SL}, v{VA2}")
                    A(f"v_add_u32 v{VVA}, {U_TILES*SL}, v{VVA}")
            A(f"v_exp_f32 v{S[par]+e}, v{S[par]+e}")
    A(f"s_cbranch_scc0 {L_loop}")
    A("s_cmp_eq_u32 s46, 1")
    A(f"s_cbranch_scc1 {L_sp}")
    A("s_waitcnt lgkmcnt(0)")
    A("v_readfirstlane_b32 s32, v24")
    A("s_mov_b64 exec, 1")
    A("ds_add_u32 v30, v31 offset:4")
    A("s_mov_b64 exec, -1")
    A("s_cmp_lt_u32 s32, 4")
    A(f"s_cbranch_scc1 {L_kr}")
    A("s_cmp_lt_u32 s46, 8")
    A(f"s_cbranch_scc1 {L_loop}")
    if X.itst: stamp(A, 9)
    elif not X.pdiag: stamp(A, 7)
    if X.pfT: A.pf_start("T")
    pv(1, 1, 1, 1)
    A(f"v_mov_b32 v26, {LTHR:#x}")
    A("s_nop 1")
    L_fb, L_norm = A.label("fb"), A.label("norm")
    A(f"v_rcp_f32 v28, v{O[0]+8}")
    A("s_nop 0")
    A("v_mov_b32 v29, v28")
    A("s_nop 1")
    A("v_permlane32_swap_b32 v28, v29")
    A("s_nop 3")
    A(f"v_min_f32 v27, v{O[0]+8}, v{O[1]+8}")
    A(f"v_cmp_nge_f32 vcc, v27, v26")
    A(f"v_cmp_u_f32 s[36:37], v{O[0]+8}, v{O[1]+8}")
    A("s_or_b64 vcc, vcc, s[36:37]")
    A("s_and_b64 vcc, vcc, s[44:45]")
    A(f"s_cbranch_vccnz {L_fb}")
    A(f"{L_norm}:")
    A(f"v_rcp_f32 v26, v{O[1]+8}")
    for r in range(12):
        A(f"v_mul_f32 v{O[0]+r}, v{O[0]+r}, v29")
    A("v_mov_b32 v27, v26")
    for r in range(6):
        A(f"v_cvt_pk_bf16_f32 v{S[0]+r}, v{O[0]+2*r}, v{O[0]+2*r+1}")
    A("v_permlane32_swap_b32 v26, v27")
    A(f"buffer_store_dwordx4 {vr(S[0],4)}, v{POA}, s[8:11], s74 offen sc1")
    A(f"buffer_store_dwordx2 {vr(S[0]+4,2)}, v{POB}, s[8:11], s75 offen sc1")
    for r in range(12):
        A(f"v_mul_f32 v{O[1]+r}, v{O[1]+r}, v27")
    for r in range(6):
        A(f"v_cvt_pk_bf16_f32 v{S[0]+8+r}, v{O[1]+2*r}, v{O[1]+2*r+1}")
    A(f"buffer_store_dwordx4 {vr(S[0]+8,4)}, v{POA}, s[8:11], s58 offen sc1")
    A(f"buffer_store_dwordx2 {vr(S[0]+12,2)}, v{POB}, s[8:11], s59 offen sc1")
    ACC = 8; OF = 56
    WFS = list(range(96, 160, 4)) + list(range(176, 256, 4))
    NPRE = 7
    XV = 28; G = 48
    TT = list(range(36, 48)) + list(range(52, 56))
    ORD = [8, 9, 0, 1, 2, 3, 4, 5, 6, 7]
    def wslot(s, mt):
        return WFS[5*(s % NPRE) + mt]
    def wrd(p, mt):
        slot = wslot(p, mt)
        s = ORD[p]
        if s < 8:
            b, off, o2 = PM, s * 6400 + mt * 32, 1280
        else:
            b, off, o2 = PT, (s - 8) * 25600 + mt * 32, 3200
        A(f"ds_read_b64_tr_b16 {vr(slot,2)}, v{b} offset:{off}")
        A(f"ds_read_b64_tr_b16 {vr(slot+2,2)}, v{b} offset:{off+o2}")
    def gx_loads(xv):
        A("s_mov_b32 s20, s4")
        A("s_and_b32 s21, s5, 0xffff")
        A(f"v_lshlrev_b32 v6, 2, v{PTK}")
        A(f"s_mov_b32 s32, {WS_G}")
        A(f"buffer_load_dword v{G}, v6, s[8:11], s32 offen sc1")
        A(f"buffer_load_dword v{G+1}, v6, s[8:11], s32 offen offset:16 sc1")
        A(f"buffer_load_dwordx4 {vr(xv,4)}, v{PX}, s[20:23], 0 offen")
        A(f"buffer_load_dwordx4 {vr(xv+4,4)}, v{PX}, s[20:23], s55 offen")
        A(f"s_mov_b32 s46, {SPIN}")
        A("s_mov_b32 s71, -1")
        A("s_mov_b32 s47, 0")
    def gate_math():
        for j in range(2):
            bf16r(A, G+j, G+j)
            sigmoid(A, G+j, G+j, G+2)
            bf16r(A, G+j, G+j)
        for j in range(2):
            A(f"v_sub_f32 v{G+2+j}, 1.0, v{G+j}")
            bf16r(A, G+2+j, G+2+j)
        for i in range(8):
            A(f"v_lshlrev_b32 v{TT[2*i]}, 16, v{XV+i}")
            A(f"v_and_b32 v{TT[2*i+1]}, 0xffff0000, v{XV+i}")
        A("s_mov_b32 s20, s6")
        A("s_and_b32 s21, s7, 0xffff")
    RL = [A.label("rl") for _ in range(10)]
    RC = [A.label("rc") for _ in range(10)]
    RT = [A.label("rt") for _ in range(10)]
    L_disp, L_h2, L_h3, L_ng2 = A.label("disp"), A.label("h2"), A.label("h3"), A.label("ng2")
    A("s_barrier")
    A(f"{L_op}:")
    for s in range(NPRE):
        for mt in range(5):
            wrd(s, mt)
    gx_loads(XV)
    A("s_cmp_lg_u32 s72, 0")
    A(f"s_cbranch_scc1 {L_h2}")
    A("s_waitcnt vmcnt(4)")
    A("s_barrier")
    L_rl, L_mm, L_rt, L_sel, L_nosel = A.label("rl"), A.label("mm"), A.label("rt"), A.label("sel"), A.label("nosel")
    A("s_waitcnt vmcnt(0)")
    gate_math()
    A(f"{L_h3}:")
    A(f"v_mov_b32 v6, {FCNT}")
    A("ds_read_b32 v6, v6 offset:12")
    A("s_waitcnt lgkmcnt(0)")
    A("v_readfirstlane_b32 s56, v6")
    A("s_lshr_b32 s33, s52, 3")
    A("s_lshr_b32 s32, s56, 3")
    A("s_cmp_eq_u32 s32, s33")
    A(f"s_cbranch_scc1 {L_sel}")
    A(f"{L_nosel}:")
    for i in range(0, 16, 2):
        A(f"v_pk_mul_f32 {vr(TT[i],2)}, {vr(TT[i],2)}, {vr(G+2,2)} " + ("op_sel:[0,0] op_sel_hi:[1,0]" if i < 8 else "op_sel:[0,1] op_sel_hi:[1,1]"))
    A("s_cmp_eq_u32 s72, 0")
    A(f"s_cbranch_scc1 {L_rl}")
    A("s_barrier")
    A(f"{L_rl}:")
    if not (X.pdiag or X.itst): stamp(A, 8)
    def oload(p):
        s = ORD[p]
        if s < 8:
            A(f"buffer_load_dwordx4 {vr(OF+4*p,4)}, v5, s[8:11], s{12+s} offen sc1")
        else:
            A(f"buffer_load_dwordx2 {vr(OF+4*p,2)}, v{PO0+s-8}, s[8:11], s70 offen sc1")
            A(f"buffer_load_dwordx2 {vr(OF+4*p+2,2)}, v{PO0+s-8}, s[8:11], s70 offen offset:128 sc1")
    for p in range(10):
        oload(p)
    A(f"{L_mm}:")
    if X.tdiag: stamp(A, 1)
    L_et = A.label("et")
    def tailchk():
        A(f"v_max3_u32 v6, v{OF}, v{OF+1}, v{OF+2}")
        A(f"v_max3_u32 v6, v{OF+3}, v{OF+4}, v6")
        A(f"v_max3_u32 v6, v{OF+5}, v{OF+6}, v6")
        A(f"v_max_u32 v6, v{OF+7}, v6")
        A("v_cmp_eq_u32 vcc, s71, v6")
    A("s_waitcnt vmcnt(8)")
    tailchk()
    A(f"s_cbranch_vccnz {L_et}")
    L_mm2 = A.label("mm2")
    A(f"{L_mm2}:")
    for s in range(10):
        A(f"s_waitcnt vmcnt({min(8, 9-s)})" + (" lgkmcnt(0)" if s in (0, NPRE) else ""))
        if X.tdiag and s in (0, 4, 9): stamp(A, {0: 2, 4: 3, 9: 4}[s])
        o = OF + 4*s
        for mt in range(5):
            A(f"v_mfma_f32_16x16x32_bf16 {vr(ACC+4*mt,4)}, {vr(wslot(s,mt),4)}, {vr(OF+4*s,4)}, {vr(ACC+4*mt,4) if s else 0}")
            if mt < 2 and s >= 2: A(f"v_max3_u32 v6, v{o+2*mt}, v{o+2*mt+1}, v6")
            if s + NPRE < 10 and mt > 0: wrd(s + NPRE, mt - 1)
        if s + NPRE < 10: wrd(s + NPRE, 4)
    A("v_cmp_eq_u32 vcc, s71, v6")
    A(f"s_cbranch_vccnz {L_rt}")
    A("s_nop 1")
    for mt in range(5):
        A(f"ds_write_b128 v{PPW}, {vr(ACC+4*mt,4)} offset:{mt*64}")
        if mt == 0: A("s_nop 3")
    A("s_waitcnt lgkmcnt(0)")
    if not (X.pdiag or X.itst): stamp(A, 9)
    A("s_barrier")
    if X.tdiag:
        stamp(A, 5)
        A("s_waitcnt lgkmcnt(0)")
        A(f"s_mov_b32 s{SB+12}, s46")
        A(f"s_mov_b32 s{SB+13}, 0")
    P = 96
    for j in range(2):
        for k in range(2):
            for h in range(2):
                A(f"ds_read_b128 {vr(P+16*j+8*k+4*h,4)}, v{PPR} offset:{j*1344 + k*21504 + h*16}")
    for j in range(2):
        A(f"s_waitcnt lgkmcnt({4*(1-j)})")
        for i in range(0, 8, 2):
            A(f"v_pk_add_f32 {vr(P+16*j+i,2)}, {vr(P+16*j+i,2)}, {vr(P+16*j+8+i,2)}")
        for i in range(0, 8, 2):
            A(f"v_pk_fma_f32 {vr(TT[8*j+i],2)}, {vr(P+16*j+i,2)}, {vr(G,2)}, {vr(TT[8*j+i],2)} " + ("op_sel:[0,0,0] op_sel_hi:[1,0,1]" if j == 0 else "op_sel:[0,1,0] op_sel_hi:[1,1,1]"))
        for i in range(4):
            A(f"v_cvt_pk_bf16_f32 v{XV+4*j+i}, v{TT[8*j+2*i]}, v{TT[8*j+2*i+1]}")
        A(f"buffer_store_dwordx4 {vr(XV+4*j,4)}, v{PX}, s[20:23], {'0' if j == 0 else 's55'} offen {X.ost}")
    if X.pfT: A.pf_stop("PFRET_T")
    stamp_rt(A, 10)
    stamp_flush(A, 11, 8, 29)
    A(f"{L_exit}:")
    A("s_endpgm")
    A(f"{L_et}:")
    A("s_sub_u32 s46, s46, 1")
    A("s_cselect_b32 s71, 0x12345, s71")
    A("s_cselect_b32 s46, 0, s46")
    oload(0); oload(1)
    A("s_waitcnt vmcnt(0)")
    tailchk()
    A(f"s_cbranch_vccnz {L_et}")
    for p in range(2, 10):
        Ls = A.label("sk")
        o = OF + 4*p
        A(f"v_max3_u32 v7, v{o}, v{o+1}, v{o+2}")
        A(f"v_max_u32 v7, v7, v{o+3}")
        A("v_cmp_eq_u32 vcc, s71, v7")
        A(f"s_cbranch_vccz {Ls}")
        oload(p)
        A(f"{Ls}:")
    A("s_waitcnt vmcnt(0)")
    A(f"s_branch {L_mm2}")
    A(f"{L_rt}:")
    A("s_mov_b32 s47, 1")
    A("s_sub_u32 s46, s46, 1")
    A("s_cselect_b32 s71, 0x12345, s71")
    A("s_cselect_b32 s46, 0, s46")
    for s_ in range(10 - NPRE):
        for mt in range(5):
            wrd(s_, mt)
    A(f"s_branch {L_rl}")
    A(f"{L_sel}:")
    A(f"ds_read_b128 {vr(XV,4)}, v{PY}")
    A(f"ds_read_b128 {vr(XV+4,4)}, v{PY} offset:16")
    A("s_waitcnt lgkmcnt(0)")
    for j in range(2):
        A(f"v_add_u32 v6, {4*j}, v{PTK}")
        A("v_cmp_eq_u32 vcc, s56, v6")
        for i in range(8):
            A(f"v_add_f32 v6, v{TT[8*j+i]}, v{XV+i}")
            bf16r(A, 6, 6)
            A(f"v_cndmask_b32 v{TT[8*j+i]}, v{TT[8*j+i]}, v6, vcc")
    A(f"s_branch {L_nosel}")
    A(f"{L_kr}:")
    A("ds_read_b32 v24, v30 offset:16")
    A("s_waitcnt lgkmcnt(0)")
    A("v_readfirstlane_b32 s32, v24")
    A("s_cmp_lt_u32 s32, 4")
    A(f"s_cbranch_scc1 {L_kr}")
    A(f"s_branch {L_loop}")
    A(f"{L_aw}:")
    A("s_waitcnt vmcnt(0)")
    A(f"s_branch {L_awr}")
    A(f"{L_rgl}:")
    qloop(True)
    A("v_add_u32 v8, s50, v2")
    A("v_lshlrev_b32 v6, 2, v8")
    A("v_lshl_or_b32 v6, v3, 28, v6")
    A("v_sub_u32 v8, 2047, v8")
    A(f"s_mov_b32 s33, {WS_R}")
    A(f"s_mov_b32 s34, {WS_G}")
    A(f"buffer_store_dword v{VE}, v6, s[8:11], s33 offen sc1")
    A(f"buffer_store_dword v{VE+1}, v6, s[8:11], s34 offen sc1")
    A(f"v_ashrrev_i32 v7, 31, v{VE}")
    A("v_or_b32 v7, 0x80000000, v7")
    A(f"v_xor_b32 v7, v7, v{VE}")
    A("v_and_b32 v7, 0xfffff800, v7")
    A("v_or_b32 v7, v7, v8")
    A(f"s_mov_b32 s34, {WS_RKEY}")
    fin_key()
    A("s_mul_i32 s32, s50, 20")
    A(f"s_add_u32 s32, s32, {WS_Y}")
    A("v_cmp_gt_u32 vcc, 20, v1")
    A("v_mov_b32 v7, 0x40000000")
    A("v_cndmask_b32 v6, v7, v5, vcc")
    A(f"buffer_store_dwordx4 {vr(VE+4,4)}, v6, s[8:11], s32 offen sc1")
    A("s_lshl_b32 s32, s30, 7")
    A(f"s_add_u32 s33, s32, {WS_GC}")
    A(f"buffer_store_dword v{VE+4}, v24, s[8:11], s33 offen sc1")
    A(f"s_add_u32 s33, s32, {WS_FC}")
    A(f"buffer_store_dword v{VE+4}, v24, s[8:11], s33 offen sc1")
    A(f"s_branch {L_rgr}")
    A(f"{L_fb}:")
    A("v_lshlrev_b32 v21, 3, v2")
    for b in range(2):
        A(f"v_cndmask_b32 v{QS[b]}, v{QS[b]}, 0, s[44:45]")
    A("v_mov_b32 v30, 0xff800000")
    A("v_mov_b32 v31, 0xff800000")
    L_p1, L_p2 = A.label("p1"), A.label("p2")
    def fb_s():
        A(f"buffer_load_dwordx4 {vr(KA1[0],4)}, v5, s[8:11], s32 offen sc1")
        A(f"buffer_load_dwordx2 {vr(KA2[0],2)}, v21, s[8:11], s32 offen offset:{OFF_A2} sc1")
    def fb_qk():
        A("s_waitcnt vmcnt(0)")
        qs2(0, 0, 0); qk1(0, 0, 0); qs2(0, 0, 1); qk1(0, 0, 1)
        A("s_nop 15")
    A("s_mov_b32 s32, 0")
    A(f"{L_p1}:")
    fb_s(); fb_qk()
    for r in range(0, 16, 2):
        A(f"v_max3_f32 v30, v{S[0]+r}, v{S[0]+r+1}, v30")
        A(f"v_max3_f32 v31, v{S[0]+16+r}, v{S[0]+16+r+1}, v31")
    A(f"s_add_u32 s32, s32, {SL}")
    A(f"s_cmp_lt_u32 s32, {64*SL}")
    A(f"s_cbranch_scc1 {L_p1}")
    A("v_mov_b32 v28, v30")
    A("v_mov_b32 v29, v31")
    A("s_nop 1")
    A("v_permlane32_swap_b32 v30, v28")
    A("v_permlane32_swap_b32 v31, v29")
    A("s_nop 1")
    A("v_max_f32 v30, v30, v28")
    A("v_max_f32 v31, v31, v29")
    for r in range(32):
        A(f"v_mov_b32 v{O[0]+r}, 0")
    A("s_mov_b32 s32, 0")
    A(f"{L_p2}:")
    fb_s()
    A(f"s_add_u32 s32, s32, {SL}")
    A(f"s_cmp_lt_u32 s32, {64*SL}")
    A("s_cselect_b32 s33, s32, 0")
    A(f"buffer_load_dwordx4 {vr(V0[0],4)}, v23, s[8:11], s33 offen offset:{OFF_V0} sc1")
    A(f"buffer_load_dwordx4 {vr(V1[0],4)}, v23, s[8:11], s33 offen offset:{OFF_V1} sc1")
    fb_qk()
    for r in range(32):
        A(f"v_sub_f32 v{S[0]+r}, v{S[0]+r}, v{30 + r // 16}")
    for r in range(32):
        A(f"v_exp_f32 v{S[0]+r}, v{S[0]+r}")
    A("s_nop 2")
    pv(0, 0, 0, 0); pv(0, 1, 0, 0); pv(0, 0, 1, 0); pv(0, 1, 1, 0)
    A(f"s_cmp_lt_u32 s32, {64*SL}")
    A(f"s_cbranch_scc1 {L_p2}")
    A("s_nop 15")
    A(f"v_rcp_f32 v28, v{O[0]+8}")
    A("s_nop 0")
    A("v_mov_b32 v29, v28")
    A("s_nop 1")
    A("v_permlane32_swap_b32 v28, v29")
    A("s_nop 1")
    A(f"s_branch {L_norm}")

    def early_setup():
        common_setup()
        oproj_addr()
        o_addr()
        for i in range(4):
            A(f"v_mov_b32 v{176+i}, -1")
        A(f"v_mov_b32 v173, {FCNT}")
        A("v_mov_b32 v6, 0")
        A("v_mov_b32 v7, 0")
        A("v_lshlrev_b32 v10, 3, v1")
        A("v_mul_u32_u24 v11, 3072, v1")
        A("v_cmp_gt_u32 vcc, 40, v1")
        A("v_mov_b32 v4, 0x40000000")
        A("v_cndmask_b32 v4, v4, v10, vcc")
        A("v_mov_b32 v175, 1")
        A("v_lshlrev_b32 v9, 1, v1")
        for j in range(12):
            A(f"v_mov_b32 v{12+j}, 0")
        A("v_and_b32 v8, 7, v1")
        A("v_lshlrev_b32 v8, 2, v8")
        A(f"v_add_u32 v8, {FB}, v8")
        A("s_lshl_b32 s32, s26, 5")
        A(f"s_add_u32 s32, s32, {FB}")
        A("v_lshl_add_u32 v25, v3, 3, s32")
        A("v_lshlrev_b32 v26, 1, v4")

    A(".MARK_H_BEGIN")
    A(f"{L_help}:")
    A("s_mov_b32 s72, 1")
    A("s_sub_u32 s26, s29, 4")
    A("v_lshrrev_b32 v6, 3, v1")
    A("v_and_b32 v7, 7, v1")
    A("v_lshrrev_b32 v8, 1, v6")
    A("v_xor_b32 v7, v7, v8")
    A("v_mul_u32_u24 v6, 1280, v6")
    A("v_lshl_add_u32 v181, v7, 4, v6")
    A("v_xor_b32 v182, 64, v181")
    A("v_add_u32 v182, 9216, v182")
    A("v_mul_u32_u24 v2, 26, v1")
    A("v_lshrrev_b32 v2, 8, v2")
    A("v_mul_u32_u24 v3, 10, v2")
    A("v_sub_u32 v3, v1, v3")
    A("v_mul_u32_u24 v2, 1280, v2")
    A("v_lshl_add_u32 v172, v3, 4, v2")
    A("v_add_u32 v183, 17920, v172")
    A("s_mul_i32 s63, s30, 81920")
    A("s_mul_i32 s32, s26, 20480")
    A("s_add_u32 s63, s63, s32")
    A("s_lshl_b32 s64, s26, 11")
    A("s_lshr_b32 s32, s26, 1")
    A("s_xor_b32 s32, s32, s26")
    A("s_mul_i32 s61, s32, 5120")
    A("s_mul_i32 s33, s31, 160")
    A("s_add_u32 s61, s61, s33")
    A("s_mul_i32 s62, s26, 640")
    A(f"s_add_u32 s62, s62, {WR}")
    A("s_mov_b32 s66, -1")
    A("s_movk_i32 s67, 0xff")
    A(f"s_mov_b32 s14, {X_BYTES}")
    A("s_mov_b32 s15, 0x00020000")
    A(f"s_mov_b32 s18, {W_BYTES}")
    A("s_mov_b32 s19, 0x00020000")
    A("s_mov_b32 s23, 0x00020000")
    A("s_lshl_b32 s35, s26, 10")
    A("s_mov_b32 s65, s25")
    A("s_lshl_b32 s32, s26, 3")
    A("s_or_b32 s32, s32, s3")
    A("s_cmp_lt_u32 s32, 2")
    A(f"s_cselect_b32 s69, {SIG + DN + 1}, 99")
    A("s_waitcnt lgkmcnt(0)")
    hst(A, 1)
    A("s_mov_b32 s12, s36")
    A("s_and_b32 s13, s37, 0xffff")
    A("s_mov_b32 s16, s38")
    A("s_and_b32 s17, s39, 0xffff")
    def xpiece():
        A("s_lshl_b32 s32, s65, 7")
        A("s_mov_b32 m0, s64")
        A("s_add_u32 s32, s32, s63")
        A("s_add_u32 s64, s64, 8192")
        A("buffer_load_dwordx4 v181, s[12:15], s32 offen lds")
        A("buffer_load_dwordx4 v182, s[12:15], s32 offen offset:1024 lds")
        A("s_add_u32 s65, s65, 1")
        A("s_cmp_eq_u32 s65, 10")
        A("s_cselect_b32 s65, 0, s65")
    def wchunk():
        A("s_mul_i32 s33, s25, 81920")
        A("s_mov_b32 m0, s62")
        A("s_add_u32 s33, s33, s61")
        A("s_mov_b64 exec, s[66:67]")
        A("buffer_load_dwordx4 v172, s[16:19], s33 offen lds")
        A("buffer_load_dwordx4 v183, s[16:19], s33 offen offset:2560 lds")
        A("s_add_u32 m0, s62, 5120")
        A("s_add_u32 s33, s33, 40960")
        A("buffer_load_dwordx4 v172, s[16:19], s33 offen lds")
        A("buffer_load_dwordx4 v183, s[16:19], s33 offen offset:2560 lds")
        A("s_mov_b64 exec, -1")
        A("s_add_u32 s62, s62, 10240")
        A(f"s_cmp_ge_u32 s62, {WR + NS*10240}")
        A(f"s_cselect_b32 s32, {NS*10240}, 0")
        A("s_sub_u32 s62, s62, s32")
        A("s_add_u32 s25, s25, 1")
        A("s_cmp_eq_u32 s25, 10")
        A("s_cselect_b32 s25, 0, s25")
    L_prod, L_p1d, L_nv2 = A.label("prod"), A.label("p1d"), A.label("nv2")
    A("s_cmp_lt_u32 s3, 2")
    A(f"s_cbranch_scc1 {L_prod}")
    A("s_cmp_lg_u32 s3, 2")
    A(f"s_cbranch_scc1 {L_nv2}")
    A("s_bitcmp1_b32 s26, 0")
    A("s_cselect_b32 s20, s4, s44")
    A("s_cselect_b32 s21, s5, s45")
    A("s_and_b32 s21, s21, 0xffff")
    A("s_movk_i32 s22, 1280")
    A("s_lshr_b32 s32, s26, 1")
    A("s_mul_i32 s32, s32, 640")
    A("s_and_b32 s33, s26, 1")
    A("s_mul_i32 s33, s33, 1280")
    A("s_add_u32 s33, s33, s32")
    A(f"s_add_u32 m0, s33, {VR}")
    A("s_mov_b64 exec, s[66:67]")
    A(f"buffer_load_dwordx4 v5, s[20:23], s32 offen lds")
    A("s_mov_b64 exec, -1")
    A(f"{L_nv2}:")
    L_l, L_x = A.label("l"), A.label("x")
    A(f"{L_x}:")
    xpiece()
    A("s_cmp_lg_u32 s65, s25")
    A(f"s_cbranch_scc1 {L_x}")
    early_setup()
    A("s_mov_b32 s46, 0")
    A("s_mov_b32 s34, 1")
    A(f"{L_l}:")
    wchunk()
    A("s_add_u32 s46, s46, 1")
    A(f"s_cmp_le_u32 s46, {DN}")
    A(f"s_cbranch_scc1 {L_l}")
    chks = []
    def chk():
        L, Lr = A.label("chk"), A.label("chkr")
        chks.append((L, Lr))
        A("s_cmp_eq_u32 s34, 63")
        A(f"s_cbranch_scc1 {L}")
        A(f"{Lr}:")
    L_ns, L_lw = A.label("ns"), A.label("lw")
    A(f"{L_lw}:")
    chk()
    A(f"s_waitcnt vmcnt({4*DN})")
    chk()
    A("s_barrier")
    chk()
    L_sgn = A.label("sgn")
    A("s_cmp_eq_u32 s46, s69")
    A(f"s_cbranch_scc1 {L_sgn}")
    A(f"{L_ns}:")
    A("s_cmp_lt_u32 s46, 10")
    A(f"s_cbranch_scc1 {L_l}")
    for d in range(DN - 1, -1, -1):
        A(f"s_waitcnt vmcnt({4*d})" + (" lgkmcnt(0)" if d == 0 else ""))
        chk()
        A("s_barrier")
    A(f"s_branch {L_p1d}")
    A(f"{L_sgn}:")
    A("s_atomic_add s34, s[48:49], 0x0 glc")
    A(f"s_branch {L_ns}")
    for L, Lr in chks:
        A(f"{L}:")
        A("s_mov_b32 s34, 1")
        A("s_atomic_add s34, s[48:49], 0x80")
        A(f"s_branch {Lr}")
    A(f"{L_prod}:")
    A("s_cmp_eq_u32 s3, 0")
    A("s_cselect_b32 s20, s40, s42")
    A("s_cselect_b32 s21, s41, s43")
    A("s_and_b32 s21, s21, 0xffff")
    A("s_movk_i32 s22, 25600")
    A("s_mul_i32 s35, s26, 640")
    A(f"s_add_u32 s68, s35, {ER}")
    A("s_mov_b32 s46, 0")
    L_a, L_w = A.label("a"), A.label("w")
    A(f"{L_a}:")
    A("s_mul_i32 s34, s65, 2560")
    A("s_mov_b32 m0, s68")
    A("s_add_u32 s34, s34, s35")
    A("s_mov_b64 exec, s[66:67]")
    A("buffer_load_dwordx4 v5, s[20:23], s34 offen lds")
    A("buffer_load_dwordx4 v5, s[20:23], s34 offen offset:2560 lds")
    A("s_mov_b64 exec, -1")
    A("s_add_u32 s68, s68, 5120")
    xpiece(); xpiece()
    A("s_add_u32 s46, s46, 1")
    A("s_cmp_le_u32 s46, 2")
    A(f"s_cbranch_scc1 {L_a}")
    A("s_waitcnt vmcnt(12)")
    A("s_barrier")
    A("s_cmp_lt_u32 s46, 5")
    A(f"s_cbranch_scc1 {L_a}")
    A("s_mov_b32 s46, 0")
    wchunk()
    A("s_waitcnt vmcnt(10)")
    A("s_barrier")
    wchunk()
    A("s_waitcnt vmcnt(8)")
    A("s_barrier")
    hst(A, 2)
    wchunk()
    A("s_barrier")
    hst(A, 3)
    wchunk()
    early_setup()
    A("s_mov_b32 s46, 4")
    A("s_mov_b32 s34, 1")
    A(f"s_branch {L_lw}")
    A(f"{L_p1d}:")
    A("s_branch L_HELP2")
    A(".MARK_H_END")
    A("L_HELP2:")
    A(f"s_load_dwordx2 s[38:39], s[0:1], {KA_WO}")
    A(f"s_load_dwordx4 s[40:43], s[0:1], {KA_WG}")
    A(f"s_load_dwordx2 s[44:45], s[0:1], {KA_WD}")
    common_setup2()
    A("v_lshlrev_b32 v174, 24, v1")
    if not X.direct: A("buffer_load_dword v29, v174, s[76:79], 0 offen offset:128 sc1")
    A("s_mov_b32 s4, s36")
    A("s_mov_b32 s5, s37")
    A("s_lshl_b32 s32, s26, 10")
    A("s_mov_b32 m0, s32")
    A("s_add_u32 s53, s32, s24")
    A("s_barrier")
    A("s_barrier")
    hst(A, 8)
    A("s_mul_i32 s64, s26, 5120")
    A("s_add_u32 s64, s64, s54")
    A("s_mul_i32 s32, s73, 51200")
    A("s_add_u32 s64, s64, s32")
    A(f"s_mov_b32 s69, {320*1280}")
    A("s_mul_i32 s65, s26, 640")
    A("s_waitcnt lgkmcnt(0)")
    srd(A, 60, 38, W_BYTES)
    L_g1, L_g2 = A.label("g1"), A.label("g2")
    if X.direct:
        A("s_cmp_lg_u32 s26, 0")
        A(f"s_cbranch_scc1 {L_g1}")
        await_cnt(A, 28, X.gsl)
    else:
        A("s_waitcnt vmcnt(0)")
        A("v_readfirstlane_b32 s32, v29")
        A("s_or_b32 s32, s32, s26")
        A("s_cmp_lg_u32 s32, 0")
        A(f"s_cbranch_scc1 {L_g1}")
        await_go(A, 0, 28, X.gsl)
    A(f"{L_g1}:")
    hst(A, 9)
    A("s_barrier")
    if not X.pdiag: stamp(A, 1)
    def dma(n):
        L = A.label("dma")
        A(f"s_add_u32 s34, m0, {n*4096}")
        A(f"{L}:")
        A("buffer_load_dwordx4 v5, s[8:11], s53 offen sc1 lds")
        A("s_add_u32 m0, m0, 4096")
        A("s_add_u32 s53, s53, 4096")
        A(f"s_cmp_ge_u32 s53, {64*SL}")
        A(f"s_cselect_b32 s32, {64*SL}, 0")
        A("s_sub_u32 s53, s53, s32")
        A("s_cmp_lt_u32 m0, s34")
        A(f"s_cbranch_scc1 {L}")
    def need(tiles):
        return min(40, -(-(-(-tiles*SL // 1024)) // 4))
    n0, n1 = need(U_TILES), need(U_TILES * 2)
    nb = X.nb0
    dma(nb)
    A(f"s_waitcnt vmcnt({nb - n0})")
    A("s_barrier")
    L_b2, L_b3, L_b4 = A.label("b2"), A.label("b3"), A.label("b4")
    A("s_lshl_b32 s32, s26, 3")
    A("s_or_b32 s32, s32, s3")
    A("s_mov_b32 s35, 1")
    A("s_cmp_lg_u32 s32, 2")
    A(f"s_cbranch_scc1 {L_b3}")
    A("s_atomic_add s35, s[48:49], 0x4 glc")
    A(f"{L_b3}:")
    A("s_mov_b64 exec, 1")
    A("ds_write_b64 v173, v[6:7]")
    A("ds_write_b64 v173, v[6:7] offset:8")
    A("ds_write_b32 v173, v6 offset:16")
    A("s_mov_b64 exec, -1")
    dma(40 - nb - 1)
    A("s_cmp_eq_u32 s26, 3")
    A("s_cselect_b32 s32, 0x3fffffff, -1")
    A("s_cselect_b32 s33, 0, -1")
    A("s_mov_b64 exec, s[32:33]")
    A("buffer_load_dwordx4 v5, s[8:11], s53 offen sc1 lds")
    A("s_mov_b64 exec, -1")
    A(f"s_waitcnt vmcnt({40 - n1}) lgkmcnt(0)")
    A("s_cmp_lg_u32 s35, 31")
    A(f"s_cbranch_scc1 {L_b4}")
    A("s_atomic_add s35, s[48:49], 0x84")
    A(f"{L_b4}:")
    A("s_barrier")
    A(f"buffer_store_dwordx4 v[176:179], v{POA}, s[8:11], s74 offen sc1")
    A(f"buffer_store_dwordx2 v[176:177], v{POB}, s[8:11], s75 offen sc1")
    A(f"buffer_store_dwordx4 v[176:179], v{POA}, s[8:11], s58 offen sc1")
    A(f"buffer_store_dwordx2 v[176:177], v{POB}, s[8:11], s59 offen sc1")
    if not X.pdiag: stamp(A, 2)
    def lds_wait(off, thr, slp=2):
        Lp = A.label("lw")
        A(f"{Lp}:")
        A(f"ds_read_b32 v171, v173 offset:{off}")
        A("s_waitcnt lgkmcnt(0)")
        A("v_readfirstlane_b32 s32, v171")
        A(f"s_sleep {slp}")
        A(f"s_cmp_lt_u32 s32, {thr}")
        A(f"s_cbranch_scc1 {Lp}")
    def wo_part(thr):
        Lw = A.label("wl")
        Lp = A.label("pw")
        A(f"{Lp}:")
        A("ds_read_b32 v171, v173 offset:4")
        A("s_waitcnt lgkmcnt(0)")
        A("v_readfirstlane_b32 s32, v171")
        A(f"s_sleep {X.slp}")
        A(f"s_add_u32 s32, s32, {0x7e7e7e7e if thr == 256 else 0x7d7d7d7d:#x}")
        A("s_andn2_b32 s32, 0x80808080, s32")
        A(f"s_cbranch_scc1 {Lp}")
        if X.nowo: return
        A(f"s_add_u32 s34, s65, 51200")
        A("s_mov_b64 exec, s[66:67]")
        A(f"{Lw}:")
        A("s_mov_b32 m0, s65")
        A("s_add_u32 s32, s64, s69")
        A("buffer_load_dwordx4 v172, s[60:63], s32 offen lds")
        A("s_add_u32 s65, s65, 2560")
        A("s_add_u32 s64, s64, 20480")
        A("s_cmp_ge_u32 s64, 409600")
        A("s_cselect_b32 s32, 409600, 0")
        A("s_sub_u32 s64, s64, s32")
        A("s_cmp_lt_u32 s65, s34")
        A(f"s_cbranch_scc1 {Lw}")
        A("s_mov_b64 exec, -1")
    A("buffer_load_dword v28, v174, s[76:79], 0 offen offset:132 sc1")
    A("s_waitcnt vmcnt(0)")
    A("s_mov_b64 exec, 1")
    A("ds_add_u32 v173, v175 offset:16")
    A("s_mov_b64 exec, -1")
    A("v_readfirstlane_b32 s32, v28")
    A("s_cmp_lg_u32 s32, 0")
    A(f"s_cbranch_scc1 {L_b2}")
    await_go(A, 4, 28, 8)
    A(f"{L_b2}:")
    A(f"s_mov_b32 s32, {WS_RKEY}")
    A("buffer_load_dwordx2 v[6:7], v10, s[8:11], s32 offen sc1")
    A("s_lshl_b32 s35, s30, 7")
    A(f"s_add_u32 s35, s35, {WS_GC}")
    A("buffer_atomic_add v175, v174, s[8:11], s35 offen sc1")
    def getidx():
        A("s_setprio 2")
        wave_max_u32(A, 6, 7, 56)
        A("s_setprio 0")
        A("s_and_b32 s56, s56, 2047")
        A("s_sub_u32 s25, 2047, s56")
    L_w1, L_w2 = A.label("w1"), A.label("w2")
    A("s_mul_i32 s47, s30, 6")
    A("s_add_u32 s47, s47, s3")
    A("s_sub_u32 s47, s47, 2")
    A(f"s_cmp_lt_u32 s3, {99 if X.noffn else 2}")
    A(f"s_cbranch_scc1 {L_w1}")
    A("s_cmp_ge_u32 s26, 2")
    A("s_cselect_b32 s16, s42, s40")
    A("s_cselect_b32 s17, s43, s41")
    A("s_and_b32 s17, s17, 0xffff")
    A(f"s_mov_b32 s18, {F_BYTES}")
    srd(A, 20, 44, F_BYTES)
    A("s_and_b32 s46, s26, 1")
    W_, WD_, XL, AC = 32, 56, 72, 12
    A(f"s_mul_i32 s32, s46, {320*3072}")
    A("s_lshl_b32 s33, s47, 4")
    A("s_add_u32 s32, s32, s33")
    for i in range(5):
        A(f"buffer_load_dwordx4 {vr(W_+4*i,4)}, v11, s[16:19], s32 offen")
        if i < 4: A(f"s_add_u32 s32, s32, {64*3072}")
    A("s_waitcnt vmcnt(5)")
    getidx()
    A("s_mul_i32 s32, s25, 1280")
    A("s_mul_i32 s33, s46, 640")
    A("s_add_u32 s32, s32, s33")
    for i in range(5):
        A(f"buffer_load_ushort v{XL+i}, v9, s[12:15], s32 offen offset:{i*128}")
    A("s_mul_i32 s32, s47, 10240")
    A("s_mul_i32 s33, s26, 320")
    A("s_add_u32 s32, s32, s33")
    for f in range(8):
        if f % 3 == 0 and f: A(f"s_add_u32 s32, s32, {3*1280}")
        A(f"buffer_load_dwordx2 {vr(WD_+2*f,2)}, v4, s[20:23], s32 offen offset:{(f%3)*1280}")
    A("s_waitcnt vmcnt(8)")
    if not X.pdiag: stamp(A, 3)
    A("s_setprio 2")
    for i in range(5):
        A(f"v_lshlrev_b32 v{XL+5}, 16, v{XL+i}")
        for dw in range(4):
            A(f"v_dot2c_f32_bf16 v{AC+2*dw}, v{W_+4*i+dw}, v{XL+i}")
            A(f"v_dot2c_f32_bf16 v{AC+2*dw+1}, v{W_+4*i+dw}, v{XL+5}")
    A("s_nop 3")
    for j in range(4):
        A(f"v_permlane32_swap_b32 v{AC+j}, v{AC+j+4}")
    A("s_nop 1")
    for j in range(4):
        A(f"v_add_f32 v{AC+j}, v{AC+j}, v{AC+j+4}")
    A("s_nop 1")
    for j in range(2):
        A(f"v_permlane16_swap_b32 v{AC+j}, v{AC+j+2}")
    A("s_nop 1")
    for j in range(2):
        A(f"v_add_f32 v{AC+j}, v{AC+j}, v{AC+j+2}")
    for sh in (8, 4, 2, 1):
        A("s_nop 1")
        for j in range(2):
            A(f"v_add_f32_dpp v{AC+j}, v{AC+j}, v{AC+j} row_ror:{sh} row_mask:0xf bank_mask:0xf")
    A("s_mov_b32 s32, 0x00010001")
    A("s_mov_b32 s33, 0x00010001")
    A("s_mov_b64 exec, s[32:33]")
    A(f"ds_write_b64 v25, {vr(AC,2)}")
    A("s_mov_b64 exec, -1")
    A("s_setprio 0")
    A("s_waitcnt lgkmcnt(0)")
    A("s_mov_b64 exec, 1")
    A("ds_add_u32 v173, v175")
    A("s_mov_b64 exec, -1")
    wo_part(256)
    lds_wait(0, 4)
    A("s_setprio 2")
    A("ds_read2_b32 v[12:13], v8 offset0:0 offset1:8")
    A("ds_read2_b32 v[14:15], v8 offset0:16 offset1:24")
    A("s_waitcnt lgkmcnt(0)")
    A("v_add_f32 v12, v12, v13")
    A("v_add_f32 v14, v14, v15")
    bf16r(A, 12, 12)
    sigmoid(A, 16, 12, 17)
    A("v_mul_f32 v12, v12, v16")
    bf16r(A, 12, 12)
    bf16r(A, 14, 14)
    A("v_mul_f32 v12, v12, v14")
    bf16r(A, 12, 12)
    Y = 20
    A("s_nop 0")
    def hs(f):
        hi = 13+2*f if f < 4 else 29+2*f
        return hi - 1, hi
    for f in range(8):
        A(f"v_readlane_b32 s{hs(f)[1]}, v12, {f}")
    for f in range(8):
        lo, hi = hs(f)
        A(f"s_lshr_b32 s{lo}, s{hi}, 16")
    A("s_waitcnt vmcnt(20)")
    for f in range(8):
        lo, hi = hs(f)
        for j in range(2):
            A(f"v_dot2c_f32_bf16 v{Y+2*j}, s{lo}, v{WD_+2*f+j}")
            A(f"v_dot2c_f32_bf16 v{Y+2*j+1}, s{hi}, v{WD_+2*f+j}")
    A("s_and_b32 s47, s47, 15")
    A("s_mul_i32 s32, s47, 2560")
    A("s_mul_i32 s33, s26, 640")
    A("s_add_u32 s32, s32, s33")
    A(f"s_add_u32 s32, s32, {WS_Y}")
    A("s_setprio 0")
    A("s_nop 2")
    for j in range(4):
        A(f"buffer_atomic_add_f32 v{Y+j}, v26, s[8:11], s32 offen offset:{j*4}")
    A("s_lshl_b32 s32, s47, 7")
    A(f"s_add_u32 s32, s32, {WS_FC}")
    A("s_waitcnt vmcnt(0)")
    A("buffer_atomic_add v175, v174, s[8:11], s32 offen sc1")
    A(f"s_branch {L_w2}")
    A(f"{L_w1}:")
    A("s_waitcnt vmcnt(0)")
    getidx()
    wo_part(256)
    A("s_waitcnt vmcnt(0)")
    A(f"{L_w2}:")
    if not X.pdiag: stamp(A, 4)
    A("s_mov_b64 exec, 1")
    A("ds_add_u32 v173, v175 offset:8")
    A("s_mov_b64 exec, -1")
    oproj_saddr()
    lds_wait(8, 4)
    A(f"s_branch {L_op}")
    A(f"{L_h2}:")
    if not X.pdiag: stamp(A, 5)
    A("v_mov_b32 v171, s25")
    A("s_mov_b64 exec, 1")
    A("ds_write_b32 v173, v171 offset:12")
    A("s_mov_b64 exec, -1")
    if X.pfT:
        A("s_cmp_lg_u32 s26, 2")
        A("s_cbranch_scc1 PFRET_T")
        A("s_mov_b64 exec, 0")
        A("s_branch PF_T_0")
        A("PFRET_T:")
        A("s_mov_b64 exec, -1")
    L_ny, L_sp2, L_sg, L_ng, L_gp = A.label("ny"), A.label("sp2"), A.label("sg"), A.label("ng"), A.label("gp")
    A("s_mov_b32 s69, 0")
    wo_part(512)
    A("s_waitcnt vmcnt(20)")
    if X.gprio: A("s_setprio 2")
    gate_math()
    A("s_setprio 0")
    A("s_cmp_lg_u32 s26, 1")
    A(f"s_cbranch_scc1 {L_ng}")
    A(f"{L_gp}:")
    A("buffer_load_dword v171, v174, s[8:11], s35 offen sc1")
    A("s_waitcnt vmcnt(0)")
    A("v_readfirstlane_b32 s32, v171")
    A("s_sub_u32 s46, s46, 1")
    A(f"s_cbranch_scc1 {L_ng}")
    A("s_cmp_lt_u32 s32, 32")
    A(f"s_cbranch_scc1 {L_gp}")
    A(f"{L_ng}:")
    A("s_lshr_b32 s32, s25, 6")
    A("s_lshl_b32 s33, s26, 8")
    A("s_or_b32 s33, s33, s30")
    A("s_cmp_lg_u32 s32, s33")
    A(f"s_cbranch_scc1 {L_ny}")
    A("v_lshlrev_b32 v6, 7, v2")
    A(f"s_mov_b32 s33, {WS_FC}")
    A(f"{L_sp2}:")
    A("buffer_load_dword v171, v6, s[8:11], s33 offen sc1")
    A("s_waitcnt vmcnt(0)")
    A(f"v_cmp_ne_u32 vcc, {0 if X.noffn else 48}, v171")
    A("s_sub_u32 s46, s46, 1")
    A(f"s_cbranch_scc1 {L_sg}")
    A("s_sleep 8")
    A(f"s_cbranch_vccnz {L_sp2}")
    A(f"{L_sg}:")
    A("s_setprio 2")
    Yv = OF
    A("v_mul_u32_u24 v6, 2560, v2")
    A("v_lshl_add_u32 v6, v3, 4, v6")
    A("s_lshl_b32 s32, s54, 1")
    A(f"s_add_u32 s32, s32, {WS_Y}")
    for mt in range(5):
        A(f"buffer_load_dwordx4 {vr(Yv+4*mt,4)}, v6, s[8:11], s32 offen offset:{mt*64} sc1")
    A("s_lshl_b32 s32, s25, 2")
    A(f"s_add_u32 s32, s32, {WS_R}")
    A("v_mov_b32 v6, 0")
    A("buffer_load_dword v171, v6, s[8:11], s32 offen sc1")
    A("s_waitcnt vmcnt(0)")
    for sh in (8, 4, 2, 1):
        A("s_nop 1")
        for j in range(20):
            A(f"v_add_f32_dpp v{Yv+j}, v{Yv+j}, v{Yv+j} row_ror:{sh} row_mask:0xf bank_mask:0xf")
    bf16r(A, 171, 171)
    sigmoid(A, 171, 171, 6)
    bf16r(A, 171, 171)
    for j in range(20):
        bf16r(A, Yv+j, Yv+j)
        A(f"v_mul_f32 v{Yv+j}, v{Yv+j}, v171")
        bf16r(A, Yv+j, Yv+j)
    A("v_lshlrev_b32 v6, 4, v3")
    A(f"v_add_u32 v6, {YB}, v6")
    A("s_mov_b32 s32, 0x00010001")
    A("s_mov_b32 s33, 0x00010001")
    A("s_mov_b64 exec, s[32:33]")
    for mt in range(5):
        A(f"ds_write_b128 v6, {vr(Yv+4*mt,4)} offset:{mt*64}")
    A("s_mov_b64 exec, -1")
    A("s_setprio 0")
    A(f"{L_ny}:")
    A(f"s_mov_b32 s46, {SPIN}")
    A("s_waitcnt vmcnt(0) lgkmcnt(0)")
    if not X.pdiag: stamp(A, 6)
    A("s_barrier")
    if not X.pdiag: stamp(A, 7)
    if X.tprio: A("s_setprio 2")
    A(f"s_branch {L_h3}")

DOC = """; ---------------------------------------------------------------------------------------------
; ---------------------------------------------------------------------------------------------
"""
def build(path):
    A = Asm()
    fused(A)
    A("L_CODE_END:")
    L = A.lines
    hb, he = L.index(".MARK_H_BEGIN"), L.index(".MARK_H_END")
    if X.first:
        e = L.index(".MARK_ENTRY_END")
        L = L[:e] + L[hb+1:he] + L[e+1:hb] + L[he+1:]
    else:
        L = [l for l in L if not l.startswith(".MARK")]
    out = []
    for i, l in enumerate(L):
        t = l.strip()
        if t.startswith("v_cndmask") and t.endswith("vcc"):
            p1 = out[-1].strip(); p2 = out[-2].strip()
            if p1.startswith("v_cmp") and " vcc," in p1: out.append("    s_nop 1")
            elif p2.startswith("v_cmp") and " vcc," in p2 and not p1.startswith("s_nop"): out.append("    s_nop 0")
        out.append(l)
    A.lines = out
    hdr = open("gated_mix__grouped_kv_mqa__moe_arch_mod__prompt.s.ref").read().split("; @launch")[0]
    out = hdr + "; @launch grid=(256,1,1) block=(512,1,1) lds=163840\n" + '.amdgcn_target "amdgcn-amd-amdhsa--gfx950"\n.text\n' + DOC + A.text() + '.section .rodata,"a"\n'
    out += kernel_desc(NAME, 256, 256)
    open(path, "w").write(out)

if __name__ == "__main__":
    build("t48.s")
    Cfg.on = True
    build("t48s.s")
    Cfg.rt = True
    build("t48r.s")
    X.tdiag = True
    build("t48t.s")
```

```python
import math, sys
from asmlib import *
from stamp8 import *

NAME = "gated_mix__grouped_kv_mqa__moe_arch_mod__prompt_kernel"
KA_X, KA_WQ, KA_WK, KA_WV, KA_WO, KA_BX, KA_WR, KA_WG, KA_WU, KA_WD, KA_GW, KA_OUT, KA_DBG, KA_WS = [8*i for i in range(14)]
SL = 2592
WS_KV0 = 0x0
WS_KMAX = 0x60000
WS_RKEY = 0x60200
WS_R = 0x61000
WS_G = 0x63000
WS_Y = 0x68000
WS_GC = 0x74000
WS_FC = 0x76000
WS_O = 0x100000
WS_SIZE = 0x1000000
X_BYTES = 2048*640*2
W_BYTES = 640*640*2
F_BYTES = 640*1536*2
QSCALE = (20 ** -0.5) * math.log2(math.e)
LOG2E = math.log2(math.e)
LTHR = f32bits(2.0 ** -30)
OFF_A2, OFF_V0, OFF_V1 = 1024, 1280, 1936
FB = 63*SL
FCNT = FB + 128
YB = FB + 160
XB = 102400
SPIN = 100000
WR = 81920
ER = WR + 5*10240
QX = WR + 7*10240
VR = QX
QF = WR + 3*10240
NS = 7
SIG = 2
DN = 3
PERM = sum(p << (4*i) for i, p in enumerate([0, 4, 5, 9, 3, 7, 2, 6]))
U_TILES = 8
class X:
    noffn = False; st = 0; hprio = 2; cprio = 0; nowo = False; slp = 20; pdiag = False; pfT = False; pfQ = False; tdiag = False; hsl = 0; rothg = False; gprio = True; tprio = True; pad = 0; pre = 0; ost = ''; gsl = 1; l2pf = True; first = True; nb0 = 8; itst = False; al = None; direct = False

def bf16r(A, d, s):
    A(f"v_cvt_pk_bf16_f32 v{d}, v{s}, v{s}")
    A(f"v_and_b32 v{d}, 0xffff0000, v{d}")
def sigmoid(A, d, s, t):
    A(f"v_mul_f32 v{t}, {f32bits(-LOG2E):#x}, v{s}")
    A(f"v_exp_f32 v{t}, v{t}")
    A("s_nop 0")
    A(f"v_add_f32 v{t}, 1.0, v{t}")
    A(f"v_rcp_f32 v{d}, v{t}")
    A("s_nop 0")
def row_max_u32(A, v):
    for sh in (8, 4, 2, 1):
        A("s_nop 1")
        A(f"v_max_u32_dpp v{v}, v{v}, v{v} row_ror:{sh} row_mask:0xf bank_mask:0xf")
def wave_max_u32(A, v, v2, st):
    A(f"v_max_u32 v{v}, v{v}, v{v2}")
    row_max_u32(A, v)
    A("s_nop 1")
    for i in range(4):
        A(f"v_readlane_b32 s{st+i}, v{v}, {16*i}")
    A(f"s_max_u32 s{st}, s{st}, s{st+1}")
    A(f"s_max_u32 s{st+2}, s{st+2}, s{st+3}")
    A(f"s_max_u32 s{st}, s{st}, s{st+2}")

def arrive(A, cnt_off, total, vt):
    L = A.label("arr")
    A(f"v_mov_b32 v{vt}, 1")
    A(f"v_lshlrev_b32 v{vt+1}, 24, v1")
    A(f"buffer_atomic_add v{vt}, v{vt+1}, s[76:79], 0 offen offset:{cnt_off} sc0 sc1")
    A("s_waitcnt vmcnt(0)")
    A(f"v_readfirstlane_b32 s32, v{vt}")
    A(f"v_mov_b32 v{vt}, 1")
    A(f"s_cmp_lg_u32 s32, {total-1}")
    A(f"s_cbranch_scc1 {L}")
    A(f"buffer_store_dword v{vt}, v{vt+1}, s[76:79], 0 offen offset:{128+cnt_off} sc1")
    A(f"{L}:")
def await_cnt(A, vt, slp):
    L, Ld = A.label("aw"), A.label("awd")
    A(f"v_lshlrev_b32 v{vt+1}, 24, v1")
    A(f"s_mov_b32 s33, {SPIN}")
    A(f"{L}:")
    A(f"buffer_load_dword v{vt}, v{vt+1}, s[76:79], 0 offen sc1")
    A("s_waitcnt vmcnt(0)")
    A(f"v_readfirstlane_b32 s32, v{vt}")
    A("s_sub_u32 s33, s33, 1")
    A(f"s_cbranch_scc1 {Ld}")
    A("s_cmp_ge_u32 s32, 64")
    A(f"s_cbranch_scc1 {Ld}")
    A(f"s_sleep {slp}")
    A(f"s_branch {L}")
    A(f"{Ld}:")
def await_go(A, cnt_off, vt, slp):
    L, Ld = A.label("aw"), A.label("awd")
    A(f"v_lshlrev_b32 v{vt+1}, 24, v1")
    A(f"s_mov_b32 s33, {SPIN}")
    A(f"{L}:")
    A(f"buffer_load_dword v{vt}, v{vt+1}, s[76:79], 0 offen offset:{128+cnt_off} sc1")
    A("s_waitcnt vmcnt(0)")
    A(f"v_readfirstlane_b32 s32, v{vt}")
    A("s_sub_u32 s33, s33, 1")
    A(f"s_cbranch_scc1 {Ld}")
    A("s_cmp_lg_u32 s32, 0")
    A(f"s_cbranch_scc1 {Ld}")
    A(f"s_sleep {slp}")
    A(f"s_branch {L}")
    A(f"{Ld}:")

def hst(A, i):
    if X.pdiag: stamp(A, i)
def fused(A):
    kernel_begin(A, NAME)
    L_exit, L_help, L_op = A.label("exit"), A.label("help"), A.label("oproj")
    A("s_cmp_ge_u32 s2, 256")
    A(f"s_cbranch_scc1 {L_exit}")
    stamp_rt(A, 0)
    for i in range(X.pre): A("s_sleep 64")
    A(f"s_load_dwordx4 s[36:39], s[0:1], {KA_X}")
    A(f"s_load_dwordx4 s[40:43], s[0:1], {KA_WK}")
    A(f"s_load_dwordx4 s[48:51], s[0:1], {KA_DBG}")
    A(f"s_load_dwordx2 s[44:45], s[0:1], {KA_WR}")
    A(f"s_load_dwordx4 s[4:7], s[0:1], {KA_GW}")
    A("v_lshrrev_b32 v4, 6, v0")
    A("v_and_b32 v1, 63, v0")
    A("v_readfirstlane_b32 s29, v4")
    A("v_lshlrev_b32 v5, 4, v1")
    A("s_and_b32 s30, s2, 7")
    A("s_lshl_b32 s30, s30, 2")
    A("s_lshr_b32 s28, s2, 6")
    A("s_add_u32 s30, s30, s28")
    A("s_bfe_u32 s31, s2, 0x30003")
    A("s_lshl_b32 s33, s28, 1")
    A("s_sub_u32 s3, s31, s33")
    A("s_and_b32 s3, s3, 7")
    A("s_lshl_b32 s32, s3, 2")
    A(f"s_lshr_b32 s25, {PERM:#x}, s32")
    A("s_and_b32 s25, s25, 15")
    A("s_add_u32 s25, s25, s33")
    A("s_cmp_ge_u32 s25, 10")
    A("s_cselect_b32 s32, 10, 0")
    A("s_sub_u32 s25, s25, s32")
    if X.first:
        A("s_cmp_lt_u32 s29, 4")
        A("s_cbranch_scc1 L_COMPUTE")
        A(".MARK_ENTRY_END")
        A("L_COMPUTE:")
    else:
        A("s_cmp_ge_u32 s29, 4")
        A(f"s_cbranch_scc1 {L_help}")

    def common_setup():
        A("s_mov_b32 s10, 0x1000000")
        A("s_mov_b32 s11, 0x00020000")
        A("s_bfe_u32 s24, s2, 0x40003")
        A(f"s_mul_i32 s24, s24, {4*SL}")
        A("s_lshl_b32 s73, s28, 1")
        if X.rothg:
            A("s_add_u32 s73, s73, s31")
            A("s_and_b32 s73, s73, 7")
        A("s_movk_i32 s78, 256")
        A("s_mov_b32 s79, 0x00020000")
    def common_setup2():
        A("s_mov_b32 s8, s50")
        A("s_and_b32 s9, s51, 0xffff")
        A("s_mov_b32 s76, s48")
        A("s_and_b32 s77, s49, 0xffff")
    PM, PT, PX, PTK, PO0, PO1, PPR, PY, PPW, POA, POB = range(160, 171)
    def oproj_addr():
        A("v_and_b32 v2, 15, v0")
        A("v_lshrrev_b32 v3, 4, v1")
        A("s_and_b32 s27, s29, 3")
        A("s_lshr_b32 s28, s29, 2")
        A("v_add_u32 v6, s73, v3")
        A("v_and_b32 v6, 7, v6")
        A("v_lshlrev_b32 v7, 3, v2")
        A(f"v_lshl_add_u32 v{PO0}, v6, 8, v7")
        A(f"v_xor_b32 v{PO1}, 0x400, v{PO0}")
        A("v_lshrrev_b32 v7, 2, v2")
        A("v_and_b32 v8, 3, v2")
        A("v_lshrrev_b32 v9, 1, v3")
        A("v_mul_u32_u24 v9, 20, v9")
        A("v_and_b32 v6, 1, v3")
        A("v_lshl_add_u32 v9, v6, 2, v9")
        A("v_add_u32 v9, v9, v7")
        A("v_mul_u32_u24 v9, 160, v9")
        A("v_lshl_add_u32 v9, v8, 3, v9")
        A("s_xor_b32 s32, s28, 1")
        A("s_mul_i32 s32, s32, 51200")
        A(f"v_add_u32 v{PM}, s32, v9")
        A("v_mul_u32_u24 v9, 40, v3")
        A("v_add3_u32 v9, v9, v7, 16")
        A("v_mul_u32_u24 v9, 160, v9")
        A("v_lshl_add_u32 v9, v8, 3, v9")
        A(f"v_add_u32 v{PT}, s32, v9")
        A("v_mul_u32_u24 v6, 26, v1")
        A("v_lshrrev_b32 v6, 8, v6")
        A("v_mul_u32_u24 v7, 10, v6")
        A("v_sub_u32 v7, v1, v7")
        A("s_lshl_b32 s32, s30, 6")
        A("s_lshl_b32 s33, s29, 3")
        A("s_add_u32 s52, s32, s33")
        A(f"v_add_u32 v{PTK}, s52, v6")
        A(f"v_mul_u32_u24 v8, 1280, v{PTK}")
        A("v_lshl_add_u32 v8, v7, 4, v8")
        A("s_mul_i32 s54, s31, 160")
        A("v_add_u32 v8, s54, v8")
        A("v_cmp_gt_u32 vcc, 40, v1")
        A("v_mov_b32 v9, 0x40000000")
        A(f"v_cndmask_b32 v{PX}, v9, v8, vcc")
        A("v_add_u32 v6, s33, v6")
        A("v_mul_u32_u24 v6, 336, v6")
        A("v_lshl_add_u32 v6, v7, 5, v6")
        A(f"v_add_u32 v{PPR}, {XB}, v6")
        A("v_lshlrev_b32 v7, 5, v7")
        A(f"v_add_u32 v{PY}, {YB}, v7")
        A("s_lshl_b32 s32, s27, 4")
        A("v_add_u32 v6, s32, v2")
        A("v_mul_u32_u24 v6, 336, v6")
        A("v_lshl_add_u32 v6, v3, 4, v6")
        A("s_mul_i32 s32, s28, 21504")
        A(f"s_add_u32 s32, s32, {XB}")
        A(f"v_add_u32 v{PPW}, s32, v6")
    def oproj_saddr():
        A("s_lshl_b32 s33, s30, 2")
        A("s_add_u32 s33, s33, s27")
        A("s_mul_i32 s68, s33, 20480")
        A(f"s_add_u32 s68, s68, {WS_O}")
        A("s_lshl_b32 s33, s28, 11")
        A("s_add_u32 s70, s68, s33")
        A("s_add_u32 s70, s70, 16384")
        A("s_lshl_b32 s33, s28, 13")
        A("s_add_u32 s68, s68, s33")
        for p in range(8):
            A(f"s_add_u32 s32, s73, {p}")
            A("s_and_b32 s32, s32, 7")
            A(f"s_lshl_b32 s{12+p}, s32, 10")
            A(f"s_add_u32 s{12+p}, s{12+p}, s68")
        A("s_movk_i32 s55, 5120")
        A(f"s_mov_b32 s22, {X_BYTES}")
        A("s_mov_b32 s23, 0x00020000")

    def o_addr():
        A("s_lshl_b32 s47, s31, 2")
        A("s_add_u32 s47, s47, s27")
        A("v_bfe_u32 v6, v1, 4, 1")
        A("v_mul_u32_u24 v6, 20480, v6")
        A("v_lshrrev_b32 v7, 5, v1")
        A(f"v_lshl_add_u32 v{POB}, v2, 3, v6")
        A(f"v_lshl_or_b32 v{POB}, v7, 30, v{POB}")
        A("v_lshl_add_u32 v6, v2, 4, v6")
        A(f"v_lshl_add_u32 v{POA}, v7, 8, v6")
        A("s_mul_i32 s32, s30, 81920")
        A(f"s_add_u32 s32, s32, {WS_O}")
        A("s_lshl_b32 s74, s47, 9")
        A("s_add_u32 s74, s74, s32")
        A("s_lshl_b32 s75, s47, 7")
        A("s_add_u32 s75, s75, s32")
        A("s_add_u32 s75, s75, 16384")
        A("s_add_u32 s58, s74, 40960")
        A("s_add_u32 s59, s75, 40960")

    A("s_mov_b32 s72, 0")
    if X.l2pf:
        A("s_getpc_b64 s[32:33]")
        A("L_PC0:")
        A(f"s_sub_u32 s32, s32, L_PC0-{NAME}")
        A("s_subb_u32 s33, s33, 0")
        A("s_lshr_b32 s34, s2, 3")
        A("v_lshl_add_u32 v6, v0, 5, s34")
        A("v_lshlrev_b32 v6, 7, v6")
        A(f"v_min_u32 v6, L_CODE_END-{NAME}-4, v6")
        A("global_load_dword v180, v6, s[32:33]")
    common_setup()
    oproj_addr()
    oproj_saddr()
    VACC = 32; VE = 52; H = [64, 96]; XF = [88, 120]; QA = 184; RV = [128, 144]
    VB1, VB2, VXA0, VXA1 = 14, 15, 16, 17
    A("v_lshrrev_b32 v6, 2, v2")
    A("v_and_b32 v7, 3, v2")
    A("v_lshl_add_u32 v6, v3, 3, v6")
    A("v_and_b32 v8, 1, v3")
    A("v_lshlrev_b32 v8, 2, v8")
    A("v_add_u32 v9, v6, v8")
    A("v_mul_u32_u24 v9, 160, v9")
    A("v_lshl_add_u32 v9, v7, 3, v9")
    A(f"v_add_u32 v{VB1}, {WR}, v9")
    A("v_xor_b32 v8, 4, v8")
    A("v_add_u32 v9, v6, v8")
    A("v_mul_u32_u24 v9, 160, v9")
    A("v_lshl_add_u32 v9, v7, 3, v9")
    A(f"v_add_u32 v{VB2}, {WR}, v9")
    A("v_mul_u32_u24 v9, 40, v6")
    A(f"v_add_u32 v9, {ER}, v9")
    A("v_lshl_add_u32 v18, v7, 3, v9")
    A("v_add_u32 v19, 32, v9")
    A("v_lshrrev_b32 v6, 1, v2")
    A("v_xor_b32 v6, v6, v3")
    A("v_lshlrev_b32 v6, 4, v6")
    A("v_lshl_add_u32 v6, v2, 7, v6")
    A("s_lshl_b32 s32, s29, 11")
    A("v_add_u32 v10, s32, v6")
    A("v_xor_b32 v11, 64, v10")
    A("s_and_b32 s33, s29, 1")
    A("s_lshr_b32 s32, s29, 1")
    A("s_lshl_b32 s32, s32, 12")
    A("s_lshl_b32 s34, s33, 6")
    A("v_xor_b32 v7, s34, v6")
    A(f"v_add_u32 v{VXA0}, s32, v7")
    A("s_mul_i32 s34, s33, 5120")
    A(f"v_add_u32 v{VB1}, s34, v{VB1}")
    A(f"v_add_u32 v{VB2}, s34, v{VB2}")
    A("s_mul_i32 s34, s33, 20480")
    A("s_lshr_b32 s32, s29, 1")
    A("s_mul_i32 s32, s32, 10240")
    A("s_add_u32 s32, s32, s34")
    A(f"s_add_u32 s32, s32, {QF}")
    A("v_lshlrev_b32 v7, 4, v2")
    A("v_lshl_add_u32 v7, v3, 9, v7")
    A(f"v_add_u32 v{VXA1}, s32, v7")
    for i in range(QA, QA + 48):
        A(f"v_mov_b32 v{i}, 0")
    for i in range(VACC, VE + 8):
        A(f"v_mov_b32 v{i}, 0")
    A("s_lshr_b32 s32, s29, 1")
    A("s_mul_i32 s32, s32, 5120")
    A("s_and_b32 s33, s29, 1")
    A("s_lshl_b32 s33, s33, 7")
    A("s_add_u32 s32, s32, s33")
    A(f"s_add_u32 s32, s32, {QX}")
    A("v_lshlrev_b32 v6, 3, v2")
    A("v_lshl_add_u32 v6, v3, 8, v6")
    A("v_add_u32 v13, s32, v6")
    o_addr()
    A("s_waitcnt lgkmcnt(0)")
    common_setup2()
    A("s_mov_b32 s4, s36")
    A("s_mov_b32 s5, s37")
    A("v_and_b32 v8, 31, v0")
    A("v_lshrrev_b32 v9, 5, v1")
    A("v_cmp_eq_u32 s[44:45], 1, v9")
    A("v_lshlrev_b32 v6, 3, v8")
    A(f"v_mov_b32 v7, {OFF_V0 + 640 - OFF_A2}")
    A("v_cndmask_b32 v21, v6, v7, s[44:45]")
    A("s_mul_i32 s32, s29, 2560")
    A(f"s_add_u32 s32, s32, {QF}")
    A("v_lshl_add_u32 v28, v8, 4, s32")
    A("v_lshl_add_u32 v27, v9, 10, v28")
    A("v_mul_u32_u24 v23, 20, v9")
    A("v_add_u32 v23, v23, v8")
    A("v_cmp_gt_u32 vcc, 20, v8")
    A("v_lshlrev_b32 v26, 3, v1")
    A("v_cndmask_b32 v23, 40, v23, vcc")
    A("v_lshlrev_b32 v23, 4, v23")
    A(f"s_mov_b32 s36, {WS_KMAX}")
    A(f"s_sub_u32 s37, s24, {2*SL}")
    A(f"s_cselect_b32 s37, {62*SL}, s37")
    A(f"s_add_u32 s38, s37, {SL}")
    A("v_lshlrev_b32 v24, 24, v1")
    A("s_lshl_b32 s32, s30, 6")
    A("s_lshl_b32 s33, s29, 4")
    A("s_add_u32 s50, s32, s33")
    if X.pfQ:
        A("s_cmp_lg_u32 s29, 3")
        A("s_cbranch_scc1 PFRET_Q")
        A("s_mov_b64 exec, 0")
        A("s_branch PF_Q_0")
        A("PFRET_Q:")
        A("s_mov_b64 exec, -1")
    stamp(A, 1)
    L_main, L_rg, L_ev, L_ej = A.label("main"), A.label("rg"), A.label("ev"), A.label("ej")
    A("s_cmp_gt_u32 s3, 2")
    A(f"s_cbranch_scc1 {L_main}")
    A("s_cmp_eq_u32 s3, 2")
    A(f"s_cbranch_scc1 {L_rg}")
    EW = 64; EX = 112
    A("s_mov_b32 s46, 0")
    def erd(s):
        A(f"ds_read_b128 {vr(EX+4*s,4)}, v{10 + (s & 1)} offset:{(s >> 1)*8192}")
        for t in range(2):
            slot = EW + 8*s + 4*t
            A(f"ds_read_b64_tr_b16 {vr(slot,2)}, v{18+t} offset:{s*1280}")
            A(f"ds_read_b64_tr_b16 {vr(slot+2,2)}, v{18+t} offset:{s*1280+160}")
    def eloop(swap):
        L = A.label("el")
        A(f"{L}:")
        for s in range(4):
            if s == 2:
                A("s_add_u32 s46, s46, 1")
                A("v_add_u32 v10, 16384, v10")
                A("v_add_u32 v11, 16384, v11")
                A("v_add_u32 v18, 5120, v18")
                A("v_add_u32 v19, 5120, v19")
                A("s_cmp_lt_u32 s46, 5")
                A("s_barrier")
            erd((s + 2) % 4)
            A("s_waitcnt lgkmcnt(10)")
            for t in range(2):
                w, x = vr(EW+8*s+4*t,4), vr(EX+4*s,4)
                A(f"v_mfma_f32_16x16x32_bf16 {vr(VE+4*t,4)}, {x if swap else w}, {w if swap else x}, {vr(VE+4*t,4)}")
        A(f"s_cbranch_scc1 {L}")
    A("s_barrier")
    erd(0); erd(1)
    A("s_cmp_eq_u32 s3, 1")
    A(f"s_cbranch_scc1 {L_ev}")
    eloop(False)
    A(f"s_branch {L_ej}")
    A(f"{L_ev}:")
    eloop(True)
    A(f"{L_ej}:")
    stamp(A, 2)
    A("s_lshl_b32 s32, s30, 1")
    A("s_lshr_b32 s33, s29, 1")
    A("s_add_u32 s51, s32, s33")
    A("s_and_b32 s53, s29, 1")
    A("v_lshrrev_b32 v6, 1, v3")
    A("v_and_b32 v7, 1, v3")
    A("s_nop 1")
    for t in range(2):
        a = VE + 4*t
        A(f"v_cvt_pk_bf16_f32 v{a}, v{a}, v{a+1}")
        A(f"v_cvt_pk_bf16_f32 v{a+1}, v{a+2}, v{a+3}")
    L_sv, L_fin, L_sig = A.label("sv"), A.label("fin"), A.label("sig")
    A("s_cmp_eq_u32 s3, 1")
    A(f"s_cbranch_scc1 {L_sv}")
    A(f"s_mov_b32 s60, {64*SL}")
    A("s_add_u32 s51, s51, 62")
    A("s_and_b32 s51, s51, 63")
    A(f"s_cselect_b32 s34, 0x40000000, s60")
    A(f"s_mul_i32 s51, s51, {SL}")
    A("s_lshl_b32 s33, s53, 4")
    A("v_add_u32 v8, s33, v2")
    A("v_lshl_add_u32 v6, v6, 5, v8")
    A("v_lshlrev_b32 v6, 4, v6")
    A("v_lshl_add_u32 v6, v7, 3, v6")
    A(f"buffer_store_dwordx2 {vr(VE,2)}, v6, s[8:11], s51 offen sc1")
    A(f"buffer_store_dwordx2 {vr(VE,2)}, v6, s[8:11], s34 offen sc1")
    A("v_cmp_eq_u32 vcc, 0, v3")
    A("v_lshlrev_b32 v6, 3, v8")
    A("v_lshl_or_b32 v6, v3, 28, v6")
    A(f"buffer_store_dwordx2 {vr(VE+4,2)}, v6, s[8:11], s51 offen offset:{OFF_A2} sc1")
    A(f"v_cndmask_b32 v8, 0, v{VE+4}, vcc")
    A(f"v_cndmask_b32 v9, 0, v{VE+5}, vcc")
    A("v_mov_b32 v7, 0")
    for r in (VE, VE+1, 8, 9):
        A(f"v_dot2c_f32_bf16 v7, v{r}, v{r}")
    A("s_nop 2")
    A("v_mov_b32 v6, v7")
    A("s_nop 1")
    A("v_permlane32_swap_b32 v6, v7")
    A("s_nop 1")
    A("v_add_f32 v7, v6, v7")
    A("v_mov_b32 v6, v7")
    A("s_nop 1")
    A("v_permlane16_swap_b32 v6, v7")
    A("s_nop 1")
    A("v_add_f32 v7, v6, v7")
    A(f"s_mov_b32 s34, {WS_KMAX}")
    A(f"s_branch {L_fin}")
    A(f"{L_sv}:")
    A("s_add_u32 s51, s51, 63")
    A("s_and_b32 s51, s51, 63")
    A(f"s_mul_i32 s51, s51, {SL}")
    A("s_mul_i32 s33, s53, 656")
    A("s_add_u32 s51, s51, s33")
    A("v_mul_u32_u24 v6, 20, v6")
    A("v_add_u32 v6, v6, v2")
    A("v_lshlrev_b32 v6, 4, v6")
    A("v_lshl_add_u32 v6, v7, 3, v6")
    A(f"buffer_store_dwordx2 {vr(VE,2)}, v6, s[8:11], s51 offen offset:{OFF_V0} sc1")
    A("v_cmp_eq_u32 vcc, 4, v2")
    A("v_mov_b32 v8, 0x3f803f80")
    A(f"v_cndmask_b32 v{VE+4}, v{VE+4}, v8, vcc")
    A(f"v_cndmask_b32 v{VE+5}, v{VE+5}, v8, vcc")
    A("v_lshrrev_b32 v8, 1, v3")
    A("v_add_u32 v8, 4, v8")
    A("v_cmp_gt_u32 vcc, v8, v2")
    A("v_mov_b32 v8, 0x40000000")
    A("v_cndmask_b32 v6, v8, v6, vcc")
    A(f"buffer_store_dwordx2 {vr(VE+4,2)}, v6, s[8:11], s51 offen offset:{OFF_V0+256} sc1")
    A(f"s_branch {L_main}")
    A(f"{L_rg}:")
    A("v_and_b32 v6, 1, v2")
    A("v_mul_u32_u24 v6, 1280, v6")
    A("v_lshl_add_u32 v18, v3, 4, v6")
    A(f"v_add_u32 v18, {VR}, v18")
    A(f"s_branch {L_main}")
    def fin_key():
        row_max_u32(A, 7)
        A("s_lshr_b32 s33, s50, 2")
        A("s_add_u32 s33, s33, s34")
        A("v_lshlrev_b32 v6, 24, v1")
        A("buffer_store_dword v7, v6, s[8:11], s33 offen sc1")
    A(f"{L_fin}:")
    fin_key()
    A(f"{L_main}:")
    stamp(A, 3)
    def rdw(bf, mt):
        A(f"ds_read_b64_tr_b16 {vr(H[bf]+4*mt,2)}, v{VB1} offset:{mt*32}")
        A(f"ds_read_b64_tr_b16 {vr(H[bf]+4*mt+2,2)}, v{VB2} offset:{mt*32}")
    def rdx(bf):
        A(f"ds_read_b128 {vr(XF[bf],4)}, v{VXA0}")
        A(f"ds_read_b128 {vr(XF[bf]+4,4)}, v{VXA0} offset:2048")
    def rdv(bf):
        A("s_lshl_b32 s32, s25, 7")
        A("v_add_u32 v6, s32, v18")
        A(f"ds_read_b128 {vr(RV[bf],4)}, v6")
        A(f"ds_read_b128 {vr(RV[bf]+4,4)}, v6 offset:64")
        A(f"ds_read_b128 {vr(RV[bf]+8,4)}, v10")
        A(f"ds_read_b128 {vr(RV[bf]+12,4)}, v11")
        A("v_add_u32 v10, 8192, v10")
        A("v_add_u32 v11, 8192, v11")
        A("s_add_u32 s25, s25, 1")
        A("s_cmp_eq_u32 s25, 10")
        A("s_cselect_b32 s25, 0, s25")
    def mm(bf, mt):
        for j in range(2):
            a_ = QA + 24*j + 4*mt
            A(f"v_mfma_f32_16x16x32_bf16 {vr(a_,4)}, {vr(H[bf]+4*mt,4)}, {vr(XF[bf]+4*j,4)}, {vr(a_,4)}")
    A("s_mov_b32 s46, 0")
    A(f"s_mov_b32 s34, {-(NS-1)*10240}")
    A("s_waitcnt lgkmcnt(0)")
    A("s_barrier")
    rdx(0)
    for mt in range(5):
        rdw(0, mt)
    L_aw, L_awr = A.label("aw"), A.label("awr")
    def qloop(rg):
        L_c = A.label("c")
        A(f"{L_c}:")
        for bf in range(2):
            A("s_add_u32 s46, s46, 1")
            A(f"s_cmp_eq_u32 s46, {NS}")
            A("s_cselect_b32 s32, s34, 10240")
            A(f"v_add_u32 v{VB1}, s32, v{VB1}")
            A(f"v_add_u32 v{VB2}, s32, v{VB2}")
            A(f"v_add_u32 v{VXA0}, 8192, v{VXA0}")
            if not rg and bf == (SIG - 1) % 2:
                A(f"s_cmp_eq_u32 s46, {SIG}")
                A(f"s_cbranch_scc1 {L_aw}")
                A(f"{L_awr}:")
            A("s_barrier")
            rdx(bf ^ 1)
            for mt in range(5):
                rdw(bf ^ 1, mt)
                A("s_waitcnt lgkmcnt(12)")
                mm(bf, mt)
            if rg:
                for s_ in range(2):
                    A(f"v_mfma_f32_16x16x32_bf16 {vr(VE,4)}, {vr(RV[bf]+4*s_,4)}, {vr(RV[bf]+8+4*s_,4)}, {vr(VE,4)}")
                rdv(bf ^ 1)
        A("s_cmp_lt_u32 s46, 10")
        A(f"s_cbranch_scc1 {L_c}")
    L_rgl, L_rgr, L_rgf, L_rgq = A.label("rgl"), A.label("rgr"), A.label("rgf"), A.label("rgq")
    A("s_cmp_eq_u32 s3, 2")
    A(f"s_cbranch_scc1 {L_rgl}")
    qloop(False)
    A(f"{L_rgr}:")
    stamp(A, 4)
    QB1 = [8, 16]; QS = [12, 14]
    VIDX = 4
    VKA, VA2, VVA = 20, 21, 22
    S = [32, 64]
    O = [96, 112]
    KA1 = [128, 136]; KA2 = [132, 140]
    V0 = [144, 152]; V1 = [148, 156]
    A("v_and_b32 v2, 31, v0")
    A("v_lshrrev_b32 v3, 5, v1")
    for mt in range(5):
        for j in range(2):
            A(f"ds_write_b128 v{VXA1}, {vr(QA+24*j+4*mt,4)} offset:{mt*2048 + j*256}")
    A("s_waitcnt lgkmcnt(0)")
    A("s_barrier")
    stamp(A, 5)
    A("buffer_load_dwordx2 v[24:25], v26, s[8:11], s36 offen sc1")
    A(f"buffer_load_dwordx4 {vr(KA1[0],4)}, v5, s[8:11], s37 offen sc1")
    A(f"buffer_load_dwordx2 {vr(KA2[0],2)}, v{VA2}, s[8:11], s37 offen offset:{OFF_A2} sc1")
    A(f"buffer_load_dwordx4 {vr(KA1[1],4)}, v5, s[8:11], s38 offen sc1")
    A(f"buffer_load_dwordx2 {vr(KA2[1],2)}, v{VA2}, s[8:11], s38 offen offset:{OFF_A2} sc1")
    A(f"buffer_load_dwordx4 {vr(V0[0],4)}, v23, s[8:11], s38 offen offset:{OFF_V0} sc1")
    A(f"buffer_load_dwordx4 {vr(V1[0],4)}, v23, s[8:11], s38 offen offset:{OFF_V1} sc1")
    for b_ in range(2):
        for k_ in range(2):
            base = QA + 24*b_ + 12*k_
            o = b_*10240 + k_*20480
            A(f"ds_read_b128 {vr(base,4)}, v27 offset:{o}")
            A(f"ds_read_b128 {vr(base+4,4)}, v27 offset:{o+512}")
            A(f"ds_read_b128 {vr(base+8,4)}, v28 offset:{o+2048}")
    A(f"v_mov_b32 v{VKA}, v5")
    A("v_cmp_lt_u32 vcc, 20, v2")
    A("v_mov_b32 v6, 0x40000")
    A(f"v_cndmask_b32 v{VVA}, v23, v6, vcc")
    A(f"v_mov_b32 v{VIDX}, 0xdddd")
    for r in range(O[0], O[0] + 32):
        A(f"v_mov_b32 v{r}, 0")
    for r in range(S[1] + 24, S[1] + 32):
        A(f"v_mov_b32 v{r}, 0")
    for r in range(V1[1], V1[1] + 4):
        A(f"v_mov_b32 v{r}, 0")
    A("v_mov_b32 v26, 0")
    A("v_mov_b32 v28, 0")
    A(f"v_mov_b32 v30, {FCNT}")
    A("s_lshl_b32 s32, s29, 3")
    A("s_lshl_b32 s32, 1, s32")
    A("v_mov_b32 v31, 0")
    A("v_writelane_b32 v31, s32, 0")
    A(f"s_mov_b32 s34, {f32bits(QSCALE):#x}")
    A(f"s_mov_b32 s35, {f32bits(QSCALE):#x}")
    for b in range(2):
        A(f"s_waitcnt lgkmcnt({6*(1-b)})")
        base = QA + 24*b
        for i in range(0, 12, 2):
            A(f"v_pk_add_f32 {vr(base+i,2)}, {vr(base+i,2)}, {vr(base+12+i,2)}")
        for i in range(0, 12, 2):
            A(f"v_pk_mul_f32 {vr(base+i,2)}, {vr(base+i,2)}, s[34:35]")
        for i in range(6):
            d = QB1[b] + i if i < 4 else QS[b] + i - 4
            A(f"v_cvt_pk_bf16_f32 v{d}, v{base+2*i}, v{base+2*i+1}")
    for b in range(2):
        for r in range(2):
            A(f"v_cndmask_b32 v{QS[b]+r}, v{QS[b]+r}, 0, s[44:45]")
    for r in range(4):
        A(f"v_dot2c_f32_bf16 v26, v{QB1[0]+r}, v{QB1[0]+r}")
        A(f"v_dot2c_f32_bf16 v28, v{QB1[1]+r}, v{QB1[1]+r}")
    for r in range(2):
        A(f"v_dot2c_f32_bf16 v26, v{QS[0]+r}, v{QS[0]+r}")
        A(f"v_dot2c_f32_bf16 v28, v{QS[1]+r}, v{QS[1]+r}")
    A("s_nop 2")
    A("v_mov_b32 v27, v26")
    A("v_mov_b32 v29, v28")
    A("s_nop 1")
    A("v_permlane32_swap_b32 v26, v27")
    A("v_permlane32_swap_b32 v28, v29")
    A("s_nop 1")
    A("v_add_f32 v26, v26, v27")
    A("v_add_f32 v28, v28, v29")
    A("s_waitcnt vmcnt(6)")
    wave_max_u32(A, 24, 25, 34)
    A("v_mul_f32 v26, s34, v26")
    A("v_mul_f32 v28, s34, v28")
    A("v_sqrt_f32 v26, v26")
    A("v_sqrt_f32 v28, v28")
    A("s_nop 0")
    A(f"v_mul_f32 v26, {f32bits(-(1.0 + 2.0**-6)):#x}, v26")
    A(f"v_mul_f32 v28, {f32bits(-(1.0 + 2.0**-6)):#x}, v28")
    A("v_lshrrev_b32 v26, 16, v26")
    A("v_lshrrev_b32 v28, 16, v28")
    A(f"v_cndmask_b32 v{QS[0]}, v{QS[0]}, v26, s[44:45]")
    A(f"v_cndmask_b32 v{QS[1]}, v{QS[1]}, v28, s[44:45]")
    def qs2(buf, par, b):
        A(f"v_mfma_f32_32x32x8_bf16 {vr(S[buf]+16*b,16)}, {vr(KA2[par],2)}, {vr(QS[b],2)}, 0")
    def qk1(buf, par, b):
        A(f"v_mfma_f32_32x32x16_bf16 {vr(S[buf]+16*b,16)}, {vr(KA1[par],4)}, {vr(QB1[b],4)}, {vr(S[buf]+16*b,16)}")
    def pv(buf, b, half, vpar):
        vv = V0[vpar] if half == 0 else V1[vpar]
        A(f"v_smfmac_f32_32x32x32_bf16 {vr(O[b],16)}, {vr(vv,4)}, {vr(S[buf]+16*b+8*half,8)}, v{VIDX}")
    A("s_waitcnt vmcnt(4)")
    qs2(0, 0, 0); qk1(0, 0, 0); qs2(0, 0, 1); qk1(0, 0, 1)
    A("s_mov_b32 s46, 0")
    A("s_waitcnt vmcnt(0)")
    A("s_nop 7")
    stamp(A, 6)
    L_loop, L_sp, L_kr = A.label("loop"), A.label("sp"), A.label("kr")
    A(f"{L_sp}:")
    A("s_barrier")
    if X.al is not None:
        A(".p2align 6")
        for i in range(X.al // 4): A("s_nop 0")
    A(f"{L_loop}:")
    if X.itst:
        A("s_waitcnt lgkmcnt(0)")
        for k in range(1, 8): A(f"s_mov_b32 s{SB+2*k}, s{SB+2*k+2}")
        A(f"s_memtime s[{SB+16}:{SB+17}]")
    sched = {2: 'pv1p', 6: 's2a', 10: 'q1a', 14: 'pv0a', 18: 'pv1a', 22: 's2b', 26: 'q1b', 30: 'pv0b'}
    for t in range(U_TILES):
        par = t & 1
        off = t * SL
        for e in range(32):
            op = sched.get(e)
            if op == 'pv1p':
                pv(par ^ 1, 1, 1, par ^ 1)
                A("s_waitcnt lgkmcnt(0)")
                A(f"ds_read_b128 {vr(V0[par^1],4)}, v{VVA} offset:{off+OFF_V0}")
                A(f"ds_read_b128 {vr(V1[par^1],4)}, v{VVA} offset:{off+OFF_V1}")
            if op == 's2a': qs2(par ^ 1, par ^ 1, 0)
            if op == 's2b': qs2(par ^ 1, par ^ 1, 1)
            if op == 'pv0a':
                pv(par, 0, 0, par)
                A(f"ds_read_b128 {vr(KA1[par],4)}, v{VKA} offset:{off}")
                A(f"ds_read_b64 {vr(KA2[par],2)}, v{VA2} offset:{off+OFF_A2}")
                if t == U_TILES - 1: A("ds_read_b32 v24, v30 offset:16")
            if op == 'q1a': qk1(par ^ 1, par ^ 1, 0)
            if op == 'pv1a': pv(par, 0, 1, par)
            if op == 'q1b': qk1(par ^ 1, par ^ 1, 1)
            if op in ('q1a', 'q1b') and X.pad: A(f"s_nop {X.pad - 1}")
            if op == 'pv0b':
                pv(par, 1, 0, par)
                if t == U_TILES - 1:
                    A("s_add_u32 s46, s46, 1")
                    A("s_bitcmp1_b32 0x12e, s46")
                    A(f"v_add_u32 v{VKA}, {U_TILES*SL}, v{VKA}")
                    A(f"v_add_u32 v{VA2}, {U_TILES*SL}, v{VA2}")
                    A(f"v_add_u32 v{VVA}, {U_TILES*SL}, v{VVA}")
            A(f"v_exp_f32 v{S[par]+e}, v{S[par]+e}")
    A(f"s_cbranch_scc0 {L_loop}")
    A("s_cmp_eq_u32 s46, 1")
    A(f"s_cbranch_scc1 {L_sp}")
    A("s_waitcnt lgkmcnt(0)")
    A("v_readfirstlane_b32 s32, v24")
    A("s_mov_b64 exec, 1")
    A("ds_add_u32 v30, v31 offset:4")
    A("s_mov_b64 exec, -1")
    A("s_cmp_lt_u32 s32, 4")
    A(f"s_cbranch_scc1 {L_kr}")
    A("s_cmp_lt_u32 s46, 8")
    A(f"s_cbranch_scc1 {L_loop}")
    if X.itst: stamp(A, 9)
    elif not X.pdiag: stamp(A, 7)
    if X.pfT: A.pf_start("T")
    pv(1, 1, 1, 1)
    A(f"v_mov_b32 v26, {LTHR:#x}")
    A("s_nop 1")
    L_fb, L_norm = A.label("fb"), A.label("norm")
    A(f"v_rcp_f32 v28, v{O[0]+8}")
    A("s_nop 0")
    A("v_mov_b32 v29, v28")
    A("s_nop 1")
    A("v_permlane32_swap_b32 v28, v29")
    A("s_nop 3")
    A(f"v_min_f32 v27, v{O[0]+8}, v{O[1]+8}")
    A(f"v_cmp_nge_f32 vcc, v27, v26")
    A(f"v_cmp_u_f32 s[36:37], v{O[0]+8}, v{O[1]+8}")
    A("s_or_b64 vcc, vcc, s[36:37]")
    A("s_and_b64 vcc, vcc, s[44:45]")
    A(f"s_cbranch_vccnz {L_fb}")
    A(f"{L_norm}:")
    A(f"v_rcp_f32 v26, v{O[1]+8}")
    for r in range(12):
        A(f"v_mul_f32 v{O[0]+r}, v{O[0]+r}, v29")
    A("v_mov_b32 v27, v26")
    for r in range(6):
        A(f"v_cvt_pk_bf16_f32 v{S[0]+r}, v{O[0]+2*r}, v{O[0]+2*r+1}")
    A("v_permlane32_swap_b32 v26, v27")
    A(f"buffer_store_dwordx4 {vr(S[0],4)}, v{POA}, s[8:11], s74 offen sc1")
    A(f"buffer_store_dwordx2 {vr(S[0]+4,2)}, v{POB}, s[8:11], s75 offen sc1")
    for r in range(12):
        A(f"v_mul_f32 v{O[1]+r}, v{O[1]+r}, v27")
    for r in range(6):
        A(f"v_cvt_pk_bf16_f32 v{S[0]+8+r}, v{O[1]+2*r}, v{O[1]+2*r+1}")
    A(f"buffer_store_dwordx4 {vr(S[0]+8,4)}, v{POA}, s[8:11], s58 offen sc1")
    A(f"buffer_store_dwordx2 {vr(S[0]+12,2)}, v{POB}, s[8:11], s59 offen sc1")
    ACC = 8; OF = 56
    WFS = list(range(96, 160, 4)) + list(range(176, 256, 4))
    NPRE = 7
    XV = 28; G = 48
    TT = list(range(36, 48)) + list(range(52, 56))
    ORD = [8, 9, 0, 1, 2, 3, 4, 5, 6, 7]
    def wslot(s, mt):
        return WFS[5*(s % NPRE) + mt]
    def wrd(p, mt):
        slot = wslot(p, mt)
        s = ORD[p]
        if s < 8:
            b, off, o2 = PM, s * 6400 + mt * 32, 1280
        else:
            b, off, o2 = PT, (s - 8) * 25600 + mt * 32, 3200
        A(f"ds_read_b64_tr_b16 {vr(slot,2)}, v{b} offset:{off}")
        A(f"ds_read_b64_tr_b16 {vr(slot+2,2)}, v{b} offset:{off+o2}")
    def gx_loads(xv):
        A("s_mov_b32 s20, s4")
        A("s_and_b32 s21, s5, 0xffff")
        A(f"v_lshlrev_b32 v6, 2, v{PTK}")
        A(f"s_mov_b32 s32, {WS_G}")
        A(f"buffer_load_dword v{G}, v6, s[8:11], s32 offen sc1")
        A(f"buffer_load_dword v{G+1}, v6, s[8:11], s32 offen offset:16 sc1")
        A(f"buffer_load_dwordx4 {vr(xv,4)}, v{PX}, s[20:23], 0 offen")
        A(f"buffer_load_dwordx4 {vr(xv+4,4)}, v{PX}, s[20:23], s55 offen")
        A(f"s_mov_b32 s46, {SPIN}")
        A("s_mov_b32 s71, -1")
        A("s_mov_b32 s47, 0")
    def gate_math():
        for j in range(2):
            bf16r(A, G+j, G+j)
            sigmoid(A, G+j, G+j, G+2)
            bf16r(A, G+j, G+j)
        for j in range(2):
            A(f"v_sub_f32 v{G+2+j}, 1.0, v{G+j}")
            bf16r(A, G+2+j, G+2+j)
        for i in range(8):
            A(f"v_lshlrev_b32 v{TT[2*i]}, 16, v{XV+i}")
            A(f"v_and_b32 v{TT[2*i+1]}, 0xffff0000, v{XV+i}")
        A("s_mov_b32 s20, s6")
        A("s_and_b32 s21, s7, 0xffff")
    RL = [A.label("rl") for _ in range(10)]
    RC = [A.label("rc") for _ in range(10)]
    RT = [A.label("rt") for _ in range(10)]
    L_disp, L_h2, L_h3, L_ng2 = A.label("disp"), A.label("h2"), A.label("h3"), A.label("ng2")
    A("s_barrier")
    A(f"{L_op}:")
    for s in range(NPRE):
        for mt in range(5):
            wrd(s, mt)
    gx_loads(XV)
    A("s_cmp_lg_u32 s72, 0")
    A(f"s_cbranch_scc1 {L_h2}")
    A("s_waitcnt vmcnt(4)")
    A("s_barrier")
    L_rl, L_mm, L_rt, L_sel, L_nosel = A.label("rl"), A.label("mm"), A.label("rt"), A.label("sel"), A.label("nosel")
    A("s_waitcnt vmcnt(0)")
    gate_math()
    A(f"{L_h3}:")
    A(f"v_mov_b32 v6, {FCNT}")
    A("ds_read_b32 v6, v6 offset:12")
    A("s_waitcnt lgkmcnt(0)")
    A("v_readfirstlane_b32 s56, v6")
    A("s_lshr_b32 s33, s52, 3")
    A("s_lshr_b32 s32, s56, 3")
    A("s_cmp_eq_u32 s32, s33")
    A(f"s_cbranch_scc1 {L_sel}")
    A(f"{L_nosel}:")
    for i in range(0, 16, 2):
        A(f"v_pk_mul_f32 {vr(TT[i],2)}, {vr(TT[i],2)}, {vr(G+2,2)} " + ("op_sel:[0,0] op_sel_hi:[1,0]" if i < 8 else "op_sel:[0,1] op_sel_hi:[1,1]"))
    A("s_cmp_eq_u32 s72, 0")
    A(f"s_cbranch_scc1 {L_rl}")
    A("s_barrier")
    A(f"{L_rl}:")
    if not (X.pdiag or X.itst): stamp(A, 8)
    def oload(p):
        s = ORD[p]
        if s < 8:
            A(f"buffer_load_dwordx4 {vr(OF+4*p,4)}, v5, s[8:11], s{12+s} offen sc1")
        else:
            A(f"buffer_load_dwordx2 {vr(OF+4*p,2)}, v{PO0+s-8}, s[8:11], s70 offen sc1")
            A(f"buffer_load_dwordx2 {vr(OF+4*p+2,2)}, v{PO0+s-8}, s[8:11], s70 offen offset:128 sc1")
    for p in range(10):
        oload(p)
    A(f"{L_mm}:")
    if X.tdiag: stamp(A, 1)
    L_et = A.label("et")
    def tailchk():
        A(f"v_max3_u32 v6, v{OF}, v{OF+1}, v{OF+2}")
        A(f"v_max3_u32 v6, v{OF+3}, v{OF+4}, v6")
        A(f"v_max3_u32 v6, v{OF+5}, v{OF+6}, v6")
        A(f"v_max_u32 v6, v{OF+7}, v6")
        A("v_cmp_eq_u32 vcc, s71, v6")
    A("s_waitcnt vmcnt(8)")
    tailchk()
    A(f"s_cbranch_vccnz {L_et}")
    L_mm2 = A.label("mm2")
    A(f"{L_mm2}:")
    for s in range(10):
        A(f"s_waitcnt vmcnt({min(8, 9-s)})" + (" lgkmcnt(0)" if s in (0, NPRE) else ""))
        if X.tdiag and s in (0, 4, 9): stamp(A, {0: 2, 4: 3, 9: 4}[s])
        o = OF + 4*s
        for mt in range(5):
            A(f"v_mfma_f32_16x16x32_bf16 {vr(ACC+4*mt,4)}, {vr(wslot(s,mt),4)}, {vr(OF+4*s,4)}, {vr(ACC+4*mt,4) if s else 0}")
            if mt < 2 and s >= 2: A(f"v_max3_u32 v6, v{o+2*mt}, v{o+2*mt+1}, v6")
            if s + NPRE < 10 and mt > 0: wrd(s + NPRE, mt - 1)
        if s + NPRE < 10: wrd(s + NPRE, 4)
    A("v_cmp_eq_u32 vcc, s71, v6")
    A(f"s_cbranch_vccnz {L_rt}")
    A("s_nop 1")
    for mt in range(5):
        A(f"ds_write_b128 v{PPW}, {vr(ACC+4*mt,4)} offset:{mt*64}")
        if mt == 0: A("s_nop 3")
    A("s_waitcnt lgkmcnt(0)")
    if not (X.pdiag or X.itst): stamp(A, 9)
    A("s_barrier")
    if X.tdiag:
        stamp(A, 5)
        A("s_waitcnt lgkmcnt(0)")
        A(f"s_mov_b32 s{SB+12}, s46")
        A(f"s_mov_b32 s{SB+13}, 0")
    P = 96
    for j in range(2):
        for k in range(2):
            for h in range(2):
                A(f"ds_read_b128 {vr(P+16*j+8*k+4*h,4)}, v{PPR} offset:{j*1344 + k*21504 + h*16}")
    for j in range(2):
        A(f"s_waitcnt lgkmcnt({4*(1-j)})")
        for i in range(0, 8, 2):
            A(f"v_pk_add_f32 {vr(P+16*j+i,2)}, {vr(P+16*j+i,2)}, {vr(P+16*j+8+i,2)}")
        for i in range(0, 8, 2):
            A(f"v_pk_fma_f32 {vr(TT[8*j+i],2)}, {vr(P+16*j+i,2)}, {vr(G,2)}, {vr(TT[8*j+i],2)} " + ("op_sel:[0,0,0] op_sel_hi:[1,0,1]" if j == 0 else "op_sel:[0,1,0] op_sel_hi:[1,1,1]"))
        for i in range(4):
            A(f"v_cvt_pk_bf16_f32 v{XV+4*j+i}, v{TT[8*j+2*i]}, v{TT[8*j+2*i+1]}")
        A(f"buffer_store_dwordx4 {vr(XV+4*j,4)}, v{PX}, s[20:23], {'0' if j == 0 else 's55'} offen {X.ost}")
    if X.pfT: A.pf_stop("PFRET_T")
    stamp_rt(A, 10)
    stamp_flush(A, 11, 8, 29)
    A(f"{L_exit}:")
    A("s_endpgm")
    A(f"{L_et}:")
    A("s_sub_u32 s46, s46, 1")
    A("s_cselect_b32 s71, 0x12345, s71")
    A("s_cselect_b32 s46, 0, s46")
    oload(0); oload(1)
    A("s_waitcnt vmcnt(0)")
    tailchk()
    A(f"s_cbranch_vccnz {L_et}")
    for p in range(2, 10):
        Ls = A.label("sk")
        o = OF + 4*p
        A(f"v_max3_u32 v7, v{o}, v{o+1}, v{o+2}")
        A(f"v_max_u32 v7, v7, v{o+3}")
        A("v_cmp_eq_u32 vcc, s71, v7")
        A(f"s_cbranch_vccz {Ls}")
        oload(p)
        A(f"{Ls}:")
    A("s_waitcnt vmcnt(0)")
    A(f"s_branch {L_mm2}")
    A(f"{L_rt}:")
    A("s_mov_b32 s47, 1")
    A("s_sub_u32 s46, s46, 1")
    A("s_cselect_b32 s71, 0x12345, s71")
    A("s_cselect_b32 s46, 0, s46")
    for s_ in range(10 - NPRE):
        for mt in range(5):
            wrd(s_, mt)
    A(f"s_branch {L_rl}")
    A(f"{L_sel}:")
    A(f"ds_read_b128 {vr(XV,4)}, v{PY}")
    A(f"ds_read_b128 {vr(XV+4,4)}, v{PY} offset:16")
    A("s_waitcnt lgkmcnt(0)")
    for j in range(2):
        A(f"v_add_u32 v6, {4*j}, v{PTK}")
        A("v_cmp_eq_u32 vcc, s56, v6")
        for i in range(8):
            A(f"v_add_f32 v6, v{TT[8*j+i]}, v{XV+i}")
            bf16r(A, 6, 6)
            A(f"v_cndmask_b32 v{TT[8*j+i]}, v{TT[8*j+i]}, v6, vcc")
    A(f"s_branch {L_nosel}")
    A(f"{L_kr}:")
    A("ds_read_b32 v24, v30 offset:16")
    A("s_waitcnt lgkmcnt(0)")
    A("v_readfirstlane_b32 s32, v24")
    A("s_cmp_lt_u32 s32, 4")
    A(f"s_cbranch_scc1 {L_kr}")
    A(f"s_branch {L_loop}")
    A(f"{L_aw}:")
    hst(A, 7)
    A("s_waitcnt vmcnt(0)")
    hst(A, 8)
    A(f"s_branch {L_awr}")
    A(f"{L_rgl}:")
    rdv(0)
    qloop(True)
    A("s_nop 3")
    A("v_add_u32 v8, s50, v2")
    A("v_lshlrev_b32 v6, 2, v8")
    A("v_lshl_or_b32 v6, v3, 28, v6")
    A("v_sub_u32 v8, 2047, v8")
    A(f"s_mov_b32 s33, {WS_R}")
    A(f"s_mov_b32 s34, {WS_G}")
    A(f"buffer_store_dword v{VE}, v6, s[8:11], s33 offen sc1")
    A(f"buffer_store_dword v{VE+1}, v6, s[8:11], s34 offen sc1")
    A(f"v_ashrrev_i32 v7, 31, v{VE}")
    A("v_or_b32 v7, 0x80000000, v7")
    A(f"v_xor_b32 v7, v7, v{VE}")
    A("v_and_b32 v7, 0xfffff800, v7")
    A("v_or_b32 v7, v7, v8")
    A(f"s_mov_b32 s34, {WS_RKEY}")
    fin_key()
    A("s_mul_i32 s32, s50, 20")
    A(f"s_add_u32 s32, s32, {WS_Y}")
    A("v_cmp_gt_u32 vcc, 20, v1")
    A("v_mov_b32 v7, 0x40000000")
    A("v_cndmask_b32 v6, v7, v5, vcc")
    A(f"buffer_store_dwordx4 {vr(VE+4,4)}, v6, s[8:11], s32 offen sc1")
    A("s_lshl_b32 s32, s30, 7")
    A(f"s_add_u32 s33, s32, {WS_GC}")
    A(f"buffer_store_dword v{VE+4}, v24, s[8:11], s33 offen sc1")
    A(f"s_add_u32 s33, s32, {WS_FC}")
    A(f"buffer_store_dword v{VE+4}, v24, s[8:11], s33 offen sc1")
    A(f"s_branch {L_rgr}")
    A(f"{L_fb}:")
    A("v_lshlrev_b32 v21, 3, v2")
    for b in range(2):
        A(f"v_cndmask_b32 v{QS[b]}, v{QS[b]}, 0, s[44:45]")
    A("v_mov_b32 v30, 0xff800000")
    A("v_mov_b32 v31, 0xff800000")
    L_p1, L_p2 = A.label("p1"), A.label("p2")
    def fb_s():
        A(f"buffer_load_dwordx4 {vr(KA1[0],4)}, v5, s[8:11], s32 offen sc1")
        A(f"buffer_load_dwordx2 {vr(KA2[0],2)}, v21, s[8:11], s32 offen offset:{OFF_A2} sc1")
    def fb_qk():
        A("s_waitcnt vmcnt(0)")
        qs2(0, 0, 0); qk1(0, 0, 0); qs2(0, 0, 1); qk1(0, 0, 1)
        A("s_nop 15")
    A("s_mov_b32 s32, 0")
    A(f"{L_p1}:")
    fb_s(); fb_qk()
    for r in range(0, 16, 2):
        A(f"v_max3_f32 v30, v{S[0]+r}, v{S[0]+r+1}, v30")
        A(f"v_max3_f32 v31, v{S[0]+16+r}, v{S[0]+16+r+1}, v31")
    A(f"s_add_u32 s32, s32, {SL}")
    A(f"s_cmp_lt_u32 s32, {64*SL}")
    A(f"s_cbranch_scc1 {L_p1}")
    A("v_mov_b32 v28, v30")
    A("v_mov_b32 v29, v31")
    A("s_nop 1")
    A("v_permlane32_swap_b32 v30, v28")
    A("v_permlane32_swap_b32 v31, v29")
    A("s_nop 1")
    A("v_max_f32 v30, v30, v28")
    A("v_max_f32 v31, v31, v29")
    for r in range(32):
        A(f"v_mov_b32 v{O[0]+r}, 0")
    A("s_mov_b32 s32, 0")
    A(f"{L_p2}:")
    fb_s()
    A(f"s_add_u32 s32, s32, {SL}")
    A(f"s_cmp_lt_u32 s32, {64*SL}")
    A("s_cselect_b32 s33, s32, 0")
    A(f"buffer_load_dwordx4 {vr(V0[0],4)}, v23, s[8:11], s33 offen offset:{OFF_V0} sc1")
    A(f"buffer_load_dwordx4 {vr(V1[0],4)}, v23, s[8:11], s33 offen offset:{OFF_V1} sc1")
    fb_qk()
    for r in range(32):
        A(f"v_sub_f32 v{S[0]+r}, v{S[0]+r}, v{30 + r // 16}")
    for r in range(32):
        A(f"v_exp_f32 v{S[0]+r}, v{S[0]+r}")
    A("s_nop 2")
    pv(0, 0, 0, 0); pv(0, 1, 0, 0); pv(0, 0, 1, 0); pv(0, 1, 1, 0)
    A(f"s_cmp_lt_u32 s32, {64*SL}")
    A(f"s_cbranch_scc1 {L_p2}")
    A("s_nop 15")
    A(f"v_rcp_f32 v28, v{O[0]+8}")
    A("s_nop 0")
    A("v_mov_b32 v29, v28")
    A("s_nop 1")
    A("v_permlane32_swap_b32 v28, v29")
    A("s_nop 1")
    A(f"s_branch {L_norm}")

    def early_setup():
        common_setup()
        oproj_addr()
        o_addr()
        for i in range(4):
            A(f"v_mov_b32 v{176+i}, -1")
        A(f"v_mov_b32 v173, {FCNT}")
        A("v_mov_b32 v6, 0")
        A("v_mov_b32 v7, 0")
        A("v_lshlrev_b32 v10, 3, v1")
        A("v_mul_u32_u24 v11, 3072, v1")
        A("v_cmp_gt_u32 vcc, 40, v1")
        A("v_mov_b32 v4, 0x40000000")
        A("v_cndmask_b32 v4, v4, v10, vcc")
        A("v_mov_b32 v175, 1")
        A("v_lshlrev_b32 v9, 1, v1")
        for j in range(12):
            A(f"v_mov_b32 v{12+j}, 0")
        A("v_and_b32 v8, 7, v1")
        A("v_lshlrev_b32 v8, 2, v8")
        A(f"v_add_u32 v8, {FB}, v8")
        A("s_lshl_b32 s32, s26, 5")
        A(f"s_add_u32 s32, s32, {FB}")
        A("v_lshl_add_u32 v25, v3, 3, s32")
        A("v_lshlrev_b32 v26, 1, v4")

    A(".MARK_H_BEGIN")
    A(f"{L_help}:")
    A("s_mov_b32 s72, 1")
    if X.pdiag:
        for i in (6, 7): A(f"s_mov_b64 s[{SB+2*i}:{SB+2*i+1}], 0")
    A("s_sub_u32 s26, s29, 4")
    A("v_lshrrev_b32 v6, 3, v1")
    A("v_and_b32 v7, 7, v1")
    A("v_lshrrev_b32 v8, 1, v6")
    A("v_xor_b32 v7, v7, v8")
    A("v_mul_u32_u24 v6, 1280, v6")
    A("v_lshl_add_u32 v181, v7, 4, v6")
    A("v_xor_b32 v182, 64, v181")
    A("v_add_u32 v182, 9216, v182")
    A("v_mul_u32_u24 v2, 26, v1")
    A("v_lshrrev_b32 v2, 8, v2")
    A("v_mul_u32_u24 v3, 10, v2")
    A("v_sub_u32 v3, v1, v3")
    A("v_mul_u32_u24 v2, 1280, v2")
    A("v_lshl_add_u32 v172, v3, 4, v2")
    A("v_add_u32 v183, 17920, v172")
    A("s_mul_i32 s63, s30, 81920")
    A("s_mul_i32 s32, s26, 20480")
    A("s_add_u32 s63, s63, s32")
    A("s_lshl_b32 s64, s26, 11")
    A("s_lshr_b32 s32, s26, 1")
    A("s_xor_b32 s32, s32, s26")
    A("s_mul_i32 s61, s32, 5120")
    A("s_mul_i32 s33, s31, 160")
    A("s_add_u32 s61, s61, s33")
    A("s_mul_i32 s62, s26, 640")
    A(f"s_add_u32 s62, s62, {WR}")
    A("s_mov_b32 s66, -1")
    A("s_movk_i32 s67, 0xff")
    A(f"s_mov_b32 s14, {X_BYTES}")
    A("s_mov_b32 s15, 0x00020000")
    A(f"s_mov_b32 s18, {W_BYTES}")
    A("s_mov_b32 s19, 0x00020000")
    A("s_mov_b32 s23, 0x00020000")
    A("s_lshl_b32 s35, s26, 10")
    A("s_mov_b32 s65, s25")
    A("s_lshl_b32 s32, s26, 3")
    A("s_or_b32 s32, s32, s3")
    A("s_cmp_lt_u32 s32, 2")
    A(f"s_cselect_b32 s69, {SIG + DN + 1}, 99")
    A("s_waitcnt lgkmcnt(0)")
    hst(A, 1)
    A("s_mov_b32 s12, s36")
    A("s_and_b32 s13, s37, 0xffff")
    A("s_mov_b32 s16, s38")
    A("s_and_b32 s17, s39, 0xffff")
    def xpiece():
        A("s_lshl_b32 s32, s65, 7")
        A("s_mov_b32 m0, s64")
        A("s_add_u32 s32, s32, s63")
        A("s_add_u32 s64, s64, 8192")
        A("buffer_load_dwordx4 v181, s[12:15], s32 offen lds")
        A("buffer_load_dwordx4 v182, s[12:15], s32 offen offset:1024 lds")
        A("s_add_u32 s65, s65, 1")
        A("s_cmp_eq_u32 s65, 10")
        A("s_cselect_b32 s65, 0, s65")
    def wchunk():
        A("s_mul_i32 s33, s25, 81920")
        A("s_mov_b32 m0, s62")
        A("s_add_u32 s33, s33, s61")
        A("s_mov_b64 exec, s[66:67]")
        A("buffer_load_dwordx4 v172, s[16:19], s33 offen lds")
        A("buffer_load_dwordx4 v183, s[16:19], s33 offen offset:2560 lds")
        A("s_add_u32 m0, s62, 5120")
        A("s_add_u32 s33, s33, 40960")
        A("buffer_load_dwordx4 v172, s[16:19], s33 offen lds")
        A("buffer_load_dwordx4 v183, s[16:19], s33 offen offset:2560 lds")
        A("s_mov_b64 exec, -1")
        A("s_add_u32 s62, s62, 10240")
        A(f"s_cmp_ge_u32 s62, {WR + NS*10240}")
        A(f"s_cselect_b32 s32, {NS*10240}, 0")
        A("s_sub_u32 s62, s62, s32")
        A("s_add_u32 s25, s25, 1")
        A("s_cmp_eq_u32 s25, 10")
        A("s_cselect_b32 s25, 0, s25")
    L_prod, L_p1d, L_nv2 = A.label("prod"), A.label("p1d"), A.label("nv2")
    A("s_cmp_lt_u32 s3, 2")
    A(f"s_cbranch_scc1 {L_prod}")
    A("s_cmp_lg_u32 s3, 2")
    A(f"s_cbranch_scc1 {L_nv2}")
    A("s_bitcmp1_b32 s26, 0")
    A("s_cselect_b32 s20, s4, s44")
    A("s_cselect_b32 s21, s5, s45")
    A("s_and_b32 s21, s21, 0xffff")
    A("s_movk_i32 s22, 1280")
    A("s_lshr_b32 s32, s26, 1")
    A("s_mul_i32 s32, s32, 640")
    A("s_and_b32 s33, s26, 1")
    A("s_mul_i32 s33, s33, 1280")
    A("s_add_u32 s33, s33, s32")
    A(f"s_add_u32 m0, s33, {VR}")
    A("s_mov_b64 exec, s[66:67]")
    A(f"buffer_load_dwordx4 v5, s[20:23], s32 offen lds")
    A("s_mov_b64 exec, -1")
    A(f"{L_nv2}:")
    L_l, L_x = A.label("l"), A.label("x")
    A(f"{L_x}:")
    xpiece()
    A("s_cmp_lg_u32 s65, s25")
    A(f"s_cbranch_scc1 {L_x}")
    early_setup()
    A("s_mov_b32 s46, 0")
    A("s_mov_b32 s34, 1")
    A(f"{L_l}:")
    wchunk()
    A("s_add_u32 s46, s46, 1")
    A(f"s_cmp_le_u32 s46, {DN}")
    A(f"s_cbranch_scc1 {L_l}")
    chks = []
    def chk():
        L, Lr = A.label("chk"), A.label("chkr")
        chks.append((L, Lr))
        A("s_cmp_eq_u32 s34, 63")
        A(f"s_cbranch_scc1 {L}")
        A(f"{Lr}:")
    L_ns, L_lw = A.label("ns"), A.label("lw")
    A(f"{L_lw}:")
    chk()
    A(f"s_waitcnt vmcnt({4*DN})")
    chk()
    A("s_barrier")
    chk()
    L_sgn = A.label("sgn")
    A("s_cmp_eq_u32 s46, s69")
    A(f"s_cbranch_scc1 {L_sgn}")
    A(f"{L_ns}:")
    A("s_cmp_lt_u32 s46, 10")
    A(f"s_cbranch_scc1 {L_l}")
    for d in range(DN - 1, -1, -1):
        A(f"s_waitcnt vmcnt({4*d})" + (" lgkmcnt(0)" if d == 0 else ""))
        chk()
        A("s_barrier")
    A(f"s_branch {L_p1d}")
    A(f"{L_sgn}:")
    hst(A, 6)
    A("s_atomic_add s34, s[48:49], 0x0 glc")
    A(f"s_branch {L_ns}")
    for L, Lr in chks:
        A(f"{L}:")
        hst(A, 7)
        A("s_mov_b32 s34, 1")
        A("s_atomic_add s34, s[48:49], 0x80")
        A(f"s_branch {Lr}")
    A(f"{L_prod}:")
    A("s_cmp_eq_u32 s3, 0")
    A("s_cselect_b32 s20, s40, s42")
    A("s_cselect_b32 s21, s41, s43")
    A("s_and_b32 s21, s21, 0xffff")
    A("s_movk_i32 s22, 25600")
    A("s_mul_i32 s35, s26, 640")
    A(f"s_add_u32 s68, s35, {ER}")
    A("s_mov_b32 s46, 0")
    L_a, L_w = A.label("a"), A.label("w")
    def achunk():
        A("s_mul_i32 s34, s65, 2560")
        A("s_mov_b32 m0, s68")
        A("s_add_u32 s34, s34, s35")
        A("s_mov_b64 exec, s[66:67]")
        A("buffer_load_dwordx4 v5, s[20:23], s34 offen lds")
        A("buffer_load_dwordx4 v5, s[20:23], s34 offen offset:2560 lds")
        A("s_mov_b64 exec, -1")
        A("s_add_u32 s68, s68, 5120")
        xpiece(); xpiece()
        A("s_add_u32 s46, s46, 1")
    A(f"{L_a}:")
    achunk()
    A("s_cmp_le_u32 s46, 2")
    A(f"s_cbranch_scc1 {L_a}")
    early_setup()
    A("s_waitcnt vmcnt(12)")
    A("s_barrier")
    L_a2 = A.label("a2")
    A(f"{L_a2}:")
    achunk()
    A("s_waitcnt vmcnt(12)")
    A("s_barrier")
    A("s_cmp_lt_u32 s46, 5")
    A(f"s_cbranch_scc1 {L_a2}")
    A("s_mov_b32 s46, 0")
    wchunk()
    A("s_waitcnt vmcnt(10)")
    A("s_barrier")
    wchunk()
    A("s_waitcnt vmcnt(8)")
    A("s_barrier")
    hst(A, 2)
    wchunk()
    A("s_barrier")
    hst(A, 3)
    wchunk()
    A("s_mov_b32 s46, 4")
    A("s_mov_b32 s34, 1")
    A(f"s_branch {L_lw}")
    A(f"{L_p1d}:")
    A("s_branch L_HELP2")
    A(".MARK_H_END")
    A("L_HELP2:")
    A(f"s_load_dwordx2 s[38:39], s[0:1], {KA_WO}")
    A(f"s_load_dwordx4 s[40:43], s[0:1], {KA_WG}")
    A(f"s_load_dwordx2 s[44:45], s[0:1], {KA_WD}")
    common_setup2()
    A("v_lshlrev_b32 v174, 24, v1")
    if not X.direct: A("buffer_load_dword v29, v174, s[76:79], 0 offen offset:128 sc1")
    A("s_mov_b32 s4, s36")
    A("s_mov_b32 s5, s37")
    A("s_lshl_b32 s32, s26, 10")
    A("s_mov_b32 m0, s32")
    A("s_add_u32 s53, s32, s24")
    A("s_barrier")
    A("s_mul_i32 s64, s26, 5120")
    A("s_add_u32 s64, s64, s54")
    A("s_mul_i32 s32, s73, 51200")
    A("s_add_u32 s64, s64, s32")
    A(f"s_mov_b32 s69, {320*1280}")
    A("s_mul_i32 s65, s26, 640")
    A("s_waitcnt lgkmcnt(0)")
    srd(A, 60, 38, W_BYTES)
    L_g1, L_g2 = A.label("g1"), A.label("g2")
    if X.direct:
        A("s_cmp_lg_u32 s26, 0")
        A(f"s_cbranch_scc1 {L_g1}")
        await_cnt(A, 28, X.gsl)
    else:
        A("s_waitcnt vmcnt(0)")
        A("v_readfirstlane_b32 s32, v29")
        A("s_or_b32 s32, s32, s26")
        A("s_cmp_lg_u32 s32, 0")
        A(f"s_cbranch_scc1 {L_g1}")
        await_go(A, 0, 28, X.gsl)
    A(f"{L_g1}:")
    hst(A, 9)
    A("s_barrier")
    if not X.pdiag: stamp(A, 1)
    def dma(n):
        L = A.label("dma")
        A(f"s_add_u32 s34, m0, {n*4096}")
        A(f"{L}:")
        A("buffer_load_dwordx4 v5, s[8:11], s53 offen sc1 lds")
        A("s_add_u32 m0, m0, 4096")
        A("s_add_u32 s53, s53, 4096")
        A(f"s_cmp_ge_u32 s53, {64*SL}")
        A(f"s_cselect_b32 s32, {64*SL}, 0")
        A("s_sub_u32 s53, s53, s32")
        A("s_cmp_lt_u32 m0, s34")
        A(f"s_cbranch_scc1 {L}")
    def need(tiles):
        return min(40, -(-(-(-tiles*SL // 1024)) // 4))
    n0, n1 = need(U_TILES), need(U_TILES * 2)
    nb = X.nb0
    dma(nb)
    A(f"s_waitcnt vmcnt({nb - n0})")
    A("s_barrier")
    L_b2, L_b3, L_b4 = A.label("b2"), A.label("b3"), A.label("b4")
    A("s_lshl_b32 s32, s26, 3")
    A("s_or_b32 s32, s32, s3")
    A("s_mov_b32 s35, 1")
    A("s_cmp_lg_u32 s32, 2")
    A(f"s_cbranch_scc1 {L_b3}")
    A("s_atomic_add s35, s[48:49], 0x4 glc")
    A(f"{L_b3}:")
    A("s_mov_b64 exec, 1")
    A("ds_write_b64 v173, v[6:7]")
    A("ds_write_b64 v173, v[6:7] offset:8")
    A("ds_write_b32 v173, v6 offset:16")
    A("s_mov_b64 exec, -1")
    dma(40 - nb - 1)
    A("s_cmp_eq_u32 s26, 3")
    A("s_cselect_b32 s32, 0x3fffffff, -1")
    A("s_cselect_b32 s33, 0, -1")
    A("s_mov_b64 exec, s[32:33]")
    A("buffer_load_dwordx4 v5, s[8:11], s53 offen sc1 lds")
    A("s_mov_b64 exec, -1")
    A(f"s_waitcnt vmcnt({40 - n1}) lgkmcnt(0)")
    A("s_cmp_lg_u32 s35, 31")
    A(f"s_cbranch_scc1 {L_b4}")
    A("s_atomic_add s35, s[48:49], 0x84")
    A(f"{L_b4}:")
    A("s_barrier")
    A(f"buffer_store_dwordx4 v[176:179], v{POA}, s[8:11], s74 offen sc1")
    A(f"buffer_store_dwordx2 v[176:177], v{POB}, s[8:11], s75 offen sc1")
    A(f"buffer_store_dwordx4 v[176:179], v{POA}, s[8:11], s58 offen sc1")
    A(f"buffer_store_dwordx2 v[176:177], v{POB}, s[8:11], s59 offen sc1")
    if not X.pdiag: stamp(A, 2)
    def lds_wait(off, thr, slp=2):
        Lp = A.label("lw")
        A(f"{Lp}:")
        A(f"ds_read_b32 v171, v173 offset:{off}")
        A("s_waitcnt lgkmcnt(0)")
        A("v_readfirstlane_b32 s32, v171")
        A(f"s_sleep {slp}")
        A(f"s_cmp_lt_u32 s32, {thr}")
        A(f"s_cbranch_scc1 {Lp}")
    def wo_part(thr):
        Lw = A.label("wl")
        Lp = A.label("pw")
        A(f"{Lp}:")
        A("ds_read_b32 v171, v173 offset:4")
        A("s_waitcnt lgkmcnt(0)")
        A("v_readfirstlane_b32 s32, v171")
        A(f"s_sleep {X.slp}")
        A(f"s_add_u32 s32, s32, {0x7e7e7e7e if thr == 256 else 0x7d7d7d7d:#x}")
        A("s_andn2_b32 s32, 0x80808080, s32")
        A(f"s_cbranch_scc1 {Lp}")
        if X.nowo: return
        A(f"s_add_u32 s34, s65, 51200")
        A("s_mov_b64 exec, s[66:67]")
        A(f"{Lw}:")
        A("s_mov_b32 m0, s65")
        A("s_add_u32 s32, s64, s69")
        A("buffer_load_dwordx4 v172, s[60:63], s32 offen lds")
        A("s_add_u32 s65, s65, 2560")
        A("s_add_u32 s64, s64, 20480")
        A("s_cmp_ge_u32 s64, 409600")
        A("s_cselect_b32 s32, 409600, 0")
        A("s_sub_u32 s64, s64, s32")
        A("s_cmp_lt_u32 s65, s34")
        A(f"s_cbranch_scc1 {Lw}")
        A("s_mov_b64 exec, -1")
    A("buffer_load_dword v28, v174, s[76:79], 0 offen offset:132 sc1")
    A("s_waitcnt vmcnt(0)")
    A("s_mov_b64 exec, 1")
    A("ds_add_u32 v173, v175 offset:16")
    A("s_mov_b64 exec, -1")
    A("v_readfirstlane_b32 s32, v28")
    A("s_cmp_lg_u32 s32, 0")
    A(f"s_cbranch_scc1 {L_b2}")
    await_go(A, 4, 28, 8)
    A(f"{L_b2}:")
    A(f"s_mov_b32 s32, {WS_RKEY}")
    A("buffer_load_dwordx2 v[6:7], v10, s[8:11], s32 offen sc1")
    A("s_lshl_b32 s35, s30, 7")
    A(f"s_add_u32 s35, s35, {WS_GC}")
    A("buffer_atomic_add v175, v174, s[8:11], s35 offen sc1")
    def getidx():
        A("s_setprio 2")
        wave_max_u32(A, 6, 7, 56)
        A("s_setprio 0")
        A("s_and_b32 s56, s56, 2047")
        A("s_sub_u32 s25, 2047, s56")
    L_w1, L_w2 = A.label("w1"), A.label("w2")
    A("s_mul_i32 s47, s30, 6")
    A("s_add_u32 s47, s47, s3")
    A("s_sub_u32 s47, s47, 2")
    A(f"s_cmp_lt_u32 s3, {99 if X.noffn else 2}")
    A(f"s_cbranch_scc1 {L_w1}")
    A("s_cmp_ge_u32 s26, 2")
    A("s_cselect_b32 s16, s42, s40")
    A("s_cselect_b32 s17, s43, s41")
    A("s_and_b32 s17, s17, 0xffff")
    A(f"s_mov_b32 s18, {F_BYTES}")
    srd(A, 20, 44, F_BYTES)
    A("s_and_b32 s46, s26, 1")
    W_, WD_, XL, AC = 32, 56, 72, 12
    A(f"s_mul_i32 s32, s46, {320*3072}")
    A("s_lshl_b32 s33, s47, 4")
    A("s_add_u32 s32, s32, s33")
    for i in range(5):
        A(f"buffer_load_dwordx4 {vr(W_+4*i,4)}, v11, s[16:19], s32 offen")
        if i < 4: A(f"s_add_u32 s32, s32, {64*3072}")
    A("s_waitcnt vmcnt(5)")
    getidx()
    A("s_mul_i32 s32, s25, 1280")
    A("s_mul_i32 s33, s46, 640")
    A("s_add_u32 s32, s32, s33")
    for i in range(5):
        A(f"buffer_load_ushort v{XL+i}, v9, s[12:15], s32 offen offset:{i*128}")
    A("s_mul_i32 s32, s47, 10240")
    A("s_mul_i32 s33, s26, 320")
    A("s_add_u32 s32, s32, s33")
    for f in range(8):
        if f % 3 == 0 and f: A(f"s_add_u32 s32, s32, {3*1280}")
        A(f"buffer_load_dwordx2 {vr(WD_+2*f,2)}, v4, s[20:23], s32 offen offset:{(f%3)*1280}")
    A("s_waitcnt vmcnt(8)")
    if not X.pdiag: stamp(A, 3)
    A("s_setprio 2")
    for i in range(5):
        A(f"v_lshlrev_b32 v{XL+5}, 16, v{XL+i}")
        for dw in range(4):
            A(f"v_dot2c_f32_bf16 v{AC+2*dw}, v{W_+4*i+dw}, v{XL+i}")
            A(f"v_dot2c_f32_bf16 v{AC+2*dw+1}, v{W_+4*i+dw}, v{XL+5}")
    A("s_nop 3")
    for j in range(4):
        A(f"v_permlane32_swap_b32 v{AC+j}, v{AC+j+4}")
    A("s_nop 1")
    for j in range(4):
        A(f"v_add_f32 v{AC+j}, v{AC+j}, v{AC+j+4}")
    A("s_nop 1")
    for j in range(2):
        A(f"v_permlane16_swap_b32 v{AC+j}, v{AC+j+2}")
    A("s_nop 1")
    for j in range(2):
        A(f"v_add_f32 v{AC+j}, v{AC+j}, v{AC+j+2}")
    for sh in (8, 4, 2, 1):
        A("s_nop 1")
        for j in range(2):
            A(f"v_add_f32_dpp v{AC+j}, v{AC+j}, v{AC+j} row_ror:{sh} row_mask:0xf bank_mask:0xf")
    A("s_mov_b32 s32, 0x00010001")
    A("s_mov_b32 s33, 0x00010001")
    A("s_mov_b64 exec, s[32:33]")
    A(f"ds_write_b64 v25, {vr(AC,2)}")
    A("s_mov_b64 exec, -1")
    A("s_setprio 0")
    A("s_waitcnt lgkmcnt(0)")
    A("s_mov_b64 exec, 1")
    A("ds_add_u32 v173, v175")
    A("s_mov_b64 exec, -1")
    wo_part(256)
    lds_wait(0, 4)
    A("s_setprio 2")
    A("ds_read2_b32 v[12:13], v8 offset0:0 offset1:8")
    A("ds_read2_b32 v[14:15], v8 offset0:16 offset1:24")
    A("s_waitcnt lgkmcnt(0)")
    A("v_add_f32 v12, v12, v13")
    A("v_add_f32 v14, v14, v15")
    bf16r(A, 12, 12)
    sigmoid(A, 16, 12, 17)
    A("v_mul_f32 v12, v12, v16")
    bf16r(A, 12, 12)
    bf16r(A, 14, 14)
    A("v_mul_f32 v12, v12, v14")
    bf16r(A, 12, 12)
    Y = 20
    A("s_nop 0")
    def hs(f):
        hi = 13+2*f if f < 4 else 29+2*f
        return hi - 1, hi
    for f in range(8):
        A(f"v_readlane_b32 s{hs(f)[1]}, v12, {f}")
    for f in range(8):
        lo, hi = hs(f)
        A(f"s_lshr_b32 s{lo}, s{hi}, 16")
    A("s_waitcnt vmcnt(20)")
    for f in range(8):
        lo, hi = hs(f)
        for j in range(2):
            A(f"v_dot2c_f32_bf16 v{Y+2*j}, s{lo}, v{WD_+2*f+j}")
            A(f"v_dot2c_f32_bf16 v{Y+2*j+1}, s{hi}, v{WD_+2*f+j}")
    A("s_and_b32 s47, s47, 15")
    A("s_mul_i32 s32, s47, 2560")
    A("s_mul_i32 s33, s26, 640")
    A("s_add_u32 s32, s32, s33")
    A(f"s_add_u32 s32, s32, {WS_Y}")
    A("s_setprio 0")
    A("s_nop 2")
    for j in range(4):
        A(f"buffer_atomic_add_f32 v{Y+j}, v26, s[8:11], s32 offen offset:{j*4}")
    A("s_lshl_b32 s32, s47, 7")
    A(f"s_add_u32 s32, s32, {WS_FC}")
    A("s_waitcnt vmcnt(0)")
    A("buffer_atomic_add v175, v174, s[8:11], s32 offen sc1")
    A(f"s_branch {L_w2}")
    A(f"{L_w1}:")
    A("s_waitcnt vmcnt(0)")
    getidx()
    wo_part(256)
    A("s_waitcnt vmcnt(0)")
    A(f"{L_w2}:")
    if not X.pdiag: stamp(A, 4)
    A("s_mov_b64 exec, 1")
    A("ds_add_u32 v173, v175 offset:8")
    A("s_mov_b64 exec, -1")
    oproj_saddr()
    lds_wait(8, 4)
    A(f"s_branch {L_op}")
    A(f"{L_h2}:")
    if not X.pdiag: stamp(A, 5)
    A("v_mov_b32 v171, s25")
    A("s_mov_b64 exec, 1")
    A("ds_write_b32 v173, v171 offset:12")
    A("s_mov_b64 exec, -1")
    if X.pfT:
        A("s_cmp_lg_u32 s26, 2")
        A("s_cbranch_scc1 PFRET_T")
        A("s_mov_b64 exec, 0")
        A("s_branch PF_T_0")
        A("PFRET_T:")
        A("s_mov_b64 exec, -1")
    L_ny, L_sp2, L_sg, L_ng, L_gp = A.label("ny"), A.label("sp2"), A.label("sg"), A.label("ng"), A.label("gp")
    A("s_mov_b32 s69, 0")
    wo_part(512)
    A("s_waitcnt vmcnt(20)")
    if X.gprio: A("s_setprio 2")
    gate_math()
    A("s_setprio 0")
    A("s_cmp_lg_u32 s26, 1")
    A(f"s_cbranch_scc1 {L_ng}")
    A(f"{L_gp}:")
    A("buffer_load_dword v171, v174, s[8:11], s35 offen sc1")
    A("s_waitcnt vmcnt(0)")
    A("v_readfirstlane_b32 s32, v171")
    A("s_sub_u32 s46, s46, 1")
    A(f"s_cbranch_scc1 {L_ng}")
    A("s_cmp_lt_u32 s32, 32")
    A(f"s_cbranch_scc1 {L_gp}")
    A(f"{L_ng}:")
    A("s_lshr_b32 s32, s25, 6")
    A("s_lshl_b32 s33, s26, 8")
    A("s_or_b32 s33, s33, s30")
    A("s_cmp_lg_u32 s32, s33")
    A(f"s_cbranch_scc1 {L_ny}")
    A("v_lshlrev_b32 v6, 7, v2")
    A(f"s_mov_b32 s33, {WS_FC}")
    A(f"{L_sp2}:")
    A("buffer_load_dword v171, v6, s[8:11], s33 offen sc1")
    A("s_waitcnt vmcnt(0)")
    A(f"v_cmp_ne_u32 vcc, {0 if X.noffn else 48}, v171")
    A("s_sub_u32 s46, s46, 1")
    A(f"s_cbranch_scc1 {L_sg}")
    A("s_sleep 8")
    A(f"s_cbranch_vccnz {L_sp2}")
    A(f"{L_sg}:")
    A("s_setprio 2")
    Yv = OF
    A("v_mul_u32_u24 v6, 2560, v2")
    A("v_lshl_add_u32 v6, v3, 4, v6")
    A("s_lshl_b32 s32, s54, 1")
    A(f"s_add_u32 s32, s32, {WS_Y}")
    for mt in range(5):
        A(f"buffer_load_dwordx4 {vr(Yv+4*mt,4)}, v6, s[8:11], s32 offen offset:{mt*64} sc1")
    A("s_lshl_b32 s32, s25, 2")
    A(f"s_add_u32 s32, s32, {WS_R}")
    A("v_mov_b32 v6, 0")
    A("buffer_load_dword v171, v6, s[8:11], s32 offen sc1")
    A("s_waitcnt vmcnt(0)")
    for sh in (8, 4, 2, 1):
        A("s_nop 1")
        for j in range(20):
            A(f"v_add_f32_dpp v{Yv+j}, v{Yv+j}, v{Yv+j} row_ror:{sh} row_mask:0xf bank_mask:0xf")
    bf16r(A, 171, 171)
    sigmoid(A, 171, 171, 6)
    bf16r(A, 171, 171)
    for j in range(20):
        bf16r(A, Yv+j, Yv+j)
        A(f"v_mul_f32 v{Yv+j}, v{Yv+j}, v171")
        bf16r(A, Yv+j, Yv+j)
    A("v_lshlrev_b32 v6, 4, v3")
    A(f"v_add_u32 v6, {YB}, v6")
    A("s_mov_b32 s32, 0x00010001")
    A("s_mov_b32 s33, 0x00010001")
    A("s_mov_b64 exec, s[32:33]")
    for mt in range(5):
        A(f"ds_write_b128 v6, {vr(Yv+4*mt,4)} offset:{mt*64}")
    A("s_mov_b64 exec, -1")
    A("s_setprio 0")
    A(f"{L_ny}:")
    A(f"s_mov_b32 s46, {SPIN}")
    A("s_waitcnt vmcnt(0) lgkmcnt(0)")
    if not X.pdiag: stamp(A, 6)
    A("s_barrier")
    if not X.pdiag: stamp(A, 7)
    if X.tprio: A("s_setprio 2")
    A(f"s_branch {L_h3}")

DOC = """; ---------------------------------------------------------------------------------------------
; ---------------------------------------------------------------------------------------------
"""
def build(path):
    A = Asm()
    fused(A)
    A("L_CODE_END:")
    L = A.lines
    hb, he = L.index(".MARK_H_BEGIN"), L.index(".MARK_H_END")
    if X.first:
        e = L.index(".MARK_ENTRY_END")
        L = L[:e] + L[hb+1:he] + L[e+1:hb] + L[he+1:]
    else:
        L = [l for l in L if not l.startswith(".MARK")]
    out = []
    for i, l in enumerate(L):
        t = l.strip()
        if t.startswith("v_cndmask") and t.endswith("vcc"):
            p1 = out[-1].strip(); p2 = out[-2].strip()
            if p1.startswith("v_cmp") and " vcc," in p1: out.append("    s_nop 1")
            elif p2.startswith("v_cmp") and " vcc," in p2 and not p1.startswith("s_nop"): out.append("    s_nop 0")
        out.append(l)
    A.lines = out
    hdr = open("gated_mix__grouped_kv_mqa__moe_arch_mod__prompt.s.ref").read().split("; @launch")[0]
    out = hdr + "; @launch grid=(256,1,1) block=(512,1,1) lds=163840\n" + '.amdgcn_target "amdgcn-amd-amdhsa--gfx950"\n.text\n' + DOC + A.text() + '.section .rodata,"a"\n'
    out += kernel_desc(NAME, 256, 256)
    open(path, "w").write(out)

if __name__ == "__main__":
    build("t54.s")
    Cfg.on = True
    build("t54s.s")
    Cfg.rt = True
    build("t54r.s")
    X.tdiag = True
    build("t54t.s")
```
